```python
import torch

def _softmax(x, axis=-1):
    return torch.softmax(x, dim=axis)
def _gelu(x):
    return torch.nn.functional.gelu(x, approximate="tanh")
def _silu(x):
    return torch.nn.functional.silu(x)
def _sigmoid(x):
    return torch.sigmoid(x)
def _layernorm(x, axis=-1, eps=1e-5):
    m = x.mean(dim=axis, keepdim=True)
    v = x.var(dim=axis, keepdim=True, unbiased=False)
    return (x - m) / torch.sqrt(v + eps)
def _scatter_add(tgt, idx, src, axis=0):
    return tgt.clone().index_add_(axis, idx, src)
def _segment_sum(src, seg, n):
    out = torch.zeros((n,) + src.shape[1:], dtype=src.dtype)
    return out.index_add_(0, seg, src)
def _pad(x, pw):
    flat = tuple(v for pair in reversed(pw) for v in pair)
    return torch.nn.functional.pad(x, flat)

kernel_name = 'recurrent_scan__sliding_block_cached__glu_gated_reglu__decode'

def setup_inputs():

    _w = (lambda a: (lambda t: t.to(torch.bfloat16) if t.is_floating_point() else t)(torch.as_tensor(a)))
    def _A_setup():
        B, Sq, D = 1, 1, 640
        Hq, Hkv, Sk, Dh = 32, 32, 32768, 192
        assert Hq % Hkv == 0, (Hq, Hkv)
        return {
            "x": _w((lambda *s: torch.randn(*s, dtype=torch.bfloat16) * 0.2)(B, Sq, D)),
            "k_cache": _w((lambda *s: torch.randn(*s, dtype=torch.bfloat16) * 1.6)(B, Hkv, Sk, Dh)),
            "v_cache": _w((lambda *s: torch.randn(*s, dtype=torch.bfloat16) * 1.6)(B, Hkv, Sk, Dh)),
            "wq": _w((lambda *s: torch.randn(*s, dtype=torch.bfloat16) * 1.6)(D, Hq * Dh) * (D ** -0.5)),
            "wo": _w((lambda *s: torch.randn(*s, dtype=torch.bfloat16) * 1.6)(Hq * Dh, D) * ((Hq * Dh) ** -0.5)),
        }
    _A_in = _A_setup()

    def _B_setup():
        B, S, D, F = 1, 1, 640, 1536
        return {
            "x": _w((lambda *s: torch.randn(*s, dtype=torch.bfloat16) * 0.2)(B, S, D)),
            "W_gate": _w((lambda *s: torch.randn(*s, dtype=torch.bfloat16) * 0.8)(D, F) * (2.0 / D) ** 0.5),
            "W_up": _w((lambda *s: torch.randn(*s, dtype=torch.bfloat16) * 0.8)(D, F) * (2.0 / D) ** 0.5),
            "W_down": _w((lambda *s: torch.randn(*s, dtype=torch.bfloat16) * 0.8)(F, D) * (1.0 / F) ** 0.5),
        }
    _B_in = _B_setup()

    return {
        "A_x": _A_in["x"],
        "A_k_cache": _A_in["k_cache"],
        "A_v_cache": _A_in["v_cache"],
        "A_wq": _A_in["wq"],
        "A_wo": _A_in["wo"],
        "B_x": _B_in["x"],
        "B_W_gate": _B_in["W_gate"],
        "B_W_up": _B_in["W_up"],
        "B_W_down": _B_in["W_down"],
    }

def reference(A_x, A_k_cache, A_v_cache, A_wq, A_wo, B_x, B_W_gate, B_W_up, B_W_down):
    def _A_ref(x, k_cache, v_cache, wq, wo):
        B, Sq, D = x.shape
        Hq, Dh = 32, 192
        Hkv, Sk = k_cache.shape[1], k_cache.shape[2]
        W = min(4096, max(256, Sk // 4))
        rep = Hq // Hkv
        q = (lambda x, *d: x.permute(*d))((x @ wq).reshape(B, Sq, Hq, Dh), 0, 2, 1, 3)
        k = (lambda x, n, axis: torch.repeat_interleave(x, n, dim=axis))(k_cache[:, :, Sk - W:, :], rep, axis=1)
        v = (lambda x, n, axis: torch.repeat_interleave(x, n, dim=axis))(v_cache[:, :, Sk - W:, :], rep, axis=1)
        scores = torch.einsum("bhqd,bhkd->bhqk", q, k) * (Dh ** -0.5)
        p = _softmax(scores, axis=-1)
        o = torch.einsum("bhqk,bhkd->bhqd", p, v)
        return (lambda x, *d: x.permute(*d))(o, 0, 2, 1, 3).reshape(B, Sq, Hq * Dh) @ wo

    def _B_ref(x, W_gate, W_up, W_down):
        gate = torch.einsum("bsd,df->bsf", x, W_gate)
        up = torch.einsum("bsd,df->bsf", x, W_up)
        gate = gate * (lambda x, dt: x.to(dt))(gate > 0, gate.dtype)
        h = gate * up
        return torch.einsum("bsf,fd->bsd", h, W_down)

    x = A_x
    xn = _layernorm(x, axis=-1)
    s = _A_ref(xn, A_k_cache, A_v_cache, A_wq, A_wo)
    g = _silu(_B_ref(xn, B_W_gate, B_W_up, B_W_down))
    return x + s * g
```

```python
import re

TRANS = ("v_exp_f32", "v_log_f32", "v_rcp_f32", "v_rsq_f32", "v_sqrt_f32", "v_sin_f32", "v_cos_f32")


def regs_of(op):
    op = op.strip()
    if op.startswith("-"):
        op = op[1:]
    m = re.fullmatch(r"abs\((.*)\)", op)
    if m:
        op = m.group(1)
    m = re.fullmatch(r"\|(.*)\|", op)
    if m:
        op = m.group(1)
    m = re.fullmatch(r"([vsa])\[(\d+):(\d+)\]", op)
    if m:
        return [(m.group(1), i) for i in range(int(m.group(2)), int(m.group(3)) + 1)]
    m = re.fullmatch(r"([vsa])(\d+)", op)
    if m:
        return [(m.group(1), int(m.group(2)))]
    if op in ("vcc", "vcc_lo", "vcc_hi"):
        return [("vcc", 0)]
    if op in ("exec", "exec_lo", "exec_hi"):
        return [("exec", 0)]
    if op == "m0":
        return [("m0", 0)]
    return []


def parse(line):
    s = line.split(";")[0].strip()
    if not s or s.endswith(":") or s.startswith("."):
        return None
    parts = s.split(None, 1)
    mn = parts[0]
    rest = parts[1] if len(parts) > 1 else ""
    ops = []
    cur = ""
    depth = 0
    for ch in rest:
        if ch in "[(":
            depth += 1
        if ch in "])":
            depth -= 1
        if ch == "," and depth == 0:
            ops.append(cur.strip())
            cur = ""
        else:
            cur += ch
    if cur.strip():
        ops.append(cur.strip())
    mods = ""
    if ops:
        t = ops[-1].split(None, 1)
        ops[-1] = t[0]
        if len(t) > 1:
            mods = t[1]
    return mn, ops, mods


class Info:
    pass


def classify(mn, ops, mods):
    I = Info()
    I.mn = mn
    base = re.sub(r"_(e32|e64|dpp|sdwa)$", "", mn)
    I.base = base
    I.valu = mn.startswith("v_") and not mn.startswith("v_mfma")
    I.mfma = mn.startswith("v_mfma")
    I.vmem = mn.startswith("buffer_") or mn.startswith("global_")
    I.ds = mn.startswith("ds_")
    I.dpp = I.valu and any(k in mods for k in ("row_", "quad_perm", "wave_", "bank_mask"))
    I.perm = base.startswith("v_permlane")
    I.dot = base.startswith("v_dot")
    I.trans = base in TRANS
    I.rdlane = base in ("v_readfirstlane_b32", "v_readlane_b32")
    I.dst = []
    I.src = []
    R = [regs_of(o) for o in ops]
    if I.valu or I.mfma:
        if base.startswith("v_cmp"):
            I.dst = R[0]
            I.src = sum(R[1:], [])
        elif I.perm and "swap" in base:
            I.dst = R[0] + R[1]
            I.src = R[0] + R[1]
        elif base in ("v_add_co_u32", "v_sub_co_u32"):
            I.dst = R[0] + R[1]
            I.src = sum(R[2:], [])
        elif base in ("v_addc_co_u32", "v_subb_co_u32"):
            I.dst = R[0] + R[1]
            I.src = sum(R[2:], [])
        else:
            I.dst = R[0]
            I.src = sum(R[1:], [])
            if base.startswith("v_dot2c") or base.startswith("v_fmac") or I.dpp:
                I.src = I.src + R[0]
            if base == "v_cndmask_b32" and len(ops) == 3:
                I.src = I.src + [("vcc", 0)]
    elif I.vmem:
        if "load" in mn and "lds" not in mods.split() :
            I.dst = R[0]
            I.src = sum(R[1:], [])
        elif "atomic" in mn:
            I.src = sum(R, [])
            if "sc0" in mods.split():
                I.dst = R[0]
        else:
            I.src = sum(R, [])
        if "lds" in mods.split():
            I.src = I.src + [("m0", 0)]
        I.wide_store = ("store" in mn) and (mn.endswith("x3") or mn.endswith("x4"))
    elif I.ds:
        if mn.startswith("ds_read") or mn.startswith("ds_bpermute") or mn.startswith("ds_swizzle") or "_rtn" in mn:
            I.dst = R[0]
            I.src = sum(R[1:], [])
        else:
            I.src = sum(R, [])
    elif mn.startswith("s_"):
        if mn.startswith("s_cmp") or mn.startswith("s_cbranch") or mn in ("s_waitcnt", "s_nop", "s_barrier", "s_endpgm", "s_branch", "s_sleep", "s_setprio"):
            I.src = sum(R, [])
        else:
            I.dst = R[0] if R else []
            I.src = sum(R[1:], [])
            if "saveexec" in mn:
                I.dst = I.dst + [("exec", 0)]
    if not hasattr(I, "wide_store"):
        I.wide_store = False
    return I


def nopcount(mn, ops):
    if mn == "s_nop":
        return int(ops[0], 0) + 1
    return 1


def fix(text, verbose=False):
    out = []
    hist = []
    pos = 0
    inserted = 0
    for line in text.split("\n"):
        p = parse(line)
        if p is None:
            out.append(line)
            continue
        mn, ops, mods = p
        I = classify(mn, ops, mods)
        need = 0
        vs = set(r for r in I.src if r[0] in ("v", "a"))
        vd = set(r for r in I.dst if r[0] in ("v", "a"))
        ss = set(r for r in I.src if r[0] in ("s", "vcc"))
        for (J, at) in hist:
            dist = pos - at - 1
            if dist >= 12:
                continue
            jd = set(r for r in J.dst if r[0] in ("v", "a"))
            jsd = set(r for r in J.dst if r[0] in ("s", "vcc"))
            req = 0
            if J.valu and jd & vs:
                if I.dpp:
                    req = max(req, 2)
                if I.perm:
                    req = max(req, 2)
                if I.rdlane:
                    req = max(req, 1)
                if I.mfma:
                    req = max(req, 2)
                if J.trans and I.valu and not I.trans:
                    req = max(req, 1)
                if J.trans and (I.vmem or I.ds):
                    req = max(req, 1)
            if J.dot and (jd & (vs | vd)):
                same = I.base == J.base
                if not same:
                    req = max(req, 3)
                else:
                    ab = set()
                    R = [regs_of(o) for o in ops]
                    if I.base.startswith("v_dot2c"):
                        ab = set(R[1] + R[2])
                    else:
                        ab = set(R[1] + R[2])
                    if jd & ab:
                        req = max(req, 3)
            if J.valu and jsd:
                if I.valu and (jsd & ss):
                    req = max(req, 2)
                if I.vmem and (jsd & ss):
                    req = max(req, 5)
            if J.mfma and jd & (vs | vd):
                if I.mfma:
                    R = [regs_of(o) for o in ops]
                    ab = set(R[1] + R[2])
                    if jd & ab:
                        req = max(req, 8)
                    elif set(R[3]) == jd:
                        req = max(req, 0)
                    else:
                        req = max(req, 6)
                else:
                    req = max(req, 8)
            if J.mfma and I.valu:
                pj = J.opsC
                if pj & vd:
                    req = max(req, 3)
            if J.wide_store and I.valu:
                if set(J.src) & vd:
                    req = max(req, 2)
            if J.mn.startswith("s_") and ("m0", 0) in J.dst and I.vmem and ("m0", 0) in I.src:
                req = max(req, 1)
            if req > dist:
                need = max(need, req - dist)
        if need > 0:
            out.append(f"  s_nop {need - 1}")
            pos += need
            inserted += 1
        if I.mfma:
            I.opsC = set(regs_of(ops[3]))
        out.append(line)
        hist.append((I, pos))
        pos += nopcount(mn, ops)
        if len(hist) > 40:
            hist = hist[-40:]
    if verbose:
        print(f"hazard pass: inserted {inserted} nops")
    return "\n".join(out)
```

```python
import sys, struct
sys.path.insert(0, "dev")
from hz import fix

KNAME = "recurrent_scan__sliding_block_cached__glu_gated_reglu__decode_kernel"


def f2h(x):
    return "0x%08x" % struct.unpack("<I", struct.pack("<f", x))[0]


LOG2E = f2h(1.4426950408889634)
SCALE = f2h(192 ** -0.5)
INV640 = f2h(1.0 / 640)
EPS = f2h(1e-5)

BOX = 2048
O_H1 = 0
O_O2 = 1280
O_LSE = 1664
SD_BASE = 524288
STAMP_BASE = 1 << 20
WS_SIZE = 2 << 20

L_Q = 0
L_MODE = 384
L_CNT = 388
L_FLAGF = 392
L_M = 400
L_L = 432
L_F = 464
L_O = 512
L_XN = 1280
L_HB = 2560
L_WO = 4096
LDS_BYTES = L_WO + 5 * 6144

SPIN_MAX = 30000


class G:
    def __init__(self, D=5, E=5, SB=19, stamps=False, force_slow=False, wo_slot=32, b0pre=True, prio=3):
        self.prio = prio
        self.b0pre = b0pre
        self.D, self.E, self.SB = D, E, SB
        self.stamps = stamps
        self.force_slow = force_slow
        self.wo_slot = wo_slot
        self.lines = []
        self.uid = 0
        self.vm = []

    def __call__(self, s=""):
        for l in s.split("\n"):
            self.lines.append(l)

    def lab(self, base):
        self.uid += 1
        return f"L_{base}_{self.uid}"

    def vm_reset(self):
        self.vm = []

    def vm_issue(self, tag):
        self.vm.append(tag)

    def vm_wait(self, tag):
        idx = [i for i, t in enumerate(self.vm) if t == tag]
        if not idx:
            return
        last = idx[-1]
        n = len(self.vm) - 1 - last
        assert n <= 63
        self(f"  s_waitcnt vmcnt({n})")
        self.vm = self.vm[last + 1:]

    def stamp(self, i):
        if self.stamps:
            self(f"  s_memrealtime s[{70 + 2 * i}:{71 + 2 * i}]")

    def stamps_out(self):
        if not self.stamps:
            return
        self("  s_waitcnt lgkmcnt(0) vmcnt(0)")
        self("  s_mul_i32 s6, s2, 12")
        self("  s_add_u32 s6, s6, s3")
        self("  s_lshl_b32 s6, s6, 5")
        self(f"  s_add_u32 s6, s6, {STAMP_BASE}")
        self("  v_mov_b32 v2, s6")
        for i in range(8):
            self(f"  v_mov_b32 v{4 + i}, s{70 + 2 * i}")
        self("  s_mov_b64 exec, 1")
        self("  buffer_store_dwordx4 v[4:7], v2, s[44:47], 0 offen")
        self("  buffer_store_dwordx4 v[8:11], v2, s[44:47], 0 offen offset:16")
        self("  s_mov_b64 exec, -1")

    def srd(self, s, base_lo, off, nrec):
        if off is None:
            self(f"  s_mov_b32 s{s}, s{base_lo}")
            self(f"  s_mov_b32 s{s + 1}, s{base_lo + 1}")
        else:
            self(f"  s_add_u32 s{s}, s{base_lo}, {off}")
            self(f"  s_addc_u32 s{s + 1}, s{base_lo + 1}, 0")
        self(f"  s_mov_b32 s{s + 2}, {nrec}")
        self(f"  s_mov_b32 s{s + 3}, 0x20000")

    def allreduce(self, op, v, t):
        for r in (1, 2, 4, 8):
            self(f"  {op}_dpp v{v}, v{v}, v{v} row_ror:{r} row_mask:0xf bank_mask:0xf")
        self(f"  v_mov_b32 v{t}, v{v}")
        self(f"  v_permlane16_swap_b32 v{v}, v{t}")
        self(f"  {op} v{v}, v{v}, v{t}")
        self(f"  v_mov_b32 v{t}, v{v}")
        self(f"  v_permlane32_swap_b32 v{v}, v{t}")
        self(f"  {op} v{v}, v{v}, v{t}")

    def cross_rows(self, op, v, t):
        self(f"  v_mov_b32 v{t}, v{v}")
        self(f"  v_permlane16_swap_b32 v{v}, v{t}")
        self(f"  {op} v{v}, v{v}, v{t}")
        self(f"  v_mov_b32 v{t}, v{v}")
        self(f"  v_permlane32_swap_b32 v{v}, v{t}")
        self(f"  {op} v{v}, v{v}, v{t}")

    def treduce8(self, A, T):
        for a in range(4):
            self(f"  v_permlane32_swap_b32 v{A[a]}, v{A[a + 4]}")
        for a in range(4):
            self(f"  v_add_f32 v{A[a]}, v{A[a]}, v{A[a + 4]}")
        for a in range(2):
            self(f"  v_permlane16_swap_b32 v{A[a]}, v{A[a + 2]}")
        for a in range(2):
            self(f"  v_add_f32 v{A[a]}, v{A[a]}, v{A[a + 2]}")
        self(f"  v_add_f32_dpp v{T}, v{A[0]}, v{A[0]} row_ror:8 row_mask:0xf bank_mask:0x3")
        self(f"  v_add_f32_dpp v{T}, v{A[1]}, v{A[1]} row_ror:8 row_mask:0xf bank_mask:0xc")

    def treduce4rows(self, A, out_pairs=None):
        n = len(A) // 4
        for k in range(n):
            a = A[4 * k:4 * k + 4]
            self(f"  v_permlane32_swap_b32 v{a[0]}, v{a[2]}")
            self(f"  v_permlane32_swap_b32 v{a[1]}, v{a[3]}")
        for k in range(n):
            a = A[4 * k:4 * k + 4]
            self(f"  v_add_f32 v{a[0]}, v{a[0]}, v{a[2]}")
            self(f"  v_add_f32 v{a[1]}, v{a[1]}, v{a[3]}")
        for k in range(n):
            a = A[4 * k:4 * k + 4]
            self(f"  v_permlane16_swap_b32 v{a[0]}, v{a[1]}")
        for k in range(n):
            a = A[4 * k:4 * k + 4]
            self(f"  v_add_f32 v{a[0]}, v{a[0]}, v{a[1]}")
        return [A[4 * k] for k in range(n)]

    def sentinel_check(self, regs, t):
        regs = list(regs)
        if len(regs) == 1:
            self(f"  v_cmp_eq_u32 vcc, -1, v{regs[0]}")
            return
        if len(regs) == 2:
            self(f"  v_max_u32 v{t}, v{regs[0]}, v{regs[1]}")
            regs = []
        else:
            self(f"  v_max3_u32 v{t}, v{regs[0]}, v{regs[1]}, v{regs[2]}")
            regs = regs[3:]
        while regs:
            if len(regs) >= 2:
                self(f"  v_max3_u32 v{t}, v{t}, v{regs[0]}, v{regs[1]}")
                regs = regs[2:]
            else:
                self(f"  v_max_u32 v{t}, v{t}, v{regs[0]}")
                regs = regs[1:]
        self(f"  v_cmp_eq_u32 vcc, -1, v{t}")

    def poll_loop(self, name, issue, regs, t, sleep=0):
        L = self.lab(name)
        Ld = self.lab(name + "d")
        self("  s_mov_b32 s57, 0")
        self(f"{L}:")
        issue()
        self("  s_waitcnt vmcnt(0)")
        self.sentinel_check(regs, t)
        self("  s_add_u32 s57, s57, 1")
        self(f"  s_cmp_gt_u32 s57, {SPIN_MAX}")
        self(f"  s_cbranch_scc1 {Ld}")
        if sleep:
            self(f"  s_cbranch_vccz {Ld}")
            self(f"  s_sleep {sleep}")
            self(f"  s_branch {L}")
        else:
            self(f"  s_cbranch_vccnz {L}")
        self(f"{Ld}:")

    def lds_spin(self, name, addr_v, off, t, target=None, sdst="s58", sleep=1):
        L = self.lab(name)
        Ld = self.lab(name + "d")
        self("  s_mov_b32 s57, 0")
        self(f"{L}:")
        self(f"  ds_read_b32 v{t}, v{addr_v} offset:{off}")
        self("  s_waitcnt lgkmcnt(0)")
        self(f"  v_readfirstlane_b32 {sdst}, v{t}")
        self("  s_add_u32 s57, s57, 1")
        self(f"  s_cmp_gt_u32 s57, {SPIN_MAX * 8}")
        self(f"  s_cbranch_scc1 {Ld}")
        if target is None:
            self(f"  s_cmp_lg_u32 {sdst}, 0")
        else:
            self(f"  s_cmp_eq_u32 {sdst}, {target}")
        self(f"  s_cbranch_scc1 {Ld}")
        if sleep:
            self(f"  s_sleep {sleep}")
        self(f"  s_branch {L}")
        self(f"{Ld}:")

    def mode_store(self, instr):
        Lf = self.lab("fast")
        Lj = self.lab("join")
        self("  s_cmp_eq_u32 s59, 2")
        self(f"  s_cbranch_scc1 {Lf}")
        for i in instr:
            self(f"  {i} sc1")
        self(f"  s_branch {Lj}")
        self(f"{Lf}:")
        for i in instr:
            self(f"  {i}")
        self(f"{Lj}:")

    def prologue(self):
        self(f"""; Fused decode step: LN -> q -> sliding-window attention (split over 8 WGs per head) -> wo,
; @launch grid=(256,1,1) block=(768,1,1) lds={LDS_BYTES}
.amdgcn_target "amdgcn-amd-amdhsa--gfx950"
.text
.globl {KNAME}
.p2align 8
.type {KNAME},@function
{KNAME}:
  s_cmp_ge_u32 s2, 256
  s_cbranch_scc1 L_end""")
        self.stamp(0)
        self(f"""  s_load_dwordx16 s[8:23], s[0:1], 0
  s_load_dwordx8 s[24:31], s[0:1], 64
  v_readfirstlane_b32 s3, v0
  v_and_b32 v0, 63, v0
  s_lshr_b32 s3, s3, 6
  s_and_b32 s4, s2, 7
  s_lshl_b32 s4, s4, 2
  s_lshr_b32 s5, s2, 3
  s_and_b32 s5, s5, 3
  s_add_u32 s4, s4, s5          ; h
  s_lshr_b32 s5, s2, 5          ; c
  s_cmp_ge_u32 s3, 8
  s_cbranch_scc1 L_helper""")

    def stream(self):
        D, E, SB = self.D, self.E, self.SB
        Q = list(range(4, 10))
        A = list(range(10, 22))
        P = list(range(22, 26))
        T = [26, 27]
        U = list(range(28, 32))
        PL = list(range(32, 36))
        PH = list(range(36, 40))
        t0, t1 = 40, 41
        RING = 42
        nbuf = 16 + E

        def kbuf(b):
            return RING + 6 * b

        def vbuf(j):
            return RING + 6 * (16 + j) if j < E else RING + 6 * (j - E)

        self(f"""  ; ---------------- stream waves ----------------
  s_mul_i32 s6, s4, 12582912
  s_mul_i32 s7, s5, 196608
  s_add_u32 s6, s6, s7
  s_add_u32 s6, s6, {28672 * 384}
  s_mul_i32 s7, s3, 24576
  v_lshrrev_b32 v3, 4, v0
  v_and_b32 v2, 15, v0
  v_mul_u32_u24 v3, 384, v3
  v_add_u32 v3, s7, v3
  v_lshl_add_u32 v1, v2, 4, v3      ; x4 offset
  v_lshl_add_u32 v2, v2, 3, v3
  v_add_u32 v2, 256, v2             ; x2 offset""")
        for k in range(1, 6):
            self(f"  s_mov_b32 s{59 + k}, {4608 * k}")
        self("  s_waitcnt lgkmcnt(0)")
        self.srd(32, 10, "s6", 196608)
        self.srd(36, 12, "s6", 196608)
        self.vm_reset()

        def issue(i):
            t, b = (0, i) if i < 16 else (1, i - 16)
            srd = "s[32:35]" if t == 0 else "s[36:39]"
            r = kbuf(b) if t == 0 else vbuf(b)
            so = "0" if b < 3 else f"s{59 + b // 3}"
            imm = 1536 * (b % 3)
            o = f" offset:{imm}" if imm else ""
            self(f"  buffer_load_dwordx4 v[{r}:{r + 3}], v1, {srd}, {so} offen{o} nt")
            self(f"  buffer_load_dwordx2 v[{r + 4}:{r + 5}], v2, {srd}, {so} offen{o} nt")
            self.vm_issue(("L", i))
            self.vm_issue(("L", i))

        def qk_group(g):
            bs = [kbuf(4 * g + k) for k in range(4)]
            for i in range(6):
                for k in range(4):
                    c = "0" if i == 0 else f"v{P[k]}"
                    self(f"  v_dot2_f32_bf16 v{P[k]}, v{bs[k] + i}, v{Q[i]}, {c}")
            self(f"  v_add_f32_dpp v{T[0]}, v{P[0]}, v{P[0]} row_ror:8 row_mask:0xf bank_mask:0x3")
            self(f"  v_add_f32_dpp v{T[1]}, v{P[1]}, v{P[1]} row_ror:8 row_mask:0xf bank_mask:0x3")
            self(f"  v_add_f32_dpp v{T[0]}, v{P[2]}, v{P[2]} row_ror:8 row_mask:0xf bank_mask:0xc")
            self(f"  v_add_f32_dpp v{T[1]}, v{P[3]}, v{P[3]} row_ror:8 row_mask:0xf bank_mask:0xc")
            self(f"  v_add_f32_dpp v{U[g]}, v{T[0]}, v{T[0]} row_shl:4 row_mask:0xf bank_mask:0x5")
            self(f"  v_add_f32_dpp v{U[g]}, v{T[1]}, v{T[1]} row_shr:4 row_mask:0xf bank_mask:0xa")
            self(f"  v_add_f32_dpp v{U[g]}, v{U[g]}, v{U[g]} quad_perm:[1,0,3,2] row_mask:0xf bank_mask:0xf")
            self(f"  v_add_f32_dpp v{U[g]}, v{U[g]}, v{U[g]} quad_perm:[2,3,0,1] row_mask:0xf bank_mask:0xf")

        def softmax():
            self(f"  v_cvt_pk_bf16_f32 v{P[0]}, v{U[0]}, v{U[1]}")
            self(f"  v_cvt_pk_bf16_f32 v{P[1]}, v{U[2]}, v{U[3]}")
            self(f"  v_lshlrev_b32 v{U[0]}, 16, v{P[0]}")
            self(f"  v_and_b32 v{U[1]}, 0xffff0000, v{P[0]}")
            self(f"  v_lshlrev_b32 v{U[2]}, 16, v{P[1]}")
            self(f"  v_and_b32 v{U[3]}, 0xffff0000, v{P[1]}")
            for g in range(4):
                self(f"  v_mul_f32 v{U[g]}, {SCALE}, v{U[g]}")
            self(f"  v_cvt_pk_bf16_f32 v{P[0]}, v{U[0]}, v{U[1]}")
            self(f"  v_cvt_pk_bf16_f32 v{P[1]}, v{U[2]}, v{U[3]}")
            self(f"  v_lshlrev_b32 v{U[0]}, 16, v{P[0]}")
            self(f"  v_and_b32 v{U[1]}, 0xffff0000, v{P[0]}")
            self(f"  v_lshlrev_b32 v{U[2]}, 16, v{P[1]}")
            self(f"  v_and_b32 v{U[3]}, 0xffff0000, v{P[1]}")
            self(f"  v_max3_f32 v{t0}, v{U[0]}, v{U[1]}, v{U[2]}")
            self(f"  v_max_f32 v{t0}, v{t0}, v{U[3]}")
            self(f"  v_max_f32_dpp v{t0}, v{t0}, v{t0} row_ror:4 row_mask:0xf bank_mask:0xf")
            self(f"  v_max_f32_dpp v{t0}, v{t0}, v{t0} row_ror:8 row_mask:0xf bank_mask:0xf")
            self.cross_rows("v_max_f32", t0, t1)
            for g in range(4):
                self(f"  v_sub_f32 v{U[g]}, v{U[g]}, v{t0}")
            for g in range(4):
                self(f"  v_mul_f32 v{U[g]}, {LOG2E}, v{U[g]}")
            for g in range(4):
                self(f"  v_exp_f32 v{U[g]}, v{U[g]}")
            self("  s_nop 0")
            for g in range(4):
                self(f"  v_cvt_pk_bf16_f32 v{PL[g]}, v{U[g]}, 0")
                self(f"  v_cvt_pk_bf16_f32 v{PH[g]}, 0, v{U[g]}")
            self(f"  v_add_f32 v{T[0]}, v{U[0]}, v{U[1]}")
            self(f"  v_add_f32 v{T[1]}, v{U[2]}, v{U[3]}")
            self(f"  v_add_f32 v{T[0]}, v{T[0]}, v{T[1]}")
            self(f"  v_add_f32_dpp v{T[0]}, v{T[0]}, v{T[0]} row_ror:4 row_mask:0xf bank_mask:0xf")
            self(f"  v_add_f32_dpp v{T[0]}, v{T[0]}, v{T[0]} row_ror:8 row_mask:0xf bank_mask:0xf")
            self.cross_rows("v_add_f32", T[0], t1)
            self(f"  s_lshl_b32 s6, s3, 2")
            self(f"  v_mov_b32 v{t1}, s6")
            self(f"  v_mov_b32 v{T[1]}, 1")
            self(f"  v_mov_b32 v{P[0]}, 0")
            self("  s_mov_b64 exec, 1")
            self(f"  ds_write_b32 v{t1}, v{t0} offset:{L_M}")
            self(f"  ds_write_b32 v{t1}, v{T[0]} offset:{L_L}")
            self("  s_waitcnt lgkmcnt(0)")
            self(f"  ds_add_u32 v{P[0]}, v{T[1]} offset:{L_CNT}")
            self("  s_mov_b64 exec, -1")
            for a in A:
                self(f"  v_mov_b32 v{a}, 0")

        def pv(j):
            g, k = j // 4, j % 4
            r = vbuf(j)
            for i in range(6):
                self(f"  v_dot2c_f32_bf16_dpp v{A[2 * i]}, v{PL[g]}, v{r + i} row_newbcast:{4 * k} row_mask:0xf bank_mask:0xf")
                self(f"  v_dot2c_f32_bf16_dpp v{A[2 * i + 1]}, v{PH[g]}, v{r + i} row_newbcast:{4 * k} row_mask:0xf bank_mask:0xf")

        qk_next = 0
        sm_done = False
        pv_next = 0
        landed = -1

        if self.b0pre:
            self("  s_barrier            ; B0")
        for i in range(32):
            if i >= D:
                self.vm_wait(("L", i - D))
                landed = i - D
            if i >= 16 and (i - 16) >= E:
                need_g = (i - 16 - E) // 4
                assert qk_next > need_g, f"schedule: V{i - 16} needs QK group {need_g} (slot {i})"
            issue(i)
            if i == D - 1 and not self.b0pre:
                self("  s_barrier            ; B0")
            if i == SB:
                self.stamp(1)
                self("  s_barrier            ; B1: q ready")
                self.stamp(2)
                self(f"  v_and_b32 v{t0}, 15, v0")
                self(f"  v_lshlrev_b32 v{t1}, 4, v{t0}")
                self(f"  v_lshlrev_b32 v{t0}, 3, v{t0}")
                self(f"  ds_read_b128 v[{Q[0]}:{Q[3]}], v{t1} offset:{L_Q}")
                self(f"  ds_read_b64 v[{Q[4]}:{Q[5]}], v{t0} offset:{L_Q + 256}")
                self("  s_waitcnt lgkmcnt(0)")
            if i >= SB:
                n = 0
                while qk_next < 4 and 4 * qk_next + 3 <= landed and n < 2:
                    qk_group(qk_next)
                    qk_next += 1
                    n += 1
                if qk_next == 4 and not sm_done:
                    softmax()
                    sm_done = True
                    self.stamp(3)
                elif sm_done:
                    n = 0
                    while pv_next < 16 and 16 + pv_next <= landed and n < 3:
                        pv(pv_next)
                        pv_next += 1
                        n += 1
        assert sm_done
        saved_vm = list(self.vm)
        saved_pv = pv_next
        Lnt = self.lab("nontail")
        Lj = self.lab("drainjoin")
        self("  s_cmp_ge_u32 s3, 5")
        self(f"  s_cbranch_scc1 {Lnt}")

        def drain():
            for j in range(saved_pv, 16):
                self.vm_wait(("L", 16 + j))
                if j == 15:
                    self.stamp(4)
                pv(j)

        self("  s_mul_i32 s6, s4, 245760      ; 192*1280*h")
        self("  s_mul_i32 s7, s5, 160")
        self("  s_add_u32 s6, s6, s7")
        self("  s_lshl_b32 s7, s3, 5")
        self("  s_add_u32 s6, s6, s7")
        self.srd(40, 16, "s6", 191 * 1280 + 32)
        self(f"  v_lshrrev_b32 v{t0}, 1, v0")
        self(f"  v_mul_u32_u24 v{t0}, 1280, v{t0}")
        self(f"  v_and_b32 v{t1}, 1, v0")
        self(f"  v_lshl_add_u32 v{t0}, v{t1}, 4, v{t0}")
        self("  s_mul_i32 s6, s3, 6144")
        self(f"  s_add_u32 s6, s6, {L_WO}")
        for i in range(6):
            self(f"  s_add_u32 m0, s6, {1024 * i}")
            self(f"  s_mov_b32 s7, {40960 * i}")
            self(f"  buffer_load_dwordx4 v{t0}, s[40:43], s7 offen nt lds")
            self.vm_issue(("W", i))
        drain()
        self(f"  s_branch {Lj}")
        self(f"{Lnt}:")
        self.vm = list(saved_vm)
        drain()
        self(f"{Lj}:")
        R = self.treduce4rows(A)
        self(f"  v_mov_b32 v{t1}, 0")
        self.lds_spin("flagf", t1, L_FLAGF, t0, target=None, sdst="s58", sleep=0)
        self(f"  s_lshl_b32 s6, s3, 2")
        self(f"  v_mov_b32 v{t1}, s6")
        self(f"  ds_read_b32 v{t0}, v{t1} offset:{L_F}")
        self(f"  v_and_b32 v{P[0]}, 15, v0")
        self(f"  v_lshrrev_b32 v{P[1]}, 4, v0")
        self(f"  v_lshlrev_b32 v{P[1]}, 2, v{P[1]}")
        self(f"  v_lshl_add_u32 v{P[2]}, v{P[0]}, 5, v{P[1]}")
        self(f"  v_lshl_add_u32 v{P[3]}, v{P[0]}, 4, v{P[1]}")
        self("  s_waitcnt lgkmcnt(0)")
        for r in R:
            self(f"  v_mul_f32 v{r}, v{t0}, v{r}")
        self(f"  ds_add_f32 v{P[2]}, v{R[0]} offset:{L_O}")
        self(f"  ds_add_f32 v{P[2]}, v{R[1]} offset:{L_O + 16}")
        self(f"  ds_add_f32 v{P[3]}, v{R[2]} offset:{L_O + 512}")
        self("  s_waitcnt lgkmcnt(0)")
        self.stamp(5)
        self("  s_cmp_ge_u32 s3, 5")
        self("  s_cbranch_scc1 L_exit_stamped")
        self("  s_barrier            ; B2: O accumulated")
        Bf = RING
        Af = RING + 24
        Dd = RING + 48
        self.srd(44, 30, None, WS_SIZE)
        self(f"  v_lshrrev_b32 v{P[0]}, 4, v0          ; g")
        self(f"  v_and_b32 v{P[1]}, 15, v0")
        self(f"  v_lshrrev_b32 v{P[2]}, 2, v{P[1]}      ; r4")
        self(f"  v_and_b32 v{P[3]}, 3, v0              ; cq")
        self(f"  v_lshl_add_u32 v{t0}, v{P[0]}, 3, v{P[2]}   ; 8g + r4")
        self(f"  v_lshlrev_b32 v{t0}, 5, v{t0}")
        self(f"  v_lshl_add_u32 v{t0}, v{P[3]}, 3, v{t0}")
        self("  s_mul_i32 s6, s3, 6144")
        self(f"  s_add_u32 s6, s6, {L_WO}")
        self(f"  v_add_u32 v{t0}, s6, v{t0}")
        self(f"  v_and_b32 v{t1}, 7, v0")
        self(f"  v_lshlrev_b32 v{t1}, 11, v{t1}")
        self(f"  v_lshl_add_u32 v{t1}, v{P[0]}, 4, v{t1}")
        self("  s_lshl_b32 s6, s4, 14")
        self(f"  s_add_u32 s6, s6, {O_O2}")
        self(f"  v_add_u32 v{t1}, s6, v{t1}")
        self("  s_waitcnt vmcnt(0)")
        for s in range(6):
            self(f"  ds_read_b64_tr_b16 v[{Bf + 4 * s}:{Bf + 4 * s + 1}], v{t0} offset:{1024 * s}")
            self(f"  ds_read_b64_tr_b16 v[{Bf + 4 * s + 2}:{Bf + 4 * s + 3}], v{t0} offset:{1024 * s + 128}")
        for d in range(4):
            self(f"  v_mov_b32 v{Dd + d}, 0")

        def issueA():
            for s in range(6):
                o = f" offset:{64 * s}" if s else ""
                self(f"  buffer_load_dwordx4 v[{Af + 4 * s}:{Af + 4 * s + 3}], v{t1}, s[44:47], 0 offen{o} sc1")

        self.poll_loop("pollA", issueA, range(Af, Af + 24), P[0])
        self.stamp(6)
        self("  s_waitcnt lgkmcnt(0)")
        for s in range(6):
            self(f"  v_mfma_f32_16x16x32_bf16 v[{Dd}:{Dd + 3}], v[{Af + 4 * s}:{Af + 4 * s + 3}], v[{Bf + 4 * s}:{Bf + 4 * s + 3}], v[{Dd}:{Dd + 3}]")
        self("  s_mul_i32 s6, s5, 20480")
        self("  s_lshl_b32 s7, s3, 12")
        self("  s_add_u32 s6, s6, s7")
        self("  s_lshl_b32 s7, s4, 6")
        self("  s_add_u32 s6, s6, s7")
        self(f"  s_add_u32 s6, s6, {SD_BASE}")
        self(f"  v_lshlrev_b32 v{t1}, 2, v0")
        self(f"  v_add_u32 v{t1}, s6, v{t1}")
        self(f"  v_add_f32 v{Dd}, v{Dd}, v{Dd + 1}")
        self(f"  v_add_f32 v{Dd + 2}, v{Dd + 2}, v{Dd + 3}")
        self(f"  v_add_f32 v{Dd}, v{Dd}, v{Dd + 2}")
        self(f"  v_mov_b32 v{t0}, v{Dd}")
        self(f"  v_permlane16_swap_b32 v{Dd}, v{t0}")
        self(f"  v_add_f32 v{Dd}, v{Dd}, v{t0}")
        self(f"  v_min_u32 v{Dd}, -2, v{Dd}")
        self("  s_mov_b32 exec_lo, 0xffff")
        self("  s_mov_b32 exec_hi, 0")
        self(f"  buffer_store_dword v{Dd}, v{t1}, s[44:47], 0 offen sc1")
        self("  s_mov_b64 exec, -1")
        self.stamp(7)
        self("  s_branch L_exit_stamped")

    def ln(self, X, xs, t):
        for i in range(5):
            self(f"  v_lshlrev_b32 v{xs[2 * i]}, 16, v{X[i]}")
            self(f"  v_and_b32 v{xs[2 * i + 1]}, 0xffff0000, v{X[i]}")
        s, u, m = t[0], t[1], t[2]
        self(f"  v_add_f32 v{s}, v{xs[0]}, v{xs[1]}")
        for i in range(2, 10):
            self(f"  v_add_f32 v{s}, v{s}, v{xs[i]}")
        self.allreduce("v_add_f32", s, u)
        self(f"  v_mul_f32 v{m}, {INV640}, v{s}")
        self(f"  v_sub_f32 v{u}, v{xs[0]}, v{m}")
        self(f"  v_mul_f32 v{s}, v{u}, v{u}")
        for i in range(1, 10):
            self(f"  v_sub_f32 v{u}, v{xs[i]}, v{m}")
            self(f"  v_fmac_f32 v{s}, v{u}, v{u}")
        self.allreduce("v_add_f32", s, u)
        self(f"  v_mul_f32 v{s}, {INV640}, v{s}          ; var")
        self(f"  v_cvt_pk_bf16_f32 v{u}, v{s}, v{m}")
        self(f"  v_lshlrev_b32 v{s}, 16, v{u}            ; bf16(var)")
        self(f"  v_and_b32 v{m}, 0xffff0000, v{u}        ; bf16(mean)")
        self(f"  v_add_f32 v{s}, {EPS}, v{s}")
        self(f"  v_cvt_pk_bf16_f32 v{s}, v{s}, v{s}")
        self(f"  v_lshlrev_b32 v{s}, 16, v{s}")
        self(f"  v_sqrt_f32 v{s}, v{s}")
        self("  s_nop 0")
        self(f"  v_cvt_pk_bf16_f32 v{s}, v{s}, v{s}")
        self(f"  v_lshlrev_b32 v{s}, 16, v{s}")
        self(f"  v_rcp_f32 v{s}, v{s}")
        for i in range(10):
            self(f"  v_sub_f32 v{xs[i]}, v{xs[i]}, v{m}")
        for i in range(5):
            self(f"  v_cvt_pk_bf16_f32 v{X[i]}, v{xs[2 * i]}, v{xs[2 * i + 1]}")
        for i in range(5):
            self(f"  v_lshlrev_b32 v{xs[2 * i]}, 16, v{X[i]}")
            self(f"  v_and_b32 v{xs[2 * i + 1]}, 0xffff0000, v{X[i]}")
        for i in range(10):
            self(f"  v_mul_f32 v{xs[i]}, v{xs[i]}, v{s}")
        for i in range(5):
            self(f"  v_cvt_pk_bf16_f32 v{X[i]}, v{xs[2 * i]}, v{xs[2 * i + 1]}")
        self(f"  v_lshlrev_b32 v{u}, 2, v0")
        for i in range(5):
            self(f"  ds_write_b32 v{u}, v{X[i]} offset:{L_XN + 256 * i}")

    def xn_rows(self, XL, XH, t):
        self(f"  v_lshrrev_b32 v{t}, 3, v0")
        self("  s_mul_i32 s6, s5, 80")
        self(f"  v_add_u32 v{t}, s6, v{t}")
        self(f"  v_lshlrev_b32 v{t}, 1, v{t}")
        self("  s_waitcnt lgkmcnt(0)")
        for i in range(10):
            self(f"  ds_read_u16 v{XL[i]}, v{t} offset:{L_XN + 16 * i}")
        self("  s_waitcnt lgkmcnt(0)")
        for i in range(10):
            self(f"  v_lshlrev_b32 v{XH[i]}, 16, v{XL[i]}")

    def gather_h1(self, nparts, part0_sgpr_off, dst, addr):
        def issue():
            for p in range(nparts):
                for c in range(8):
                    so = ["0", "s60", "s61", "s62"][c // 2]
                    imm = 2048 * (c % 2) + 256 * p
                    o = f" offset:{imm}" if imm else ""
                    self(f"  buffer_load_dword v{dst[p * 8 + c]}, v{addr}, s[44:47], {so} offen{o} sc1")
        self.poll_loop("h1", issue, dst[:nparts * 8], dst[nparts * 8], sleep=2)

    def helper(self):
        X = list(range(4, 9))
        xs = list(range(10, 20))
        t = [20, 21, 22, 23]
        XL = list(range(24, 34))
        XH = list(range(34, 44))
        ACC = list(range(44, 60))
        W = 64
        self("L_helper:")
        if self.prio:
            self(f"  s_setprio {self.prio}")
        self("  s_sub_u32 s7, s3, 8")
        self("  v_lshlrev_b32 v1, 2, v0       ; 4*lane")
        self("  s_mov_b32 s60, 4096")
        self("  s_mov_b32 s61, 8192")
        self("  s_mov_b32 s62, 12288")
        self("  s_waitcnt lgkmcnt(0)")
        self.srd(32, 8, None, 1280)
        self.srd(44, 30, None, WS_SIZE)
        self.srd(48, 28, None, 256)
        self("  s_cmp_eq_u32 s3, 11")
        self("  s_cbranch_scc1 L_h3")
        self("  s_mul_i32 s6, s5, 983040      ; 80*12288*c")
        self("  s_mul_i32 s56, s4, 384")
        self("  s_add_u32 s6, s6, s56")
        self.srd(36, 14, "s6", 79 * 12288 + 384)
        self(f"  v_lshrrev_b32 v2, 3, v0")
        self(f"  v_mul_u32_u24 v2, 12288, v2")
        self(f"  v_and_b32 v3, 7, v0")
        self(f"  v_lshl_add_u32 v2, v3, 4, v2")
        self("  s_lshl_b32 s6, s7, 7")
        self(f"  v_add_u32 v2, s6, v2")
        self("  s_cmp_eq_u32 s3, 10")
        self("  s_cbranch_scc0 L_noclear")
        self("  v_mov_b32 v8, -1")
        self("  v_mov_b32 v9, -1")
        self("  v_mov_b32 v10, -1")
        self("  v_mov_b32 v11, -1")
        self("  s_lshl_b32 s6, s4, 14")
        self("  s_lshl_b32 s56, s5, 11")
        self("  s_add_u32 s6, s6, s56          ; box")
        self("  v_lshlrev_b32 v3, 4, v0")
        self("  v_add_u32 v12, s6, v3")
        self("  buffer_store_dwordx4 v[8:11], v12, s[44:47], 0 offen sc1")
        self("  buffer_store_dwordx4 v[8:11], v12, s[44:47], 0 offen offset:1024 sc1")
        self("  s_mul_i32 s6, s5, 20480")
        self("  s_lshl_b32 s56, s4, 6")
        self("  s_add_u32 s6, s6, s56")
        self(f"  s_add_u32 s6, s6, {SD_BASE}")
        self("  v_lshrrev_b32 v13, 2, v0")
        self("  v_lshlrev_b32 v13, 11, v13")
        self("  v_and_b32 v14, 3, v0")
        self("  v_lshl_add_u32 v13, v14, 4, v13")
        self("  v_add_u32 v13, s6, v13")
        self("  s_mov_b32 exec_hi, 0xff")
        self("  buffer_store_dwordx4 v[8:11], v13, s[44:47], 0 offen sc1")
        self("  s_mov_b64 exec, -1")
        self("  v_mov_b32 v16, 0")
        self("  v_mov_b32 v17, 0")
        self("  v_mov_b32 v18, 0")
        self("  v_mov_b32 v19, 0")
        self(f"  ds_write_b128 v3, v[16:19] offset:{L_MODE}")
        self("  s_waitcnt lgkmcnt(0)")
        self("L_noclear:")
        for i in range(5):
            o = f" offset:{256 * i}" if i else ""
            self(f"  buffer_load_dword v{X[i]}, v1, s[32:35], 0 offen{o}")
        for i in range(10):
            self(f"  s_mov_b32 s6, {98304 * i}")
            self(f"  buffer_load_dwordx4 v[{W + 4 * i}:{W + 4 * i + 3}], v2, s[36:39], s6 offen nt")
        self("  s_barrier            ; B0")
        self("  s_cmp_eq_u32 s3, 10")
        self("  s_cbranch_scc0 L_noatom")
        self("  s_waitcnt vmcnt(15)")
        self.stamp(6)
        self("  s_getreg_b32 s6, hwreg(HW_REG_XCC_ID, 0, 4)")
        self("  s_mul_i32 s56, s6, s6")
        self("  s_lshl_b32 s56, s56, 16")
        self("  s_lshl_b32 s6, s6, 8")
        self("  s_add_u32 s6, s6, s56")
        self("  s_add_u32 s63, s6, 1")
        self("  s_lshl_b32 s6, s4, 3")
        self("  v_mov_b32 v12, s6")
        self("  v_mov_b32 v13, s63")
        self("  s_mov_b64 exec, 1")
        self("  buffer_atomic_add v13, v12, s[48:51], 0 offen sc1")
        self("  s_mov_b64 exec, -1")
        self("  s_waitcnt vmcnt(11)")
        self("  s_branch L_ln")
        self("L_noatom:")
        self("  s_waitcnt vmcnt(10)")
        self("L_ln:")
        self.ln(X, xs, t)
        self.xn_rows(XL, XH, t[0])
        self.stamp(1)
        self("  s_waitcnt vmcnt(1)")
        self("  s_cmp_eq_u32 s3, 10")
        self("  s_cbranch_scc1 L_wq_ready")
        self("  s_waitcnt vmcnt(0)")
        self("L_wq_ready:")
        self.stamp(2)
        for i in range(10):
            for k in range(4):
                c0 = "0" if i == 0 else f"v{ACC[2 * k]}"
                c1 = "0" if i == 0 else f"v{ACC[2 * k + 1]}"
                self(f"  v_dot2_f32_bf16 v{ACC[2 * k]}, v{W + 4 * i + k}, v{XL[i]}, {c0}")
                self(f"  v_dot2_f32_bf16 v{ACC[2 * k + 1]}, v{W + 4 * i + k}, v{XH[i]}, {c1}")
        self.treduce8(ACC[:8], t[1])
        self(f"  v_min_u32 v{t[1]}, -2, v{t[1]}")
        self("  s_cmp_eq_u32 s3, 10")
        self("  s_cbranch_scc0 L_waitmode")
        Lp = self.lab("cntpoll")
        Lpd = self.lab("cntpolld")
        self("  s_lshl_b32 s6, s4, 3")
        self("  v_mov_b32 v12, s6")
        self("  s_mov_b32 s57, 0")
        self(f"{Lp}:")
        self("  buffer_load_dword v13, v12, s[48:51], 0 offen sc1")
        self("  s_waitcnt vmcnt(0)")
        self("  v_readfirstlane_b32 s58, v13")
        self("  s_add_u32 s57, s57, 1")
        self(f"  s_cmp_gt_u32 s57, {SPIN_MAX}")
        self(f"  s_cbranch_scc1 {Lpd}")
        self("  s_and_b32 s6, s58, 0xff")
        self("  s_cmp_eq_u32 s6, 8")
        self(f"  s_cbranch_scc0 {Lp}")
        self(f"{Lpd}:")
        if self.stamps:
            self("  s_mov_b32 s84, s57")
        self("  s_lshl_b32 s6, s63, 3")
        self("  s_cmp_eq_u32 s58, s6")
        if self.force_slow:
            self("  s_mov_b32 s59, 1")
        else:
            self("  s_cselect_b32 s59, 2, 1")
        self("  v_mov_b32 v13, s59")
        self("  v_mov_b32 v12, 0")
        self(f"  ds_write_b32 v12, v13 offset:{L_MODE}")
        self("  s_branch L_havemode")
        self("L_waitmode:")
        self(f"  v_mov_b32 v12, 0")
        self.lds_spin("mode", 12, L_MODE, 13, target=None, sdst="s59")
        self("L_havemode:")
        self.stamp(3)
        self("  s_lshl_b32 s6, s4, 14")
        self("  s_lshl_b32 s56, s7, 8")
        self("  s_add_u32 s6, s6, s56")
        self("  v_add_u32 v14, s6, v1")
        self("  s_lshl_b32 s56, s5, 11")
        self("  v_add_u32 v15, s56, v14")
        self.mode_store([f"buffer_store_dword v{t[1]}, v15, s[44:47], 0 offen"])
        G8 = list(range(64, 73))
        self.gather_h1(1, None, G8, 14)
        self.stamp(4)
        self(f"  v_add_f32 v{G8[0]}, v{G8[0]}, v{G8[1]}")
        self(f"  v_add_f32 v{G8[2]}, v{G8[2]}, v{G8[3]}")
        self(f"  v_add_f32 v{G8[4]}, v{G8[4]}, v{G8[5]}")
        self(f"  v_add_f32 v{G8[6]}, v{G8[6]}, v{G8[7]}")
        self(f"  v_add_f32 v{G8[0]}, v{G8[0]}, v{G8[2]}")
        self(f"  v_add_f32 v{G8[4]}, v{G8[4]}, v{G8[6]}")
        self(f"  v_add_f32 v{G8[0]}, v{G8[0]}, v{G8[4]}")
        self(f"  v_cvt_pk_bf16_f32 v{G8[0]}, v{G8[0]}, v{G8[0]}")
        self("  v_and_b32 v16, 7, v0")
        self("  v_lshrrev_b32 v17, 3, v0")
        self("  v_lshl_add_u32 v16, v16, 3, v17")
        self("  s_lshl_b32 s6, s7, 6")
        self("  v_add_u32 v16, s6, v16")
        self("  v_lshlrev_b32 v16, 1, v16")
        self(f"  ds_write_b16 v16, v{G8[0]} offset:{L_Q}")
        self("  s_waitcnt lgkmcnt(0)")
        self.stamp(5)
        self("  s_cmp_eq_u32 s3, 8")
        self("  s_cbranch_scc1 L_h0")
        self("  s_cmp_eq_u32 s3, 9")
        self("  s_cbranch_scc0 L_exit_stamped")
        self("  s_mov_b32 s56, -1")
        for tt in range(5):
            self(f"  s_cmp_eq_u32 s4, {6 * tt + 1}")
            self(f"  s_cselect_b32 s56, {tt}, s56")
        self("  s_cmp_eq_u32 s56, -1")
        self("  s_cbranch_scc1 L_exit_stamped")
        self.final_consumer()

        self("L_h0:")
        self("  s_barrier            ; B1")
        self("  v_mov_b32 v12, 0")
        self.lds_spin("cnt", 12, L_CNT, 13, target=8, sdst="s58")
        self("  v_and_b32 v14, 7, v0")
        self("  v_lshlrev_b32 v14, 2, v14")
        self(f"  ds_read_b32 v16, v14 offset:{L_M}")
        self(f"  ds_read_b32 v17, v14 offset:{L_L}")
        self("  s_waitcnt lgkmcnt(0)")
        self("  v_mov_b32 v18, v16")
        for r in (1, 2, 4):
            self(f"  v_max_f32_dpp v18, v18, v18 row_ror:{r} row_mask:0xf bank_mask:0xf")
        self("  v_sub_f32 v19, v16, v18")
        self(f"  v_mul_f32 v19, {LOG2E}, v19")
        self("  v_exp_f32 v19, v19")
        self("  s_nop 0")
        self("  v_mul_f32 v19, v19, v17")
        for r in (1, 2, 4):
            self(f"  v_add_f32_dpp v19, v19, v19 row_ror:{r} row_mask:0xf bank_mask:0xf")
        self("  v_min_u32 v20, -2, v18")
        self("  v_min_u32 v21, -2, v19")
        self("  s_lshl_b32 s6, s4, 14")
        self("  s_lshl_b32 s56, s5, 11")
        self("  s_add_u32 s6, s6, s56")
        self(f"  s_add_u32 s6, s6, {O_LSE}")
        self("  v_mov_b32 v15, s6")
        self("  s_mov_b64 exec, 1")
        self.mode_store(["buffer_store_dwordx2 v[20:21], v15, s[44:47], 0 offen"])
        self("  s_mov_b64 exec, -1")
        self("  v_and_b32 v15, 7, v0")
        self("  v_lshlrev_b32 v15, 11, v15")
        self("  s_lshl_b32 s6, s4, 14")
        self(f"  s_add_u32 s6, s6, {O_LSE}")
        self("  v_add_u32 v15, s6, v15")

        def issue_lse():
            self("  buffer_load_dwordx2 v[22:23], v15, s[44:47], 0 offen sc1")
        self.poll_loop("lse", issue_lse, [22, 23], 24, sleep=1)
        self("  v_mov_b32 v18, v22")
        for r in (1, 2, 4):
            self(f"  v_max_f32_dpp v18, v18, v18 row_ror:{r} row_mask:0xf bank_mask:0xf")
        self("  v_sub_f32 v19, v22, v18")
        self(f"  v_mul_f32 v19, {LOG2E}, v19")
        self("  v_exp_f32 v19, v19")
        self("  s_nop 0")
        self("  v_mul_f32 v19, v19, v23")
        for r in (1, 2, 4):
            self(f"  v_add_f32_dpp v19, v19, v19 row_ror:{r} row_mask:0xf bank_mask:0xf")
        self("  v_rcp_f32 v19, v19")
        self("  v_sub_f32 v16, v16, v18")
        self(f"  v_mul_f32 v16, {LOG2E}, v16")
        self("  v_exp_f32 v16, v16")
        self("  s_nop 0")
        self("  v_mul_f32 v16, v16, v19          ; F[w]")
        self("  s_mov_b32 exec_lo, 0xff")
        self("  s_mov_b32 exec_hi, 0")
        self(f"  ds_write_b32 v14, v16 offset:{L_F}")
        self("  s_waitcnt lgkmcnt(0)")
        self("  s_mov_b64 exec, 1")
        self("  v_mov_b32 v13, 1")
        self(f"  ds_write_b32 v12, v13 offset:{L_FLAGF}")
        self("  s_mov_b64 exec, -1")
        self("  s_waitcnt lgkmcnt(0)")
        self.stamp(6)
        self("  v_lshlrev_b32 v14, 4, v0")
        self("  s_lshl_b32 s6, s4, 14")
        self("  s_lshl_b32 s56, s5, 11")
        self("  s_add_u32 s6, s6, s56")
        self(f"  s_add_u32 s6, s6, {O_O2}")
        self("  v_lshlrev_b32 v15, 3, v0")
        self("  v_add_u32 v15, s6, v15")
        self("  s_mov_b32 exec_hi, 0xffff         ; 48 lanes")
        self("  s_barrier            ; B2")
        self(f"  ds_read_b128 v[16:19], v14 offset:{L_O}")
        self("  s_waitcnt lgkmcnt(0)")
        self("  v_cvt_pk_bf16_f32 v20, v16, v17")
        self("  v_cvt_pk_bf16_f32 v21, v18, v19")
        self("  v_min_u32 v20, -2, v20")
        self("  v_min_u32 v21, -2, v21")
        self.mode_store(["buffer_store_dwordx2 v[20:21], v15, s[44:47], 0 offen"])
        self("  s_mov_b64 exec, -1")
        self.stamp(7)
        self("  s_branch L_exit_stamped")

        self("L_h3:")
        self("  s_mul_i32 s6, s5, 245760       ; 80*3072*c")
        self("  s_mul_i32 s56, s4, 96")
        self("  s_add_u32 s6, s6, s56")
        self.srd(36, 20, "s6", 79 * 3072 + 96)
        self.srd(40, 22, "s6", 79 * 3072 + 96)
        self("  s_mul_i32 s6, s4, 61440        ; 48*1280*h")
        self("  s_mul_i32 s56, s5, 160")
        self("  s_add_u32 s6, s6, s56")
        self.srd(52, 24, "s6", 47 * 1280 + 160)
        self("  v_lshrrev_b32 v2, 3, v0")
        self("  v_mul_u32_u24 v2, 3072, v2")
        self("  v_and_b32 v3, 7, v0")
        self("  v_mul_u32_u24 v3, 12, v3")
        self("  v_add_u32 v2, v2, v3")
        self("  v_lshrrev_b32 v9, 4, v0")
        self("  v_mul_u32_u24 v9, 1280, v9")
        self("  v_and_b32 v3, 15, v0")
        self("  v_lshl_add_u32 v9, v3, 4, v9")
        self("  v_mov_b32 v10, 0x7fffffff")
        self("  v_cmp_gt_u32 vcc, 10, v3")
        self("  v_cndmask_b32 v9, v10, v9, vcc")
        WG, WU, WD = 64, 104, 144
        WD = 104
        for i in range(5):
            o = f" offset:{256 * i}" if i else ""
            self(f"  buffer_load_dword v{X[i]}, v1, s[32:35], 0 offen{o}")
        for i in range(10):
            self(f"  s_mov_b32 s6, {24576 * i}")
            self(f"  buffer_load_dwordx3 v[{WG + 4 * i}:{WG + 4 * i + 2}], v2, s[36:39], s6 offen nt")
        for i in range(10):
            self(f"  s_mov_b32 s6, {24576 * i}")
            self(f"  buffer_load_dwordx3 v[{WU + 4 * i}:{WU + 4 * i + 2}], v2, s[40:43], s6 offen nt")
        self("  s_barrier            ; B0")
        self("  s_waitcnt vmcnt(20)")
        self.ln(X, xs, t)
        self.xn_rows(XL, XH, t[0])
        self.stamp(1)
        GA = list(range(44, 52))
        UA = list(range(52, 60))
        self("  s_waitcnt vmcnt(10)")
        for (Wr, AC, last) in ((WG, GA, False), (WU, UA, True)):
            if last:
                self("  s_waitcnt vmcnt(0)")
                self.stamp(2)
            for i in range(10):
                for k in range(3):
                    c0 = "0" if i == 0 else f"v{AC[2 * k]}"
                    c1 = "0" if i == 0 else f"v{AC[2 * k + 1]}"
                    self(f"  v_dot2_f32_bf16 v{AC[2 * k]}, v{Wr + 4 * i + k}, v{XL[i]}, {c0}")
                    self(f"  v_dot2_f32_bf16 v{AC[2 * k + 1]}, v{Wr + 4 * i + k}, v{XH[i]}, {c1}")
            self(f"  v_mov_b32 v{AC[6]}, 0")
            self(f"  v_mov_b32 v{AC[7]}, 0")
        WD = 64
        for n in range(12):
            self(f"  s_mov_b32 s6, {5120 * n}")
            self(f"  buffer_load_dwordx4 v[{WD + 4 * n}:{WD + 4 * n + 3}], v9, s[52:55], s6 offen nt")
        self.treduce8(GA, t[1])
        self.treduce8(UA, t[2])
        self(f"  v_min_u32 v{t[1]}, -2, v{t[1]}")
        self(f"  v_min_u32 v{t[2]}, -2, v{t[2]}")
        self(f"  v_mov_b32 v12, 0")
        self.lds_spin("mode", 12, L_MODE, 13, target=None, sdst="s59")
        self.stamp(3)
        self("  s_lshl_b32 s6, s4, 14")
        self(f"  s_add_u32 s6, s6, {3 * 256}")
        self("  v_add_u32 v14, s6, v1          ; h*16384 + 768 + 4*lane")
        self("  s_lshl_b32 s56, s5, 11")
        self("  v_add_u32 v15, s56, v14")
        self.mode_store([f"buffer_store_dword v{t[1]}, v15, s[44:47], 0 offen",
                         f"buffer_store_dword v{t[2]}, v15, s[44:47], 0 offen offset:256"])
        G16 = list(range(120, 137))
        self.gather_h1(2, None, G16, 14)
        self.stamp(4)
        for p in range(2):
            g = G16[8 * p:8 * p + 8]
            self(f"  v_add_f32 v{g[0]}, v{g[0]}, v{g[1]}")
            self(f"  v_add_f32 v{g[2]}, v{g[2]}, v{g[3]}")
            self(f"  v_add_f32 v{g[4]}, v{g[4]}, v{g[5]}")
            self(f"  v_add_f32 v{g[6]}, v{g[6]}, v{g[7]}")
            self(f"  v_add_f32 v{g[0]}, v{g[0]}, v{g[2]}")
            self(f"  v_add_f32 v{g[4]}, v{g[4]}, v{g[6]}")
            self(f"  v_add_f32 v{g[0]}, v{g[0]}, v{g[4]}")
        self(f"  v_cvt_pk_bf16_f32 v16, v{G16[0]}, v{G16[8]}")
        self("  v_lshlrev_b32 v17, 16, v16         ; gate")
        self("  v_and_b32 v18, 0xffff0000, v16     ; up")
        self("  v_max_f32 v17, 0, v17")
        self("  v_mul_f32 v17, v17, v18")
        self("  v_cvt_pk_bf16_f32 v17, v17, v17    ; h")
        self("  v_and_b32 v18, 7, v0")
        self("  v_mul_u32_u24 v18, 6, v18")
        self("  v_lshrrev_b32 v19, 3, v0")
        self("  v_add_u32 v18, v18, v19")
        self("  v_lshlrev_b32 v18, 1, v18")
        self("  s_mov_b32 exec_hi, 0xffff")
        self(f"  ds_write_b16 v18, v17 offset:{L_HB}")
        self("  s_mov_b64 exec, -1")
        self("  v_and_b32 v18, 15, v0")
        self("  v_lshrrev_b32 v19, 4, v0")
        self("  v_lshl_add_u32 v18, v18, 2, v19")
        self("  v_lshlrev_b32 v18, 1, v18")
        self("  s_waitcnt lgkmcnt(0)")
        self(f"  ds_read_u16 v20, v18 offset:{L_HB}")
        DA = list(range(44, 52))
        for a in DA:
            self(f"  v_mov_b32 v{a}, 0")
        self("  s_waitcnt lgkmcnt(0)")
        self("  v_lshlrev_b32 v21, 16, v20")
        self("  s_nop 1")
        for n in range(12):
            for k in range(4):
                self(f"  v_dot2c_f32_bf16_dpp v{DA[2 * k]}, v20, v{WD + 4 * n + k} row_newbcast:{n} row_mask:0xf bank_mask:0xf")
                self(f"  v_dot2c_f32_bf16_dpp v{DA[2 * k + 1]}, v21, v{WD + 4 * n + k} row_newbcast:{n} row_mask:0xf bank_mask:0xf")
        R = self.treduce4rows(DA)
        self("  s_mul_i32 s6, s5, 20480")
        self("  s_lshl_b32 s56, s4, 6")
        self("  s_add_u32 s6, s6, s56")
        self(f"  s_add_u32 s6, s6, {SD_BASE + 2048}")
        self("  v_and_b32 v18, 15, v0              ; j")
        self("  v_lshrrev_b32 v19, 1, v18          ; t")
        self("  v_lshlrev_b32 v19, 12, v19")
        self("  v_and_b32 v22, 1, v18")
        self("  v_lshl_add_u32 v19, v22, 5, v19")
        self("  v_lshrrev_b32 v22, 4, v0           ; rho")
        self("  v_lshl_add_u32 v19, v22, 2, v19")
        self("  v_add_u32 v19, s6, v19")
        self("  v_mov_b32 v22, 0x7fffffff")
        self("  v_cmp_gt_u32 vcc, 10, v18")
        self("  v_cndmask_b32 v19, v22, v19, vcc")
        self(f"  v_min_u32 v{R[0]}, -2, v{R[0]}")
        self(f"  v_min_u32 v{R[1]}, -2, v{R[1]}")
        self(f"  buffer_store_dword v{R[0]}, v19, s[44:47], 0 offen sc1")
        self(f"  buffer_store_dword v{R[1]}, v19, s[44:47], 0 offen offset:16 sc1")
        self.stamp(5)
        self("  s_branch L_exit_stamped")

    def final_consumer(self):
        self("  s_barrier            ; B1")
        L = self.lab("allcnt")
        Ld = self.lab("allcntd")
        self("  v_and_b32 v12, 31, v0")
        self("  v_lshlrev_b32 v12, 3, v12")
        self("  s_mov_b32 s57, 0")
        self(f"{L}:")
        self("  buffer_load_dword v13, v12, s[48:51], 0 offen sc1")
        self("  s_waitcnt vmcnt(0)")
        self("  v_and_b32 v13, 0xff, v13")
        self("  v_cmp_ne_u32 vcc, 8, v13")
        self("  s_add_u32 s57, s57, 1")
        self(f"  s_cmp_gt_u32 s57, {SPIN_MAX}")
        self(f"  s_cbranch_scc1 {Ld}")
        self(f"  s_cbranch_vccnz {L}")
        self(f"{Ld}:")
        self("  s_mul_i32 s6, s5, 20480")
        self("  s_lshl_b32 s7, s56, 12")
        self("  s_add_u32 s6, s6, s7")
        self(f"  s_add_u32 s6, s6, {SD_BASE}")
        self("  v_lshlrev_b32 v14, 4, v0")
        self("  v_add_u32 v14, s6, v14")
        self("  v_and_b32 v15, 3, v0")
        self("  v_lshlrev_b32 v15, 2, v15")
        self("  v_lshrrev_b32 v16, 5, v0")
        self("  v_lshl_add_u32 v15, v16, 1, v15")
        self("  v_bfe_u32 v16, v0, 4, 1")
        self("  v_add_u32 v15, v15, v16")
        self("  s_mul_i32 s6, s5, 80")
        self("  s_lshl_b32 s7, s56, 4")
        self("  s_add_u32 s6, s6, s7")
        self("  v_add_u32 v15, s6, v15")
        self("  v_lshlrev_b32 v15, 1, v15")
        self("  buffer_load_ushort v17, v15, s[32:35], 0 offen")
        self.srd(40, 26, None, 1280)

        def red(base):
            for k in range(4):
                self(f"  v_add_f32 v{base + k}, v{base + k}, v{base + 4 + k}")
            self(f"  v_permlane32_swap_b32 v{base}, v{base + 2}")
            self(f"  v_permlane32_swap_b32 v{base + 1}, v{base + 3}")
            self(f"  v_add_f32 v{base}, v{base}, v{base + 2}")
            self(f"  v_add_f32 v{base + 1}, v{base + 1}, v{base + 3}")
            self(f"  v_permlane16_swap_b32 v{base}, v{base + 1}")
            self(f"  v_add_f32 v{base}, v{base}, v{base + 1}")
            self(f"  v_add_f32_dpp v{base}, v{base}, v{base} row_ror:4 row_mask:0xf bank_mask:0xf")
            self(f"  v_add_f32_dpp v{base}, v{base}, v{base} row_ror:8 row_mask:0xf bank_mask:0xf")

        def issueD():
            self("  buffer_load_dwordx4 v[24:27], v14, s[44:47], 0 offen offset:2048 sc1")
            self("  buffer_load_dwordx4 v[28:31], v14, s[44:47], 0 offen offset:3072 sc1")
        self.poll_loop("pollD", issueD, range(24, 32), 32, sleep=4)
        red(24)
        self("  v_cvt_pk_bf16_f32 v24, v24, v24")
        self("  v_lshlrev_b32 v24, 16, v24")
        self(f"  v_mul_f32 v25, {f2h(-1.4426950408889634)}, v24")
        self("  v_exp_f32 v25, v25")
        self("  s_nop 0")
        self("  v_add_f32 v25, 1.0, v25")
        self("  v_rcp_f32 v25, v25")
        self("  s_nop 0")
        self("  v_mul_f32 v24, v24, v25")
        self("  v_cvt_pk_bf16_f32 v24, v24, v24")
        self("  v_lshlrev_b32 v18, 16, v24          ; g")
        self("  v_lshlrev_b32 v17, 16, v17          ; x")
        self.stamp(6)
        self("  s_barrier            ; B2")

        def issueS():
            self("  buffer_load_dwordx4 v[24:27], v14, s[44:47], 0 offen sc1")
            self("  buffer_load_dwordx4 v[28:31], v14, s[44:47], 0 offen offset:1024 sc1")
        self.poll_loop("pollS", issueS, range(24, 32), 32)
        red(24)
        self("  v_cvt_pk_bf16_f32 v24, v24, v24")
        self("  v_lshlrev_b32 v24, 16, v24          ; s")
        self("  v_mul_f32 v24, v24, v18")
        self("  v_cvt_pk_bf16_f32 v24, v24, v24")
        self("  v_lshlrev_b32 v24, 16, v24")
        self("  v_add_f32 v24, v17, v24")
        self("  v_cvt_pk_bf16_f32 v24, v24, v24")
        self("  s_mov_b32 exec_lo, 0x000f000f")
        self("  s_mov_b32 exec_hi, 0x000f000f")
        self("  buffer_store_short v24, v15, s[40:43], 0 offen")
        self("  s_mov_b64 exec, -1")
        self.stamp(7)
        self("  s_branch L_exit_stamped")

    def epilogue(self):
        self("L_exit_stamped:")
        if self.stamps:
            self.srd(44, 30, None, WS_SIZE)
            self.stamps_out()
        self("L_end:")
        self("  s_endpgm")
        self(f""".section .rodata,"a"
.p2align 6
.amdhsa_kernel {KNAME}
  .amdhsa_next_free_vgpr 168
  .amdhsa_next_free_sgpr 102
  .amdhsa_accum_offset 168
  .amdhsa_group_segment_fixed_size 0
  .amdhsa_kernarg_size 96
  .amdhsa_user_sgpr_count 2
  .amdhsa_user_sgpr_kernarg_segment_ptr 1
  .amdhsa_system_sgpr_workgroup_id_x 1
.end_amdhsa_kernel""")

    def build(self):
        self.prologue()
        self.stream()
        self.helper()
        self.epilogue()
        return fix("\n".join(self.lines) + "\n", verbose=True)


if __name__ == "__main__":
    import argparse
    ap = argparse.ArgumentParser()
    ap.add_argument("-o", default="k.s")
    ap.add_argument("--D", type=int, default=5)
    ap.add_argument("--E", type=int, default=5)
    ap.add_argument("--SB", type=int, default=19)
    ap.add_argument("--stamps", action="store_true")
    ap.add_argument("--slow", action="store_true")
    ap.add_argument("--b0post", action="store_true")
    ap.add_argument("--prio", type=int, default=3)
    a = ap.parse_args()
    g = G(D=a.D, E=a.E, SB=a.SB, stamps=a.stamps, force_slow=a.slow, b0pre=not a.b0post, prio=a.prio)
    open(a.o, "w").write(g.build())
```

```python
import sys, struct
sys.path.insert(0, "dev")
from hz import fix

KNAME = "recurrent_scan__sliding_block_cached__glu_gated_reglu__decode_kernel"


def f2h(x):
    return "0x%08x" % struct.unpack("<I", struct.pack("<f", x))[0]


LOG2E = f2h(1.4426950408889634)
SCALE = f2h(192 ** -0.5)
INV640 = f2h(1.0 / 640)
EPS = f2h(1e-5)

BOX = 2048
O_H1 = 0
O_O2 = 1280
O_LSE = 1664
SD_BASE = 524288
STAMP_BASE = 1 << 20
WS_SIZE = 2 << 20

L_Q = 0
L_MODE = 384
L_CNT = 388
L_FLAGF = 392
L_M = 400
L_L = 432
L_F = 464
L_O = 512
L_XN = 1280
L_HB = 2560
L_WO = 4096
LDS_BYTES = L_WO + 5 * 6144

SPIN_MAX = 30000


class G:
    def __init__(self, D=5, E=5, SB=19, stamps=False, force_slow=False, wo_slot=32, b0pre=True, prio=3, dbgst=False):
        self.dbgst = dbgst
        self.prio = prio
        self.b0pre = b0pre
        self.D, self.E, self.SB = D, E, SB
        self.stamps = stamps
        self.force_slow = force_slow
        self.wo_slot = wo_slot
        self.lines = []
        self.uid = 0
        self.vm = []

    def __call__(self, s=""):
        for l in s.split("\n"):
            self.lines.append(l)

    def lab(self, base):
        self.uid += 1
        return f"L_{base}_{self.uid}"

    def vm_reset(self):
        self.vm = []

    def vm_issue(self, tag):
        self.vm.append(tag)

    def vm_wait(self, tag):
        idx = [i for i, t in enumerate(self.vm) if t == tag]
        if not idx:
            return
        last = idx[-1]
        n = len(self.vm) - 1 - last
        assert n <= 63
        self(f"  s_waitcnt vmcnt({n})")
        self.vm = self.vm[last + 1:]

    def stamp(self, i):
        if self.stamps:
            self(f"  s_memrealtime s[{70 + 2 * i}:{71 + 2 * i}]")

    def stamps_out(self):
        if not self.stamps:
            return
        self("  s_waitcnt lgkmcnt(0) vmcnt(0)")
        self("  s_mul_i32 s6, s2, 12")
        self("  s_add_u32 s6, s6, s3")
        self("  s_lshl_b32 s6, s6, 5")
        self(f"  s_add_u32 s6, s6, {STAMP_BASE}")
        self("  v_mov_b32 v2, s6")
        for i in range(8):
            self(f"  v_mov_b32 v{4 + i}, s{70 + 2 * i}")
        self("  s_mov_b64 exec, 1")
        self("  buffer_store_dwordx4 v[4:7], v2, s[44:47], 0 offen")
        self("  buffer_store_dwordx4 v[8:11], v2, s[44:47], 0 offen offset:16")
        if self.dbgst:
            self("  s_load_dwordx2 s[6:7], s[0:1], 80")
            self("  s_waitcnt lgkmcnt(0)")
            self.srd(48, 6, None, 256)
            for (wg, wv, lst) in ((0, 0, ((0, 1), (2, 3), (4, 5))), (8, 9, ((0, 7), (6, 9), (7, 11))), (255, 0, ((0, 13), (4, 15)))):
                Ls = self.lab("dbgskip")
                self(f"  s_cmp_eq_u32 s2, {wg}")
                self(f"  s_cbranch_scc0 {Ls}")
                self(f"  s_cmp_eq_u32 s3, {wv}")
                self(f"  s_cbranch_scc0 {Ls}")
                for (st, dw) in lst:
                    self(f"  v_mov_b32 v2, {4 * dw}")
                    self(f"  buffer_store_dword v{4 + st}, v2, s[48:51], 0 offen")
                self(f"{Ls}:")
        self("  s_mov_b64 exec, -1")

    def srd(self, s, base_lo, off, nrec):
        if off is None:
            self(f"  s_mov_b32 s{s}, s{base_lo}")
            self(f"  s_mov_b32 s{s + 1}, s{base_lo + 1}")
        else:
            self(f"  s_add_u32 s{s}, s{base_lo}, {off}")
            self(f"  s_addc_u32 s{s + 1}, s{base_lo + 1}, 0")
        self(f"  s_mov_b32 s{s + 2}, {nrec}")
        self(f"  s_mov_b32 s{s + 3}, 0x20000")

    def allreduce(self, op, v, t):
        for r in (1, 2, 4, 8):
            self(f"  {op}_dpp v{v}, v{v}, v{v} row_ror:{r} row_mask:0xf bank_mask:0xf")
        self(f"  v_mov_b32 v{t}, v{v}")
        self(f"  v_permlane16_swap_b32 v{v}, v{t}")
        self(f"  {op} v{v}, v{v}, v{t}")
        self(f"  v_mov_b32 v{t}, v{v}")
        self(f"  v_permlane32_swap_b32 v{v}, v{t}")
        self(f"  {op} v{v}, v{v}, v{t}")

    def cross_rows(self, op, v, t):
        self(f"  v_mov_b32 v{t}, v{v}")
        self(f"  v_permlane16_swap_b32 v{v}, v{t}")
        self(f"  {op} v{v}, v{v}, v{t}")
        self(f"  v_mov_b32 v{t}, v{v}")
        self(f"  v_permlane32_swap_b32 v{v}, v{t}")
        self(f"  {op} v{v}, v{v}, v{t}")

    def treduce8(self, A, T):
        for a in range(4):
            self(f"  v_permlane32_swap_b32 v{A[a]}, v{A[a + 4]}")
        for a in range(4):
            self(f"  v_add_f32 v{A[a]}, v{A[a]}, v{A[a + 4]}")
        for a in range(2):
            self(f"  v_permlane16_swap_b32 v{A[a]}, v{A[a + 2]}")
        for a in range(2):
            self(f"  v_add_f32 v{A[a]}, v{A[a]}, v{A[a + 2]}")
        self(f"  v_add_f32_dpp v{T}, v{A[0]}, v{A[0]} row_ror:8 row_mask:0xf bank_mask:0x3")
        self(f"  v_add_f32_dpp v{T}, v{A[1]}, v{A[1]} row_ror:8 row_mask:0xf bank_mask:0xc")

    def treduce4rows(self, A, out_pairs=None):
        n = len(A) // 4
        for k in range(n):
            a = A[4 * k:4 * k + 4]
            self(f"  v_permlane32_swap_b32 v{a[0]}, v{a[2]}")
            self(f"  v_permlane32_swap_b32 v{a[1]}, v{a[3]}")
        for k in range(n):
            a = A[4 * k:4 * k + 4]
            self(f"  v_add_f32 v{a[0]}, v{a[0]}, v{a[2]}")
            self(f"  v_add_f32 v{a[1]}, v{a[1]}, v{a[3]}")
        for k in range(n):
            a = A[4 * k:4 * k + 4]
            self(f"  v_permlane16_swap_b32 v{a[0]}, v{a[1]}")
        for k in range(n):
            a = A[4 * k:4 * k + 4]
            self(f"  v_add_f32 v{a[0]}, v{a[0]}, v{a[1]}")
        return [A[4 * k] for k in range(n)]

    def sentinel_check(self, regs, t):
        regs = list(regs)
        if len(regs) == 1:
            self(f"  v_cmp_eq_u32 vcc, -1, v{regs[0]}")
            return
        if len(regs) == 2:
            self(f"  v_max_u32 v{t}, v{regs[0]}, v{regs[1]}")
            regs = []
        else:
            self(f"  v_max3_u32 v{t}, v{regs[0]}, v{regs[1]}, v{regs[2]}")
            regs = regs[3:]
        while regs:
            if len(regs) >= 2:
                self(f"  v_max3_u32 v{t}, v{t}, v{regs[0]}, v{regs[1]}")
                regs = regs[2:]
            else:
                self(f"  v_max_u32 v{t}, v{t}, v{regs[0]}")
                regs = regs[1:]
        self(f"  v_cmp_eq_u32 vcc, -1, v{t}")

    def poll_loop(self, name, issue, regs, t, sleep=0):
        L = self.lab(name)
        Ld = self.lab(name + "d")
        self("  s_mov_b32 s57, 0")
        self(f"{L}:")
        issue()
        self("  s_waitcnt vmcnt(0)")
        self.sentinel_check(regs, t)
        self("  s_add_u32 s57, s57, 1")
        self(f"  s_cmp_gt_u32 s57, {SPIN_MAX}")
        self(f"  s_cbranch_scc1 {Ld}")
        if sleep:
            self(f"  s_cbranch_vccz {Ld}")
            self(f"  s_sleep {sleep}")
            self(f"  s_branch {L}")
        else:
            self(f"  s_cbranch_vccnz {L}")
        self(f"{Ld}:")

    def lds_spin(self, name, addr_v, off, t, target=None, sdst="s58", sleep=1):
        L = self.lab(name)
        Ld = self.lab(name + "d")
        self("  s_mov_b32 s57, 0")
        self(f"{L}:")
        self(f"  ds_read_b32 v{t}, v{addr_v} offset:{off}")
        self("  s_waitcnt lgkmcnt(0)")
        self(f"  v_readfirstlane_b32 {sdst}, v{t}")
        self("  s_add_u32 s57, s57, 1")
        self(f"  s_cmp_gt_u32 s57, {SPIN_MAX * 8}")
        self(f"  s_cbranch_scc1 {Ld}")
        if target is None:
            self(f"  s_cmp_lg_u32 {sdst}, 0")
        else:
            self(f"  s_cmp_eq_u32 {sdst}, {target}")
        self(f"  s_cbranch_scc1 {Ld}")
        if sleep:
            self(f"  s_sleep {sleep}")
        self(f"  s_branch {L}")
        self(f"{Ld}:")

    def mode_store(self, instr):
        Lf = self.lab("fast")
        Lj = self.lab("join")
        self("  s_cmp_eq_u32 s59, 2")
        self(f"  s_cbranch_scc1 {Lf}")
        for i in instr:
            self(f"  {i} sc1")
        self(f"  s_branch {Lj}")
        self(f"{Lf}:")
        for i in instr:
            self(f"  {i}")
        self(f"{Lj}:")

    def prologue(self):
        self(f"""; Fused decode step: LN -> q -> sliding-window attention (split over 8 WGs per head) -> wo,
; @launch grid=(256,1,1) block=(768,1,1) lds={LDS_BYTES}
.amdgcn_target "amdgcn-amd-amdhsa--gfx950"
.text
.globl {KNAME}
.p2align 8
.type {KNAME},@function
{KNAME}:
  s_cmp_ge_u32 s2, 256
  s_cbranch_scc1 L_end""")
        self.stamp(0)
        self(f"""  s_load_dwordx16 s[8:23], s[0:1], 0
  s_load_dwordx8 s[24:31], s[0:1], 64
  v_readfirstlane_b32 s3, v0
  v_and_b32 v0, 63, v0
  s_lshr_b32 s3, s3, 6
  s_and_b32 s4, s2, 7
  s_lshl_b32 s4, s4, 2
  s_lshr_b32 s5, s2, 3
  s_and_b32 s5, s5, 3
  s_add_u32 s4, s4, s5          ; h
  s_lshr_b32 s5, s2, 5          ; c
  s_cmp_ge_u32 s3, 8
  s_cbranch_scc1 L_helper""")

    def stream(self):
        D, E, SB = self.D, self.E, self.SB
        Q = list(range(4, 10))
        A = list(range(10, 22))
        P = list(range(22, 26))
        T = [26, 27]
        U = list(range(28, 32))
        PL = list(range(32, 36))
        PH = list(range(36, 40))
        t0, t1 = 40, 41
        RING = 42
        nbuf = 16 + E

        def kbuf(b):
            return RING + 6 * b

        def vbuf(j):
            return RING + 6 * (16 + j) if j < E else RING + 6 * (j - E)

        self(f"""  ; ---------------- stream waves ----------------
  s_mul_i32 s6, s4, 12582912
  s_mul_i32 s7, s5, 196608
  s_add_u32 s6, s6, s7
  s_add_u32 s6, s6, {28672 * 384}
  s_mul_i32 s7, s3, 24576
  v_lshrrev_b32 v3, 4, v0
  v_and_b32 v2, 15, v0
  v_mul_u32_u24 v3, 384, v3
  v_add_u32 v3, s7, v3
  v_lshl_add_u32 v1, v2, 4, v3      ; x4 offset
  v_lshl_add_u32 v2, v2, 3, v3
  v_add_u32 v2, 256, v2             ; x2 offset""")
        for k in range(1, 6):
            self(f"  s_mov_b32 s{59 + k}, {4608 * k}")
        self("  s_waitcnt lgkmcnt(0)")
        self.srd(32, 10, "s6", 196608)
        self.srd(36, 12, "s6", 196608)
        self.vm_reset()

        def issue(i):
            t, b = (0, i) if i < 16 else (1, i - 16)
            srd = "s[32:35]" if t == 0 else "s[36:39]"
            r = kbuf(b) if t == 0 else vbuf(b)
            so = "0" if b < 3 else f"s{59 + b // 3}"
            imm = 1536 * (b % 3)
            o = f" offset:{imm}" if imm else ""
            self(f"  buffer_load_dwordx4 v[{r}:{r + 3}], v1, {srd}, {so} offen{o} nt")
            self(f"  buffer_load_dwordx2 v[{r + 4}:{r + 5}], v2, {srd}, {so} offen{o} nt")
            self.vm_issue(("L", i))
            self.vm_issue(("L", i))

        def qk_group(g):
            bs = [kbuf(4 * g + k) for k in range(4)]
            for i in range(6):
                for k in range(4):
                    c = "0" if i == 0 else f"v{P[k]}"
                    self(f"  v_dot2_f32_bf16 v{P[k]}, v{bs[k] + i}, v{Q[i]}, {c}")
            self(f"  v_add_f32_dpp v{T[0]}, v{P[0]}, v{P[0]} row_ror:8 row_mask:0xf bank_mask:0x3")
            self(f"  v_add_f32_dpp v{T[1]}, v{P[1]}, v{P[1]} row_ror:8 row_mask:0xf bank_mask:0x3")
            self(f"  v_add_f32_dpp v{T[0]}, v{P[2]}, v{P[2]} row_ror:8 row_mask:0xf bank_mask:0xc")
            self(f"  v_add_f32_dpp v{T[1]}, v{P[3]}, v{P[3]} row_ror:8 row_mask:0xf bank_mask:0xc")
            self(f"  v_add_f32_dpp v{U[g]}, v{T[0]}, v{T[0]} row_shl:4 row_mask:0xf bank_mask:0x5")
            self(f"  v_add_f32_dpp v{U[g]}, v{T[1]}, v{T[1]} row_shr:4 row_mask:0xf bank_mask:0xa")
            self(f"  v_add_f32_dpp v{U[g]}, v{U[g]}, v{U[g]} quad_perm:[1,0,3,2] row_mask:0xf bank_mask:0xf")
            self(f"  v_add_f32_dpp v{U[g]}, v{U[g]}, v{U[g]} quad_perm:[2,3,0,1] row_mask:0xf bank_mask:0xf")

        def softmax():
            self(f"  v_cvt_pk_bf16_f32 v{P[0]}, v{U[0]}, v{U[1]}")
            self(f"  v_cvt_pk_bf16_f32 v{P[1]}, v{U[2]}, v{U[3]}")
            self(f"  v_lshlrev_b32 v{U[0]}, 16, v{P[0]}")
            self(f"  v_and_b32 v{U[1]}, 0xffff0000, v{P[0]}")
            self(f"  v_lshlrev_b32 v{U[2]}, 16, v{P[1]}")
            self(f"  v_and_b32 v{U[3]}, 0xffff0000, v{P[1]}")
            for g in range(4):
                self(f"  v_mul_f32 v{U[g]}, {SCALE}, v{U[g]}")
            self(f"  v_cvt_pk_bf16_f32 v{P[0]}, v{U[0]}, v{U[1]}")
            self(f"  v_cvt_pk_bf16_f32 v{P[1]}, v{U[2]}, v{U[3]}")
            self(f"  v_lshlrev_b32 v{U[0]}, 16, v{P[0]}")
            self(f"  v_and_b32 v{U[1]}, 0xffff0000, v{P[0]}")
            self(f"  v_lshlrev_b32 v{U[2]}, 16, v{P[1]}")
            self(f"  v_and_b32 v{U[3]}, 0xffff0000, v{P[1]}")
            self(f"  v_max3_f32 v{t0}, v{U[0]}, v{U[1]}, v{U[2]}")
            self(f"  v_max_f32 v{t0}, v{t0}, v{U[3]}")
            self(f"  v_max_f32_dpp v{t0}, v{t0}, v{t0} row_ror:4 row_mask:0xf bank_mask:0xf")
            self(f"  v_max_f32_dpp v{t0}, v{t0}, v{t0} row_ror:8 row_mask:0xf bank_mask:0xf")
            self.cross_rows("v_max_f32", t0, t1)
            for g in range(4):
                self(f"  v_sub_f32 v{U[g]}, v{U[g]}, v{t0}")
            for g in range(4):
                self(f"  v_mul_f32 v{U[g]}, {LOG2E}, v{U[g]}")
            for g in range(4):
                self(f"  v_exp_f32 v{U[g]}, v{U[g]}")
            self("  s_nop 0")
            for g in range(4):
                self(f"  v_cvt_pk_bf16_f32 v{PL[g]}, v{U[g]}, 0")
                self(f"  v_cvt_pk_bf16_f32 v{PH[g]}, 0, v{U[g]}")
            self(f"  v_add_f32 v{T[0]}, v{U[0]}, v{U[1]}")
            self(f"  v_add_f32 v{T[1]}, v{U[2]}, v{U[3]}")
            self(f"  v_add_f32 v{T[0]}, v{T[0]}, v{T[1]}")
            self(f"  v_add_f32_dpp v{T[0]}, v{T[0]}, v{T[0]} row_ror:4 row_mask:0xf bank_mask:0xf")
            self(f"  v_add_f32_dpp v{T[0]}, v{T[0]}, v{T[0]} row_ror:8 row_mask:0xf bank_mask:0xf")
            self.cross_rows("v_add_f32", T[0], t1)
            self(f"  s_lshl_b32 s6, s3, 2")
            self(f"  v_mov_b32 v{t1}, s6")
            self(f"  v_mov_b32 v{T[1]}, 1")
            self(f"  v_mov_b32 v{P[0]}, 0")
            self("  s_mov_b64 exec, 1")
            self(f"  ds_write_b32 v{t1}, v{t0} offset:{L_M}")
            self(f"  ds_write_b32 v{t1}, v{T[0]} offset:{L_L}")
            self("  s_waitcnt lgkmcnt(0)")
            self(f"  ds_add_u32 v{P[0]}, v{T[1]} offset:{L_CNT}")
            self("  s_mov_b64 exec, -1")
            for a in A:
                self(f"  v_mov_b32 v{a}, 0")

        def pv(j):
            g, k = j // 4, j % 4
            r = vbuf(j)
            for i in range(6):
                self(f"  v_dot2c_f32_bf16_dpp v{A[2 * i]}, v{PL[g]}, v{r + i} row_newbcast:{4 * k} row_mask:0xf bank_mask:0xf")
                self(f"  v_dot2c_f32_bf16_dpp v{A[2 * i + 1]}, v{PH[g]}, v{r + i} row_newbcast:{4 * k} row_mask:0xf bank_mask:0xf")

        qk_next = 0
        sm_done = False
        pv_next = 0
        landed = -1

        if self.b0pre:
            self("  s_barrier            ; B0")
        for i in range(32):
            if i >= D:
                self.vm_wait(("L", i - D))
                landed = i - D
            if i >= 16 and (i - 16) >= E:
                need_g = (i - 16 - E) // 4
                assert qk_next > need_g, f"schedule: V{i - 16} needs QK group {need_g} (slot {i})"
            issue(i)
            if i == D - 1 and not self.b0pre:
                self("  s_barrier            ; B0")
            if i == SB:
                self.stamp(1)
                self("  s_barrier            ; B1: q ready")
                self.stamp(2)
                self(f"  v_and_b32 v{t0}, 15, v0")
                self(f"  v_lshlrev_b32 v{t1}, 4, v{t0}")
                self(f"  v_lshlrev_b32 v{t0}, 3, v{t0}")
                self(f"  ds_read_b128 v[{Q[0]}:{Q[3]}], v{t1} offset:{L_Q}")
                self(f"  ds_read_b64 v[{Q[4]}:{Q[5]}], v{t0} offset:{L_Q + 256}")
                self("  s_waitcnt lgkmcnt(0)")
            if i >= SB:
                n = 0
                while qk_next < 4 and 4 * qk_next + 3 <= landed and n < 2:
                    qk_group(qk_next)
                    qk_next += 1
                    n += 1
                if qk_next == 4 and not sm_done:
                    softmax()
                    sm_done = True
                    self.stamp(3)
                elif sm_done:
                    n = 0
                    while pv_next < 16 and 16 + pv_next <= landed and n < 3:
                        pv(pv_next)
                        pv_next += 1
                        n += 1
        assert sm_done
        saved_vm = list(self.vm)
        saved_pv = pv_next
        Lnt = self.lab("nontail")
        Lj = self.lab("drainjoin")
        self("  s_cmp_ge_u32 s3, 5")
        self(f"  s_cbranch_scc1 {Lnt}")

        def drain():
            for j in range(saved_pv, 16):
                self.vm_wait(("L", 16 + j))
                if j == 15:
                    self.stamp(4)
                pv(j)

        self("  s_mul_i32 s6, s4, 245760      ; 192*1280*h")
        self("  s_mul_i32 s7, s5, 160")
        self("  s_add_u32 s6, s6, s7")
        self("  s_lshl_b32 s7, s3, 5")
        self("  s_add_u32 s6, s6, s7")
        self.srd(40, 16, "s6", 191 * 1280 + 32)
        self(f"  v_lshrrev_b32 v{t0}, 1, v0")
        self(f"  v_mul_u32_u24 v{t0}, 1280, v{t0}")
        self(f"  v_and_b32 v{t1}, 1, v0")
        self(f"  v_lshl_add_u32 v{t0}, v{t1}, 4, v{t0}")
        self("  s_mul_i32 s6, s3, 6144")
        self(f"  s_add_u32 s6, s6, {L_WO}")
        for i in range(6):
            self(f"  s_add_u32 m0, s6, {1024 * i}")
            self(f"  s_mov_b32 s7, {40960 * i}")
            self(f"  buffer_load_dwordx4 v{t0}, s[40:43], s7 offen nt lds")
            self.vm_issue(("W", i))
        drain()
        self(f"  s_branch {Lj}")
        self(f"{Lnt}:")
        self.vm = list(saved_vm)
        drain()
        self(f"{Lj}:")
        R = self.treduce4rows(A)
        self(f"  v_mov_b32 v{t1}, 0")
        self.lds_spin("flagf", t1, L_FLAGF, t0, target=None, sdst="s58", sleep=0)
        self(f"  s_lshl_b32 s6, s3, 2")
        self(f"  v_mov_b32 v{t1}, s6")
        self(f"  ds_read_b32 v{t0}, v{t1} offset:{L_F}")
        self(f"  v_and_b32 v{P[0]}, 15, v0")
        self(f"  v_lshrrev_b32 v{P[1]}, 4, v0")
        self(f"  v_lshlrev_b32 v{P[1]}, 2, v{P[1]}")
        self(f"  v_lshl_add_u32 v{P[2]}, v{P[0]}, 5, v{P[1]}")
        self(f"  v_lshl_add_u32 v{P[3]}, v{P[0]}, 4, v{P[1]}")
        self("  s_waitcnt lgkmcnt(0)")
        for r in R:
            self(f"  v_mul_f32 v{r}, v{t0}, v{r}")
        self(f"  ds_add_f32 v{P[2]}, v{R[0]} offset:{L_O}")
        self(f"  ds_add_f32 v{P[2]}, v{R[1]} offset:{L_O + 16}")
        self(f"  ds_add_f32 v{P[3]}, v{R[2]} offset:{L_O + 512}")
        self("  s_waitcnt lgkmcnt(0)")
        self.stamp(5)
        self("  s_cmp_ge_u32 s3, 5")
        self("  s_cbranch_scc1 L_exit_stamped")
        self("  s_barrier            ; B2: O accumulated")
        Bf = RING
        Af = RING + 24
        Dd = RING + 48
        self.srd(44, 30, None, WS_SIZE)
        self(f"  v_lshrrev_b32 v{P[0]}, 4, v0          ; g")
        self(f"  v_and_b32 v{P[1]}, 15, v0")
        self(f"  v_lshrrev_b32 v{P[2]}, 2, v{P[1]}      ; r4")
        self(f"  v_and_b32 v{P[3]}, 3, v0              ; cq")
        self(f"  v_lshl_add_u32 v{t0}, v{P[0]}, 3, v{P[2]}   ; 8g + r4")
        self(f"  v_lshlrev_b32 v{t0}, 5, v{t0}")
        self(f"  v_lshl_add_u32 v{t0}, v{P[3]}, 3, v{t0}")
        self("  s_mul_i32 s6, s3, 6144")
        self(f"  s_add_u32 s6, s6, {L_WO}")
        self(f"  v_add_u32 v{t0}, s6, v{t0}")
        self(f"  v_and_b32 v{t1}, 7, v0")
        self(f"  v_lshlrev_b32 v{t1}, 11, v{t1}")
        self(f"  v_lshl_add_u32 v{t1}, v{P[0]}, 4, v{t1}")
        self("  s_lshl_b32 s6, s4, 14")
        self(f"  s_add_u32 s6, s6, {O_O2}")
        self(f"  v_add_u32 v{t1}, s6, v{t1}")
        self("  s_waitcnt vmcnt(0)")
        for s in range(6):
            self(f"  ds_read_b64_tr_b16 v[{Bf + 4 * s}:{Bf + 4 * s + 1}], v{t0} offset:{1024 * s}")
            self(f"  ds_read_b64_tr_b16 v[{Bf + 4 * s + 2}:{Bf + 4 * s + 3}], v{t0} offset:{1024 * s + 128}")
        for d in range(4):
            self(f"  v_mov_b32 v{Dd + d}, 0")

        def issueA():
            for s in range(6):
                o = f" offset:{64 * s}" if s else ""
                self(f"  buffer_load_dwordx4 v[{Af + 4 * s}:{Af + 4 * s + 3}], v{t1}, s[44:47], 0 offen{o} sc1")

        self.poll_loop("pollA", issueA, range(Af, Af + 24), P[0])
        self.stamp(6)
        self("  s_waitcnt lgkmcnt(0)")
        for s in range(6):
            self(f"  v_mfma_f32_16x16x32_bf16 v[{Dd}:{Dd + 3}], v[{Af + 4 * s}:{Af + 4 * s + 3}], v[{Bf + 4 * s}:{Bf + 4 * s + 3}], v[{Dd}:{Dd + 3}]")
        self("  s_mul_i32 s6, s5, 20480")
        self("  s_lshl_b32 s7, s3, 12")
        self("  s_add_u32 s6, s6, s7")
        self("  s_lshl_b32 s7, s4, 6")
        self("  s_add_u32 s6, s6, s7")
        self(f"  s_add_u32 s6, s6, {SD_BASE}")
        self(f"  v_lshlrev_b32 v{t1}, 2, v0")
        self(f"  v_add_u32 v{t1}, s6, v{t1}")
        self(f"  v_add_f32 v{Dd}, v{Dd}, v{Dd + 1}")
        self(f"  v_add_f32 v{Dd + 2}, v{Dd + 2}, v{Dd + 3}")
        self(f"  v_add_f32 v{Dd}, v{Dd}, v{Dd + 2}")
        self(f"  v_mov_b32 v{t0}, v{Dd}")
        self(f"  v_permlane16_swap_b32 v{Dd}, v{t0}")
        self(f"  v_add_f32 v{Dd}, v{Dd}, v{t0}")
        self(f"  v_min_u32 v{Dd}, -2, v{Dd}")
        self("  s_mov_b32 exec_lo, 0xffff")
        self("  s_mov_b32 exec_hi, 0")
        self(f"  buffer_store_dword v{Dd}, v{t1}, s[44:47], 0 offen sc1")
        self("  s_mov_b64 exec, -1")
        self.stamp(7)
        self("  s_branch L_exit_stamped")

    def ln(self, X, xs, t):
        for i in range(5):
            self(f"  v_lshlrev_b32 v{xs[2 * i]}, 16, v{X[i]}")
            self(f"  v_and_b32 v{xs[2 * i + 1]}, 0xffff0000, v{X[i]}")
        s, u, m = t[0], t[1], t[2]
        self(f"  v_add_f32 v{s}, v{xs[0]}, v{xs[1]}")
        for i in range(2, 10):
            self(f"  v_add_f32 v{s}, v{s}, v{xs[i]}")
        self.allreduce("v_add_f32", s, u)
        self(f"  v_mul_f32 v{m}, {INV640}, v{s}")
        self(f"  v_sub_f32 v{u}, v{xs[0]}, v{m}")
        self(f"  v_mul_f32 v{s}, v{u}, v{u}")
        for i in range(1, 10):
            self(f"  v_sub_f32 v{u}, v{xs[i]}, v{m}")
            self(f"  v_fmac_f32 v{s}, v{u}, v{u}")
        self.allreduce("v_add_f32", s, u)
        self(f"  v_mul_f32 v{s}, {INV640}, v{s}          ; var")
        self(f"  v_cvt_pk_bf16_f32 v{u}, v{s}, v{m}")
        self(f"  v_lshlrev_b32 v{s}, 16, v{u}            ; bf16(var)")
        self(f"  v_and_b32 v{m}, 0xffff0000, v{u}        ; bf16(mean)")
        self(f"  v_add_f32 v{s}, {EPS}, v{s}")
        self(f"  v_cvt_pk_bf16_f32 v{s}, v{s}, v{s}")
        self(f"  v_lshlrev_b32 v{s}, 16, v{s}")
        self(f"  v_sqrt_f32 v{s}, v{s}")
        self("  s_nop 0")
        self(f"  v_cvt_pk_bf16_f32 v{s}, v{s}, v{s}")
        self(f"  v_lshlrev_b32 v{s}, 16, v{s}")
        self(f"  v_rcp_f32 v{s}, v{s}")
        for i in range(10):
            self(f"  v_sub_f32 v{xs[i]}, v{xs[i]}, v{m}")
        for i in range(5):
            self(f"  v_cvt_pk_bf16_f32 v{X[i]}, v{xs[2 * i]}, v{xs[2 * i + 1]}")
        for i in range(5):
            self(f"  v_lshlrev_b32 v{xs[2 * i]}, 16, v{X[i]}")
            self(f"  v_and_b32 v{xs[2 * i + 1]}, 0xffff0000, v{X[i]}")
        for i in range(10):
            self(f"  v_mul_f32 v{xs[i]}, v{xs[i]}, v{s}")
        for i in range(5):
            self(f"  v_cvt_pk_bf16_f32 v{X[i]}, v{xs[2 * i]}, v{xs[2 * i + 1]}")
        self(f"  v_lshlrev_b32 v{u}, 2, v0")
        for i in range(5):
            self(f"  ds_write_b32 v{u}, v{X[i]} offset:{L_XN + 256 * i}")

    def xn_rows(self, XL, XH, t):
        self(f"  v_lshrrev_b32 v{t}, 3, v0")
        self("  s_mul_i32 s6, s5, 80")
        self(f"  v_add_u32 v{t}, s6, v{t}")
        self(f"  v_lshlrev_b32 v{t}, 1, v{t}")
        self("  s_waitcnt lgkmcnt(0)")
        for i in range(10):
            self(f"  ds_read_u16 v{XL[i]}, v{t} offset:{L_XN + 16 * i}")
        self("  s_waitcnt lgkmcnt(0)")
        for i in range(10):
            self(f"  v_lshlrev_b32 v{XH[i]}, 16, v{XL[i]}")

    def gather_h1(self, nparts, part0_sgpr_off, dst, addr):
        def issue():
            for p in range(nparts):
                for c in range(8):
                    so = ["0", "s60", "s61", "s62"][c // 2]
                    imm = 2048 * (c % 2) + 256 * p
                    o = f" offset:{imm}" if imm else ""
                    self(f"  buffer_load_dword v{dst[p * 8 + c]}, v{addr}, s[44:47], {so} offen{o} sc1")
        self.poll_loop("h1", issue, dst[:nparts * 8], dst[nparts * 8], sleep=2)

    def helper(self):
        X = list(range(4, 9))
        xs = list(range(10, 20))
        t = [20, 21, 22, 23]
        XL = list(range(24, 34))
        XH = list(range(34, 44))
        ACC = list(range(44, 60))
        W = 64
        self("L_helper:")
        if self.prio:
            self(f"  s_setprio {self.prio}")
        self("  s_sub_u32 s7, s3, 8")
        self("  v_lshlrev_b32 v1, 2, v0       ; 4*lane")
        self("  s_mov_b32 s60, 4096")
        self("  s_mov_b32 s61, 8192")
        self("  s_mov_b32 s62, 12288")
        self("  s_waitcnt lgkmcnt(0)")
        self.srd(32, 8, None, 1280)
        self.srd(44, 30, None, WS_SIZE)
        self.srd(48, 28, None, 256)
        self("  s_cmp_eq_u32 s3, 11")
        self("  s_cbranch_scc1 L_h3")
        self("  s_mul_i32 s6, s5, 983040      ; 80*12288*c")
        self("  s_mul_i32 s56, s4, 384")
        self("  s_add_u32 s6, s6, s56")
        self.srd(36, 14, "s6", 79 * 12288 + 384)
        self(f"  v_lshrrev_b32 v2, 3, v0")
        self(f"  v_mul_u32_u24 v2, 12288, v2")
        self(f"  v_and_b32 v3, 7, v0")
        self(f"  v_lshl_add_u32 v2, v3, 4, v2")
        self("  s_lshl_b32 s6, s7, 7")
        self(f"  v_add_u32 v2, s6, v2")
        self("  s_cmp_eq_u32 s3, 10")
        self("  s_cbranch_scc0 L_noclear")
        self("  v_mov_b32 v8, -1")
        self("  v_mov_b32 v9, -1")
        self("  v_mov_b32 v10, -1")
        self("  v_mov_b32 v11, -1")
        self("  s_lshl_b32 s6, s4, 14")
        self("  s_lshl_b32 s56, s5, 11")
        self("  s_add_u32 s6, s6, s56          ; box")
        self("  v_lshlrev_b32 v3, 4, v0")
        self("  v_add_u32 v12, s6, v3")
        self("  buffer_store_dwordx4 v[8:11], v12, s[44:47], 0 offen sc1")
        self("  buffer_store_dwordx4 v[8:11], v12, s[44:47], 0 offen offset:1024 sc1")
        self("  s_mul_i32 s6, s5, 20480")
        self("  s_lshl_b32 s56, s4, 6")
        self("  s_add_u32 s6, s6, s56")
        self(f"  s_add_u32 s6, s6, {SD_BASE}")
        self("  v_lshrrev_b32 v13, 2, v0")
        self("  v_lshlrev_b32 v13, 11, v13")
        self("  v_and_b32 v14, 3, v0")
        self("  v_lshl_add_u32 v13, v14, 4, v13")
        self("  v_add_u32 v13, s6, v13")
        self("  s_mov_b32 exec_hi, 0xff")
        self("  buffer_store_dwordx4 v[8:11], v13, s[44:47], 0 offen sc1")
        self("  s_mov_b64 exec, -1")
        self("  v_mov_b32 v16, 0")
        self("  v_mov_b32 v17, 0")
        self("  v_mov_b32 v18, 0")
        self("  v_mov_b32 v19, 0")
        self(f"  ds_write_b128 v3, v[16:19] offset:{L_MODE}")
        self("  s_waitcnt lgkmcnt(0)")
        self("L_noclear:")
        for i in range(5):
            o = f" offset:{256 * i}" if i else ""
            self(f"  buffer_load_dword v{X[i]}, v1, s[32:35], 0 offen{o}")
        for i in range(10):
            self(f"  s_mov_b32 s6, {98304 * i}")
            self(f"  buffer_load_dwordx4 v[{W + 4 * i}:{W + 4 * i + 3}], v2, s[36:39], s6 offen nt")
        self("  s_barrier            ; B0")
        self("  s_cmp_eq_u32 s3, 10")
        self("  s_cbranch_scc0 L_noatom")
        self("  s_waitcnt vmcnt(15)")
        self.stamp(6)
        self("  s_getreg_b32 s6, hwreg(HW_REG_XCC_ID, 0, 4)")
        self("  s_mul_i32 s56, s6, s6")
        self("  s_lshl_b32 s56, s56, 16")
        self("  s_lshl_b32 s6, s6, 8")
        self("  s_add_u32 s6, s6, s56")
        self("  s_add_u32 s63, s6, 1")
        self("  s_lshl_b32 s6, s4, 3")
        self("  v_mov_b32 v12, s6")
        self("  v_mov_b32 v13, s63")
        self("  s_mov_b64 exec, 1")
        self("  buffer_atomic_add v13, v12, s[48:51], 0 offen sc1")
        self("  s_mov_b64 exec, -1")
        self("  s_waitcnt vmcnt(11)")
        self("  s_branch L_ln")
        self("L_noatom:")
        self("  s_waitcnt vmcnt(10)")
        self("L_ln:")
        self.ln(X, xs, t)
        self.xn_rows(XL, XH, t[0])
        self.stamp(1)
        self("  s_waitcnt vmcnt(1)")
        self("  s_cmp_eq_u32 s3, 10")
        self("  s_cbranch_scc1 L_wq_ready")
        self("  s_waitcnt vmcnt(0)")
        self("L_wq_ready:")
        self.stamp(2)
        for i in range(10):
            for k in range(4):
                c0 = "0" if i == 0 else f"v{ACC[2 * k]}"
                c1 = "0" if i == 0 else f"v{ACC[2 * k + 1]}"
                self(f"  v_dot2_f32_bf16 v{ACC[2 * k]}, v{W + 4 * i + k}, v{XL[i]}, {c0}")
                self(f"  v_dot2_f32_bf16 v{ACC[2 * k + 1]}, v{W + 4 * i + k}, v{XH[i]}, {c1}")
        self.treduce8(ACC[:8], t[1])
        self(f"  v_min_u32 v{t[1]}, -2, v{t[1]}")
        self("  s_cmp_eq_u32 s3, 10")
        self("  s_cbranch_scc0 L_waitmode")
        Lp = self.lab("cntpoll")
        Lpd = self.lab("cntpolld")
        self("  s_lshl_b32 s6, s4, 3")
        self("  v_mov_b32 v12, s6")
        self("  s_mov_b32 s57, 0")
        self(f"{Lp}:")
        self("  buffer_load_dword v13, v12, s[48:51], 0 offen sc1")
        self("  s_waitcnt vmcnt(0)")
        self("  v_readfirstlane_b32 s58, v13")
        self("  s_add_u32 s57, s57, 1")
        self(f"  s_cmp_gt_u32 s57, {SPIN_MAX}")
        self(f"  s_cbranch_scc1 {Lpd}")
        self("  s_and_b32 s6, s58, 0xff")
        self("  s_cmp_eq_u32 s6, 8")
        self(f"  s_cbranch_scc0 {Lp}")
        self(f"{Lpd}:")
        if self.stamps:
            self("  s_mov_b32 s84, s57")
        self("  s_lshl_b32 s6, s63, 3")
        self("  s_cmp_eq_u32 s58, s6")
        if self.force_slow:
            self("  s_mov_b32 s59, 1")
        else:
            self("  s_cselect_b32 s59, 2, 1")
        self("  v_mov_b32 v13, s59")
        self("  v_mov_b32 v12, 0")
        self(f"  ds_write_b32 v12, v13 offset:{L_MODE}")
        self("  s_branch L_havemode")
        self("L_waitmode:")
        self(f"  v_mov_b32 v12, 0")
        self.lds_spin("mode", 12, L_MODE, 13, target=None, sdst="s59")
        self("L_havemode:")
        self.stamp(3)
        self("  s_lshl_b32 s6, s4, 14")
        self("  s_lshl_b32 s56, s7, 8")
        self("  s_add_u32 s6, s6, s56")
        self("  v_add_u32 v14, s6, v1")
        self("  s_lshl_b32 s56, s5, 11")
        self("  v_add_u32 v15, s56, v14")
        self.mode_store([f"buffer_store_dword v{t[1]}, v15, s[44:47], 0 offen"])
        G8 = list(range(64, 73))
        self.gather_h1(1, None, G8, 14)
        self.stamp(4)
        self(f"  v_add_f32 v{G8[0]}, v{G8[0]}, v{G8[1]}")
        self(f"  v_add_f32 v{G8[2]}, v{G8[2]}, v{G8[3]}")
        self(f"  v_add_f32 v{G8[4]}, v{G8[4]}, v{G8[5]}")
        self(f"  v_add_f32 v{G8[6]}, v{G8[6]}, v{G8[7]}")
        self(f"  v_add_f32 v{G8[0]}, v{G8[0]}, v{G8[2]}")
        self(f"  v_add_f32 v{G8[4]}, v{G8[4]}, v{G8[6]}")
        self(f"  v_add_f32 v{G8[0]}, v{G8[0]}, v{G8[4]}")
        self(f"  v_cvt_pk_bf16_f32 v{G8[0]}, v{G8[0]}, v{G8[0]}")
        self("  v_and_b32 v16, 7, v0")
        self("  v_lshrrev_b32 v17, 3, v0")
        self("  v_lshl_add_u32 v16, v16, 3, v17")
        self("  s_lshl_b32 s6, s7, 6")
        self("  v_add_u32 v16, s6, v16")
        self("  v_lshlrev_b32 v16, 1, v16")
        self(f"  ds_write_b16 v16, v{G8[0]} offset:{L_Q}")
        self("  s_waitcnt lgkmcnt(0)")
        self.stamp(5)
        self("  s_cmp_eq_u32 s3, 8")
        self("  s_cbranch_scc1 L_h0")
        self("  s_cmp_eq_u32 s3, 9")
        self("  s_cbranch_scc0 L_exit_stamped")
        self("  s_mov_b32 s56, -1")
        for tt in range(5):
            self(f"  s_cmp_eq_u32 s4, {6 * tt + 1}")
            self(f"  s_cselect_b32 s56, {tt}, s56")
        self("  s_cmp_eq_u32 s56, -1")
        self("  s_cbranch_scc1 L_exit_stamped")
        self.final_consumer()

        self("L_h0:")
        self("  s_barrier            ; B1")
        self("  v_mov_b32 v12, 0")
        self.lds_spin("cnt", 12, L_CNT, 13, target=8, sdst="s58")
        self("  v_and_b32 v14, 7, v0")
        self("  v_lshlrev_b32 v14, 2, v14")
        self(f"  ds_read_b32 v16, v14 offset:{L_M}")
        self(f"  ds_read_b32 v17, v14 offset:{L_L}")
        self("  s_waitcnt lgkmcnt(0)")
        self("  v_mov_b32 v18, v16")
        for r in (1, 2, 4):
            self(f"  v_max_f32_dpp v18, v18, v18 row_ror:{r} row_mask:0xf bank_mask:0xf")
        self("  v_sub_f32 v19, v16, v18")
        self(f"  v_mul_f32 v19, {LOG2E}, v19")
        self("  v_exp_f32 v19, v19")
        self("  s_nop 0")
        self("  v_mul_f32 v19, v19, v17")
        for r in (1, 2, 4):
            self(f"  v_add_f32_dpp v19, v19, v19 row_ror:{r} row_mask:0xf bank_mask:0xf")
        self("  v_min_u32 v20, -2, v18")
        self("  v_min_u32 v21, -2, v19")
        self("  s_lshl_b32 s6, s4, 14")
        self("  s_lshl_b32 s56, s5, 11")
        self("  s_add_u32 s6, s6, s56")
        self(f"  s_add_u32 s6, s6, {O_LSE}")
        self("  v_mov_b32 v15, s6")
        self("  s_mov_b64 exec, 1")
        self.mode_store(["buffer_store_dwordx2 v[20:21], v15, s[44:47], 0 offen"])
        self("  s_mov_b64 exec, -1")
        self("  v_and_b32 v15, 7, v0")
        self("  v_lshlrev_b32 v15, 11, v15")
        self("  s_lshl_b32 s6, s4, 14")
        self(f"  s_add_u32 s6, s6, {O_LSE}")
        self("  v_add_u32 v15, s6, v15")

        def issue_lse():
            self("  buffer_load_dwordx2 v[22:23], v15, s[44:47], 0 offen sc1")
        self.poll_loop("lse", issue_lse, [22, 23], 24, sleep=1)
        self("  v_mov_b32 v18, v22")
        for r in (1, 2, 4):
            self(f"  v_max_f32_dpp v18, v18, v18 row_ror:{r} row_mask:0xf bank_mask:0xf")
        self("  v_sub_f32 v19, v22, v18")
        self(f"  v_mul_f32 v19, {LOG2E}, v19")
        self("  v_exp_f32 v19, v19")
        self("  s_nop 0")
        self("  v_mul_f32 v19, v19, v23")
        for r in (1, 2, 4):
            self(f"  v_add_f32_dpp v19, v19, v19 row_ror:{r} row_mask:0xf bank_mask:0xf")
        self("  v_rcp_f32 v19, v19")
        self("  v_sub_f32 v16, v16, v18")
        self(f"  v_mul_f32 v16, {LOG2E}, v16")
        self("  v_exp_f32 v16, v16")
        self("  s_nop 0")
        self("  v_mul_f32 v16, v16, v19          ; F[w]")
        self("  s_mov_b32 exec_lo, 0xff")
        self("  s_mov_b32 exec_hi, 0")
        self(f"  ds_write_b32 v14, v16 offset:{L_F}")
        self("  s_waitcnt lgkmcnt(0)")
        self("  s_mov_b64 exec, 1")
        self("  v_mov_b32 v13, 1")
        self(f"  ds_write_b32 v12, v13 offset:{L_FLAGF}")
        self("  s_mov_b64 exec, -1")
        self("  s_waitcnt lgkmcnt(0)")
        self.stamp(6)
        self("  v_lshlrev_b32 v14, 4, v0")
        self("  s_lshl_b32 s6, s4, 14")
        self("  s_lshl_b32 s56, s5, 11")
        self("  s_add_u32 s6, s6, s56")
        self(f"  s_add_u32 s6, s6, {O_O2}")
        self("  v_lshlrev_b32 v15, 3, v0")
        self("  v_add_u32 v15, s6, v15")
        self("  s_mov_b32 exec_hi, 0xffff         ; 48 lanes")
        self("  s_barrier            ; B2")
        self(f"  ds_read_b128 v[16:19], v14 offset:{L_O}")
        self("  s_waitcnt lgkmcnt(0)")
        self("  v_cvt_pk_bf16_f32 v20, v16, v17")
        self("  v_cvt_pk_bf16_f32 v21, v18, v19")
        self("  v_min_u32 v20, -2, v20")
        self("  v_min_u32 v21, -2, v21")
        self.mode_store(["buffer_store_dwordx2 v[20:21], v15, s[44:47], 0 offen"])
        self("  s_mov_b64 exec, -1")
        self.stamp(7)
        self("  s_branch L_exit_stamped")

        self("L_h3:")
        self("  s_mul_i32 s6, s5, 245760       ; 80*3072*c")
        self("  s_mul_i32 s56, s4, 96")
        self("  s_add_u32 s6, s6, s56")
        self.srd(36, 20, "s6", 79 * 3072 + 96)
        self.srd(40, 22, "s6", 79 * 3072 + 96)
        self("  s_mul_i32 s6, s4, 61440        ; 48*1280*h")
        self("  s_mul_i32 s56, s5, 160")
        self("  s_add_u32 s6, s6, s56")
        self.srd(52, 24, "s6", 47 * 1280 + 160)
        self("  v_lshrrev_b32 v2, 3, v0")
        self("  v_mul_u32_u24 v2, 3072, v2")
        self("  v_and_b32 v3, 7, v0")
        self("  v_mul_u32_u24 v3, 12, v3")
        self("  v_add_u32 v2, v2, v3")
        self("  v_lshrrev_b32 v9, 4, v0")
        self("  v_mul_u32_u24 v9, 1280, v9")
        self("  v_and_b32 v3, 15, v0")
        self("  v_lshl_add_u32 v9, v3, 4, v9")
        self("  v_mov_b32 v10, 0x7fffffff")
        self("  v_cmp_gt_u32 vcc, 10, v3")
        self("  v_cndmask_b32 v9, v10, v9, vcc")
        WG, WU, WD = 64, 104, 144
        WD = 104
        for i in range(5):
            o = f" offset:{256 * i}" if i else ""
            self(f"  buffer_load_dword v{X[i]}, v1, s[32:35], 0 offen{o}")
        for i in range(10):
            self(f"  s_mov_b32 s6, {24576 * i}")
            self(f"  buffer_load_dwordx3 v[{WG + 4 * i}:{WG + 4 * i + 2}], v2, s[36:39], s6 offen nt")
        for i in range(10):
            self(f"  s_mov_b32 s6, {24576 * i}")
            self(f"  buffer_load_dwordx3 v[{WU + 4 * i}:{WU + 4 * i + 2}], v2, s[40:43], s6 offen nt")
        self("  s_barrier            ; B0")
        self("  s_waitcnt vmcnt(20)")
        self.ln(X, xs, t)
        self.xn_rows(XL, XH, t[0])
        self.stamp(1)
        GA = list(range(44, 52))
        UA = list(range(52, 60))
        self("  s_waitcnt vmcnt(10)")
        for (Wr, AC, last) in ((WG, GA, False), (WU, UA, True)):
            if last:
                self("  s_waitcnt vmcnt(0)")
                self.stamp(2)
            for i in range(10):
                for k in range(3):
                    c0 = "0" if i == 0 else f"v{AC[2 * k]}"
                    c1 = "0" if i == 0 else f"v{AC[2 * k + 1]}"
                    self(f"  v_dot2_f32_bf16 v{AC[2 * k]}, v{Wr + 4 * i + k}, v{XL[i]}, {c0}")
                    self(f"  v_dot2_f32_bf16 v{AC[2 * k + 1]}, v{Wr + 4 * i + k}, v{XH[i]}, {c1}")
            self(f"  v_mov_b32 v{AC[6]}, 0")
            self(f"  v_mov_b32 v{AC[7]}, 0")
        WD = 64
        for n in range(12):
            self(f"  s_mov_b32 s6, {5120 * n}")
            self(f"  buffer_load_dwordx4 v[{WD + 4 * n}:{WD + 4 * n + 3}], v9, s[52:55], s6 offen nt")
        self.treduce8(GA, t[1])
        self.treduce8(UA, t[2])
        self(f"  v_min_u32 v{t[1]}, -2, v{t[1]}")
        self(f"  v_min_u32 v{t[2]}, -2, v{t[2]}")
        self(f"  v_mov_b32 v12, 0")
        self.lds_spin("mode", 12, L_MODE, 13, target=None, sdst="s59")
        self.stamp(3)
        self("  s_lshl_b32 s6, s4, 14")
        self(f"  s_add_u32 s6, s6, {3 * 256}")
        self("  v_add_u32 v14, s6, v1          ; h*16384 + 768 + 4*lane")
        self("  s_lshl_b32 s56, s5, 11")
        self("  v_add_u32 v15, s56, v14")
        self.mode_store([f"buffer_store_dword v{t[1]}, v15, s[44:47], 0 offen",
                         f"buffer_store_dword v{t[2]}, v15, s[44:47], 0 offen offset:256"])
        G16 = list(range(120, 137))
        self.gather_h1(2, None, G16, 14)
        self.stamp(4)
        for p in range(2):
            g = G16[8 * p:8 * p + 8]
            self(f"  v_add_f32 v{g[0]}, v{g[0]}, v{g[1]}")
            self(f"  v_add_f32 v{g[2]}, v{g[2]}, v{g[3]}")
            self(f"  v_add_f32 v{g[4]}, v{g[4]}, v{g[5]}")
            self(f"  v_add_f32 v{g[6]}, v{g[6]}, v{g[7]}")
            self(f"  v_add_f32 v{g[0]}, v{g[0]}, v{g[2]}")
            self(f"  v_add_f32 v{g[4]}, v{g[4]}, v{g[6]}")
            self(f"  v_add_f32 v{g[0]}, v{g[0]}, v{g[4]}")
        self(f"  v_cvt_pk_bf16_f32 v16, v{G16[0]}, v{G16[8]}")
        self("  v_lshlrev_b32 v17, 16, v16         ; gate")
        self("  v_and_b32 v18, 0xffff0000, v16     ; up")
        self("  v_max_f32 v17, 0, v17")
        self("  v_mul_f32 v17, v17, v18")
        self("  v_cvt_pk_bf16_f32 v17, v17, v17    ; h")
        self("  v_and_b32 v18, 7, v0")
        self("  v_mul_u32_u24 v18, 6, v18")
        self("  v_lshrrev_b32 v19, 3, v0")
        self("  v_add_u32 v18, v18, v19")
        self("  v_lshlrev_b32 v18, 1, v18")
        self("  s_mov_b32 exec_hi, 0xffff")
        self(f"  ds_write_b16 v18, v17 offset:{L_HB}")
        self("  s_mov_b64 exec, -1")
        self("  v_and_b32 v18, 15, v0")
        self("  v_lshrrev_b32 v19, 4, v0")
        self("  v_lshl_add_u32 v18, v18, 2, v19")
        self("  v_lshlrev_b32 v18, 1, v18")
        self("  s_waitcnt lgkmcnt(0)")
        self(f"  ds_read_u16 v20, v18 offset:{L_HB}")
        DA = list(range(44, 52))
        for a in DA:
            self(f"  v_mov_b32 v{a}, 0")
        self("  s_waitcnt lgkmcnt(0)")
        self("  v_lshlrev_b32 v21, 16, v20")
        self("  s_nop 1")
        for n in range(12):
            for k in range(4):
                self(f"  v_dot2c_f32_bf16_dpp v{DA[2 * k]}, v20, v{WD + 4 * n + k} row_newbcast:{n} row_mask:0xf bank_mask:0xf")
                self(f"  v_dot2c_f32_bf16_dpp v{DA[2 * k + 1]}, v21, v{WD + 4 * n + k} row_newbcast:{n} row_mask:0xf bank_mask:0xf")
        R = self.treduce4rows(DA)
        self("  s_mul_i32 s6, s5, 20480")
        self("  s_lshl_b32 s56, s4, 6")
        self("  s_add_u32 s6, s6, s56")
        self(f"  s_add_u32 s6, s6, {SD_BASE + 2048}")
        self("  v_and_b32 v18, 15, v0              ; j")
        self("  v_lshrrev_b32 v19, 1, v18          ; t")
        self("  v_lshlrev_b32 v19, 12, v19")
        self("  v_and_b32 v22, 1, v18")
        self("  v_lshl_add_u32 v19, v22, 5, v19")
        self("  v_lshrrev_b32 v22, 4, v0           ; rho")
        self("  v_lshl_add_u32 v19, v22, 2, v19")
        self("  v_add_u32 v19, s6, v19")
        self("  v_mov_b32 v22, 0x7fffffff")
        self("  v_cmp_gt_u32 vcc, 10, v18")
        self("  v_cndmask_b32 v19, v22, v19, vcc")
        self(f"  v_min_u32 v{R[0]}, -2, v{R[0]}")
        self(f"  v_min_u32 v{R[1]}, -2, v{R[1]}")
        self(f"  buffer_store_dword v{R[0]}, v19, s[44:47], 0 offen sc1")
        self(f"  buffer_store_dword v{R[1]}, v19, s[44:47], 0 offen offset:16 sc1")
        self.stamp(5)
        self("  s_branch L_exit_stamped")

    def final_consumer(self):
        self("  s_barrier            ; B1")
        L = self.lab("allcnt")
        Ld = self.lab("allcntd")
        self("  v_and_b32 v12, 31, v0")
        self("  v_lshlrev_b32 v12, 3, v12")
        self("  s_mov_b32 s57, 0")
        self(f"{L}:")
        self("  buffer_load_dword v13, v12, s[48:51], 0 offen sc1")
        self("  s_waitcnt vmcnt(0)")
        self("  v_and_b32 v13, 0xff, v13")
        self("  v_cmp_ne_u32 vcc, 8, v13")
        self("  s_add_u32 s57, s57, 1")
        self(f"  s_cmp_gt_u32 s57, {SPIN_MAX}")
        self(f"  s_cbranch_scc1 {Ld}")
        self(f"  s_cbranch_vccnz {L}")
        self(f"{Ld}:")
        self("  s_mul_i32 s6, s5, 20480")
        self("  s_lshl_b32 s7, s56, 12")
        self("  s_add_u32 s6, s6, s7")
        self(f"  s_add_u32 s6, s6, {SD_BASE}")
        self("  v_lshlrev_b32 v14, 4, v0")
        self("  v_add_u32 v14, s6, v14")
        self("  v_and_b32 v15, 3, v0")
        self("  v_lshlrev_b32 v15, 2, v15")
        self("  v_lshrrev_b32 v16, 5, v0")
        self("  v_lshl_add_u32 v15, v16, 1, v15")
        self("  v_bfe_u32 v16, v0, 4, 1")
        self("  v_add_u32 v15, v15, v16")
        self("  s_mul_i32 s6, s5, 80")
        self("  s_lshl_b32 s7, s56, 4")
        self("  s_add_u32 s6, s6, s7")
        self("  v_add_u32 v15, s6, v15")
        self("  v_lshlrev_b32 v15, 1, v15")
        self("  buffer_load_ushort v17, v15, s[32:35], 0 offen")
        self.srd(40, 26, None, 1280)

        def red(base):
            for k in range(4):
                self(f"  v_add_f32 v{base + k}, v{base + k}, v{base + 4 + k}")
            self(f"  v_permlane32_swap_b32 v{base}, v{base + 2}")
            self(f"  v_permlane32_swap_b32 v{base + 1}, v{base + 3}")
            self(f"  v_add_f32 v{base}, v{base}, v{base + 2}")
            self(f"  v_add_f32 v{base + 1}, v{base + 1}, v{base + 3}")
            self(f"  v_permlane16_swap_b32 v{base}, v{base + 1}")
            self(f"  v_add_f32 v{base}, v{base}, v{base + 1}")
            self(f"  v_add_f32_dpp v{base}, v{base}, v{base} row_ror:4 row_mask:0xf bank_mask:0xf")
            self(f"  v_add_f32_dpp v{base}, v{base}, v{base} row_ror:8 row_mask:0xf bank_mask:0xf")

        def issueD():
            self("  buffer_load_dwordx4 v[24:27], v14, s[44:47], 0 offen offset:2048 sc1")
            self("  buffer_load_dwordx4 v[28:31], v14, s[44:47], 0 offen offset:3072 sc1")
        self.poll_loop("pollD", issueD, range(24, 32), 32, sleep=4)
        red(24)
        self("  v_cvt_pk_bf16_f32 v24, v24, v24")
        self("  v_lshlrev_b32 v24, 16, v24")
        self(f"  v_mul_f32 v25, {f2h(-1.4426950408889634)}, v24")
        self("  v_exp_f32 v25, v25")
        self("  s_nop 0")
        self("  v_add_f32 v25, 1.0, v25")
        self("  v_rcp_f32 v25, v25")
        self("  s_nop 0")
        self("  v_mul_f32 v24, v24, v25")
        self("  v_cvt_pk_bf16_f32 v24, v24, v24")
        self("  v_lshlrev_b32 v18, 16, v24          ; g")
        self("  v_lshlrev_b32 v17, 16, v17          ; x")
        self.stamp(6)
        self("  s_barrier            ; B2")

        def issueS():
            self("  buffer_load_dwordx4 v[24:27], v14, s[44:47], 0 offen sc1")
            self("  buffer_load_dwordx4 v[28:31], v14, s[44:47], 0 offen offset:1024 sc1")
        self.poll_loop("pollS", issueS, range(24, 32), 32)
        red(24)
        self("  v_cvt_pk_bf16_f32 v24, v24, v24")
        self("  v_lshlrev_b32 v24, 16, v24          ; s")
        self("  v_mul_f32 v24, v24, v18")
        self("  v_cvt_pk_bf16_f32 v24, v24, v24")
        self("  v_lshlrev_b32 v24, 16, v24")
        self("  v_add_f32 v24, v17, v24")
        self("  v_cvt_pk_bf16_f32 v24, v24, v24")
        self("  s_mov_b32 exec_lo, 0x000f000f")
        self("  s_mov_b32 exec_hi, 0x000f000f")
        self("  buffer_store_short v24, v15, s[40:43], 0 offen")
        self("  s_mov_b64 exec, -1")
        self.stamp(7)
        self("  s_branch L_exit_stamped")

    def epilogue(self):
        self("L_exit_stamped:")
        if self.stamps:
            self.srd(44, 30, None, WS_SIZE)
            self.stamps_out()
        self("L_end:")
        self("  s_endpgm")
        self(f""".section .rodata,"a"
.p2align 6
.amdhsa_kernel {KNAME}
  .amdhsa_next_free_vgpr 168
  .amdhsa_next_free_sgpr 102
  .amdhsa_accum_offset 168
  .amdhsa_group_segment_fixed_size 0
  .amdhsa_kernarg_size 96
  .amdhsa_user_sgpr_count 2
  .amdhsa_user_sgpr_kernarg_segment_ptr 1
  .amdhsa_system_sgpr_workgroup_id_x 1
.end_amdhsa_kernel""")

    def build(self):
        self.prologue()
        self.stream()
        self.helper()
        self.epilogue()
        return fix("\n".join(self.lines) + "\n", verbose=True)


if __name__ == "__main__":
    import argparse
    ap = argparse.ArgumentParser()
    ap.add_argument("-o", default="k.s")
    ap.add_argument("--D", type=int, default=5)
    ap.add_argument("--E", type=int, default=5)
    ap.add_argument("--SB", type=int, default=19)
    ap.add_argument("--stamps", action="store_true")
    ap.add_argument("--slow", action="store_true")
    ap.add_argument("--b0post", action="store_true")
    ap.add_argument("--prio", type=int, default=3)
    ap.add_argument("--dbgst", action="store_true")
    a = ap.parse_args()
    g = G(D=a.D, E=a.E, SB=a.SB, stamps=a.stamps, force_slow=a.slow, b0pre=not a.b0post, prio=a.prio, dbgst=a.dbgst)
    open(a.o, "w").write(g.build())
```

```python
import sys, struct
sys.path.insert(0, "dev")
from hz import fix

KNAME = "recurrent_scan__sliding_block_cached__glu_gated_reglu__decode_kernel"


def f2h(x):
    return "0x%08x" % struct.unpack("<I", struct.pack("<f", x))[0]


LOG2E = f2h(1.4426950408889634)
SCALE = f2h(192 ** -0.5)
INV640 = f2h(1.0 / 640)
EPS = f2h(1e-5)

BOX = 2304
GBOX = 8 * BOX
O_H1 = 0
O_O2 = 1280
O_LSE = 1664
SD_BASE = 655360
STAMP_BASE = 1 << 20
WS_SIZE = 2 << 20

L_Q = 0
L_MODE = 384
L_CNT = 388
L_QF = 392
L_CLR = 396
L_M = 400
L_L = 432
L_XN = 1280
L_HB = 2560
L_WO = 4096
L_PART = L_WO + 192 * 160
L_A = L_PART + 8 * 768
LDS_BYTES = L_A + 8 * 400

SPIN_MAX = 30000


class G:
    def __init__(self, D=5, E=5, SB=19, stamps=False, force_slow=False, wo_slot=32, b0pre=True, prio=3, dbgst=False, fine=False, dsched=(), qk_per_slot=2, wo_throttle=0, npoll=2, poll_gap=8, bulkprio=None, ilv=False, prog=(), early_pub=True, poll_delay=0, nocnt=0, adapt=None):
        self.adapt = adapt
        self.nocnt = nocnt
        self.early_pub = early_pub
        self.poll_delay = poll_delay
        self.prog = list(prog)
        self.ilv = ilv
        self.bulkprio = bulkprio
        self.wo_throttle = wo_throttle
        self.npoll = npoll
        self.poll_gap = poll_gap
        self.dsched = list(dsched)
        self.qk_per_slot = qk_per_slot
        self.dbgst = dbgst
        self.fine = fine
        self.in_stream = False
        self.prio = prio
        self.b0pre = b0pre
        self.D, self.E, self.SB = D, E, SB
        self.stamps = stamps
        self.force_slow = force_slow
        self.wo_slot = wo_slot
        self.lines = []
        self.uid = 0
        self.vm = []

    def Dof(self, i):
        for (slot, d) in reversed(self.dsched):
            if i >= slot:
                return d
        return self.D

    def __call__(self, s=""):
        for l in s.split("\n"):
            self.lines.append(l)

    def lab(self, base):
        self.uid += 1
        return f"L_{base}_{self.uid}"

    def vm_reset(self):
        self.vm = []

    def vm_issue(self, tag):
        self.vm.append(tag)

    def vm_wait(self, tag):
        idx = [i for i, t in enumerate(self.vm) if t == tag]
        if not idx:
            return
        last = idx[-1]
        n = len(self.vm) - 1 - last
        assert n <= 63
        self(f"  s_waitcnt vmcnt({n})")
        self.vm = self.vm[last + 1:]

    def stamp(self, i):
        if self.prog and self.in_stream and i != 0:
            return
        if self.stamps and not (self.fine and self.in_stream and i in (1, 2, 3, 5, 6, 7)):
            self(f"  s_memrealtime s[{70 + 2 * i}:{71 + 2 * i}]")

    def fstamp(self, i, clk=False):
        if self.stamps and self.fine:
            op = "s_memtime" if clk else "s_memrealtime"
            self(f"  {op} s[{70 + 2 * i}:{71 + 2 * i}]")

    def stamps_out(self):
        if not self.stamps:
            return
        self("  s_waitcnt lgkmcnt(0) vmcnt(0)")
        self("  s_mul_i32 s6, s2, 12")
        self("  s_add_u32 s6, s6, s3")
        self("  s_lshl_b32 s6, s6, 6")
        self(f"  s_add_u32 s6, s6, {STAMP_BASE}")
        self("  v_mov_b32 v2, s6")
        for i in range(12):
            self(f"  v_mov_b32 v{4 + i}, s{70 + 2 * i}")
        self("  s_mov_b64 exec, 1")
        self("  buffer_store_dwordx4 v[4:7], v2, s[44:47], 0 offen")
        self("  buffer_store_dwordx4 v[8:11], v2, s[44:47], 0 offen offset:16")
        self("  buffer_store_dwordx4 v[12:15], v2, s[44:47], 0 offen offset:32")
        if self.dbgst:
            self("  s_load_dwordx2 s[6:7], s[0:1], 80")
            self("  s_waitcnt lgkmcnt(0)")
            self.srd(48, 6, None, 256)
            for (wg, wv, lst) in ((0, 0, ((0, 1), (2, 3), (4, 5))), (8, 9, ((0, 7), (6, 9), (7, 11))), (255, 0, ((0, 13), (4, 15)))):
                Ls = self.lab("dbgskip")
                self(f"  s_cmp_eq_u32 s2, {wg}")
                self(f"  s_cbranch_scc0 {Ls}")
                self(f"  s_cmp_eq_u32 s3, {wv}")
                self(f"  s_cbranch_scc0 {Ls}")
                for (st, dw) in lst:
                    self(f"  v_mov_b32 v2, {4 * dw}")
                    self(f"  buffer_store_dword v{4 + st}, v2, s[48:51], 0 offen")
                self(f"{Ls}:")
        self("  s_mov_b64 exec, -1")

    def srd(self, s, base_lo, off, nrec):
        if off is None:
            self(f"  s_mov_b32 s{s}, s{base_lo}")
            self(f"  s_mov_b32 s{s + 1}, s{base_lo + 1}")
        else:
            self(f"  s_add_u32 s{s}, s{base_lo}, {off}")
            self(f"  s_addc_u32 s{s + 1}, s{base_lo + 1}, 0")
        self(f"  s_mov_b32 s{s + 2}, {nrec}")
        self(f"  s_mov_b32 s{s + 3}, 0x20000")

    def allreduce(self, op, v, t):
        for r in (1, 2, 4, 8):
            self(f"  {op}_dpp v{v}, v{v}, v{v} row_ror:{r} row_mask:0xf bank_mask:0xf")
        self(f"  v_mov_b32 v{t}, v{v}")
        self(f"  v_permlane16_swap_b32 v{v}, v{t}")
        self(f"  {op} v{v}, v{v}, v{t}")
        self(f"  v_mov_b32 v{t}, v{v}")
        self(f"  v_permlane32_swap_b32 v{v}, v{t}")
        self(f"  {op} v{v}, v{v}, v{t}")

    def cross_rows(self, op, v, t):
        self(f"  v_mov_b32 v{t}, v{v}")
        self(f"  v_permlane16_swap_b32 v{v}, v{t}")
        self(f"  {op} v{v}, v{v}, v{t}")
        self(f"  v_mov_b32 v{t}, v{v}")
        self(f"  v_permlane32_swap_b32 v{v}, v{t}")
        self(f"  {op} v{v}, v{v}, v{t}")

    def treduce8(self, A, T):
        for a in range(4):
            self(f"  v_permlane32_swap_b32 v{A[a]}, v{A[a + 4]}")
        for a in range(4):
            self(f"  v_add_f32 v{A[a]}, v{A[a]}, v{A[a + 4]}")
        for a in range(2):
            self(f"  v_permlane16_swap_b32 v{A[a]}, v{A[a + 2]}")
        for a in range(2):
            self(f"  v_add_f32 v{A[a]}, v{A[a]}, v{A[a + 2]}")
        self(f"  v_add_f32_dpp v{T}, v{A[0]}, v{A[0]} row_ror:8 row_mask:0xf bank_mask:0x3")
        self(f"  v_add_f32_dpp v{T}, v{A[1]}, v{A[1]} row_ror:8 row_mask:0xf bank_mask:0xc")

    def treduce4rows(self, A, out_pairs=None):
        n = len(A) // 4
        for k in range(n):
            a = A[4 * k:4 * k + 4]
            self(f"  v_permlane32_swap_b32 v{a[0]}, v{a[2]}")
            self(f"  v_permlane32_swap_b32 v{a[1]}, v{a[3]}")
        for k in range(n):
            a = A[4 * k:4 * k + 4]
            self(f"  v_add_f32 v{a[0]}, v{a[0]}, v{a[2]}")
            self(f"  v_add_f32 v{a[1]}, v{a[1]}, v{a[3]}")
        for k in range(n):
            a = A[4 * k:4 * k + 4]
            self(f"  v_permlane16_swap_b32 v{a[0]}, v{a[1]}")
        for k in range(n):
            a = A[4 * k:4 * k + 4]
            self(f"  v_add_f32 v{a[0]}, v{a[0]}, v{a[1]}")
        return [A[4 * k] for k in range(n)]

    def sentinel_check(self, regs, t):
        regs = list(regs)
        if len(regs) == 1:
            self(f"  v_cmp_eq_u32 vcc, -1, v{regs[0]}")
            return
        if len(regs) == 2:
            self(f"  v_max_u32 v{t}, v{regs[0]}, v{regs[1]}")
            regs = []
        else:
            self(f"  v_max3_u32 v{t}, v{regs[0]}, v{regs[1]}, v{regs[2]}")
            regs = regs[3:]
        while regs:
            if len(regs) >= 2:
                self(f"  v_max3_u32 v{t}, v{t}, v{regs[0]}, v{regs[1]}")
                regs = regs[2:]
            else:
                self(f"  v_max_u32 v{t}, v{t}, v{regs[0]}")
                regs = regs[1:]
        self(f"  v_cmp_eq_u32 vcc, -1, v{t}")

    def poll_loop(self, name, issue, regs, t, sleep=0):
        L = self.lab(name)
        Ld = self.lab(name + "d")
        self("  s_mov_b32 s57, 0")
        self(f"{L}:")
        issue()
        self("  s_waitcnt vmcnt(0)")
        self.sentinel_check(regs, t)
        self("  s_add_u32 s57, s57, 1")
        self(f"  s_cmp_gt_u32 s57, {SPIN_MAX}")
        self(f"  s_cbranch_scc1 {Ld}")
        if sleep:
            self(f"  s_cbranch_vccz {Ld}")
            self(f"  s_sleep {sleep}")
            self(f"  s_branch {L}")
        else:
            self(f"  s_cbranch_vccnz {L}")
        self(f"{Ld}:")

    def lds_spin(self, name, addr_v, off, t, target=None, sdst="s58", sleep=1):
        L = self.lab(name)
        Ld = self.lab(name + "d")
        self("  s_mov_b32 s57, 0")
        self(f"{L}:")
        self(f"  ds_read_b32 v{t}, v{addr_v} offset:{off}")
        self("  s_waitcnt lgkmcnt(0)")
        self(f"  v_readfirstlane_b32 {sdst}, v{t}")
        self("  s_add_u32 s57, s57, 1")
        self(f"  s_cmp_gt_u32 s57, {SPIN_MAX * 8}")
        self(f"  s_cbranch_scc1 {Ld}")
        if target is None:
            self(f"  s_cmp_lg_u32 {sdst}, 0")
        else:
            self(f"  s_cmp_eq_u32 {sdst}, {target}")
        self(f"  s_cbranch_scc1 {Ld}")
        if sleep:
            self(f"  s_sleep {sleep}")
        self(f"  s_branch {L}")
        self(f"{Ld}:")

    def mode_store(self, instr):
        Lf = self.lab("fast")
        Lj = self.lab("join")
        self("  s_cmp_eq_u32 s59, 2")
        self(f"  s_cbranch_scc1 {Lf}")
        for i in instr:
            self(f"  {i} sc1")
        self(f"  s_branch {Lj}")
        self(f"{Lf}:")
        for i in instr:
            self(f"  {i}")
        self(f"{Lj}:")

    def prologue(self):
        self(f"""; Fused decode step: LN -> q -> sliding-window attention (split over 8 WGs per head) -> wo,
; @launch grid=(256,1,1) block=(768,1,1) lds={LDS_BYTES}
.amdgcn_target "amdgcn-amd-amdhsa--gfx950"
.text
.globl {KNAME}
.p2align 8
.type {KNAME},@function
{KNAME}:
  s_cmp_ge_u32 s2, 256
  s_cbranch_scc1 L_end""")
        self.stamp(0)
        self(f"""  s_load_dwordx16 s[8:23], s[0:1], 0
  s_load_dwordx8 s[24:31], s[0:1], 64
  v_readfirstlane_b32 s3, v0
  v_and_b32 v0, 63, v0
  s_lshr_b32 s3, s3, 6
  s_and_b32 s4, s2, 7
  s_lshl_b32 s4, s4, 2
  s_lshr_b32 s5, s2, 3
  s_and_b32 s5, s5, 3
  s_add_u32 s4, s4, s5          ; h
  s_lshr_b32 s5, s2, 5          ; c
  s_cmp_ge_u32 s3, 8
  s_cbranch_scc1 L_helper""")

    def stream(self):
        self.in_stream = True
        D, E, SB = self.D, self.E, self.SB
        Q = list(range(4, 10))
        A = list(range(10, 22))
        P = list(range(22, 26))
        T = [26, 27]
        U = list(range(28, 32))
        PL = list(range(32, 36))
        PH = list(range(36, 40))
        t0, t1 = 40, 41
        RING = 42
        nbuf = 16 + E

        def kbuf(b):
            return RING + 6 * b

        def vbuf(j):
            return RING + 6 * (16 + j) if j < E else RING + 6 * (j - E)

        self(f"""  ; ---------------- stream waves ----------------
  s_mul_i32 s6, s4, 12582912
  s_mul_i32 s7, s5, 196608
  s_add_u32 s6, s6, s7
  s_add_u32 s6, s6, {28672 * 384}
  s_mul_i32 s7, s3, {1536 if self.ilv else 24576}
  v_lshrrev_b32 v3, 4, v0
  v_and_b32 v2, 15, v0
  v_mul_u32_u24 v3, 384, v3
  v_add_u32 v3, s7, v3
  v_lshl_add_u32 v1, v2, 4, v3      ; x4 offset
  v_lshl_add_u32 v2, v2, 3, v3
  v_add_u32 v2, 256, v2             ; x2 offset""")
        for k in range(1, 6):
            self(f"  s_mov_b32 s{59 + k}, {4608 * k}")
        if self.adapt:
            self("  s_and_b32 s65, s2, 1")
        self("  s_waitcnt lgkmcnt(0)")
        self.srd(32, 10, "s6", 196608)
        self.srd(36, 12, "s6", 196608)
        self.vm_reset()

        def issue(i):
            t, b = (0, i) if i < 16 else (1, i - 16)
            srd = "s[32:35]" if t == 0 else "s[36:39]"
            r = kbuf(b) if t == 0 else vbuf(b)
            so = "0" if b < 3 else f"s{59 + b // 3}"
            imm = 1536 * (b % 3)
            if self.ilv:
                imm = 0
                so = "0" if b == 0 else "s60"
                if b:
                    self(f"  s_mov_b32 s60, {12288 * b}")
            o = f" offset:{imm}" if imm else ""
            self(f"  buffer_load_dwordx4 v[{r}:{r + 3}], v1, {srd}, {so} offen{o} nt")
            self(f"  buffer_load_dwordx2 v[{r + 4}:{r + 5}], v2, {srd}, {so} offen{o} nt")
            self.vm_issue(("L", i))
            self.vm_issue(("L", i))

        def qk_group(g):
            bs = [kbuf(4 * g + k) for k in range(4)]
            for i in range(6):
                for k in range(4):
                    c = "0" if i == 0 else f"v{P[k]}"
                    self(f"  v_dot2_f32_bf16 v{P[k]}, v{bs[k] + i}, v{Q[i]}, {c}")
            self(f"  v_add_f32_dpp v{T[0]}, v{P[0]}, v{P[0]} row_ror:8 row_mask:0xf bank_mask:0x3")
            self(f"  v_add_f32_dpp v{T[1]}, v{P[1]}, v{P[1]} row_ror:8 row_mask:0xf bank_mask:0x3")
            self(f"  v_add_f32_dpp v{T[0]}, v{P[2]}, v{P[2]} row_ror:8 row_mask:0xf bank_mask:0xc")
            self(f"  v_add_f32_dpp v{T[1]}, v{P[3]}, v{P[3]} row_ror:8 row_mask:0xf bank_mask:0xc")
            self(f"  v_add_f32_dpp v{U[g]}, v{T[0]}, v{T[0]} row_shl:4 row_mask:0xf bank_mask:0x5")
            self(f"  v_add_f32_dpp v{U[g]}, v{T[1]}, v{T[1]} row_shr:4 row_mask:0xf bank_mask:0xa")
            self(f"  v_add_f32_dpp v{U[g]}, v{U[g]}, v{U[g]} quad_perm:[1,0,3,2] row_mask:0xf bank_mask:0xf")
            self(f"  v_add_f32_dpp v{U[g]}, v{U[g]}, v{U[g]} quad_perm:[2,3,0,1] row_mask:0xf bank_mask:0xf")

        def softmax():
            self(f"  v_cvt_pk_bf16_f32 v{P[0]}, v{U[0]}, v{U[1]}")
            self(f"  v_cvt_pk_bf16_f32 v{P[1]}, v{U[2]}, v{U[3]}")
            self(f"  v_lshlrev_b32 v{U[0]}, 16, v{P[0]}")
            self(f"  v_and_b32 v{U[1]}, 0xffff0000, v{P[0]}")
            self(f"  v_lshlrev_b32 v{U[2]}, 16, v{P[1]}")
            self(f"  v_and_b32 v{U[3]}, 0xffff0000, v{P[1]}")
            for g in range(4):
                self(f"  v_mul_f32 v{U[g]}, {SCALE}, v{U[g]}")
            self(f"  v_cvt_pk_bf16_f32 v{P[0]}, v{U[0]}, v{U[1]}")
            self(f"  v_cvt_pk_bf16_f32 v{P[1]}, v{U[2]}, v{U[3]}")
            self(f"  v_lshlrev_b32 v{U[0]}, 16, v{P[0]}")
            self(f"  v_and_b32 v{U[1]}, 0xffff0000, v{P[0]}")
            self(f"  v_lshlrev_b32 v{U[2]}, 16, v{P[1]}")
            self(f"  v_and_b32 v{U[3]}, 0xffff0000, v{P[1]}")
            self(f"  v_max3_f32 v{t0}, v{U[0]}, v{U[1]}, v{U[2]}")
            self(f"  v_max_f32 v{t0}, v{t0}, v{U[3]}")
            self(f"  v_max_f32_dpp v{t0}, v{t0}, v{t0} row_ror:4 row_mask:0xf bank_mask:0xf")
            self(f"  v_max_f32_dpp v{t0}, v{t0}, v{t0} row_ror:8 row_mask:0xf bank_mask:0xf")
            self.cross_rows("v_max_f32", t0, t1)
            for g in range(4):
                self(f"  v_sub_f32 v{U[g]}, v{U[g]}, v{t0}")
            for g in range(4):
                self(f"  v_mul_f32 v{U[g]}, {LOG2E}, v{U[g]}")
            for g in range(4):
                self(f"  v_exp_f32 v{U[g]}, v{U[g]}")
            self("  s_nop 0")
            for g in range(4):
                self(f"  v_cvt_pk_bf16_f32 v{PL[g]}, v{U[g]}, 0")
                self(f"  v_cvt_pk_bf16_f32 v{PH[g]}, 0, v{U[g]}")
            self(f"  v_add_f32 v{T[0]}, v{U[0]}, v{U[1]}")
            self(f"  v_add_f32 v{T[1]}, v{U[2]}, v{U[3]}")
            self(f"  v_add_f32 v{T[0]}, v{T[0]}, v{T[1]}")
            self(f"  v_add_f32_dpp v{T[0]}, v{T[0]}, v{T[0]} row_ror:4 row_mask:0xf bank_mask:0xf")
            self(f"  v_add_f32_dpp v{T[0]}, v{T[0]}, v{T[0]} row_ror:8 row_mask:0xf bank_mask:0xf")
            self.cross_rows("v_add_f32", T[0], t1)
            self(f"  s_lshl_b32 s6, s3, 2")
            self(f"  v_mov_b32 v{t1}, s6")
            self(f"  v_mov_b32 v{T[1]}, 1")
            self(f"  v_mov_b32 v{P[0]}, 0")
            self("  s_mov_b64 exec, 1")
            self(f"  ds_write_b32 v{t1}, v{t0} offset:{L_M}")
            self(f"  ds_write_b32 v{t1}, v{T[0]} offset:{L_L}")
            self("  s_waitcnt lgkmcnt(0)")
            self(f"  ds_add_u32 v{P[0]}, v{T[1]} offset:{L_CNT}")
            self("  s_mov_b64 exec, -1")
            for a in A:
                self(f"  v_mov_b32 v{a}, 0")

        def pv(j):
            g, k = j // 4, j % 4
            r = vbuf(j)
            for i in range(6):
                self(f"  v_dot2c_f32_bf16_dpp v{A[2 * i]}, v{PL[g]}, v{r + i} row_newbcast:{4 * k} row_mask:0xf bank_mask:0xf")
                self(f"  v_dot2c_f32_bf16_dpp v{A[2 * i + 1]}, v{PH[g]}, v{r + i} row_newbcast:{4 * k} row_mask:0xf bank_mask:0xf")

        qk_next = 0
        sm_done = False
        pv_next = 0
        landed = -1
        MO, FF, PA0, PA1 = 4, 5, 6, 7

        self("  s_barrier            ; B0")
        for i in range(32):
            Di = self.Dof(i)
            if i - Di > landed:
                self.vm_wait(("L", i - Di))
                landed = i - Di
            if self.adapt and self.adapt[0] <= i < self.adapt[1]:
                tag = ("L", i - (Di - 1))
                idx = [k for k, tg in enumerate(self.vm) if tg == tag]
                if idx:
                    n = len(self.vm) - 1 - idx[-1]
                    Ls = self.lab("deep")
                    self("  s_cmp_lg_u32 s65, 0")
                    self(f"  s_cbranch_scc1 {Ls}")
                    self(f"  s_waitcnt vmcnt({n})")
                    self(f"{Ls}:")
            if i >= 16 and (i - 16) >= E:
                need_g = (i - 16 - E) // 4
                assert qk_next > need_g, f"schedule: V{i - 16} needs QK group {need_g} (slot {i})"
            if self.prog and self.stamps and i in self.prog:
                k = 1 + self.prog.index(i)
                self(f"  s_memrealtime s[{70 + 2 * k}:{71 + 2 * k}]")
            issue(i)
            if i == SB:
                self.stamp(1)
                self(f"  v_mov_b32 v{t1}, 0")
                self.lds_spin("qf", t1, L_QF, t0, target=3, sdst="s58", sleep=1)
                self.stamp(2)
                self(f"  v_and_b32 v{t0}, 15, v0")
                self(f"  v_lshlrev_b32 v{t1}, 4, v{t0}")
                self(f"  v_lshlrev_b32 v{t0}, 3, v{t0}")
                self(f"  ds_read_b128 v[{Q[0]}:{Q[3]}], v{t1} offset:{L_Q}")
                self(f"  ds_read_b64 v[{Q[4]}:{Q[5]}], v{t0} offset:{L_Q + 256}")
                self("  s_waitcnt lgkmcnt(0)")
            if i >= SB:
                n = 0
                while qk_next < 4 and 4 * qk_next + 3 <= landed and n < self.qk_per_slot:
                    qk_group(qk_next)
                    qk_next += 1
                    n += 1
                if qk_next == 4 and not sm_done:
                    softmax()
                    self(f"  v_mov_b32 v{MO}, v{t0}")
                    sm_done = True
                    self.stamp(3)
                elif sm_done:
                    n = 0
                    while pv_next < 16 and 16 + pv_next <= landed and n < 3:
                        pv(pv_next)
                        pv_next += 1
                        n += 1
        assert sm_done
        self(f"  v_mov_b32 v{t1}, 0")
        self.lds_spin("cnt8", t1, L_CNT, t0, target=8, sdst="s58", sleep=1)
        self(f"  v_and_b32 v{t1}, 7, v0")
        self(f"  v_lshlrev_b32 v{t1}, 2, v{t1}")
        self(f"  ds_read_b32 v{t0}, v{t1} offset:{L_M}")
        self(f"  v_and_b32 v{P[0]}, 15, v0")
        self(f"  v_lshrrev_b32 v{P[1]}, 4, v0")
        self(f"  v_lshlrev_b32 v{P[1]}, 2, v{P[1]}")
        self("  s_mul_i32 s6, s3, 768")
        self(f"  v_add_u32 v{P[1]}, s6, v{P[1]}")
        self(f"  v_lshl_add_u32 v{PA0}, v{P[0]}, 5, v{P[1]}")
        self(f"  v_lshl_add_u32 v{PA1}, v{P[0]}, 4, v{P[1]}")
        self("  s_waitcnt lgkmcnt(0)")
        for r in (1, 2, 4):
            self(f"  v_max_f32_dpp v{t0}, v{t0}, v{t0} row_ror:{r} row_mask:0xf bank_mask:0xf")
        self(f"  v_sub_f32 v{FF}, v{MO}, v{t0}")
        self(f"  v_mul_f32 v{FF}, {LOG2E}, v{FF}")
        self(f"  v_exp_f32 v{FF}, v{FF}")
        for j in range(pv_next, 16):
            self.vm_wait(("L", 16 + j))
            if j == 15:
                self.stamp(4)
                if self.prog and self.stamps:
                    self(f"  s_memrealtime s[92:93]")
            pv(j)
        R = self.treduce4rows(A)
        for r in R:
            self(f"  v_mul_f32 v{r}, v{FF}, v{r}")
        self(f"  ds_write_b32 v{PA0}, v{R[0]} offset:{L_PART}")
        self(f"  ds_write_b32 v{PA0}, v{R[1]} offset:{L_PART + 16}")
        self(f"  ds_write_b32 v{PA1}, v{R[2]} offset:{L_PART + 512}")
        Bf = RING
        Af = RING + 24
        Dd = RING + 48
        aB, aA, aS = RING + 52, RING + 53, RING + 54
        self(f"  v_lshrrev_b32 v{P[0]}, 4, v0          ; g")
        self(f"  v_bfe_u32 v{P[2]}, v0, 2, 2           ; r4")
        self(f"  v_and_b32 v{P[3]}, 3, v0              ; cq")
        self(f"  v_lshl_add_u32 v{aB}, v{P[0]}, 3, v{P[2]}   ; 8g + r4")
        self(f"  v_mul_u32_u24 v{aB}, 160, v{aB}")
        self(f"  v_lshl_add_u32 v{aB}, v{P[3]}, 3, v{aB}")
        self("  s_lshl_b32 s6, s3, 5")
        self(f"  v_add_u32 v{aB}, s6, v{aB}")
        self("  s_waitcnt lgkmcnt(0)")
        self.stamp(5)
        self("  s_cmp_ge_u32 s3, 5")
        self("  s_cbranch_scc1 L_exit_stamped")
        self("  s_barrier")
        for s in range(6):
            self(f"  ds_read_b64_tr_b16 v[{Bf + 4 * s}:{Bf + 4 * s + 1}], v{aB} offset:{L_WO + 5120 * s}")
            self(f"  ds_read_b64_tr_b16 v[{Bf + 4 * s + 2}:{Bf + 4 * s + 3}], v{aB} offset:{L_WO + 5120 * s + 640}")
        self.srd(44, 30, None, WS_SIZE)
        self(f"  v_and_b32 v{aA}, 7, v0")
        self(f"  v_mul_u32_u24 v{aA}, 400, v{aA}")
        self(f"  v_lshl_add_u32 v{aA}, v{P[0]}, 4, v{aA}")
        for d in range(4):
            self(f"  v_mov_b32 v{Dd + d}, 0")
        self("  s_mul_i32 s6, s5, 20480")
        self("  s_lshl_b32 s7, s3, 12")
        self("  s_add_u32 s6, s6, s7")
        self("  s_lshl_b32 s7, s4, 6")
        self("  s_add_u32 s6, s6, s7")
        self(f"  s_add_u32 s6, s6, {SD_BASE}")
        self(f"  v_lshlrev_b32 v{aS}, 2, v0")
        self(f"  v_add_u32 v{aS}, s6, v{aS}")
        self("  s_waitcnt lgkmcnt(0)")
        self("  s_barrier")
        for s in range(6):
            self(f"  ds_read_b128 v[{Af + 4 * s}:{Af + 4 * s + 3}], v{aA} offset:{L_A + 64 * s}")
        self.stamp(6)
        for s in range(6):
            if self.stamps:
                if s == 0:
                    self("  s_waitcnt lgkmcnt(0)")
            else:
                self(f"  s_waitcnt lgkmcnt({5 - s})")
            self(f"  v_mfma_f32_16x16x32_bf16 v[{Dd}:{Dd + 3}], v[{Af + 4 * s}:{Af + 4 * s + 3}], v[{Bf + 4 * s}:{Bf + 4 * s + 3}], v[{Dd}:{Dd + 3}]")
        self(f"  v_add_f32 v{Dd}, v{Dd}, v{Dd + 1}")
        self(f"  v_add_f32 v{Dd + 2}, v{Dd + 2}, v{Dd + 3}")
        self(f"  v_add_f32 v{Dd}, v{Dd}, v{Dd + 2}")
        self(f"  v_mov_b32 v{t0}, v{Dd}")
        self(f"  v_permlane16_swap_b32 v{Dd}, v{t0}")
        self(f"  v_add_f32 v{Dd}, v{Dd}, v{t0}")
        self(f"  v_min_u32 v{Dd}, -2, v{Dd}")
        self("  s_mov_b32 exec_lo, 0xffff")
        self("  s_mov_b32 exec_hi, 0")
        self(f"  buffer_store_dword v{Dd}, v{aS}, s[44:47], 0 offen sc1")
        self("  s_mov_b64 exec, -1")
        self.stamp(7)
        self("  s_branch L_exit_stamped")

    def ln(self, X, xs, t):
        for i in range(5):
            self(f"  v_lshlrev_b32 v{xs[2 * i]}, 16, v{X[i]}")
            self(f"  v_and_b32 v{xs[2 * i + 1]}, 0xffff0000, v{X[i]}")
        s, u, m = t[0], t[1], t[2]
        self(f"  v_add_f32 v{s}, v{xs[0]}, v{xs[1]}")
        for i in range(2, 10):
            self(f"  v_add_f32 v{s}, v{s}, v{xs[i]}")
        self.allreduce("v_add_f32", s, u)
        self(f"  v_mul_f32 v{m}, {INV640}, v{s}")
        self(f"  v_sub_f32 v{u}, v{xs[0]}, v{m}")
        self(f"  v_mul_f32 v{s}, v{u}, v{u}")
        for i in range(1, 10):
            self(f"  v_sub_f32 v{u}, v{xs[i]}, v{m}")
            self(f"  v_fmac_f32 v{s}, v{u}, v{u}")
        self.allreduce("v_add_f32", s, u)
        self(f"  v_mul_f32 v{s}, {INV640}, v{s}          ; var")
        self(f"  v_cvt_pk_bf16_f32 v{u}, v{s}, v{m}")
        self(f"  v_lshlrev_b32 v{s}, 16, v{u}            ; bf16(var)")
        self(f"  v_and_b32 v{m}, 0xffff0000, v{u}        ; bf16(mean)")
        self(f"  v_add_f32 v{s}, {EPS}, v{s}")
        self(f"  v_cvt_pk_bf16_f32 v{s}, v{s}, v{s}")
        self(f"  v_lshlrev_b32 v{s}, 16, v{s}")
        self(f"  v_sqrt_f32 v{s}, v{s}")
        self("  s_nop 0")
        self(f"  v_cvt_pk_bf16_f32 v{s}, v{s}, v{s}")
        self(f"  v_lshlrev_b32 v{s}, 16, v{s}")
        self(f"  v_rcp_f32 v{s}, v{s}")
        for i in range(10):
            self(f"  v_sub_f32 v{xs[i]}, v{xs[i]}, v{m}")
        for i in range(5):
            self(f"  v_cvt_pk_bf16_f32 v{X[i]}, v{xs[2 * i]}, v{xs[2 * i + 1]}")
        for i in range(5):
            self(f"  v_lshlrev_b32 v{xs[2 * i]}, 16, v{X[i]}")
            self(f"  v_and_b32 v{xs[2 * i + 1]}, 0xffff0000, v{X[i]}")
        for i in range(10):
            self(f"  v_mul_f32 v{xs[i]}, v{xs[i]}, v{s}")
        for i in range(5):
            self(f"  v_cvt_pk_bf16_f32 v{X[i]}, v{xs[2 * i]}, v{xs[2 * i + 1]}")
        self(f"  v_lshlrev_b32 v{u}, 2, v0")
        for i in range(5):
            self(f"  ds_write_b32 v{u}, v{X[i]} offset:{L_XN + 256 * i}")

    def xn_rows(self, XL, XH, t):
        self(f"  v_lshrrev_b32 v{t}, 3, v0")
        self("  s_mul_i32 s6, s5, 80")
        self(f"  v_add_u32 v{t}, s6, v{t}")
        self(f"  v_lshlrev_b32 v{t}, 1, v{t}")
        self("  s_waitcnt lgkmcnt(0)")
        for i in range(10):
            self(f"  ds_read_u16 v{XL[i]}, v{t} offset:{L_XN + 16 * i}")
        self("  s_waitcnt lgkmcnt(0)")
        for i in range(10):
            self(f"  v_lshlrev_b32 v{XH[i]}, 16, v{XL[i]}")

    def gather_h1(self, nparts, dst, addr):
        def issue():
            for p in range(nparts):
                for c in range(8):
                    so = ["0", "s60", "s61", "s62"][c // 2]
                    imm = BOX * (c % 2) + 256 * p
                    o = f" offset:{imm}" if imm else ""
                    self(f"  buffer_load_dword v{dst[p * 8 + c]}, v{addr}, s[44:47], {so} offen{o} sc1")
        self.poll_loop("h1", issue, dst[:nparts * 8], dst[nparts * 8], sleep=2)

    def own_box(self, dst="s6", tmp="s56"):
        self(f"  s_mul_i32 {dst}, s4, {GBOX}")
        self(f"  s_mul_i32 {tmp}, s5, {BOX}")
        self(f"  s_add_u32 {dst}, {dst}, {tmp}")

    def helper(self):
        self.in_stream = False
        X = list(range(4, 9))
        xs = list(range(10, 20))
        t = [20, 21, 22, 23]
        XL = list(range(24, 34))
        XH = list(range(34, 44))
        ACC = list(range(44, 60))
        W = 64
        self("L_helper:")
        if self.prio:
            self(f"  s_setprio {self.prio}")
        self("  s_sub_u32 s7, s3, 8")
        self("  v_lshlrev_b32 v1, 2, v0       ; 4*lane")
        self(f"  s_mov_b32 s60, {2 * BOX}")
        self(f"  s_mov_b32 s61, {4 * BOX}")
        self(f"  s_mov_b32 s62, {6 * BOX}")
        self("  s_waitcnt lgkmcnt(0)")
        self.srd(32, 8, None, 1280)
        self.srd(44, 30, None, WS_SIZE)
        self.srd(48, 28, None, 256)
        self("  s_cmp_eq_u32 s3, 11")
        self("  s_cbranch_scc1 L_h3")
        self("  s_mul_i32 s6, s5, 983040      ; 80*12288*c")
        self("  s_mul_i32 s56, s4, 384")
        self("  s_add_u32 s6, s6, s56")
        self.srd(36, 14, "s6", 79 * 12288 + 384)
        self(f"  v_lshrrev_b32 v2, 3, v0")
        self(f"  v_mul_u32_u24 v2, 12288, v2")
        self(f"  v_and_b32 v3, 7, v0")
        self(f"  v_lshl_add_u32 v2, v3, 4, v2")
        self("  s_lshl_b32 s6, s7, 7")
        self(f"  v_add_u32 v2, s6, v2")
        for i in range(5):
            o = f" offset:{256 * i}" if i else ""
            self(f"  buffer_load_dword v{X[i]}, v1, s[32:35], 0 offen{o}")
        for i in range(10):
            self(f"  s_mov_b32 s6, {98304 * i}")
            self(f"  buffer_load_dwordx4 v[{W + 4 * i}:{W + 4 * i + 3}], v2, s[36:39], s6 offen nt")
        self("  s_barrier            ; B0")
        self("  s_waitcnt vmcnt(10)")
        self.ln(X, xs, t)
        self.xn_rows(XL, XH, t[0])
        self.stamp(1)
        self("  s_waitcnt vmcnt(0)")
        self.stamp(2)
        for i in range(10):
            for k in range(4):
                c0 = "0" if i == 0 else f"v{ACC[2 * k]}"
                c1 = "0" if i == 0 else f"v{ACC[2 * k + 1]}"
                self(f"  v_dot2_f32_bf16 v{ACC[2 * k]}, v{W + 4 * i + k}, v{XL[i]}, {c0}")
                self(f"  v_dot2_f32_bf16 v{ACC[2 * k + 1]}, v{W + 4 * i + k}, v{XH[i]}, {c1}")
        self.treduce8(ACC[:8], t[1])
        self(f"  v_min_u32 v{t[1]}, -2, v{t[1]}")
        self(f"  s_mul_i32 s6, s4, {GBOX}")
        self("  s_lshl_b32 s56, s7, 8")
        self("  s_add_u32 s6, s6, s56")
        self(f"  v_add_u32 v14, s6, v1")
        self(f"  s_mul_i32 s56, s5, {BOX}")
        self("  v_add_u32 v15, s56, v14")
        self(f"  v_mov_b32 v12, 0")
        if self.early_pub:
            self.lds_spin("clr", 12, L_CLR, 13, target=None, sdst="s58")
            self(f"  buffer_store_dword v{t[1]}, v15, s[44:47], 0 offen sc1")
            self.lds_spin("mode", 12, L_MODE, 13, target=None, sdst="s59")
        else:
            self.lds_spin("mode", 12, L_MODE, 13, target=None, sdst="s59")
            self.mode_store([f"buffer_store_dword v{t[1]}, v15, s[44:47], 0 offen"])
        self.stamp(3)
        G8 = list(range(64, 73))
        self.gather_h1(1, G8, 14)
        self.stamp(4)
        self(f"  v_add_f32 v{G8[0]}, v{G8[0]}, v{G8[1]}")
        self(f"  v_add_f32 v{G8[2]}, v{G8[2]}, v{G8[3]}")
        self(f"  v_add_f32 v{G8[4]}, v{G8[4]}, v{G8[5]}")
        self(f"  v_add_f32 v{G8[6]}, v{G8[6]}, v{G8[7]}")
        self(f"  v_add_f32 v{G8[0]}, v{G8[0]}, v{G8[2]}")
        self(f"  v_add_f32 v{G8[4]}, v{G8[4]}, v{G8[6]}")
        self(f"  v_add_f32 v{G8[0]}, v{G8[0]}, v{G8[4]}")
        self(f"  v_cvt_pk_bf16_f32 v{G8[0]}, v{G8[0]}, v{G8[0]}")
        self("  v_and_b32 v16, 7, v0")
        self("  v_lshrrev_b32 v17, 3, v0")
        self("  v_lshl_add_u32 v16, v16, 3, v17")
        self("  s_lshl_b32 s6, s7, 6")
        self("  v_add_u32 v16, s6, v16")
        self("  v_lshlrev_b32 v16, 1, v16")
        self(f"  ds_write_b16 v16, v{G8[0]} offset:{L_Q}")
        self("  v_mov_b32 v13, 1")
        self("  s_waitcnt lgkmcnt(0)")
        self("  s_mov_b64 exec, 1")
        self(f"  ds_add_u32 v12, v13 offset:{L_QF}")
        self("  s_mov_b64 exec, -1")
        self.stamp(5)
        self("  s_cmp_eq_u32 s3, 8")
        self("  s_cbranch_scc1 L_h0")
        self("  s_cmp_eq_u32 s3, 10")
        self("  s_cbranch_scc1 L_h2")
        self("  s_mov_b32 s56, -1")
        for tt in range(5):
            self(f"  s_cmp_eq_u32 s4, {6 * tt + 1}")
            self(f"  s_cselect_b32 s56, {tt}, s56")
        self("  s_cmp_eq_u32 s56, -1")
        self("  s_cbranch_scc1 L_exit_stamped")
        self.final_consumer()

        self("L_h2:")
        if self.bulkprio is not None:
            self(f"  s_setprio {self.bulkprio}")
        self("  s_mul_i32 s6, s4, 245760      ; 192*1280*h")
        self("  s_mul_i32 s56, s5, 160")
        self("  s_add_u32 s6, s6, s56")
        self.srd(40, 16, "s6", 191 * 1280 + 160)
        self("  v_mul_u32_u24 v2, 103, v0")
        self("  v_lshrrev_b32 v2, 10, v2")
        self("  v_mul_u32_u24 v3, 10, v2")
        self("  v_sub_u32 v3, v0, v3              ; chunk")
        self("  v_mul_u32_u24 v2, 1280, v2")
        self("  v_lshl_add_u32 v2, v3, 4, v2")
        self("  s_mov_b32 exec_hi, 0x0fffffff     ; 60 lanes")
        self("  s_mov_b32 s6, 0")
        self(f"  s_mov_b32 m0, {L_WO}")
        self("L_wo_loop:")
        self("  buffer_load_dwordx4 v2, s[40:43], s6 offen nt lds")
        self("  s_add_u32 m0, m0, 960")
        self("  s_add_u32 s6, s6, 7680")
        if self.wo_throttle:
            self(f"  s_waitcnt vmcnt({self.wo_throttle})")
        self(f"  s_cmp_lt_u32 s6, {7680 * 32}")
        self("  s_cbranch_scc1 L_wo_loop")
        self("  s_mov_b64 exec, -1")
        self("  s_waitcnt vmcnt(0)")
        self.stamp(6)
        self("  s_branch L_exit_stamped")

        self("L_h0:")
        self("  v_mov_b32 v12, 0")
        self.lds_spin("cnt", 12, L_CNT, 13, target=8, sdst="s58", sleep=2)
        self("  v_and_b32 v14, 7, v0")
        self("  v_lshlrev_b32 v14, 2, v14")
        self(f"  ds_read_b32 v16, v14 offset:{L_M}")
        self(f"  ds_read_b32 v17, v14 offset:{L_L}")
        self("  s_waitcnt lgkmcnt(0)")
        self("  v_mov_b32 v18, v16")
        for r in (1, 2, 4):
            self(f"  v_max_f32_dpp v18, v18, v18 row_ror:{r} row_mask:0xf bank_mask:0xf")
        self("  v_sub_f32 v19, v16, v18")
        self(f"  v_mul_f32 v19, {LOG2E}, v19")
        self("  v_exp_f32 v19, v19")
        self("  s_nop 0")
        self("  v_mul_f32 v19, v19, v17")
        for r in (1, 2, 4):
            self(f"  v_add_f32_dpp v19, v19, v19 row_ror:{r} row_mask:0xf bank_mask:0xf")
        self("  v_min_u32 v20, -2, v18")
        self("  v_min_u32 v21, -2, v19")
        self("  v_mov_b32 v16, v18                ; M_c")
        self.own_box()
        self(f"  s_add_u32 s6, s6, {O_LSE}")
        self("  v_mov_b32 v15, s6")
        self("  s_mov_b64 exec, 1")
        self.mode_store(["buffer_store_dwordx2 v[20:21], v15, s[44:47], 0 offen"])
        self("  s_mov_b64 exec, -1")
        self("  v_and_b32 v15, 7, v0")
        self(f"  v_mul_u32_u24 v15, {BOX}, v15")
        self(f"  s_mul_i32 s6, s4, {GBOX}")
        self(f"  s_add_u32 s6, s6, {O_LSE}")
        self("  v_add_u32 v15, s6, v15")

        def issue_lse():
            self("  buffer_load_dwordx2 v[22:23], v15, s[44:47], 0 offen sc1")
        self.poll_loop("lse", issue_lse, [22, 23], 24, sleep=1)
        self("  v_mov_b32 v18, v22")
        for r in (1, 2, 4):
            self(f"  v_max_f32_dpp v18, v18, v18 row_ror:{r} row_mask:0xf bank_mask:0xf")
        self("  v_sub_f32 v19, v22, v18")
        self(f"  v_mul_f32 v19, {LOG2E}, v19")
        self("  v_exp_f32 v19, v19")
        self("  s_nop 0")
        self("  v_mul_f32 v19, v19, v23")
        for r in (1, 2, 4):
            self(f"  v_add_f32_dpp v19, v19, v19 row_ror:{r} row_mask:0xf bank_mask:0xf")
        self("  v_rcp_f32 v19, v19")
        self("  v_sub_f32 v16, v16, v18")
        self(f"  v_mul_f32 v16, {LOG2E}, v16")
        self("  v_exp_f32 v16, v16")
        self("  s_nop 0")
        self("  v_mul_f32 v16, v16, v19          ; G = exp(M_c - M_h) / L_h")
        self.stamp(6)
        self("  v_lshlrev_b32 v14, 4, v0")
        self.own_box()
        self(f"  s_add_u32 s6, s6, {O_O2}")
        self("  v_lshlrev_b32 v15, 3, v0")
        self("  v_add_u32 v15, s6, v15")
        self(f"  s_mul_i32 s6, s4, {GBOX}")
        self(f"  s_add_u32 s6, s6, {O_O2}")
        GA, LA = [4, 5, 6], [7, 8, 9]
        for i in range(3):
            self(f"  v_add_u32 v17, {64 * i}, v0")
            self("  v_mul_u32_u24 v18, 171, v17")
            self("  v_lshrrev_b32 v18, 12, v18")
            self("  v_mul_u32_u24 v19, 24, v18")
            self("  v_sub_u32 v19, v17, v19           ; chunk")
            self(f"  v_mul_u32_u24 v20, {BOX}, v18")
            self("  v_lshl_add_u32 v20, v19, 4, v20")
            self(f"  v_add_u32 v{GA[i]}, s6, v20")
            self("  v_mul_u32_u24 v20, 400, v18")
            self(f"  v_lshl_add_u32 v{LA[i]}, v19, 4, v20")
        self("  s_mov_b32 exec_hi, 0xffff         ; 48 lanes")
        self("  s_barrier            ; B2")
        PR = 24
        for w in range(8):
            self(f"  ds_read_b128 v[{PR + 4 * w}:{PR + 4 * w + 3}], v14 offset:{L_PART + 768 * w}")
        for (a_, b_, cnt) in ((0, 1, 6), (2, 3, 4), (0, 2, None), (4, 5, 2), (6, 7, 0), (4, 6, None), (0, 4, None)):
            if cnt is not None:
                self(f"  s_waitcnt lgkmcnt({cnt if not self.stamps else 0})")
            for k in range(4):
                self(f"  v_add_f32 v{PR + 4 * a_ + k}, v{PR + 4 * a_ + k}, v{PR + 4 * b_ + k}")
        for k in range(4):
            self(f"  v_mul_f32 v{PR + k}, v16, v{PR + k}")
        self(f"  v_cvt_pk_bf16_f32 v20, v{PR}, v{PR + 1}")
        self(f"  v_cvt_pk_bf16_f32 v21, v{PR + 2}, v{PR + 3}")
        self("  v_min_u32 v20, -2, v20")
        self("  v_min_u32 v21, -2, v21")
        self.mode_store(["buffer_store_dwordx2 v[20:21], v15, s[44:47], 0 offen"])
        self("  s_mov_b64 exec, -1")
        self.stamp(7)
        AG = 56

        def issueA():
            for i in range(3):
                self(f"  buffer_load_dwordx4 v[{AG + 4 * i}:{AG + 4 * i + 3}], v{GA[i]}, s[44:47], 0 offen sc1")
        self.poll_loop("pollA", issueA, range(AG, AG + 12), 17)
        self.stamp(8)
        for i in range(3):
            self(f"  ds_write_b128 v{LA[i]}, v[{AG + 4 * i}:{AG + 4 * i + 3}] offset:{L_A}")
        self("  s_waitcnt lgkmcnt(0)")
        self("  s_barrier            ; B3")
        self("  s_branch L_exit_stamped")

        self("L_h3:")
        self("  v_mov_b32 v16, 0")
        self("  v_mov_b32 v17, 0")
        self("  v_mov_b32 v18, 0")
        self("  v_mov_b32 v19, 0")
        self("  v_lshlrev_b32 v3, 4, v0")
        self("  v_mov_b32 v8, -1")
        self("  v_mov_b32 v9, -1")
        self("  v_mov_b32 v10, -1")
        self("  v_mov_b32 v11, -1")
        self.own_box()
        self("  v_add_u32 v12, s6, v3")
        self("  buffer_store_dwordx4 v[8:11], v12, s[44:47], 0 offen sc1")
        self("  buffer_store_dwordx4 v[8:11], v12, s[44:47], 0 offen offset:1024 sc1")
        self("  s_mul_i32 s6, s5, 20480")
        self("  s_lshl_b32 s56, s4, 6")
        self("  s_add_u32 s6, s6, s56")
        self(f"  s_add_u32 s6, s6, {SD_BASE}")
        self("  v_lshrrev_b32 v13, 2, v0")
        self("  v_lshlrev_b32 v13, 11, v13")
        self("  v_and_b32 v14, 3, v0")
        self("  v_lshl_add_u32 v13, v14, 4, v13")
        self("  v_add_u32 v13, s6, v13")
        self("  s_mov_b32 exec_hi, 0xff")
        self("  buffer_store_dwordx4 v[8:11], v13, s[44:47], 0 offen sc1")
        self("  s_mov_b32 exec_hi, 0")
        self("  s_mov_b32 exec_lo, 0xff")
        self(f"  ds_write_b128 v3, v[16:19] offset:{L_MODE}")
        self("  s_mov_b64 exec, -1")
        for i in range(5):
            o = f" offset:{256 * i}" if i else ""
            self(f"  buffer_load_dword v{X[i]}, v1, s[32:35], 0 offen{o}")
        self("  s_waitcnt lgkmcnt(0)")
        self("  s_barrier            ; B0")
        self("  s_getreg_b32 s6, hwreg(HW_REG_XCC_ID, 0, 4)")
        self("  s_mul_i32 s56, s6, s6")
        self("  s_lshl_b32 s56, s56, 16")
        self("  s_lshl_b32 s6, s6, 8")
        self("  s_add_u32 s6, s6, s56")
        self("  s_add_u32 s63, s6, 1")
        self("  s_lshl_b32 s6, s4, 3")
        self("  v_mov_b32 v12, s6")
        self("  v_mov_b32 v13, s63")
        self("  v_mov_b32 v14, 0")
        self("  v_mov_b32 v15, 1")
        self("  s_waitcnt vmcnt(5)")
        self("  s_mov_b64 exec, 1")
        if self.nocnt != 1:
            self("  buffer_atomic_add v13, v12, s[48:51], 0 offen sc1")
        else:
            self("  buffer_load_dword v13, v14, s[32:35], 0 offen")
        self(f"  ds_write_b32 v14, v15 offset:{L_CLR}")
        self("  s_mov_b64 exec, -1")
        self.stamp(6)
        self("  s_waitcnt vmcnt(1)")
        self.ln(X, xs, t)
        self.xn_rows(XL, XH, t[0])
        self.stamp(1)
        self("  s_lshl_b32 s6, s4, 3")
        self("  v_mov_b32 v12, s6")
        self("  v_mov_b32 v14, 0")
        NP = self.npoll
        PV_ = list(range(60, 60 + NP))
        Lp = self.lab("cntpoll")
        Lpd = self.lab("cntpolld")
        self("  s_mov_b32 s57, 0")
        if self.poll_delay:
            self(f"  s_sleep {self.poll_delay}")
        if self.nocnt:
            self("  s_lshl_b32 s58, s63, 3")
            self(f"  s_branch {Lpd}")
        self("  s_mov_b64 exec, 1")
        for k in range(NP):
            self(f"  buffer_load_dword v{PV_[k]}, v12, s[48:51], 0 offen sc1")
            if k < NP - 1:
                self(f"  s_sleep {self.poll_gap}")
        self(f"{Lp}:")
        for k in range(NP):
            self(f"  s_waitcnt vmcnt({NP - 1})")
            self(f"  v_readfirstlane_b32 s58, v{PV_[k]}")
            self("  s_and_b32 s6, s58, 0xff")
            self("  s_cmp_eq_u32 s6, 8")
            self(f"  s_cbranch_scc1 {Lpd}")
            self(f"  buffer_load_dword v{PV_[k]}, v12, s[48:51], 0 offen sc1")
        self("  s_add_u32 s57, s57, 1")
        self(f"  s_cmp_lt_u32 s57, {SPIN_MAX}")
        self(f"  s_cbranch_scc1 {Lp}")
        self(f"{Lpd}:")
        self("  s_mov_b64 exec, -1")
        self("  s_lshl_b32 s6, s63, 3")
        self("  s_cmp_eq_u32 s58, s6")
        if self.force_slow:
            self("  s_mov_b32 s59, 1")
        else:
            self("  s_cselect_b32 s59, 2, 1")
        self("  v_mov_b32 v13, s59")
        self("  s_mov_b64 exec, 1")
        self(f"  ds_write_b32 v14, v13 offset:{L_MODE}")
        self("  s_mov_b64 exec, -1")
        self.stamp(3)
        if self.bulkprio is not None:
            self(f"  s_setprio {self.bulkprio}")
        self("  s_mul_i32 s6, s5, 245760       ; 80*3072*c")
        self("  s_mul_i32 s56, s4, 96")
        self("  s_add_u32 s6, s6, s56")
        self.srd(36, 20, "s6", 79 * 3072 + 96)
        self.srd(40, 22, "s6", 79 * 3072 + 96)
        self("  s_mul_i32 s6, s4, 61440        ; 48*1280*h")
        self("  s_mul_i32 s56, s5, 160")
        self("  s_add_u32 s6, s6, s56")
        self.srd(52, 24, "s6", 47 * 1280 + 160)
        self("  v_lshrrev_b32 v2, 3, v0")
        self("  v_mul_u32_u24 v2, 3072, v2")
        self("  v_and_b32 v3, 7, v0")
        self("  v_mul_u32_u24 v3, 12, v3")
        self("  v_add_u32 v2, v2, v3")
        WG, WU = 64, 104
        for i in range(10):
            self(f"  s_mov_b32 s6, {24576 * i}")
            self(f"  buffer_load_dwordx3 v[{WG + 4 * i}:{WG + 4 * i + 2}], v2, s[36:39], s6 offen nt")
        for i in range(10):
            self(f"  s_mov_b32 s6, {24576 * i}")
            self(f"  buffer_load_dwordx3 v[{WU + 4 * i}:{WU + 4 * i + 2}], v2, s[40:43], s6 offen nt")
        self("  v_lshrrev_b32 v9, 4, v0")
        self("  v_mul_u32_u24 v9, 1280, v9")
        self("  v_and_b32 v3, 15, v0")
        self("  v_lshl_add_u32 v9, v3, 4, v9")
        self("  v_mov_b32 v10, 0x7fffffff")
        self("  v_cmp_gt_u32 vcc, 10, v3")
        self("  v_cndmask_b32 v9, v10, v9, vcc")
        GA = list(range(44, 52))
        UA = list(range(52, 60))
        self("  s_waitcnt vmcnt(10)")
        for (Wr, AC, last) in ((WG, GA, False), (WU, UA, True)):
            if last:
                self("  s_waitcnt vmcnt(0)")
                self.stamp(2)
            for i in range(10):
                for k in range(3):
                    c0 = "0" if i == 0 else f"v{AC[2 * k]}"
                    c1 = "0" if i == 0 else f"v{AC[2 * k + 1]}"
                    self(f"  v_dot2_f32_bf16 v{AC[2 * k]}, v{Wr + 4 * i + k}, v{XL[i]}, {c0}")
                    self(f"  v_dot2_f32_bf16 v{AC[2 * k + 1]}, v{Wr + 4 * i + k}, v{XH[i]}, {c1}")
            self(f"  v_mov_b32 v{AC[6]}, 0")
            self(f"  v_mov_b32 v{AC[7]}, 0")
        WD = 64
        for n in range(12):
            self(f"  s_mov_b32 s6, {5120 * n}")
            self(f"  buffer_load_dwordx4 v[{WD + 4 * n}:{WD + 4 * n + 3}], v9, s[52:55], s6 offen nt")
        self.treduce8(GA, t[1])
        self.treduce8(UA, t[2])
        self(f"  v_min_u32 v{t[1]}, -2, v{t[1]}")
        self(f"  v_min_u32 v{t[2]}, -2, v{t[2]}")
        self(f"  s_mul_i32 s6, s4, {GBOX}")
        self(f"  s_add_u32 s6, s6, {3 * 256}")
        self("  v_add_u32 v14, s6, v1")
        self(f"  s_mul_i32 s56, s5, {BOX}")
        self("  v_add_u32 v15, s56, v14")
        self.mode_store([f"buffer_store_dword v{t[1]}, v15, s[44:47], 0 offen",
                         f"buffer_store_dword v{t[2]}, v15, s[44:47], 0 offen offset:256"])
        G16 = list(range(120, 137))
        self.gather_h1(2, G16, 14)
        self.stamp(4)
        for p in range(2):
            g = G16[8 * p:8 * p + 8]
            self(f"  v_add_f32 v{g[0]}, v{g[0]}, v{g[1]}")
            self(f"  v_add_f32 v{g[2]}, v{g[2]}, v{g[3]}")
            self(f"  v_add_f32 v{g[4]}, v{g[4]}, v{g[5]}")
            self(f"  v_add_f32 v{g[6]}, v{g[6]}, v{g[7]}")
            self(f"  v_add_f32 v{g[0]}, v{g[0]}, v{g[2]}")
            self(f"  v_add_f32 v{g[4]}, v{g[4]}, v{g[6]}")
            self(f"  v_add_f32 v{g[0]}, v{g[0]}, v{g[4]}")
        self(f"  v_cvt_pk_bf16_f32 v16, v{G16[0]}, v{G16[8]}")
        self("  v_lshlrev_b32 v17, 16, v16         ; gate")
        self("  v_and_b32 v18, 0xffff0000, v16     ; up")
        self("  v_max_f32 v17, 0, v17")
        self("  v_mul_f32 v17, v17, v18")
        self("  v_cvt_pk_bf16_f32 v17, v17, v17    ; h")
        self("  v_and_b32 v18, 7, v0")
        self("  v_mul_u32_u24 v18, 6, v18")
        self("  v_lshrrev_b32 v19, 3, v0")
        self("  v_add_u32 v18, v18, v19")
        self("  v_lshlrev_b32 v18, 1, v18")
        self("  s_mov_b32 exec_hi, 0xffff")
        self(f"  ds_write_b16 v18, v17 offset:{L_HB}")
        self("  s_mov_b64 exec, -1")
        self("  v_and_b32 v18, 15, v0")
        self("  v_lshrrev_b32 v19, 4, v0")
        self("  v_lshl_add_u32 v18, v18, 2, v19")
        self("  v_lshlrev_b32 v18, 1, v18")
        self("  s_waitcnt lgkmcnt(0)")
        self(f"  ds_read_u16 v20, v18 offset:{L_HB}")
        DA = list(range(44, 52))
        for a in DA:
            self(f"  v_mov_b32 v{a}, 0")
        self("  s_waitcnt lgkmcnt(0)")
        self("  v_lshlrev_b32 v21, 16, v20")
        self("  s_nop 1")
        for n in range(12):
            for k in range(4):
                self(f"  v_dot2c_f32_bf16_dpp v{DA[2 * k]}, v20, v{WD + 4 * n + k} row_newbcast:{n} row_mask:0xf bank_mask:0xf")
                self(f"  v_dot2c_f32_bf16_dpp v{DA[2 * k + 1]}, v21, v{WD + 4 * n + k} row_newbcast:{n} row_mask:0xf bank_mask:0xf")
        R = self.treduce4rows(DA)
        self("  s_mul_i32 s6, s5, 20480")
        self("  s_lshl_b32 s56, s4, 6")
        self("  s_add_u32 s6, s6, s56")
        self(f"  s_add_u32 s6, s6, {SD_BASE + 2048}")
        self("  v_and_b32 v18, 15, v0              ; j")
        self("  v_lshrrev_b32 v19, 1, v18          ; t")
        self("  v_lshlrev_b32 v19, 12, v19")
        self("  v_and_b32 v22, 1, v18")
        self("  v_lshl_add_u32 v19, v22, 5, v19")
        self("  v_lshrrev_b32 v22, 4, v0           ; rho")
        self("  v_lshl_add_u32 v19, v22, 2, v19")
        self("  v_add_u32 v19, s6, v19")
        self("  v_mov_b32 v22, 0x7fffffff")
        self("  v_cmp_gt_u32 vcc, 10, v18")
        self("  v_cndmask_b32 v19, v22, v19, vcc")
        self(f"  v_min_u32 v{R[0]}, -2, v{R[0]}")
        self(f"  v_min_u32 v{R[1]}, -2, v{R[1]}")
        self(f"  buffer_store_dword v{R[0]}, v19, s[44:47], 0 offen sc1")
        self(f"  buffer_store_dword v{R[1]}, v19, s[44:47], 0 offen offset:16 sc1")
        self.stamp(5)
        self("  s_branch L_exit_stamped")

    def final_consumer(self):
        L = self.lab("allcnt")
        Ld = self.lab("allcntd")
        self("  v_and_b32 v12, 31, v0")
        self("  v_lshlrev_b32 v12, 3, v12")
        self("  s_mov_b32 s57, 0")
        if self.nocnt:
            self(f"  s_branch {Ld}")
        self(f"{L}:")
        self("  buffer_load_dword v13, v12, s[48:51], 0 offen sc1")
        self("  s_waitcnt vmcnt(0)")
        self("  v_and_b32 v13, 0xff, v13")
        self("  v_cmp_ne_u32 vcc, 8, v13")
        self("  s_add_u32 s57, s57, 1")
        self(f"  s_cmp_gt_u32 s57, {SPIN_MAX}")
        self(f"  s_cbranch_scc1 {Ld}")
        self(f"  s_cbranch_vccnz {L}")
        self(f"{Ld}:")
        self("  s_mul_i32 s6, s5, 20480")
        self("  s_lshl_b32 s7, s56, 12")
        self("  s_add_u32 s6, s6, s7")
        self(f"  s_add_u32 s6, s6, {SD_BASE}")
        self("  v_lshlrev_b32 v14, 4, v0")
        self("  v_add_u32 v14, s6, v14")
        self("  v_and_b32 v15, 3, v0")
        self("  v_lshlrev_b32 v15, 2, v15")
        self("  v_lshrrev_b32 v16, 5, v0")
        self("  v_lshl_add_u32 v15, v16, 1, v15")
        self("  v_bfe_u32 v16, v0, 4, 1")
        self("  v_add_u32 v15, v15, v16")
        self("  s_mul_i32 s6, s5, 80")
        self("  s_lshl_b32 s7, s56, 4")
        self("  s_add_u32 s6, s6, s7")
        self("  v_add_u32 v15, s6, v15")
        self("  v_lshlrev_b32 v15, 1, v15")
        self("  buffer_load_ushort v17, v15, s[32:35], 0 offen")
        self.srd(40, 26, None, 1280)

        def red(base):
            for k in range(4):
                self(f"  v_add_f32 v{base + k}, v{base + k}, v{base + 4 + k}")
            self(f"  v_permlane32_swap_b32 v{base}, v{base + 2}")
            self(f"  v_permlane32_swap_b32 v{base + 1}, v{base + 3}")
            self(f"  v_add_f32 v{base}, v{base}, v{base + 2}")
            self(f"  v_add_f32 v{base + 1}, v{base + 1}, v{base + 3}")
            self(f"  v_permlane16_swap_b32 v{base}, v{base + 1}")
            self(f"  v_add_f32 v{base}, v{base}, v{base + 1}")
            self(f"  v_add_f32_dpp v{base}, v{base}, v{base} row_ror:4 row_mask:0xf bank_mask:0xf")
            self(f"  v_add_f32_dpp v{base}, v{base}, v{base} row_ror:8 row_mask:0xf bank_mask:0xf")

        def issueD():
            self("  buffer_load_dwordx4 v[24:27], v14, s[44:47], 0 offen offset:2048 sc1")
            self("  buffer_load_dwordx4 v[28:31], v14, s[44:47], 0 offen offset:3072 sc1")
        self.poll_loop("pollD", issueD, range(24, 32), 32, sleep=8)
        red(24)
        self("  v_cvt_pk_bf16_f32 v24, v24, v24")
        self("  v_lshlrev_b32 v24, 16, v24")
        self(f"  v_mul_f32 v25, {f2h(-1.4426950408889634)}, v24")
        self("  v_exp_f32 v25, v25")
        self("  s_nop 0")
        self("  v_add_f32 v25, 1.0, v25")
        self("  v_rcp_f32 v25, v25")
        self("  s_nop 0")
        self("  v_mul_f32 v24, v24, v25")
        self("  v_cvt_pk_bf16_f32 v24, v24, v24")
        self("  v_lshlrev_b32 v18, 16, v24          ; g")
        self("  v_lshlrev_b32 v17, 16, v17          ; x")
        self.stamp(6)
        self("  s_barrier            ; B2")
        self("  s_barrier            ; B3")

        def issueS():
            self("  buffer_load_dwordx4 v[24:27], v14, s[44:47], 0 offen sc1")
            self("  buffer_load_dwordx4 v[28:31], v14, s[44:47], 0 offen offset:1024 sc1")
        self.poll_loop("pollS", issueS, range(24, 32), 32)
        red(24)
        self("  v_cvt_pk_bf16_f32 v24, v24, v24")
        self("  v_lshlrev_b32 v24, 16, v24          ; s")
        self("  v_mul_f32 v24, v24, v18")
        self("  v_cvt_pk_bf16_f32 v24, v24, v24")
        self("  v_lshlrev_b32 v24, 16, v24")
        self("  v_add_f32 v24, v17, v24")
        self("  v_cvt_pk_bf16_f32 v24, v24, v24")
        self("  s_mov_b32 exec_lo, 0x000f000f")
        self("  s_mov_b32 exec_hi, 0x000f000f")
        self("  buffer_store_short v24, v15, s[40:43], 0 offen")
        self("  s_mov_b64 exec, -1")
        self.stamp(7)
        self("  s_branch L_exit_stamped")

    def epilogue(self):
        self("L_exit_stamped:")
        if self.stamps:
            self.srd(44, 30, None, WS_SIZE)
            self.stamps_out()
        self("L_end:")
        self("  s_endpgm")
        self(f""".section .rodata,"a"
.p2align 6
.amdhsa_kernel {KNAME}
  .amdhsa_next_free_vgpr 168
  .amdhsa_next_free_sgpr 102
  .amdhsa_accum_offset 168
  .amdhsa_group_segment_fixed_size 0
  .amdhsa_kernarg_size 96
  .amdhsa_user_sgpr_count 2
  .amdhsa_user_sgpr_kernarg_segment_ptr 1
  .amdhsa_system_sgpr_workgroup_id_x 1
.end_amdhsa_kernel""")

    def build(self):
        self.prologue()
        self.stream()
        self.helper()
        self.epilogue()
        return fix("\n".join(self.lines) + "\n", verbose=True)


if __name__ == "__main__":
    import argparse
    ap = argparse.ArgumentParser()
    ap.add_argument("-o", default="k.s")
    ap.add_argument("--D", type=int, default=5)
    ap.add_argument("--E", type=int, default=5)
    ap.add_argument("--SB", type=int, default=19)
    ap.add_argument("--stamps", action="store_true")
    ap.add_argument("--slow", action="store_true")
    ap.add_argument("--b0post", action="store_true")
    ap.add_argument("--prio", type=int, default=3)
    ap.add_argument("--dbgst", action="store_true")
    ap.add_argument("--fine", action="store_true")
    ap.add_argument("--ds", default="", help="D schedule: slot:D,slot:D")
    ap.add_argument("--qkn", type=int, default=2)
    ap.add_argument("--wot", type=int, default=0)
    ap.add_argument("--npoll", type=int, default=2)
    ap.add_argument("--bp", type=int, default=None)
    ap.add_argument("--ilv", action="store_true")
    ap.add_argument("--prog", default="")
    ap.add_argument("--latepub", action="store_true")
    ap.add_argument("--pdelay", type=int, default=0)
    ap.add_argument("--adapt", default="", help="lo:hi slots with optional tighter throttle")
    ap.add_argument("--nocnt", type=int, default=0, help="diagnosis only: 1 = no atomic, no polls; 2 = atomic but no polls")
    ap.add_argument("--pgap", type=int, default=8)
    a = ap.parse_args()
    g = G(D=a.D, E=a.E, SB=a.SB, stamps=a.stamps, force_slow=a.slow, b0pre=not a.b0post, prio=a.prio, dbgst=a.dbgst, fine=a.fine,
          dsched=[tuple(int(v) for v in p.split(':')) for p in a.ds.split(',') if p], qk_per_slot=a.qkn, wo_throttle=a.wot, npoll=a.npoll, poll_gap=a.pgap, bulkprio=a.bp, ilv=a.ilv, prog=[int(v) for v in a.prog.split(',') if v], early_pub=not a.latepub, poll_delay=a.pdelay, nocnt=a.nocnt, adapt=tuple(int(v) for v in a.adapt.split(':')) if a.adapt else None)
    open(a.o, "w").write(g.build())
```

```python
import sys, struct
sys.path.insert(0, "dev")
from hz import fix

KNAME = "recurrent_scan__sliding_block_cached__glu_gated_reglu__decode_kernel"


def f2h(x):
    return "0x%08x" % struct.unpack("<I", struct.pack("<f", x))[0]


LOG2E = f2h(1.4426950408889634)
SCALE = f2h(192 ** -0.5)
INV640 = f2h(1.0 / 640)
EPS = f2h(1e-5)

BOX = 2304
GBOX = 8 * BOX
O_H1 = 0
O_O2 = 1280
O_LSE = 1664
SD_BASE = 655360
STAMP_BASE = 1 << 20
WS_SIZE = 2 << 20

L_Q = 0
L_MODE = 384
L_CNT = 388
L_QF = 392
L_CLR = 396
L_M = 400
L_L = 432
L_XN = 1280
L_HB = 2560
L_WO = 4096
L_PART = L_WO + 192 * 160
L_A = L_PART + 8 * 768
LDS_BYTES = L_A + 8 * 400

SPIN_MAX = 30000


class G:
    def __init__(self, D=5, E=5, SB=19, stamps=False, force_slow=False, wo_slot=32, b0pre=True, prio=3, dbgst=False, fine=False, dsched=(), qk_per_slot=2, wo_throttle=0, npoll=2, poll_gap=8, bulkprio=None, ilv=False, prog=(), early_pub=True, poll_delay=0, nocnt=0, adapt=None, hwid=False, map2=False, rot=None, touch=0, wnt=7):
        self.wnt = wnt
        self.touch = touch
        self.map2 = map2
        self.rot = rot
        self.hwid = hwid
        self.adapt = adapt
        self.nocnt = nocnt
        self.early_pub = early_pub
        self.poll_delay = poll_delay
        self.prog = list(prog)
        self.ilv = ilv
        self.bulkprio = bulkprio
        self.wo_throttle = wo_throttle
        self.npoll = npoll
        self.poll_gap = poll_gap
        self.dsched = list(dsched)
        self.qk_per_slot = qk_per_slot
        self.dbgst = dbgst
        self.fine = fine
        self.in_stream = False
        self.prio = prio
        self.b0pre = b0pre
        self.D, self.E, self.SB = D, E, SB
        self.stamps = stamps
        self.force_slow = force_slow
        self.wo_slot = wo_slot
        self.lines = []
        self.uid = 0
        self.vm = []

    def Dof(self, i):
        for (slot, d) in reversed(self.dsched):
            if i >= slot:
                return d
        return self.D

    def __call__(self, s=""):
        for l in s.split("\n"):
            self.lines.append(l)

    def lab(self, base):
        self.uid += 1
        return f"L_{base}_{self.uid}"

    def vm_reset(self):
        self.vm = []

    def vm_issue(self, tag):
        self.vm.append(tag)

    def vm_wait(self, tag):
        idx = [i for i, t in enumerate(self.vm) if t == tag]
        if not idx:
            return
        last = idx[-1]
        n = len(self.vm) - 1 - last
        assert n <= 63
        self(f"  s_waitcnt vmcnt({n})")
        self.vm = self.vm[last + 1:]

    def stamp(self, i):
        if self.prog and self.in_stream and i != 0:
            return
        if self.stamps and not (self.fine and self.in_stream and i in (1, 2, 3, 5, 6, 7)):
            self(f"  s_memrealtime s[{70 + 2 * i}:{71 + 2 * i}]")

    def fstamp(self, i, clk=False):
        if self.stamps and self.fine:
            op = "s_memtime" if clk else "s_memrealtime"
            self(f"  {op} s[{70 + 2 * i}:{71 + 2 * i}]")

    def stamps_out(self):
        if not self.stamps:
            return
        self("  s_waitcnt lgkmcnt(0) vmcnt(0)")
        self("  s_mul_i32 s6, s2, 12")
        self("  s_add_u32 s6, s6, s3")
        self("  s_lshl_b32 s6, s6, 6")
        self(f"  s_add_u32 s6, s6, {STAMP_BASE}")
        self("  v_mov_b32 v2, s6")
        for i in range(12):
            self(f"  v_mov_b32 v{4 + i}, s{70 + 2 * i}")
        self("  s_mov_b64 exec, 1")
        self("  buffer_store_dwordx4 v[4:7], v2, s[44:47], 0 offen")
        self("  buffer_store_dwordx4 v[8:11], v2, s[44:47], 0 offen offset:16")
        self("  buffer_store_dwordx4 v[12:15], v2, s[44:47], 0 offen offset:32")
        if self.dbgst:
            self("  s_load_dwordx2 s[6:7], s[0:1], 80")
            self("  s_waitcnt lgkmcnt(0)")
            self.srd(48, 6, None, 256)
            for (wg, wv, lst) in ((0, 0, ((0, 1), (2, 3), (4, 5))), (8, 9, ((0, 7), (6, 9), (7, 11))), (255, 0, ((0, 13), (4, 15)))):
                Ls = self.lab("dbgskip")
                self(f"  s_cmp_eq_u32 s2, {wg}")
                self(f"  s_cbranch_scc0 {Ls}")
                self(f"  s_cmp_eq_u32 s3, {wv}")
                self(f"  s_cbranch_scc0 {Ls}")
                for (st, dw) in lst:
                    self(f"  v_mov_b32 v2, {4 * dw}")
                    self(f"  buffer_store_dword v{4 + st}, v2, s[48:51], 0 offen")
                self(f"{Ls}:")
        self("  s_mov_b64 exec, -1")

    def srd(self, s, base_lo, off, nrec):
        if off is None:
            self(f"  s_mov_b32 s{s}, s{base_lo}")
            self(f"  s_mov_b32 s{s + 1}, s{base_lo + 1}")
        else:
            self(f"  s_add_u32 s{s}, s{base_lo}, {off}")
            self(f"  s_addc_u32 s{s + 1}, s{base_lo + 1}, 0")
        self(f"  s_mov_b32 s{s + 2}, {nrec}")
        self(f"  s_mov_b32 s{s + 3}, 0x20000")

    def allreduce(self, op, v, t):
        for r in (1, 2, 4, 8):
            self(f"  {op}_dpp v{v}, v{v}, v{v} row_ror:{r} row_mask:0xf bank_mask:0xf")
        self(f"  v_mov_b32 v{t}, v{v}")
        self(f"  v_permlane16_swap_b32 v{v}, v{t}")
        self(f"  {op} v{v}, v{v}, v{t}")
        self(f"  v_mov_b32 v{t}, v{v}")
        self(f"  v_permlane32_swap_b32 v{v}, v{t}")
        self(f"  {op} v{v}, v{v}, v{t}")

    def cross_rows(self, op, v, t):
        self(f"  v_mov_b32 v{t}, v{v}")
        self(f"  v_permlane16_swap_b32 v{v}, v{t}")
        self(f"  {op} v{v}, v{v}, v{t}")
        self(f"  v_mov_b32 v{t}, v{v}")
        self(f"  v_permlane32_swap_b32 v{v}, v{t}")
        self(f"  {op} v{v}, v{v}, v{t}")

    def treduce8(self, A, T):
        for a in range(4):
            self(f"  v_permlane32_swap_b32 v{A[a]}, v{A[a + 4]}")
        for a in range(4):
            self(f"  v_add_f32 v{A[a]}, v{A[a]}, v{A[a + 4]}")
        for a in range(2):
            self(f"  v_permlane16_swap_b32 v{A[a]}, v{A[a + 2]}")
        for a in range(2):
            self(f"  v_add_f32 v{A[a]}, v{A[a]}, v{A[a + 2]}")
        self(f"  v_add_f32_dpp v{T}, v{A[0]}, v{A[0]} row_ror:8 row_mask:0xf bank_mask:0x3")
        self(f"  v_add_f32_dpp v{T}, v{A[1]}, v{A[1]} row_ror:8 row_mask:0xf bank_mask:0xc")

    def treduce4rows(self, A, out_pairs=None):
        n = len(A) // 4
        for k in range(n):
            a = A[4 * k:4 * k + 4]
            self(f"  v_permlane32_swap_b32 v{a[0]}, v{a[2]}")
            self(f"  v_permlane32_swap_b32 v{a[1]}, v{a[3]}")
        for k in range(n):
            a = A[4 * k:4 * k + 4]
            self(f"  v_add_f32 v{a[0]}, v{a[0]}, v{a[2]}")
            self(f"  v_add_f32 v{a[1]}, v{a[1]}, v{a[3]}")
        for k in range(n):
            a = A[4 * k:4 * k + 4]
            self(f"  v_permlane16_swap_b32 v{a[0]}, v{a[1]}")
        for k in range(n):
            a = A[4 * k:4 * k + 4]
            self(f"  v_add_f32 v{a[0]}, v{a[0]}, v{a[1]}")
        return [A[4 * k] for k in range(n)]

    def sentinel_check(self, regs, t):
        regs = list(regs)
        if len(regs) == 1:
            self(f"  v_cmp_eq_u32 vcc, -1, v{regs[0]}")
            return
        if len(regs) == 2:
            self(f"  v_max_u32 v{t}, v{regs[0]}, v{regs[1]}")
            regs = []
        else:
            self(f"  v_max3_u32 v{t}, v{regs[0]}, v{regs[1]}, v{regs[2]}")
            regs = regs[3:]
        while regs:
            if len(regs) >= 2:
                self(f"  v_max3_u32 v{t}, v{t}, v{regs[0]}, v{regs[1]}")
                regs = regs[2:]
            else:
                self(f"  v_max_u32 v{t}, v{t}, v{regs[0]}")
                regs = regs[1:]
        self(f"  v_cmp_eq_u32 vcc, -1, v{t}")

    def poll_loop(self, name, issue, regs, t, sleep=0):
        L = self.lab(name)
        Ld = self.lab(name + "d")
        self("  s_mov_b32 s57, 0")
        self(f"{L}:")
        issue()
        self("  s_waitcnt vmcnt(0)")
        self.sentinel_check(regs, t)
        self("  s_add_u32 s57, s57, 1")
        self(f"  s_cmp_gt_u32 s57, {SPIN_MAX}")
        self(f"  s_cbranch_scc1 {Ld}")
        if sleep:
            self(f"  s_cbranch_vccz {Ld}")
            self(f"  s_sleep {sleep}")
            self(f"  s_branch {L}")
        else:
            self(f"  s_cbranch_vccnz {L}")
        self(f"{Ld}:")

    def lds_spin(self, name, addr_v, off, t, target=None, sdst="s58", sleep=1):
        L = self.lab(name)
        Ld = self.lab(name + "d")
        self("  s_mov_b32 s57, 0")
        self(f"{L}:")
        self(f"  ds_read_b32 v{t}, v{addr_v} offset:{off}")
        self("  s_waitcnt lgkmcnt(0)")
        self(f"  v_readfirstlane_b32 {sdst}, v{t}")
        self("  s_add_u32 s57, s57, 1")
        self(f"  s_cmp_gt_u32 s57, {SPIN_MAX * 8}")
        self(f"  s_cbranch_scc1 {Ld}")
        if target is None:
            self(f"  s_cmp_lg_u32 {sdst}, 0")
        else:
            self(f"  s_cmp_eq_u32 {sdst}, {target}")
        self(f"  s_cbranch_scc1 {Ld}")
        if sleep:
            self(f"  s_sleep {sleep}")
        self(f"  s_branch {L}")
        self(f"{Ld}:")

    def mode_store(self, instr):
        Lf = self.lab("fast")
        Lj = self.lab("join")
        self("  s_cmp_eq_u32 s59, 2")
        self(f"  s_cbranch_scc1 {Lf}")
        for i in instr:
            self(f"  {i} sc1")
        self(f"  s_branch {Lj}")
        self(f"{Lf}:")
        for i in instr:
            self(f"  {i}")
        self(f"{Lj}:")

    def prologue(self):
        self(f"""; Fused decode step: LN -> q -> sliding-window attention (split over 8 WGs per head) -> wo,
; @launch grid=(256,1,1) block=(768,1,1) lds={LDS_BYTES}
.amdgcn_target "amdgcn-amd-amdhsa--gfx950"
.text
.globl {KNAME}
.p2align 8
.type {KNAME},@function
{KNAME}:
  s_cmp_ge_u32 s2, 256
  s_cbranch_scc1 L_end""")
        self.stamp(0)
        if self.hwid:
            self("  s_getreg_b32 s88, hwreg(HW_REG_HW_ID)")
            self("  s_getreg_b32 s90, hwreg(HW_REG_XCC_ID)")
        self(f"""  s_load_dwordx16 s[8:23], s[0:1], 0
  s_load_dwordx8 s[24:31], s[0:1], 64
  v_readfirstlane_b32 s3, v0
  v_and_b32 v0, 63, v0
  s_lshr_b32 s3, s3, 6
  s_and_b32 s4, s2, 7
  s_lshl_b32 s4, s4, 2""")
        if self.map2:
            self("""  s_lshr_b32 s5, s2, 6
  s_add_u32 s4, s4, s5          ; h
  s_lshr_b32 s5, s2, 3
  s_and_b32 s5, s5, 7           ; c""")
        else:
            self("""  s_lshr_b32 s5, s2, 3
  s_and_b32 s5, s5, 3
  s_add_u32 s4, s4, s5          ; h
  s_lshr_b32 s5, s2, 5          ; c""")
        self("""  s_cmp_ge_u32 s3, 8
  s_cbranch_scc1 L_helper""")

    def stream(self):
        self.in_stream = True
        D, E, SB = self.D, self.E, self.SB
        Q = list(range(4, 10))
        A = list(range(10, 22))
        P = list(range(22, 26))
        T = [26, 27]
        U = list(range(28, 32))
        PL = list(range(32, 36))
        PH = list(range(36, 40))
        t0, t1 = 40, 41
        RING = 42
        nbuf = 16 + E

        def kbuf(b):
            return RING + 6 * b

        def vbuf(j):
            return RING + 6 * (16 + j) if j < E else RING + 6 * (j - E)

        self(f"""  ; ---------------- stream waves ----------------
  s_mul_i32 s6, s4, 12582912
  s_mul_i32 s7, s5, 196608
  s_add_u32 s6, s6, s7
  s_add_u32 s6, s6, {28672 * 384}
  s_mul_i32 s7, s3, {1536 if self.ilv else 24576}
  v_lshrrev_b32 v3, 4, v0
  v_and_b32 v2, 15, v0
  v_mul_u32_u24 v3, 384, v3
  v_add_u32 v3, s7, v3
  v_lshl_add_u32 v1, v2, 4, v3      ; x4 offset
  v_lshl_add_u32 v2, v2, 3, v3
  v_add_u32 v2, 256, v2             ; x2 offset""")
        for k in range(1, 6):
            self(f"  s_mov_b32 s{59 + k}, {4608 * k}")
        if self.rot:
            self(f"  s_mul_i32 s66, s4, {self.rot[0]}")
            self(f"  s_mul_i32 s7, s5, {self.rot[1]}")
            self("  s_add_u32 s66, s66, s7")
            self(f"  s_mul_i32 s7, s3, {self.rot[2]}")
            self("  s_add_u32 s66, s66, s7")
        if self.adapt:
            self("  s_and_b32 s65, s2, 1")
        self("  s_waitcnt lgkmcnt(0)")
        self.srd(32, 10, "s6", 196608)
        self.srd(36, 12, "s6", 196608)
        self.vm_reset()

        def issue(i):
            t, b = (0, i) if i < 16 else (1, i - 16)
            srd = "s[32:35]" if t == 0 else "s[36:39]"
            r = kbuf(b) if t == 0 else vbuf(b)
            so = "0" if b < 3 else f"s{59 + b // 3}"
            imm = 1536 * (b % 3)
            if self.ilv:
                imm = 0
                so = "0" if b == 0 else "s60"
                if self.rot:
                    so = "s60"
                    self(f"  s_add_u32 s60, s66, {b}")
                    self("  s_and_b32 s60, s60, 15")
                    self("  s_mul_i32 s60, s60, 12288")
                elif b:
                    self(f"  s_mov_b32 s60, {12288 * b}")
            o = f" offset:{imm}" if imm else ""
            self(f"  buffer_load_dwordx4 v[{r}:{r + 3}], v1, {srd}, {so} offen{o} nt")
            self(f"  buffer_load_dwordx2 v[{r + 4}:{r + 5}], v2, {srd}, {so} offen{o} nt")
            self.vm_issue(("L", i))
            self.vm_issue(("L", i))

        def qk_group(g):
            bs = [kbuf(4 * g + k) for k in range(4)]
            for i in range(6):
                for k in range(4):
                    c = "0" if i == 0 else f"v{P[k]}"
                    self(f"  v_dot2_f32_bf16 v{P[k]}, v{bs[k] + i}, v{Q[i]}, {c}")
            self(f"  v_add_f32_dpp v{T[0]}, v{P[0]}, v{P[0]} row_ror:8 row_mask:0xf bank_mask:0x3")
            self(f"  v_add_f32_dpp v{T[1]}, v{P[1]}, v{P[1]} row_ror:8 row_mask:0xf bank_mask:0x3")
            self(f"  v_add_f32_dpp v{T[0]}, v{P[2]}, v{P[2]} row_ror:8 row_mask:0xf bank_mask:0xc")
            self(f"  v_add_f32_dpp v{T[1]}, v{P[3]}, v{P[3]} row_ror:8 row_mask:0xf bank_mask:0xc")
            self(f"  v_add_f32_dpp v{U[g]}, v{T[0]}, v{T[0]} row_shl:4 row_mask:0xf bank_mask:0x5")
            self(f"  v_add_f32_dpp v{U[g]}, v{T[1]}, v{T[1]} row_shr:4 row_mask:0xf bank_mask:0xa")
            self(f"  v_add_f32_dpp v{U[g]}, v{U[g]}, v{U[g]} quad_perm:[1,0,3,2] row_mask:0xf bank_mask:0xf")
            self(f"  v_add_f32_dpp v{U[g]}, v{U[g]}, v{U[g]} quad_perm:[2,3,0,1] row_mask:0xf bank_mask:0xf")

        def softmax():
            self(f"  v_cvt_pk_bf16_f32 v{P[0]}, v{U[0]}, v{U[1]}")
            self(f"  v_cvt_pk_bf16_f32 v{P[1]}, v{U[2]}, v{U[3]}")
            self(f"  v_lshlrev_b32 v{U[0]}, 16, v{P[0]}")
            self(f"  v_and_b32 v{U[1]}, 0xffff0000, v{P[0]}")
            self(f"  v_lshlrev_b32 v{U[2]}, 16, v{P[1]}")
            self(f"  v_and_b32 v{U[3]}, 0xffff0000, v{P[1]}")
            for g in range(4):
                self(f"  v_mul_f32 v{U[g]}, {SCALE}, v{U[g]}")
            self(f"  v_cvt_pk_bf16_f32 v{P[0]}, v{U[0]}, v{U[1]}")
            self(f"  v_cvt_pk_bf16_f32 v{P[1]}, v{U[2]}, v{U[3]}")
            self(f"  v_lshlrev_b32 v{U[0]}, 16, v{P[0]}")
            self(f"  v_and_b32 v{U[1]}, 0xffff0000, v{P[0]}")
            self(f"  v_lshlrev_b32 v{U[2]}, 16, v{P[1]}")
            self(f"  v_and_b32 v{U[3]}, 0xffff0000, v{P[1]}")
            self(f"  v_max3_f32 v{t0}, v{U[0]}, v{U[1]}, v{U[2]}")
            self(f"  v_max_f32 v{t0}, v{t0}, v{U[3]}")
            self(f"  v_max_f32_dpp v{t0}, v{t0}, v{t0} row_ror:4 row_mask:0xf bank_mask:0xf")
            self(f"  v_max_f32_dpp v{t0}, v{t0}, v{t0} row_ror:8 row_mask:0xf bank_mask:0xf")
            self.cross_rows("v_max_f32", t0, t1)
            for g in range(4):
                self(f"  v_sub_f32 v{U[g]}, v{U[g]}, v{t0}")
            for g in range(4):
                self(f"  v_mul_f32 v{U[g]}, {LOG2E}, v{U[g]}")
            for g in range(4):
                self(f"  v_exp_f32 v{U[g]}, v{U[g]}")
            self("  s_nop 0")
            for g in range(4):
                self(f"  v_cvt_pk_bf16_f32 v{PL[g]}, v{U[g]}, 0")
                self(f"  v_cvt_pk_bf16_f32 v{PH[g]}, 0, v{U[g]}")
            self(f"  v_add_f32 v{T[0]}, v{U[0]}, v{U[1]}")
            self(f"  v_add_f32 v{T[1]}, v{U[2]}, v{U[3]}")
            self(f"  v_add_f32 v{T[0]}, v{T[0]}, v{T[1]}")
            self(f"  v_add_f32_dpp v{T[0]}, v{T[0]}, v{T[0]} row_ror:4 row_mask:0xf bank_mask:0xf")
            self(f"  v_add_f32_dpp v{T[0]}, v{T[0]}, v{T[0]} row_ror:8 row_mask:0xf bank_mask:0xf")
            self.cross_rows("v_add_f32", T[0], t1)
            self(f"  s_lshl_b32 s6, s3, 2")
            self(f"  v_mov_b32 v{t1}, s6")
            self(f"  v_mov_b32 v{T[1]}, 1")
            self(f"  v_mov_b32 v{P[0]}, 0")
            self("  s_mov_b64 exec, 1")
            self(f"  ds_write_b32 v{t1}, v{t0} offset:{L_M}")
            self(f"  ds_write_b32 v{t1}, v{T[0]} offset:{L_L}")
            self("  s_waitcnt lgkmcnt(0)")
            self(f"  ds_add_u32 v{P[0]}, v{T[1]} offset:{L_CNT}")
            self("  s_mov_b64 exec, -1")
            for a in A:
                self(f"  v_mov_b32 v{a}, 0")

        def pv(j):
            g, k = j // 4, j % 4
            r = vbuf(j)
            for i in range(6):
                self(f"  v_dot2c_f32_bf16_dpp v{A[2 * i]}, v{PL[g]}, v{r + i} row_newbcast:{4 * k} row_mask:0xf bank_mask:0xf")
                self(f"  v_dot2c_f32_bf16_dpp v{A[2 * i + 1]}, v{PH[g]}, v{r + i} row_newbcast:{4 * k} row_mask:0xf bank_mask:0xf")

        qk_next = 0
        sm_done = False
        pv_next = 0
        landed = -1
        MO, FF, PA0, PA1 = 4, 5, 6, 7

        if self.touch & 1:
            self(f"  s_mul_i32 s7, s3, 24576")
            self(f"  v_mov_b32 v{t1}, s7")
            self("  s_mov_b64 exec, 1")
            self(f"  buffer_load_dword v{t0}, v{t1}, s[36:39], 0 offen")
            self("  s_mov_b64 exec, -1")
            self.vm_issue(("T", 0))
        self("  s_barrier            ; B0")
        for i in range(32):
            Di = self.Dof(i)
            if i - Di > landed:
                self.vm_wait(("L", i - Di))
                landed = i - Di
            if self.adapt and self.adapt[0] <= i < self.adapt[1]:
                tag = ("L", i - (Di - 1))
                idx = [k for k, tg in enumerate(self.vm) if tg == tag]
                if idx:
                    n = len(self.vm) - 1 - idx[-1]
                    Ls = self.lab("deep")
                    self("  s_cmp_lg_u32 s65, 0")
                    self(f"  s_cbranch_scc1 {Ls}")
                    self(f"  s_waitcnt vmcnt({n})")
                    self(f"{Ls}:")
            if i >= 16 and (i - 16) >= E:
                need_g = (i - 16 - E) // 4
                assert qk_next > need_g, f"schedule: V{i - 16} needs QK group {need_g} (slot {i})"
            if self.prog and self.stamps and i in self.prog:
                k = 1 + self.prog.index(i)
                self(f"  s_memrealtime s[{70 + 2 * k}:{71 + 2 * k}]")
            issue(i)
            if i == SB:
                self.stamp(1)
                self(f"  v_mov_b32 v{t1}, 0")
                self.lds_spin("qf", t1, L_QF, t0, target=3, sdst="s58", sleep=1)
                self.stamp(2)
                self(f"  v_and_b32 v{t0}, 15, v0")
                self(f"  v_lshlrev_b32 v{t1}, 4, v{t0}")
                self(f"  v_lshlrev_b32 v{t0}, 3, v{t0}")
                self(f"  ds_read_b128 v[{Q[0]}:{Q[3]}], v{t1} offset:{L_Q}")
                self(f"  ds_read_b64 v[{Q[4]}:{Q[5]}], v{t0} offset:{L_Q + 256}")
                self("  s_waitcnt lgkmcnt(0)")
            if i >= SB:
                n = 0
                while qk_next < 4 and 4 * qk_next + 3 <= landed and n < self.qk_per_slot:
                    qk_group(qk_next)
                    qk_next += 1
                    n += 1
                if qk_next == 4 and not sm_done:
                    softmax()
                    self(f"  v_mov_b32 v{MO}, v{t0}")
                    sm_done = True
                    self.stamp(3)
                elif sm_done:
                    n = 0
                    while pv_next < 16 and 16 + pv_next <= landed and n < 3:
                        pv(pv_next)
                        pv_next += 1
                        n += 1
        assert sm_done
        self(f"  v_mov_b32 v{t1}, 0")
        self.lds_spin("cnt8", t1, L_CNT, t0, target=8, sdst="s58", sleep=1)
        self(f"  v_and_b32 v{t1}, 7, v0")
        self(f"  v_lshlrev_b32 v{t1}, 2, v{t1}")
        self(f"  ds_read_b32 v{t0}, v{t1} offset:{L_M}")
        self(f"  v_and_b32 v{P[0]}, 15, v0")
        self(f"  v_lshrrev_b32 v{P[1]}, 4, v0")
        self(f"  v_lshlrev_b32 v{P[1]}, 2, v{P[1]}")
        self("  s_mul_i32 s6, s3, 768")
        self(f"  v_add_u32 v{P[1]}, s6, v{P[1]}")
        self(f"  v_lshl_add_u32 v{PA0}, v{P[0]}, 5, v{P[1]}")
        self(f"  v_lshl_add_u32 v{PA1}, v{P[0]}, 4, v{P[1]}")
        self("  s_waitcnt lgkmcnt(0)")
        for r in (1, 2, 4):
            self(f"  v_max_f32_dpp v{t0}, v{t0}, v{t0} row_ror:{r} row_mask:0xf bank_mask:0xf")
        self(f"  v_sub_f32 v{FF}, v{MO}, v{t0}")
        self(f"  v_mul_f32 v{FF}, {LOG2E}, v{FF}")
        self(f"  v_exp_f32 v{FF}, v{FF}")
        for j in range(pv_next, 16):
            self.vm_wait(("L", 16 + j))
            if j == 15:
                self.stamp(4)
                if self.prog and self.stamps:
                    self(f"  s_memrealtime s[92:93]")
            pv(j)
        R = self.treduce4rows(A)
        for r in R:
            self(f"  v_mul_f32 v{r}, v{FF}, v{r}")
        self(f"  ds_write_b32 v{PA0}, v{R[0]} offset:{L_PART}")
        self(f"  ds_write_b32 v{PA0}, v{R[1]} offset:{L_PART + 16}")
        self(f"  ds_write_b32 v{PA1}, v{R[2]} offset:{L_PART + 512}")
        Bf = RING
        Af = RING + 24
        Dd = RING + 48
        aB, aA, aS = RING + 52, RING + 53, RING + 54
        self(f"  v_lshrrev_b32 v{P[0]}, 4, v0          ; g")
        self(f"  v_bfe_u32 v{P[2]}, v0, 2, 2           ; r4")
        self(f"  v_and_b32 v{P[3]}, 3, v0              ; cq")
        self(f"  v_lshl_add_u32 v{aB}, v{P[0]}, 3, v{P[2]}   ; 8g + r4")
        self(f"  v_mul_u32_u24 v{aB}, 160, v{aB}")
        self(f"  v_lshl_add_u32 v{aB}, v{P[3]}, 3, v{aB}")
        self("  s_lshl_b32 s6, s3, 5")
        self(f"  v_add_u32 v{aB}, s6, v{aB}")
        self("  s_waitcnt lgkmcnt(0)")
        self.stamp(5)
        self("  s_cmp_ge_u32 s3, 5")
        self("  s_cbranch_scc1 L_exit_stamped")
        self("  s_barrier")
        for s in range(6):
            self(f"  ds_read_b64_tr_b16 v[{Bf + 4 * s}:{Bf + 4 * s + 1}], v{aB} offset:{L_WO + 5120 * s}")
            self(f"  ds_read_b64_tr_b16 v[{Bf + 4 * s + 2}:{Bf + 4 * s + 3}], v{aB} offset:{L_WO + 5120 * s + 640}")
        self.srd(44, 30, None, WS_SIZE)
        self(f"  v_and_b32 v{aA}, 7, v0")
        self(f"  v_mul_u32_u24 v{aA}, 400, v{aA}")
        self(f"  v_lshl_add_u32 v{aA}, v{P[0]}, 4, v{aA}")
        for d in range(4):
            self(f"  v_mov_b32 v{Dd + d}, 0")
        self("  s_mul_i32 s6, s5, 20480")
        self("  s_lshl_b32 s7, s3, 12")
        self("  s_add_u32 s6, s6, s7")
        self("  s_lshl_b32 s7, s4, 6")
        self("  s_add_u32 s6, s6, s7")
        self(f"  s_add_u32 s6, s6, {SD_BASE}")
        self(f"  v_lshlrev_b32 v{aS}, 2, v0")
        self(f"  v_add_u32 v{aS}, s6, v{aS}")
        self("  s_waitcnt lgkmcnt(0)")
        self("  s_barrier")
        for s in range(6):
            self(f"  ds_read_b128 v[{Af + 4 * s}:{Af + 4 * s + 3}], v{aA} offset:{L_A + 64 * s}")
        self.stamp(6)
        for s in range(6):
            if self.stamps:
                if s == 0:
                    self("  s_waitcnt lgkmcnt(0)")
            else:
                self(f"  s_waitcnt lgkmcnt({5 - s})")
            self(f"  v_mfma_f32_16x16x32_bf16 v[{Dd}:{Dd + 3}], v[{Af + 4 * s}:{Af + 4 * s + 3}], v[{Bf + 4 * s}:{Bf + 4 * s + 3}], v[{Dd}:{Dd + 3}]")
        self(f"  v_add_f32 v{Dd}, v{Dd}, v{Dd + 1}")
        self(f"  v_add_f32 v{Dd + 2}, v{Dd + 2}, v{Dd + 3}")
        self(f"  v_add_f32 v{Dd}, v{Dd}, v{Dd + 2}")
        self(f"  v_mov_b32 v{t0}, v{Dd}")
        self(f"  v_permlane16_swap_b32 v{Dd}, v{t0}")
        self(f"  v_add_f32 v{Dd}, v{Dd}, v{t0}")
        self(f"  v_min_u32 v{Dd}, -2, v{Dd}")
        self("  s_mov_b32 exec_lo, 0xffff")
        self("  s_mov_b32 exec_hi, 0")
        self(f"  buffer_store_dword v{Dd}, v{aS}, s[44:47], 0 offen sc1")
        self("  s_mov_b64 exec, -1")
        self.stamp(7)
        self("  s_branch L_exit_stamped")

    def ln(self, X, xs, t):
        for i in range(5):
            self(f"  v_lshlrev_b32 v{xs[2 * i]}, 16, v{X[i]}")
            self(f"  v_and_b32 v{xs[2 * i + 1]}, 0xffff0000, v{X[i]}")
        s, u, m = t[0], t[1], t[2]
        self(f"  v_add_f32 v{s}, v{xs[0]}, v{xs[1]}")
        for i in range(2, 10):
            self(f"  v_add_f32 v{s}, v{s}, v{xs[i]}")
        self.allreduce("v_add_f32", s, u)
        self(f"  v_mul_f32 v{m}, {INV640}, v{s}")
        self(f"  v_sub_f32 v{u}, v{xs[0]}, v{m}")
        self(f"  v_mul_f32 v{s}, v{u}, v{u}")
        for i in range(1, 10):
            self(f"  v_sub_f32 v{u}, v{xs[i]}, v{m}")
            self(f"  v_fmac_f32 v{s}, v{u}, v{u}")
        self.allreduce("v_add_f32", s, u)
        self(f"  v_mul_f32 v{s}, {INV640}, v{s}          ; var")
        self(f"  v_cvt_pk_bf16_f32 v{u}, v{s}, v{m}")
        self(f"  v_lshlrev_b32 v{s}, 16, v{u}            ; bf16(var)")
        self(f"  v_and_b32 v{m}, 0xffff0000, v{u}        ; bf16(mean)")
        self(f"  v_add_f32 v{s}, {EPS}, v{s}")
        self(f"  v_cvt_pk_bf16_f32 v{s}, v{s}, v{s}")
        self(f"  v_lshlrev_b32 v{s}, 16, v{s}")
        self(f"  v_sqrt_f32 v{s}, v{s}")
        self("  s_nop 0")
        self(f"  v_cvt_pk_bf16_f32 v{s}, v{s}, v{s}")
        self(f"  v_lshlrev_b32 v{s}, 16, v{s}")
        self(f"  v_rcp_f32 v{s}, v{s}")
        for i in range(10):
            self(f"  v_sub_f32 v{xs[i]}, v{xs[i]}, v{m}")
        for i in range(5):
            self(f"  v_cvt_pk_bf16_f32 v{X[i]}, v{xs[2 * i]}, v{xs[2 * i + 1]}")
        for i in range(5):
            self(f"  v_lshlrev_b32 v{xs[2 * i]}, 16, v{X[i]}")
            self(f"  v_and_b32 v{xs[2 * i + 1]}, 0xffff0000, v{X[i]}")
        for i in range(10):
            self(f"  v_mul_f32 v{xs[i]}, v{xs[i]}, v{s}")
        for i in range(5):
            self(f"  v_cvt_pk_bf16_f32 v{X[i]}, v{xs[2 * i]}, v{xs[2 * i + 1]}")
        self(f"  v_lshlrev_b32 v{u}, 2, v0")
        for i in range(5):
            self(f"  ds_write_b32 v{u}, v{X[i]} offset:{L_XN + 256 * i}")

    def xn_rows(self, XL, XH, t):
        self(f"  v_lshrrev_b32 v{t}, 3, v0")
        self("  s_mul_i32 s6, s5, 80")
        self(f"  v_add_u32 v{t}, s6, v{t}")
        self(f"  v_lshlrev_b32 v{t}, 1, v{t}")
        self("  s_waitcnt lgkmcnt(0)")
        for i in range(10):
            self(f"  ds_read_u16 v{XL[i]}, v{t} offset:{L_XN + 16 * i}")
        self("  s_waitcnt lgkmcnt(0)")
        for i in range(10):
            self(f"  v_lshlrev_b32 v{XH[i]}, 16, v{XL[i]}")

    def gather_h1(self, nparts, dst, addr):
        def issue():
            for p in range(nparts):
                for c in range(8):
                    so = ["0", "s60", "s61", "s62"][c // 2]
                    imm = BOX * (c % 2) + 256 * p
                    o = f" offset:{imm}" if imm else ""
                    self(f"  buffer_load_dword v{dst[p * 8 + c]}, v{addr}, s[44:47], {so} offen{o} sc1")
        self.poll_loop("h1", issue, dst[:nparts * 8], dst[nparts * 8], sleep=2)

    def own_box(self, dst="s6", tmp="s56"):
        self(f"  s_mul_i32 {dst}, s4, {GBOX}")
        self(f"  s_mul_i32 {tmp}, s5, {BOX}")
        self(f"  s_add_u32 {dst}, {dst}, {tmp}")

    def helper(self):
        self.in_stream = False
        X = list(range(4, 9))
        xs = list(range(10, 20))
        t = [20, 21, 22, 23]
        XL = list(range(24, 34))
        XH = list(range(34, 44))
        ACC = list(range(44, 60))
        W = 64
        self("L_helper:")
        if self.prio:
            self(f"  s_setprio {self.prio}")
        self("  s_sub_u32 s7, s3, 8")
        self("  v_lshlrev_b32 v1, 2, v0       ; 4*lane")
        self(f"  s_mov_b32 s60, {2 * BOX}")
        self(f"  s_mov_b32 s61, {4 * BOX}")
        self(f"  s_mov_b32 s62, {6 * BOX}")
        self("  s_waitcnt lgkmcnt(0)")
        self.srd(32, 8, None, 1280)
        self.srd(44, 30, None, WS_SIZE)
        self.srd(48, 28, None, 256)
        self("  s_cmp_eq_u32 s3, 11")
        self("  s_cbranch_scc1 L_h3")
        self("  s_mul_i32 s6, s5, 983040      ; 80*12288*c")
        self("  s_mul_i32 s56, s4, 384")
        self("  s_add_u32 s6, s6, s56")
        self.srd(36, 14, "s6", 79 * 12288 + 384)
        self(f"  v_lshrrev_b32 v2, 3, v0")
        self(f"  v_mul_u32_u24 v2, 12288, v2")
        self(f"  v_and_b32 v3, 7, v0")
        self(f"  v_lshl_add_u32 v2, v3, 4, v2")
        self("  s_lshl_b32 s6, s7, 7")
        self(f"  v_add_u32 v2, s6, v2")
        for i in range(5):
            o = f" offset:{256 * i}" if i else ""
            self(f"  buffer_load_dword v{X[i]}, v1, s[32:35], 0 offen{o}")
        for i in range(10):
            self(f"  s_mov_b32 s6, {98304 * i}")
            self(f"  buffer_load_dwordx4 v[{W + 4 * i}:{W + 4 * i + 3}], v2, s[36:39], s6 offen nt")
        if self.touch & 2:
            self("  s_mul_i32 s6, s4, 245760      ; 192*1280*h")
            self("  s_mul_i32 s56, s5, 160")
            self("  s_add_u32 s6, s6, s56")
            self.srd(40, 16, "s6", 191 * 1280 + 160)
            self("  s_mul_i32 s6, s7, 81920")
            self("  v_mov_b32 v3, s6")
            self("  s_mov_b64 exec, 1")
            self("  buffer_load_dword v60, v3, s[40:43], 0 offen")
            self("  s_mov_b64 exec, -1")
        self("  s_barrier            ; B0")
        self(f"  s_waitcnt vmcnt({11 if self.touch & 2 else 10})")
        self.ln(X, xs, t)
        self.xn_rows(XL, XH, t[0])
        self.stamp(1)
        self("  s_waitcnt vmcnt(0)")
        self.stamp(2)
        for i in range(10):
            for k in range(4):
                c0 = "0" if i == 0 else f"v{ACC[2 * k]}"
                c1 = "0" if i == 0 else f"v{ACC[2 * k + 1]}"
                self(f"  v_dot2_f32_bf16 v{ACC[2 * k]}, v{W + 4 * i + k}, v{XL[i]}, {c0}")
                self(f"  v_dot2_f32_bf16 v{ACC[2 * k + 1]}, v{W + 4 * i + k}, v{XH[i]}, {c1}")
        self.treduce8(ACC[:8], t[1])
        self(f"  v_min_u32 v{t[1]}, -2, v{t[1]}")
        self(f"  s_mul_i32 s6, s4, {GBOX}")
        self("  s_lshl_b32 s56, s7, 8")
        self("  s_add_u32 s6, s6, s56")
        self(f"  v_add_u32 v14, s6, v1")
        self(f"  s_mul_i32 s56, s5, {BOX}")
        self("  v_add_u32 v15, s56, v14")
        self(f"  v_mov_b32 v12, 0")
        if self.early_pub:
            self.lds_spin("clr", 12, L_CLR, 13, target=None, sdst="s58")
            self(f"  buffer_store_dword v{t[1]}, v15, s[44:47], 0 offen sc1")
            self.lds_spin("mode", 12, L_MODE, 13, target=None, sdst="s59")
        else:
            self.lds_spin("mode", 12, L_MODE, 13, target=None, sdst="s59")
            self.mode_store([f"buffer_store_dword v{t[1]}, v15, s[44:47], 0 offen"])
        self.stamp(3)
        G8 = list(range(64, 73))
        self.gather_h1(1, G8, 14)
        self.stamp(4)
        self(f"  v_add_f32 v{G8[0]}, v{G8[0]}, v{G8[1]}")
        self(f"  v_add_f32 v{G8[2]}, v{G8[2]}, v{G8[3]}")
        self(f"  v_add_f32 v{G8[4]}, v{G8[4]}, v{G8[5]}")
        self(f"  v_add_f32 v{G8[6]}, v{G8[6]}, v{G8[7]}")
        self(f"  v_add_f32 v{G8[0]}, v{G8[0]}, v{G8[2]}")
        self(f"  v_add_f32 v{G8[4]}, v{G8[4]}, v{G8[6]}")
        self(f"  v_add_f32 v{G8[0]}, v{G8[0]}, v{G8[4]}")
        self(f"  v_cvt_pk_bf16_f32 v{G8[0]}, v{G8[0]}, v{G8[0]}")
        self("  v_and_b32 v16, 7, v0")
        self("  v_lshrrev_b32 v17, 3, v0")
        self("  v_lshl_add_u32 v16, v16, 3, v17")
        self("  s_lshl_b32 s6, s7, 6")
        self("  v_add_u32 v16, s6, v16")
        self("  v_lshlrev_b32 v16, 1, v16")
        self(f"  ds_write_b16 v16, v{G8[0]} offset:{L_Q}")
        self("  v_mov_b32 v13, 1")
        self("  s_waitcnt lgkmcnt(0)")
        self("  s_mov_b64 exec, 1")
        self(f"  ds_add_u32 v12, v13 offset:{L_QF}")
        self("  s_mov_b64 exec, -1")
        self.stamp(5)
        self("  s_cmp_eq_u32 s3, 8")
        self("  s_cbranch_scc1 L_h0")
        self("  s_cmp_eq_u32 s3, 10")
        self("  s_cbranch_scc1 L_h2")
        self("  s_mov_b32 s56, -1")
        for tt in range(5):
            self(f"  s_cmp_eq_u32 s4, {6 * tt + 1}")
            self(f"  s_cselect_b32 s56, {tt}, s56")
        self("  s_cmp_eq_u32 s56, -1")
        self("  s_cbranch_scc1 L_exit_stamped")
        self.final_consumer()

        self("L_h2:")
        if self.bulkprio is not None:
            self(f"  s_setprio {self.bulkprio}")
        self("  s_mul_i32 s6, s4, 245760      ; 192*1280*h")
        self("  s_mul_i32 s56, s5, 160")
        self("  s_add_u32 s6, s6, s56")
        self.srd(40, 16, "s6", 191 * 1280 + 160)
        self("  v_mul_u32_u24 v2, 103, v0")
        self("  v_lshrrev_b32 v2, 10, v2")
        self("  v_mul_u32_u24 v3, 10, v2")
        self("  v_sub_u32 v3, v0, v3              ; chunk")
        self("  v_mul_u32_u24 v2, 1280, v2")
        self("  v_lshl_add_u32 v2, v3, 4, v2")
        self("  s_mov_b32 exec_hi, 0x0fffffff     ; 60 lanes")
        self("  s_mov_b32 s6, 0")
        self(f"  s_mov_b32 m0, {L_WO}")
        self("L_wo_loop:")
        self(f"  buffer_load_dwordx4 v2, s[40:43], s6 offen{' nt' if self.wnt & 1 else ''} lds")
        self("  s_add_u32 m0, m0, 960")
        self("  s_add_u32 s6, s6, 7680")
        if self.wo_throttle:
            self(f"  s_waitcnt vmcnt({self.wo_throttle})")
        self(f"  s_cmp_lt_u32 s6, {7680 * 32}")
        self("  s_cbranch_scc1 L_wo_loop")
        self("  s_mov_b64 exec, -1")
        self("  s_waitcnt vmcnt(0)")
        self.stamp(6)
        self("  s_branch L_exit_stamped")

        self("L_h0:")
        self("  v_mov_b32 v12, 0")
        self.lds_spin("cnt", 12, L_CNT, 13, target=8, sdst="s58", sleep=2)
        self("  v_and_b32 v14, 7, v0")
        self("  v_lshlrev_b32 v14, 2, v14")
        self(f"  ds_read_b32 v16, v14 offset:{L_M}")
        self(f"  ds_read_b32 v17, v14 offset:{L_L}")
        self("  s_waitcnt lgkmcnt(0)")
        self("  v_mov_b32 v18, v16")
        for r in (1, 2, 4):
            self(f"  v_max_f32_dpp v18, v18, v18 row_ror:{r} row_mask:0xf bank_mask:0xf")
        self("  v_sub_f32 v19, v16, v18")
        self(f"  v_mul_f32 v19, {LOG2E}, v19")
        self("  v_exp_f32 v19, v19")
        self("  s_nop 0")
        self("  v_mul_f32 v19, v19, v17")
        for r in (1, 2, 4):
            self(f"  v_add_f32_dpp v19, v19, v19 row_ror:{r} row_mask:0xf bank_mask:0xf")
        self("  v_min_u32 v20, -2, v18")
        self("  v_min_u32 v21, -2, v19")
        self("  v_mov_b32 v16, v18                ; M_c")
        self.own_box()
        self(f"  s_add_u32 s6, s6, {O_LSE}")
        self("  v_mov_b32 v15, s6")
        self("  s_mov_b64 exec, 1")
        self.mode_store(["buffer_store_dwordx2 v[20:21], v15, s[44:47], 0 offen"])
        self("  s_mov_b64 exec, -1")
        self("  v_and_b32 v15, 7, v0")
        self(f"  v_mul_u32_u24 v15, {BOX}, v15")
        self(f"  s_mul_i32 s6, s4, {GBOX}")
        self(f"  s_add_u32 s6, s6, {O_LSE}")
        self("  v_add_u32 v15, s6, v15")

        def issue_lse():
            self("  buffer_load_dwordx2 v[22:23], v15, s[44:47], 0 offen sc1")
        self.poll_loop("lse", issue_lse, [22, 23], 24, sleep=1)
        self("  v_mov_b32 v18, v22")
        for r in (1, 2, 4):
            self(f"  v_max_f32_dpp v18, v18, v18 row_ror:{r} row_mask:0xf bank_mask:0xf")
        self("  v_sub_f32 v19, v22, v18")
        self(f"  v_mul_f32 v19, {LOG2E}, v19")
        self("  v_exp_f32 v19, v19")
        self("  s_nop 0")
        self("  v_mul_f32 v19, v19, v23")
        for r in (1, 2, 4):
            self(f"  v_add_f32_dpp v19, v19, v19 row_ror:{r} row_mask:0xf bank_mask:0xf")
        self("  v_rcp_f32 v19, v19")
        self("  v_sub_f32 v16, v16, v18")
        self(f"  v_mul_f32 v16, {LOG2E}, v16")
        self("  v_exp_f32 v16, v16")
        self("  s_nop 0")
        self("  v_mul_f32 v16, v16, v19          ; G = exp(M_c - M_h) / L_h")
        self.stamp(6)
        self("  v_lshlrev_b32 v14, 4, v0")
        self.own_box()
        self(f"  s_add_u32 s6, s6, {O_O2}")
        self("  v_lshlrev_b32 v15, 3, v0")
        self("  v_add_u32 v15, s6, v15")
        self(f"  s_mul_i32 s6, s4, {GBOX}")
        self(f"  s_add_u32 s6, s6, {O_O2}")
        GA, LA = [4, 5, 6], [7, 8, 9]
        for i in range(3):
            self(f"  v_add_u32 v17, {64 * i}, v0")
            self("  v_mul_u32_u24 v18, 171, v17")
            self("  v_lshrrev_b32 v18, 12, v18")
            self("  v_mul_u32_u24 v19, 24, v18")
            self("  v_sub_u32 v19, v17, v19           ; chunk")
            self(f"  v_mul_u32_u24 v20, {BOX}, v18")
            self("  v_lshl_add_u32 v20, v19, 4, v20")
            self(f"  v_add_u32 v{GA[i]}, s6, v20")
            self("  v_mul_u32_u24 v20, 400, v18")
            self(f"  v_lshl_add_u32 v{LA[i]}, v19, 4, v20")
        self("  s_mov_b32 exec_hi, 0xffff         ; 48 lanes")
        self("  s_barrier            ; B2")
        PR = 24
        for w in range(8):
            self(f"  ds_read_b128 v[{PR + 4 * w}:{PR + 4 * w + 3}], v14 offset:{L_PART + 768 * w}")
        for (a_, b_, cnt) in ((0, 1, 6), (2, 3, 4), (0, 2, None), (4, 5, 2), (6, 7, 0), (4, 6, None), (0, 4, None)):
            if cnt is not None:
                self(f"  s_waitcnt lgkmcnt({cnt if not self.stamps else 0})")
            for k in range(4):
                self(f"  v_add_f32 v{PR + 4 * a_ + k}, v{PR + 4 * a_ + k}, v{PR + 4 * b_ + k}")
        for k in range(4):
            self(f"  v_mul_f32 v{PR + k}, v16, v{PR + k}")
        self(f"  v_cvt_pk_bf16_f32 v20, v{PR}, v{PR + 1}")
        self(f"  v_cvt_pk_bf16_f32 v21, v{PR + 2}, v{PR + 3}")
        self("  v_min_u32 v20, -2, v20")
        self("  v_min_u32 v21, -2, v21")
        self.mode_store(["buffer_store_dwordx2 v[20:21], v15, s[44:47], 0 offen"])
        self("  s_mov_b64 exec, -1")
        self.stamp(7)
        AG = 56

        def issueA():
            for i in range(3):
                self(f"  buffer_load_dwordx4 v[{AG + 4 * i}:{AG + 4 * i + 3}], v{GA[i]}, s[44:47], 0 offen sc1")
        self.poll_loop("pollA", issueA, range(AG, AG + 12), 17)
        self.stamp(8)
        for i in range(3):
            self(f"  ds_write_b128 v{LA[i]}, v[{AG + 4 * i}:{AG + 4 * i + 3}] offset:{L_A}")
        self("  s_waitcnt lgkmcnt(0)")
        self("  s_barrier            ; B3")
        self("  s_branch L_exit_stamped")

        self("L_h3:")
        self("  v_mov_b32 v16, 0")
        self("  v_mov_b32 v17, 0")
        self("  v_mov_b32 v18, 0")
        self("  v_mov_b32 v19, 0")
        self("  v_lshlrev_b32 v3, 4, v0")
        self("  v_mov_b32 v8, -1")
        self("  v_mov_b32 v9, -1")
        self("  v_mov_b32 v10, -1")
        self("  v_mov_b32 v11, -1")
        self.own_box()
        self("  v_add_u32 v12, s6, v3")
        self("  buffer_store_dwordx4 v[8:11], v12, s[44:47], 0 offen sc1")
        self("  buffer_store_dwordx4 v[8:11], v12, s[44:47], 0 offen offset:1024 sc1")
        self("  s_mul_i32 s6, s5, 20480")
        self("  s_lshl_b32 s56, s4, 6")
        self("  s_add_u32 s6, s6, s56")
        self(f"  s_add_u32 s6, s6, {SD_BASE}")
        self("  v_lshrrev_b32 v13, 2, v0")
        self("  v_lshlrev_b32 v13, 11, v13")
        self("  v_and_b32 v14, 3, v0")
        self("  v_lshl_add_u32 v13, v14, 4, v13")
        self("  v_add_u32 v13, s6, v13")
        self("  s_mov_b32 exec_hi, 0xff")
        self("  buffer_store_dwordx4 v[8:11], v13, s[44:47], 0 offen sc1")
        self("  s_mov_b32 exec_hi, 0")
        self("  s_mov_b32 exec_lo, 0xff")
        self(f"  ds_write_b128 v3, v[16:19] offset:{L_MODE}")
        self("  s_mov_b64 exec, -1")
        for i in range(5):
            o = f" offset:{256 * i}" if i else ""
            self(f"  buffer_load_dword v{X[i]}, v1, s[32:35], 0 offen{o}")
        if self.touch & 4:
            self("  s_mul_i32 s6, s5, 245760       ; 80*3072*c")
            self("  s_mul_i32 s56, s4, 96")
            self("  s_add_u32 s6, s6, s56")
            self.srd(36, 20, "s6", 79 * 3072 + 96)
            self.srd(40, 22, "s6", 79 * 3072 + 96)
            self("  s_mul_i32 s6, s4, 61440        ; 48*1280*h")
            self("  s_mul_i32 s56, s5, 160")
            self("  s_add_u32 s6, s6, s56")
            self.srd(52, 24, "s6", 47 * 1280 + 160)
            self("  v_mul_u32_u24 v3, 61440, v0")
            self("  v_mul_u32_u24 v2, 20480, v0")
            self("  s_mov_b64 exec, 15")
            self("  buffer_load_dword v61, v3, s[36:39], 0 offen")
            self("  buffer_load_dword v62, v3, s[40:43], 0 offen")
            self("  s_mov_b64 exec, 7")
            self("  buffer_load_dword v63, v2, s[52:55], 0 offen")
            self("  s_mov_b64 exec, -1")
        self("  s_waitcnt lgkmcnt(0)")
        self("  s_barrier            ; B0")
        self("  s_getreg_b32 s6, hwreg(HW_REG_XCC_ID, 0, 4)")
        self("  s_mul_i32 s56, s6, s6")
        self("  s_lshl_b32 s56, s56, 16")
        self("  s_lshl_b32 s6, s6, 8")
        self("  s_add_u32 s6, s6, s56")
        self("  s_add_u32 s63, s6, 1")
        self("  s_lshl_b32 s6, s4, 3")
        self("  v_mov_b32 v12, s6")
        self("  v_mov_b32 v13, s63")
        self("  v_mov_b32 v14, 0")
        self("  v_mov_b32 v15, 1")
        self(f"  s_waitcnt vmcnt({8 if self.touch & 4 else 5})")
        self("  s_mov_b64 exec, 1")
        if self.nocnt != 1:
            self("  buffer_atomic_add v13, v12, s[48:51], 0 offen sc1")
        else:
            self("  buffer_load_dword v13, v14, s[32:35], 0 offen")
        self(f"  ds_write_b32 v14, v15 offset:{L_CLR}")
        self("  s_mov_b64 exec, -1")
        self.stamp(6)
        self(f"  s_waitcnt vmcnt({4 if self.touch & 4 else 1})")
        self.ln(X, xs, t)
        self.xn_rows(XL, XH, t[0])
        self.stamp(1)
        self("  s_lshl_b32 s6, s4, 3")
        self("  v_mov_b32 v12, s6")
        self("  v_mov_b32 v14, 0")
        NP = self.npoll
        PV_ = list(range(60, 60 + NP))
        Lp = self.lab("cntpoll")
        Lpd = self.lab("cntpolld")
        self("  s_mov_b32 s57, 0")
        if self.poll_delay:
            self(f"  s_sleep {self.poll_delay}")
        if self.nocnt:
            self("  s_lshl_b32 s58, s63, 3")
            self(f"  s_branch {Lpd}")
        self("  s_mov_b64 exec, 1")
        for k in range(NP):
            self(f"  buffer_load_dword v{PV_[k]}, v12, s[48:51], 0 offen sc1")
            if k < NP - 1:
                self(f"  s_sleep {self.poll_gap}")
        self(f"{Lp}:")
        for k in range(NP):
            self(f"  s_waitcnt vmcnt({NP - 1})")
            self(f"  v_readfirstlane_b32 s58, v{PV_[k]}")
            self("  s_and_b32 s6, s58, 0xff")
            self("  s_cmp_eq_u32 s6, 8")
            self(f"  s_cbranch_scc1 {Lpd}")
            self(f"  buffer_load_dword v{PV_[k]}, v12, s[48:51], 0 offen sc1")
        self("  s_add_u32 s57, s57, 1")
        self(f"  s_cmp_lt_u32 s57, {SPIN_MAX}")
        self(f"  s_cbranch_scc1 {Lp}")
        self(f"{Lpd}:")
        self("  s_mov_b64 exec, -1")
        self("  s_lshl_b32 s6, s63, 3")
        self("  s_cmp_eq_u32 s58, s6")
        if self.force_slow:
            self("  s_mov_b32 s59, 1")
        else:
            self("  s_cselect_b32 s59, 2, 1")
        self("  v_mov_b32 v13, s59")
        self("  s_mov_b64 exec, 1")
        self(f"  ds_write_b32 v14, v13 offset:{L_MODE}")
        self("  s_mov_b64 exec, -1")
        self.stamp(3)
        if self.bulkprio is not None:
            self(f"  s_setprio {self.bulkprio}")
        self("  s_mul_i32 s6, s5, 245760       ; 80*3072*c")
        self("  s_mul_i32 s56, s4, 96")
        self("  s_add_u32 s6, s6, s56")
        self.srd(36, 20, "s6", 79 * 3072 + 96)
        self.srd(40, 22, "s6", 79 * 3072 + 96)
        self("  s_mul_i32 s6, s4, 61440        ; 48*1280*h")
        self("  s_mul_i32 s56, s5, 160")
        self("  s_add_u32 s6, s6, s56")
        self.srd(52, 24, "s6", 47 * 1280 + 160)
        self("  v_lshrrev_b32 v2, 3, v0")
        self("  v_mul_u32_u24 v2, 3072, v2")
        self("  v_and_b32 v3, 7, v0")
        self("  v_mul_u32_u24 v3, 12, v3")
        self("  v_add_u32 v2, v2, v3")
        WG, WU = 64, 104
        for i in range(10):
            self(f"  s_mov_b32 s6, {24576 * i}")
            self(f"  buffer_load_dwordx3 v[{WG + 4 * i}:{WG + 4 * i + 2}], v2, s[36:39], s6 offen{' nt' if self.wnt & 2 else ''}")
        for i in range(10):
            self(f"  s_mov_b32 s6, {24576 * i}")
            self(f"  buffer_load_dwordx3 v[{WU + 4 * i}:{WU + 4 * i + 2}], v2, s[40:43], s6 offen{' nt' if self.wnt & 2 else ''}")
        self("  v_lshrrev_b32 v9, 4, v0")
        self("  v_mul_u32_u24 v9, 1280, v9")
        self("  v_and_b32 v3, 15, v0")
        self("  v_lshl_add_u32 v9, v3, 4, v9")
        self("  v_mov_b32 v10, 0x7fffffff")
        self("  v_cmp_gt_u32 vcc, 10, v3")
        self("  v_cndmask_b32 v9, v10, v9, vcc")
        GA = list(range(44, 52))
        UA = list(range(52, 60))
        self("  s_waitcnt vmcnt(10)")
        for (Wr, AC, last) in ((WG, GA, False), (WU, UA, True)):
            if last:
                self("  s_waitcnt vmcnt(0)")
                self.stamp(2)
            for i in range(10):
                for k in range(3):
                    c0 = "0" if i == 0 else f"v{AC[2 * k]}"
                    c1 = "0" if i == 0 else f"v{AC[2 * k + 1]}"
                    self(f"  v_dot2_f32_bf16 v{AC[2 * k]}, v{Wr + 4 * i + k}, v{XL[i]}, {c0}")
                    self(f"  v_dot2_f32_bf16 v{AC[2 * k + 1]}, v{Wr + 4 * i + k}, v{XH[i]}, {c1}")
            self(f"  v_mov_b32 v{AC[6]}, 0")
            self(f"  v_mov_b32 v{AC[7]}, 0")
        WD = 64
        for n in range(12):
            self(f"  s_mov_b32 s6, {5120 * n}")
            self(f"  buffer_load_dwordx4 v[{WD + 4 * n}:{WD + 4 * n + 3}], v9, s[52:55], s6 offen{' nt' if self.wnt & 4 else ''}")
        self.treduce8(GA, t[1])
        self.treduce8(UA, t[2])
        self(f"  v_min_u32 v{t[1]}, -2, v{t[1]}")
        self(f"  v_min_u32 v{t[2]}, -2, v{t[2]}")
        self(f"  s_mul_i32 s6, s4, {GBOX}")
        self(f"  s_add_u32 s6, s6, {3 * 256}")
        self("  v_add_u32 v14, s6, v1")
        self(f"  s_mul_i32 s56, s5, {BOX}")
        self("  v_add_u32 v15, s56, v14")
        self.mode_store([f"buffer_store_dword v{t[1]}, v15, s[44:47], 0 offen",
                         f"buffer_store_dword v{t[2]}, v15, s[44:47], 0 offen offset:256"])
        G16 = list(range(120, 137))
        self.gather_h1(2, G16, 14)
        self.stamp(4)
        for p in range(2):
            g = G16[8 * p:8 * p + 8]
            self(f"  v_add_f32 v{g[0]}, v{g[0]}, v{g[1]}")
            self(f"  v_add_f32 v{g[2]}, v{g[2]}, v{g[3]}")
            self(f"  v_add_f32 v{g[4]}, v{g[4]}, v{g[5]}")
            self(f"  v_add_f32 v{g[6]}, v{g[6]}, v{g[7]}")
            self(f"  v_add_f32 v{g[0]}, v{g[0]}, v{g[2]}")
            self(f"  v_add_f32 v{g[4]}, v{g[4]}, v{g[6]}")
            self(f"  v_add_f32 v{g[0]}, v{g[0]}, v{g[4]}")
        self(f"  v_cvt_pk_bf16_f32 v16, v{G16[0]}, v{G16[8]}")
        self("  v_lshlrev_b32 v17, 16, v16         ; gate")
        self("  v_and_b32 v18, 0xffff0000, v16     ; up")
        self("  v_max_f32 v17, 0, v17")
        self("  v_mul_f32 v17, v17, v18")
        self("  v_cvt_pk_bf16_f32 v17, v17, v17    ; h")
        self("  v_and_b32 v18, 7, v0")
        self("  v_mul_u32_u24 v18, 6, v18")
        self("  v_lshrrev_b32 v19, 3, v0")
        self("  v_add_u32 v18, v18, v19")
        self("  v_lshlrev_b32 v18, 1, v18")
        self("  s_mov_b32 exec_hi, 0xffff")
        self(f"  ds_write_b16 v18, v17 offset:{L_HB}")
        self("  s_mov_b64 exec, -1")
        self("  v_and_b32 v18, 15, v0")
        self("  v_lshrrev_b32 v19, 4, v0")
        self("  v_lshl_add_u32 v18, v18, 2, v19")
        self("  v_lshlrev_b32 v18, 1, v18")
        self("  s_waitcnt lgkmcnt(0)")
        self(f"  ds_read_u16 v20, v18 offset:{L_HB}")
        DA = list(range(44, 52))
        for a in DA:
            self(f"  v_mov_b32 v{a}, 0")
        self("  s_waitcnt lgkmcnt(0)")
        self("  v_lshlrev_b32 v21, 16, v20")
        self("  s_nop 1")
        for n in range(12):
            for k in range(4):
                self(f"  v_dot2c_f32_bf16_dpp v{DA[2 * k]}, v20, v{WD + 4 * n + k} row_newbcast:{n} row_mask:0xf bank_mask:0xf")
                self(f"  v_dot2c_f32_bf16_dpp v{DA[2 * k + 1]}, v21, v{WD + 4 * n + k} row_newbcast:{n} row_mask:0xf bank_mask:0xf")
        R = self.treduce4rows(DA)
        self("  s_mul_i32 s6, s5, 20480")
        self("  s_lshl_b32 s56, s4, 6")
        self("  s_add_u32 s6, s6, s56")
        self(f"  s_add_u32 s6, s6, {SD_BASE + 2048}")
        self("  v_and_b32 v18, 15, v0              ; j")
        self("  v_lshrrev_b32 v19, 1, v18          ; t")
        self("  v_lshlrev_b32 v19, 12, v19")
        self("  v_and_b32 v22, 1, v18")
        self("  v_lshl_add_u32 v19, v22, 5, v19")
        self("  v_lshrrev_b32 v22, 4, v0           ; rho")
        self("  v_lshl_add_u32 v19, v22, 2, v19")
        self("  v_add_u32 v19, s6, v19")
        self("  v_mov_b32 v22, 0x7fffffff")
        self("  v_cmp_gt_u32 vcc, 10, v18")
        self("  v_cndmask_b32 v19, v22, v19, vcc")
        self(f"  v_min_u32 v{R[0]}, -2, v{R[0]}")
        self(f"  v_min_u32 v{R[1]}, -2, v{R[1]}")
        self(f"  buffer_store_dword v{R[0]}, v19, s[44:47], 0 offen sc1")
        self(f"  buffer_store_dword v{R[1]}, v19, s[44:47], 0 offen offset:16 sc1")
        self.stamp(5)
        self("  s_branch L_exit_stamped")

    def final_consumer(self):
        L = self.lab("allcnt")
        Ld = self.lab("allcntd")
        self("  v_and_b32 v12, 31, v0")
        self("  v_lshlrev_b32 v12, 3, v12")
        self("  s_mov_b32 s57, 0")
        if self.nocnt:
            self(f"  s_branch {Ld}")
        self(f"{L}:")
        self("  buffer_load_dword v13, v12, s[48:51], 0 offen sc1")
        self("  s_waitcnt vmcnt(0)")
        self("  v_and_b32 v13, 0xff, v13")
        self("  v_cmp_ne_u32 vcc, 8, v13")
        self("  s_add_u32 s57, s57, 1")
        self(f"  s_cmp_gt_u32 s57, {SPIN_MAX}")
        self(f"  s_cbranch_scc1 {Ld}")
        self(f"  s_cbranch_vccnz {L}")
        self(f"{Ld}:")
        self("  s_mul_i32 s6, s5, 20480")
        self("  s_lshl_b32 s7, s56, 12")
        self("  s_add_u32 s6, s6, s7")
        self(f"  s_add_u32 s6, s6, {SD_BASE}")
        self("  v_lshlrev_b32 v14, 4, v0")
        self("  v_add_u32 v14, s6, v14")
        self("  v_and_b32 v15, 3, v0")
        self("  v_lshlrev_b32 v15, 2, v15")
        self("  v_lshrrev_b32 v16, 5, v0")
        self("  v_lshl_add_u32 v15, v16, 1, v15")
        self("  v_bfe_u32 v16, v0, 4, 1")
        self("  v_add_u32 v15, v15, v16")
        self("  s_mul_i32 s6, s5, 80")
        self("  s_lshl_b32 s7, s56, 4")
        self("  s_add_u32 s6, s6, s7")
        self("  v_add_u32 v15, s6, v15")
        self("  v_lshlrev_b32 v15, 1, v15")
        self("  buffer_load_ushort v17, v15, s[32:35], 0 offen")
        self.srd(40, 26, None, 1280)

        def red(base):
            for k in range(4):
                self(f"  v_add_f32 v{base + k}, v{base + k}, v{base + 4 + k}")
            self(f"  v_permlane32_swap_b32 v{base}, v{base + 2}")
            self(f"  v_permlane32_swap_b32 v{base + 1}, v{base + 3}")
            self(f"  v_add_f32 v{base}, v{base}, v{base + 2}")
            self(f"  v_add_f32 v{base + 1}, v{base + 1}, v{base + 3}")
            self(f"  v_permlane16_swap_b32 v{base}, v{base + 1}")
            self(f"  v_add_f32 v{base}, v{base}, v{base + 1}")
            self(f"  v_add_f32_dpp v{base}, v{base}, v{base} row_ror:4 row_mask:0xf bank_mask:0xf")
            self(f"  v_add_f32_dpp v{base}, v{base}, v{base} row_ror:8 row_mask:0xf bank_mask:0xf")

        def issueD():
            self("  buffer_load_dwordx4 v[24:27], v14, s[44:47], 0 offen offset:2048 sc1")
            self("  buffer_load_dwordx4 v[28:31], v14, s[44:47], 0 offen offset:3072 sc1")
        self.poll_loop("pollD", issueD, range(24, 32), 32, sleep=8)
        red(24)
        self("  v_cvt_pk_bf16_f32 v24, v24, v24")
        self("  v_lshlrev_b32 v24, 16, v24")
        self(f"  v_mul_f32 v25, {f2h(-1.4426950408889634)}, v24")
        self("  v_exp_f32 v25, v25")
        self("  s_nop 0")
        self("  v_add_f32 v25, 1.0, v25")
        self("  v_rcp_f32 v25, v25")
        self("  s_nop 0")
        self("  v_mul_f32 v24, v24, v25")
        self("  v_cvt_pk_bf16_f32 v24, v24, v24")
        self("  v_lshlrev_b32 v18, 16, v24          ; g")
        self("  v_lshlrev_b32 v17, 16, v17          ; x")
        self.stamp(6)
        self("  s_barrier            ; B2")
        self("  s_barrier            ; B3")

        def issueS():
            self("  buffer_load_dwordx4 v[24:27], v14, s[44:47], 0 offen sc1")
            self("  buffer_load_dwordx4 v[28:31], v14, s[44:47], 0 offen offset:1024 sc1")
        self.poll_loop("pollS", issueS, range(24, 32), 32)
        red(24)
        self("  v_cvt_pk_bf16_f32 v24, v24, v24")
        self("  v_lshlrev_b32 v24, 16, v24          ; s")
        self("  v_mul_f32 v24, v24, v18")
        self("  v_cvt_pk_bf16_f32 v24, v24, v24")
        self("  v_lshlrev_b32 v24, 16, v24")
        self("  v_add_f32 v24, v17, v24")
        self("  v_cvt_pk_bf16_f32 v24, v24, v24")
        self("  s_mov_b32 exec_lo, 0x000f000f")
        self("  s_mov_b32 exec_hi, 0x000f000f")
        self("  buffer_store_short v24, v15, s[40:43], 0 offen")
        self("  s_mov_b64 exec, -1")
        self.stamp(7)
        self("  s_branch L_exit_stamped")

    def epilogue(self):
        self("L_exit_stamped:")
        if self.stamps:
            self.srd(44, 30, None, WS_SIZE)
            self.stamps_out()
        self("L_end:")
        self("  s_endpgm")
        self(f""".section .rodata,"a"
.p2align 6
.amdhsa_kernel {KNAME}
  .amdhsa_next_free_vgpr 168
  .amdhsa_next_free_sgpr 102
  .amdhsa_accum_offset 168
  .amdhsa_group_segment_fixed_size 0
  .amdhsa_kernarg_size 96
  .amdhsa_user_sgpr_count 2
  .amdhsa_user_sgpr_kernarg_segment_ptr 1
  .amdhsa_system_sgpr_workgroup_id_x 1
.end_amdhsa_kernel""")

    def build(self):
        self.prologue()
        self.stream()
        self.helper()
        self.epilogue()
        return fix("\n".join(self.lines) + "\n", verbose=True)


if __name__ == "__main__":
    import argparse
    ap = argparse.ArgumentParser()
    ap.add_argument("-o", default="k.s")
    ap.add_argument("--D", type=int, default=5)
    ap.add_argument("--E", type=int, default=5)
    ap.add_argument("--SB", type=int, default=19)
    ap.add_argument("--stamps", action="store_true")
    ap.add_argument("--slow", action="store_true")
    ap.add_argument("--b0post", action="store_true")
    ap.add_argument("--prio", type=int, default=3)
    ap.add_argument("--dbgst", action="store_true")
    ap.add_argument("--fine", action="store_true")
    ap.add_argument("--ds", default="", help="D schedule: slot:D,slot:D")
    ap.add_argument("--qkn", type=int, default=2)
    ap.add_argument("--wot", type=int, default=0)
    ap.add_argument("--npoll", type=int, default=2)
    ap.add_argument("--bp", type=int, default=None)
    ap.add_argument("--ilv", action="store_true")
    ap.add_argument("--prog", default="")
    ap.add_argument("--latepub", action="store_true")
    ap.add_argument("--pdelay", type=int, default=0)
    ap.add_argument("--adapt", default="", help="lo:hi slots with optional tighter throttle")
    ap.add_argument("--nocnt", type=int, default=0, help="diagnosis only: 1 = no atomic, no polls; 2 = atomic but no polls")
    ap.add_argument("--pgap", type=int, default=8)
    ap.add_argument("--hwid", action="store_true")
    ap.add_argument("--map2", action="store_true")
    ap.add_argument("--wnt", type=int, default=7, help="nt hint bits: 1 wo, 2 gate/up, 4 down")
    ap.add_argument("--touch", type=int, default=0, help="1: V, 2: wo, 4: FFN weights early page touch")
    ap.add_argument("--rot", default="", help="a:b:w block rotation = h*a + c*b + wave*w")
    a = ap.parse_args()
    g = G(D=a.D, E=a.E, SB=a.SB, stamps=a.stamps, force_slow=a.slow, b0pre=not a.b0post, prio=a.prio, dbgst=a.dbgst, fine=a.fine,
          dsched=[tuple(int(v) for v in p.split(':')) for p in a.ds.split(',') if p], qk_per_slot=a.qkn, wo_throttle=a.wot, npoll=a.npoll, poll_gap=a.pgap, bulkprio=a.bp, ilv=a.ilv, prog=[int(v) for v in a.prog.split(',') if v], early_pub=not a.latepub, poll_delay=a.pdelay, nocnt=a.nocnt, adapt=tuple(int(v) for v in a.adapt.split(':')) if a.adapt else None, hwid=a.hwid, map2=a.map2, wnt=a.wnt, touch=a.touch, rot=tuple(int(v) for v in a.rot.split(':')) if a.rot else None)
    open(a.o, "w").write(g.build())
```

```python
import sys, struct
sys.path.insert(0, "dev")
from hz import fix

KNAME = "recurrent_scan__sliding_block_cached__glu_gated_reglu__decode_kernel"


def f2h(x):
    return "0x%08x" % struct.unpack("<I", struct.pack("<f", x))[0]


LOG2E = f2h(1.4426950408889634)
SCALE = f2h(192 ** -0.5)
INV640 = f2h(1.0 / 640)
EPS = f2h(1e-5)

BOX = 1280
GBOX = 8 * BOX
O_H1 = 0
O_O2 = 768
O_LSE = 1152
FB_BASE = 327680
FSTR = 768
SD_BASE = 524288
SDSTR = 8448
O_D3 = 6144
OOB = 0x70000000
STAMP_BASE = 1 << 20
WS_SIZE = 2 << 20

L_Q = 0
L_MODE = 384
L_CNT = 388
L_QF = 392
L_CLR = 396
L_M = 400
L_L = 432
L_XN = 1280
L_HB = 2560
L_ALL = 464
L_WO = 4096
L_WO2 = L_WO + 192 * 128
L_PART = L_WO2 + 64 * 128
L_A = L_PART + 8 * 768
LDS_BYTES = L_A + 8 * 400

SPIN_MAX = 30000


class G:
    def __init__(self, D=5, E=5, SB=19, stamps=False, force_slow=False, wo_slot=32, b0pre=True, prio=3, dbgst=False, fine=False, dsched=(), qk_per_slot=2, wo_throttle=0, npoll=2, poll_gap=8, bulkprio=None, ilv=False, prog=(), early_pub=True, poll_delay=0, nocnt=0, adapt=None, hwid=False, map2=False, rot=None, touch=0, wnt=7, kvnt=3, b0late=0):
        self.b0late = b0late
        self.kvnt = kvnt
        self.wnt = wnt
        self.touch = touch
        self.map2 = map2
        self.rot = rot
        self.hwid = hwid
        self.adapt = adapt
        self.nocnt = nocnt
        self.early_pub = early_pub
        self.poll_delay = poll_delay
        self.prog = list(prog)
        self.ilv = ilv
        self.bulkprio = bulkprio
        self.wo_throttle = wo_throttle
        self.npoll = npoll
        self.poll_gap = poll_gap
        self.dsched = list(dsched)
        self.qk_per_slot = qk_per_slot
        self.dbgst = dbgst
        self.fine = fine
        self.in_stream = False
        self.prio = prio
        self.b0pre = b0pre
        self.D, self.E, self.SB = D, E, SB
        self.stamps = stamps
        self.force_slow = force_slow
        self.wo_slot = wo_slot
        self.lines = []
        self.uid = 0
        self.vm = []

    def Dof(self, i):
        for (slot, d) in reversed(self.dsched):
            if i >= slot:
                return d
        return self.D

    def __call__(self, s=""):
        for l in s.split("\n"):
            self.lines.append(l)

    def lab(self, base):
        self.uid += 1
        return f"L_{base}_{self.uid}"

    def vm_reset(self):
        self.vm = []

    def vm_issue(self, tag):
        self.vm.append(tag)

    def vm_wait(self, tag):
        idx = [i for i, t in enumerate(self.vm) if t == tag]
        if not idx:
            return
        last = idx[-1]
        n = len(self.vm) - 1 - last
        assert n <= 63
        self(f"  s_waitcnt vmcnt({n})")
        self.vm = self.vm[last + 1:]

    def stamp(self, i):
        if self.prog and self.in_stream and i != 0:
            return
        if self.stamps and not (self.fine and self.in_stream and i in (1, 2, 3, 5, 6, 7)):
            self(f"  s_memrealtime s[{70 + 2 * i}:{71 + 2 * i}]")

    def fstamp(self, i, clk=False):
        if self.stamps and self.fine:
            op = "s_memtime" if clk else "s_memrealtime"
            self(f"  {op} s[{70 + 2 * i}:{71 + 2 * i}]")

    def stamps_out(self):
        if not self.stamps:
            return
        self("  s_waitcnt lgkmcnt(0) vmcnt(0)")
        self("  s_mul_i32 s6, s2, 12")
        self("  s_add_u32 s6, s6, s3")
        self("  s_lshl_b32 s6, s6, 6")
        self(f"  s_add_u32 s6, s6, {STAMP_BASE}")
        self("  v_mov_b32 v2, s6")
        for i in range(12):
            self(f"  v_mov_b32 v{4 + i}, s{70 + 2 * i}")
        self("  s_mov_b64 exec, 1")
        self("  buffer_store_dwordx4 v[4:7], v2, s[44:47], 0 offen")
        self("  buffer_store_dwordx4 v[8:11], v2, s[44:47], 0 offen offset:16")
        self("  buffer_store_dwordx4 v[12:15], v2, s[44:47], 0 offen offset:32")
        if self.dbgst:
            self("  s_load_dwordx2 s[6:7], s[0:1], 80")
            self("  s_waitcnt lgkmcnt(0)")
            self.srd(48, 6, None, 256)
            for (wg, wv, lst) in ((0, 0, ((0, 1), (2, 3), (4, 5))), (8, 9, ((0, 7), (6, 9), (7, 11))), (255, 0, ((0, 13), (4, 15)))):
                Ls = self.lab("dbgskip")
                self(f"  s_cmp_eq_u32 s2, {wg}")
                self(f"  s_cbranch_scc0 {Ls}")
                self(f"  s_cmp_eq_u32 s3, {wv}")
                self(f"  s_cbranch_scc0 {Ls}")
                for (st, dw) in lst:
                    self(f"  v_mov_b32 v2, {4 * dw}")
                    self(f"  buffer_store_dword v{4 + st}, v2, s[48:51], 0 offen")
                self(f"{Ls}:")
        self("  s_mov_b64 exec, -1")

    def srd(self, s, base_lo, off, nrec):
        if off is None:
            self(f"  s_mov_b32 s{s}, s{base_lo}")
            self(f"  s_mov_b32 s{s + 1}, s{base_lo + 1}")
        else:
            self(f"  s_add_u32 s{s}, s{base_lo}, {off}")
            self(f"  s_addc_u32 s{s + 1}, s{base_lo + 1}, 0")
        self(f"  s_mov_b32 s{s + 2}, {nrec}")
        self(f"  s_mov_b32 s{s + 3}, 0x20000")

    def allreduce(self, op, v, t):
        for r in (1, 2, 4, 8):
            self(f"  {op}_dpp v{v}, v{v}, v{v} row_ror:{r} row_mask:0xf bank_mask:0xf")
        self(f"  v_mov_b32 v{t}, v{v}")
        self(f"  v_permlane16_swap_b32 v{v}, v{t}")
        self(f"  {op} v{v}, v{v}, v{t}")
        self(f"  v_mov_b32 v{t}, v{v}")
        self(f"  v_permlane32_swap_b32 v{v}, v{t}")
        self(f"  {op} v{v}, v{v}, v{t}")

    def cross_rows(self, op, v, t):
        self(f"  v_mov_b32 v{t}, v{v}")
        self(f"  v_permlane16_swap_b32 v{v}, v{t}")
        self(f"  {op} v{v}, v{v}, v{t}")
        self(f"  v_mov_b32 v{t}, v{v}")
        self(f"  v_permlane32_swap_b32 v{v}, v{t}")
        self(f"  {op} v{v}, v{v}, v{t}")

    def treduce8(self, A, T):
        for a in range(4):
            self(f"  v_permlane32_swap_b32 v{A[a]}, v{A[a + 4]}")
        for a in range(4):
            self(f"  v_add_f32 v{A[a]}, v{A[a]}, v{A[a + 4]}")
        for a in range(2):
            self(f"  v_permlane16_swap_b32 v{A[a]}, v{A[a + 2]}")
        for a in range(2):
            self(f"  v_add_f32 v{A[a]}, v{A[a]}, v{A[a + 2]}")
        self(f"  v_add_f32_dpp v{T}, v{A[0]}, v{A[0]} row_ror:8 row_mask:0xf bank_mask:0x3")
        self(f"  v_add_f32_dpp v{T}, v{A[1]}, v{A[1]} row_ror:8 row_mask:0xf bank_mask:0xc")

    def treduce4rows(self, A, out_pairs=None):
        n = len(A) // 4
        for k in range(n):
            a = A[4 * k:4 * k + 4]
            self(f"  v_permlane32_swap_b32 v{a[0]}, v{a[2]}")
            self(f"  v_permlane32_swap_b32 v{a[1]}, v{a[3]}")
        for k in range(n):
            a = A[4 * k:4 * k + 4]
            self(f"  v_add_f32 v{a[0]}, v{a[0]}, v{a[2]}")
            self(f"  v_add_f32 v{a[1]}, v{a[1]}, v{a[3]}")
        for k in range(n):
            a = A[4 * k:4 * k + 4]
            self(f"  v_permlane16_swap_b32 v{a[0]}, v{a[1]}")
        for k in range(n):
            a = A[4 * k:4 * k + 4]
            self(f"  v_add_f32 v{a[0]}, v{a[0]}, v{a[1]}")
        return [A[4 * k] for k in range(n)]

    def sentinel_check(self, regs, t):
        regs = list(regs)
        if len(regs) == 1:
            self(f"  v_cmp_eq_u32 vcc, -1, v{regs[0]}")
            return
        if len(regs) == 2:
            self(f"  v_max_u32 v{t}, v{regs[0]}, v{regs[1]}")
            regs = []
        else:
            self(f"  v_max3_u32 v{t}, v{regs[0]}, v{regs[1]}, v{regs[2]}")
            regs = regs[3:]
        while regs:
            if len(regs) >= 2:
                self(f"  v_max3_u32 v{t}, v{t}, v{regs[0]}, v{regs[1]}")
                regs = regs[2:]
            else:
                self(f"  v_max_u32 v{t}, v{t}, v{regs[0]}")
                regs = regs[1:]
        self(f"  v_cmp_eq_u32 vcc, -1, v{t}")

    def poll_loop(self, name, issue, regs, t, sleep=0):
        L = self.lab(name)
        Ld = self.lab(name + "d")
        self("  s_mov_b32 s57, 0")
        self(f"{L}:")
        issue()
        self("  s_waitcnt vmcnt(0)")
        self.sentinel_check(regs, t)
        self("  s_add_u32 s57, s57, 1")
        self(f"  s_cmp_gt_u32 s57, {SPIN_MAX}")
        self(f"  s_cbranch_scc1 {Ld}")
        if sleep:
            self(f"  s_cbranch_vccz {Ld}")
            self(f"  s_sleep {sleep}")
            self(f"  s_branch {L}")
        else:
            self(f"  s_cbranch_vccnz {L}")
        self(f"{Ld}:")

    def lds_spin(self, name, addr_v, off, t, target=None, sdst="s58", sleep=1):
        L = self.lab(name)
        Ld = self.lab(name + "d")
        self("  s_mov_b32 s57, 0")
        self(f"{L}:")
        self(f"  ds_read_b32 v{t}, v{addr_v} offset:{off}")
        self("  s_waitcnt lgkmcnt(0)")
        self(f"  v_readfirstlane_b32 {sdst}, v{t}")
        self("  s_add_u32 s57, s57, 1")
        self(f"  s_cmp_gt_u32 s57, {SPIN_MAX * 8}")
        self(f"  s_cbranch_scc1 {Ld}")
        if target is None:
            self(f"  s_cmp_lg_u32 {sdst}, 0")
        else:
            self(f"  s_cmp_eq_u32 {sdst}, {target}")
        self(f"  s_cbranch_scc1 {Ld}")
        if sleep:
            self(f"  s_sleep {sleep}")
        self(f"  s_branch {L}")
        self(f"{Ld}:")

    def mode_store(self, instr):
        Lf = self.lab("fast")
        Lj = self.lab("join")
        self("  s_cmp_eq_u32 s59, 2")
        self(f"  s_cbranch_scc1 {Lf}")
        for i in instr:
            self(f"  {i} sc1")
        self(f"  s_branch {Lj}")
        self(f"{Lf}:")
        for i in instr:
            self(f"  {i}")
        self(f"{Lj}:")

    def prologue(self):
        self(f"""; Fused decode step: LN -> q -> sliding-window attention (split over 8 WGs per head) -> wo,
; @launch grid=(256,1,1) block=(768,1,1) lds={LDS_BYTES}
.amdgcn_target "amdgcn-amd-amdhsa--gfx950"
.text
.globl {KNAME}
.p2align 8
.type {KNAME},@function
{KNAME}:
  s_cmp_ge_u32 s2, 256
  s_cbranch_scc1 L_end""")
        self.stamp(0)
        if self.hwid:
            self("  s_getreg_b32 s88, hwreg(HW_REG_HW_ID)")
            self("  s_getreg_b32 s90, hwreg(HW_REG_XCC_ID)")
        self(f"""  s_load_dwordx16 s[8:23], s[0:1], 0
  s_load_dwordx8 s[24:31], s[0:1], 64
  v_readfirstlane_b32 s3, v0
  v_and_b32 v0, 63, v0
  s_lshr_b32 s3, s3, 6
  s_and_b32 s4, s2, 7
  s_lshl_b32 s4, s4, 2""")
        if self.map2:
            self("""  s_lshr_b32 s5, s2, 6
  s_add_u32 s4, s4, s5          ; h
  s_lshr_b32 s5, s2, 3
  s_and_b32 s5, s5, 7           ; c""")
        else:
            self("""  s_lshr_b32 s5, s2, 3
  s_and_b32 s5, s5, 3
  s_add_u32 s4, s4, s5          ; h
  s_lshr_b32 s5, s2, 5          ; c""")
        self("""  s_cmp_ge_u32 s3, 8
  s_cbranch_scc1 L_helper""")

    def stream(self):
        self.in_stream = True
        D, E, SB = self.D, self.E, self.SB
        Q = list(range(4, 10))
        A = list(range(10, 22))
        P = list(range(22, 26))
        T = [26, 27]
        U = list(range(28, 32))
        PL = list(range(32, 36))
        PH = list(range(36, 40))
        t0, t1 = 40, 41
        RING = 42
        nbuf = 16 + E

        def kbuf(b):
            return RING + 6 * b

        def vbuf(j):
            return RING + 6 * (16 + j) if j < E else RING + 6 * (j - E)

        self(f"""  ; ---------------- stream waves ----------------
  s_mul_i32 s6, s4, 12582912
  s_mul_i32 s7, s5, 196608
  s_add_u32 s6, s6, s7
  s_add_u32 s6, s6, {28672 * 384}
  s_mul_i32 s7, s3, {1536 if self.ilv else 24576}
  v_lshrrev_b32 v3, 4, v0
  v_and_b32 v2, 15, v0
  v_mul_u32_u24 v3, 384, v3
  v_add_u32 v3, s7, v3
  v_lshl_add_u32 v1, v2, 4, v3      ; x4 offset
  v_lshl_add_u32 v2, v2, 3, v3
  v_add_u32 v2, 256, v2             ; x2 offset""")
        for k in range(1, 6):
            self(f"  s_mov_b32 s{59 + k}, {4608 * k}")
        if self.rot:
            self(f"  s_mul_i32 s66, s4, {self.rot[0]}")
            self(f"  s_mul_i32 s7, s5, {self.rot[1]}")
            self("  s_add_u32 s66, s66, s7")
            self(f"  s_mul_i32 s7, s3, {self.rot[2]}")
            self("  s_add_u32 s66, s66, s7")
        if self.adapt:
            self("  s_and_b32 s65, s2, 1")
        self("  s_waitcnt lgkmcnt(0)")
        self.srd(32, 10, "s6", 196608)
        self.srd(36, 12, "s6", 196608)
        self.vm_reset()

        def issue(i):
            t, b = (0, i) if i < 16 else (1, i - 16)
            srd = "s[32:35]" if t == 0 else "s[36:39]"
            r = kbuf(b) if t == 0 else vbuf(b)
            so = "0" if b < 3 else f"s{59 + b // 3}"
            imm = 1536 * (b % 3)
            if self.ilv:
                imm = 0
                so = "0" if b == 0 else "s60"
                if self.rot:
                    so = "s60"
                    self(f"  s_add_u32 s60, s66, {b}")
                    self("  s_and_b32 s60, s60, 15")
                    self("  s_mul_i32 s60, s60, 12288")
                elif b:
                    self(f"  s_mov_b32 s60, {12288 * b}")
            o = f" offset:{imm}" if imm else ""
            nt = " nt" if self.kvnt & (1 << t) else ""
            self(f"  buffer_load_dwordx4 v[{r}:{r + 3}], v1, {srd}, {so} offen{o}{nt}")
            self(f"  buffer_load_dwordx2 v[{r + 4}:{r + 5}], v2, {srd}, {so} offen{o}{nt}")
            self.vm_issue(("L", i))
            self.vm_issue(("L", i))

        def qk_group(g):
            bs = [kbuf(4 * g + k) for k in range(4)]
            for i in range(6):
                for k in range(4):
                    c = "0" if i == 0 else f"v{P[k]}"
                    self(f"  v_dot2_f32_bf16 v{P[k]}, v{bs[k] + i}, v{Q[i]}, {c}")
            self(f"  v_add_f32_dpp v{T[0]}, v{P[0]}, v{P[0]} row_ror:8 row_mask:0xf bank_mask:0x3")
            self(f"  v_add_f32_dpp v{T[1]}, v{P[1]}, v{P[1]} row_ror:8 row_mask:0xf bank_mask:0x3")
            self(f"  v_add_f32_dpp v{T[0]}, v{P[2]}, v{P[2]} row_ror:8 row_mask:0xf bank_mask:0xc")
            self(f"  v_add_f32_dpp v{T[1]}, v{P[3]}, v{P[3]} row_ror:8 row_mask:0xf bank_mask:0xc")
            self(f"  v_add_f32_dpp v{U[g]}, v{T[0]}, v{T[0]} row_shl:4 row_mask:0xf bank_mask:0x5")
            self(f"  v_add_f32_dpp v{U[g]}, v{T[1]}, v{T[1]} row_shr:4 row_mask:0xf bank_mask:0xa")
            self(f"  v_add_f32_dpp v{U[g]}, v{U[g]}, v{U[g]} quad_perm:[1,0,3,2] row_mask:0xf bank_mask:0xf")
            self(f"  v_add_f32_dpp v{U[g]}, v{U[g]}, v{U[g]} quad_perm:[2,3,0,1] row_mask:0xf bank_mask:0xf")

        def softmax():
            self(f"  v_cvt_pk_bf16_f32 v{P[0]}, v{U[0]}, v{U[1]}")
            self(f"  v_cvt_pk_bf16_f32 v{P[1]}, v{U[2]}, v{U[3]}")
            self(f"  v_lshlrev_b32 v{U[0]}, 16, v{P[0]}")
            self(f"  v_and_b32 v{U[1]}, 0xffff0000, v{P[0]}")
            self(f"  v_lshlrev_b32 v{U[2]}, 16, v{P[1]}")
            self(f"  v_and_b32 v{U[3]}, 0xffff0000, v{P[1]}")
            for g in range(4):
                self(f"  v_mul_f32 v{U[g]}, {SCALE}, v{U[g]}")
            self(f"  v_cvt_pk_bf16_f32 v{P[0]}, v{U[0]}, v{U[1]}")
            self(f"  v_cvt_pk_bf16_f32 v{P[1]}, v{U[2]}, v{U[3]}")
            self(f"  v_lshlrev_b32 v{U[0]}, 16, v{P[0]}")
            self(f"  v_and_b32 v{U[1]}, 0xffff0000, v{P[0]}")
            self(f"  v_lshlrev_b32 v{U[2]}, 16, v{P[1]}")
            self(f"  v_and_b32 v{U[3]}, 0xffff0000, v{P[1]}")
            self(f"  v_max3_f32 v{t0}, v{U[0]}, v{U[1]}, v{U[2]}")
            self(f"  v_max_f32 v{t0}, v{t0}, v{U[3]}")
            self(f"  v_max_f32_dpp v{t0}, v{t0}, v{t0} row_ror:4 row_mask:0xf bank_mask:0xf")
            self(f"  v_max_f32_dpp v{t0}, v{t0}, v{t0} row_ror:8 row_mask:0xf bank_mask:0xf")
            self.cross_rows("v_max_f32", t0, t1)
            for g in range(4):
                self(f"  v_sub_f32 v{U[g]}, v{U[g]}, v{t0}")
            for g in range(4):
                self(f"  v_mul_f32 v{U[g]}, {LOG2E}, v{U[g]}")
            for g in range(4):
                self(f"  v_exp_f32 v{U[g]}, v{U[g]}")
            self("  s_nop 0")
            for g in range(4):
                self(f"  v_cvt_pk_bf16_f32 v{PL[g]}, v{U[g]}, 0")
                self(f"  v_cvt_pk_bf16_f32 v{PH[g]}, 0, v{U[g]}")
            self(f"  v_add_f32 v{T[0]}, v{U[0]}, v{U[1]}")
            self(f"  v_add_f32 v{T[1]}, v{U[2]}, v{U[3]}")
            self(f"  v_add_f32 v{T[0]}, v{T[0]}, v{T[1]}")
            self(f"  v_add_f32_dpp v{T[0]}, v{T[0]}, v{T[0]} row_ror:4 row_mask:0xf bank_mask:0xf")
            self(f"  v_add_f32_dpp v{T[0]}, v{T[0]}, v{T[0]} row_ror:8 row_mask:0xf bank_mask:0xf")
            self.cross_rows("v_add_f32", T[0], t1)
            self(f"  s_lshl_b32 s6, s3, 2")
            self(f"  v_mov_b32 v{t1}, s6")
            self(f"  v_mov_b32 v{T[1]}, 1")
            self(f"  v_mov_b32 v{P[0]}, 0")
            self("  s_mov_b64 exec, 1")
            self(f"  ds_write_b32 v{t1}, v{t0} offset:{L_M}")
            self(f"  ds_write_b32 v{t1}, v{T[0]} offset:{L_L}")
            self("  s_waitcnt lgkmcnt(0)")
            self(f"  ds_add_u32 v{P[0]}, v{T[1]} offset:{L_CNT}")
            self("  s_mov_b64 exec, -1")
            for a in A:
                self(f"  v_mov_b32 v{a}, 0")

        def pv(j):
            g, k = j // 4, j % 4
            r = vbuf(j)
            for i in range(6):
                self(f"  v_dot2c_f32_bf16_dpp v{A[2 * i]}, v{PL[g]}, v{r + i} row_newbcast:{4 * k} row_mask:0xf bank_mask:0xf")
                self(f"  v_dot2c_f32_bf16_dpp v{A[2 * i + 1]}, v{PH[g]}, v{r + i} row_newbcast:{4 * k} row_mask:0xf bank_mask:0xf")

        qk_next = 0
        sm_done = False
        pv_next = 0
        landed = -1
        MO, FF, PA0, PA1 = 4, 5, 6, 7

        if self.touch & 1:
            self(f"  s_mul_i32 s7, s3, 24576")
            self(f"  v_mov_b32 v{t1}, s7")
            self("  s_mov_b64 exec, 1")
            self(f"  buffer_load_dword v{t0}, v{t1}, s[36:39], 0 offen")
            self("  s_mov_b64 exec, -1")
            self.vm_issue(("T", 0))
        if not self.b0late:
            self("  s_barrier            ; B0")
        for i in range(32):
            Di = self.Dof(i)
            if i - Di > landed:
                self.vm_wait(("L", i - Di))
                landed = i - Di
            if self.adapt and self.adapt[0] <= i < self.adapt[1]:
                tag = ("L", i - (Di - 1))
                idx = [k for k, tg in enumerate(self.vm) if tg == tag]
                if idx:
                    n = len(self.vm) - 1 - idx[-1]
                    Ls = self.lab("deep")
                    self("  s_cmp_lg_u32 s65, 0")
                    self(f"  s_cbranch_scc1 {Ls}")
                    self(f"  s_waitcnt vmcnt({n})")
                    self(f"{Ls}:")
            if i >= 16 and (i - 16) >= E:
                need_g = (i - 16 - E) // 4
                assert qk_next > need_g, f"schedule: V{i - 16} needs QK group {need_g} (slot {i})"
            if self.prog and self.stamps and i in self.prog:
                k = 1 + self.prog.index(i)
                self(f"  s_memrealtime s[{70 + 2 * k}:{71 + 2 * k}]")
            issue(i)
            if self.b0late and i == self.b0late - 1:
                self("  s_barrier            ; B0")
            if i == SB:
                self.stamp(1)
                self(f"  v_mov_b32 v{t1}, 0")
                self.lds_spin("qf", t1, L_QF, t0, target=3, sdst="s58", sleep=1)
                self.stamp(2)
                self(f"  v_and_b32 v{t0}, 15, v0")
                self(f"  v_lshlrev_b32 v{t1}, 4, v{t0}")
                self(f"  v_lshlrev_b32 v{t0}, 3, v{t0}")
                self(f"  ds_read_b128 v[{Q[0]}:{Q[3]}], v{t1} offset:{L_Q}")
                self(f"  ds_read_b64 v[{Q[4]}:{Q[5]}], v{t0} offset:{L_Q + 256}")
                self("  s_waitcnt lgkmcnt(0)")
            if i >= SB:
                n = 0
                while qk_next < 4 and 4 * qk_next + 3 <= landed and n < self.qk_per_slot:
                    qk_group(qk_next)
                    qk_next += 1
                    n += 1
                if qk_next == 4 and not sm_done:
                    softmax()
                    self(f"  v_mov_b32 v{MO}, v{t0}")
                    sm_done = True
                    self.stamp(3)
                elif sm_done:
                    n = 0
                    while pv_next < 16 and 16 + pv_next <= landed and n < 3:
                        pv(pv_next)
                        pv_next += 1
                        n += 1
        assert sm_done
        self(f"  v_mov_b32 v{t1}, 0")
        self.lds_spin("cnt8", t1, L_CNT, t0, target=8, sdst="s58", sleep=1)
        self(f"  v_and_b32 v{t1}, 7, v0")
        self(f"  v_lshlrev_b32 v{t1}, 2, v{t1}")
        self(f"  ds_read_b32 v{t0}, v{t1} offset:{L_M}")
        self(f"  v_and_b32 v{P[0]}, 15, v0")
        self(f"  v_lshrrev_b32 v{P[1]}, 4, v0")
        self(f"  v_lshlrev_b32 v{P[1]}, 2, v{P[1]}")
        self("  s_mul_i32 s6, s3, 768")
        self(f"  v_add_u32 v{P[1]}, s6, v{P[1]}")
        self(f"  v_lshl_add_u32 v{PA0}, v{P[0]}, 5, v{P[1]}")
        self(f"  v_lshl_add_u32 v{PA1}, v{P[0]}, 4, v{P[1]}")
        self("  s_waitcnt lgkmcnt(0)")
        for r in (1, 2, 4):
            self(f"  v_max_f32_dpp v{t0}, v{t0}, v{t0} row_ror:{r} row_mask:0xf bank_mask:0xf")
        self(f"  v_sub_f32 v{FF}, v{MO}, v{t0}")
        self(f"  v_mul_f32 v{FF}, {LOG2E}, v{FF}")
        self(f"  v_exp_f32 v{FF}, v{FF}")
        for j in range(pv_next, 16):
            self.vm_wait(("L", 16 + j))
            if j == 15:
                self.stamp(4)
                if self.prog and self.stamps:
                    self(f"  s_memrealtime s[92:93]")
            pv(j)
        R = self.treduce4rows(A)
        for r in R:
            self(f"  v_mul_f32 v{r}, v{FF}, v{r}")
        self(f"  ds_write_b32 v{PA0}, v{R[0]} offset:{L_PART}")
        self(f"  ds_write_b32 v{PA0}, v{R[1]} offset:{L_PART + 16}")
        self(f"  ds_write_b32 v{PA1}, v{R[2]} offset:{L_PART + 512}")
        Bf = RING
        Af = RING + 24
        Dd = RING + 48
        aB, aA, aS = RING + 52, RING + 53, RING + 54
        self(f"  v_lshrrev_b32 v{P[0]}, 4, v0          ; g")
        self(f"  v_bfe_u32 v{P[2]}, v0, 2, 2           ; r4")
        self(f"  v_and_b32 v{P[3]}, 3, v0              ; cq")
        self(f"  v_lshl_add_u32 v{aB}, v{P[0]}, 3, v{P[2]}   ; 8g + r4")
        self(f"  v_lshlrev_b32 v{aB}, 7, v{aB}")
        self("  s_and_b32 s6, s3, 3           ; tile")
        self("  s_lshl_b32 s7, s6, 1")
        self(f"  v_lshrrev_b32 v{aA}, 1, v{P[3]}")
        self(f"  v_add_u32 v{aA}, s7, v{aA}")
        self(f"  v_lshlrev_b32 v{aS}, 1, v{P[2]}")
        self(f"  v_xor_b32 v{aA}, v{aA}, v{aS}")
        self(f"  v_lshl_add_u32 v{aB}, v{aA}, 4, v{aB}")
        self(f"  v_and_b32 v{aA}, 1, v{P[3]}")
        self(f"  v_lshl_add_u32 v{aB}, v{aA}, 3, v{aB}")
        self(f"  v_and_b32 v{aA}, 7, v0")
        self(f"  v_mul_u32_u24 v{aA}, 400, v{aA}")
        self(f"  v_lshl_add_u32 v{aA}, v{P[0]}, 4, v{aA}")
        self(f"  v_lshlrev_b32 v{aS}, 2, v0")
        for d in range(4):
            self(f"  v_mov_b32 v{Dd + d}, 0")
        self.srd(44, 30, None, WS_SIZE)
        self("  s_waitcnt lgkmcnt(0)")
        self.stamp(5)
        self("  s_cmp_ge_u32 s3, 4")
        self("  s_cbranch_scc1 L_tail_extra")

        def tail_part(nk, wo_off):
            self("  s_barrier")
            for k in range(nk):
                self(f"  ds_read_b64_tr_b16 v[{Bf + 4 * k}:{Bf + 4 * k + 1}], v{aB} offset:{wo_off + 4096 * k}")
                self(f"  ds_read_b64_tr_b16 v[{Bf + 4 * k + 2}:{Bf + 4 * k + 3}], v{aB} offset:{wo_off + 4096 * k + 512}")
            self(f"  v_add_u32 v{aS}, s6, v{aS}")
            self("  s_waitcnt lgkmcnt(0)")
            self("  s_barrier")
            for k in range(nk):
                self(f"  ds_read_b128 v[{Af + 4 * k}:{Af + 4 * k + 3}], v{aA} offset:{L_A + 64 * k}")
            self.stamp(6)
            for k in range(nk):
                if self.stamps:
                    if k == 0:
                        self("  s_waitcnt lgkmcnt(0)")
                else:
                    self(f"  s_waitcnt lgkmcnt({nk - 1 - k})")
                self(f"  v_mfma_f32_16x16x32_bf16 v[{Dd}:{Dd + 3}], v[{Af + 4 * k}:{Af + 4 * k + 3}], v[{Bf + 4 * k}:{Bf + 4 * k + 3}], v[{Dd}:{Dd + 3}]")
            self(f"  v_add_f32 v{Dd}, v{Dd}, v{Dd + 1}")
            self(f"  v_add_f32 v{Dd + 2}, v{Dd + 2}, v{Dd + 3}")
            self(f"  v_add_f32 v{Dd}, v{Dd}, v{Dd + 2}")
            self(f"  v_mov_b32 v{t0}, v{Dd}")
            self(f"  v_permlane16_swap_b32 v{Dd}, v{t0}")
            self(f"  v_add_f32 v{Dd}, v{Dd}, v{t0}")
            self(f"  v_min_u32 v{Dd}, -2, v{Dd}")
            self("  s_mov_b32 exec_lo, 0xffff")
            self("  s_mov_b32 exec_hi, 0")
            self(f"  buffer_store_dword v{Dd}, v{aS}, s[44:47], 0 offen sc1")
            self("  s_mov_b64 exec, -1")
            self.stamp(7)
            self("  s_branch L_exit_stamped")

        self("  s_lshl_b32 s7, s5, 2")
        self("  s_add_u32 s6, s6, s7")
        self(f"  s_mul_i32 s6, s6, {SDSTR}")
        self("  s_lshl_b32 s7, s4, 6")
        self("  s_add_u32 s6, s6, s7")
        self(f"  s_add_u32 s6, s6, {SD_BASE}")
        tail_part(6, L_WO)
        self("L_tail_extra:")
        self("  s_cmp_ge_u32 s5, 6")
        self("  s_cbranch_scc1 L_exit_stamped")
        self("  s_cmp_ge_u32 s5, 3")
        self("  s_cselect_b32 s7, 4, 0        ; 4e")
        self("  s_cselect_b32 s56, 3, 0")
        self("  s_sub_u32 s56, s5, s56        ; third")
        self("  s_add_u32 s6, s6, s7")
        self("  s_add_u32 s6, s6, 32")
        self(f"  s_mul_i32 s6, s6, {SDSTR}")
        self("  s_mul_i32 s7, s4, 3")
        self("  s_add_u32 s7, s7, s56")
        self("  s_lshl_b32 s7, s7, 6")
        self("  s_add_u32 s6, s6, s7")
        self(f"  s_add_u32 s6, s6, {SD_BASE}")
        self("  s_lshl_b32 s7, s56, 7")
        self(f"  v_add_u32 v{aA}, s7, v{aA}")
        tail_part(2, L_WO2)

    def ln(self, X, xs, t):
        for i in range(5):
            self(f"  v_lshlrev_b32 v{xs[2 * i]}, 16, v{X[i]}")
            self(f"  v_and_b32 v{xs[2 * i + 1]}, 0xffff0000, v{X[i]}")
        s, u, m = t[0], t[1], t[2]
        self(f"  v_add_f32 v{s}, v{xs[0]}, v{xs[1]}")
        for i in range(2, 10):
            self(f"  v_add_f32 v{s}, v{s}, v{xs[i]}")
        self.allreduce("v_add_f32", s, u)
        self(f"  v_mul_f32 v{m}, {INV640}, v{s}")
        self(f"  v_sub_f32 v{u}, v{xs[0]}, v{m}")
        self(f"  v_mul_f32 v{s}, v{u}, v{u}")
        for i in range(1, 10):
            self(f"  v_sub_f32 v{u}, v{xs[i]}, v{m}")
            self(f"  v_fmac_f32 v{s}, v{u}, v{u}")
        self.allreduce("v_add_f32", s, u)
        self(f"  v_mul_f32 v{s}, {INV640}, v{s}          ; var")
        self(f"  v_cvt_pk_bf16_f32 v{u}, v{s}, v{m}")
        self(f"  v_lshlrev_b32 v{s}, 16, v{u}            ; bf16(var)")
        self(f"  v_and_b32 v{m}, 0xffff0000, v{u}        ; bf16(mean)")
        self(f"  v_add_f32 v{s}, {EPS}, v{s}")
        self(f"  v_cvt_pk_bf16_f32 v{s}, v{s}, v{s}")
        self(f"  v_lshlrev_b32 v{s}, 16, v{s}")
        self(f"  v_sqrt_f32 v{s}, v{s}")
        self("  s_nop 0")
        self(f"  v_cvt_pk_bf16_f32 v{s}, v{s}, v{s}")
        self(f"  v_lshlrev_b32 v{s}, 16, v{s}")
        self(f"  v_rcp_f32 v{s}, v{s}")
        for i in range(10):
            self(f"  v_sub_f32 v{xs[i]}, v{xs[i]}, v{m}")
        for i in range(5):
            self(f"  v_cvt_pk_bf16_f32 v{X[i]}, v{xs[2 * i]}, v{xs[2 * i + 1]}")
        for i in range(5):
            self(f"  v_lshlrev_b32 v{xs[2 * i]}, 16, v{X[i]}")
            self(f"  v_and_b32 v{xs[2 * i + 1]}, 0xffff0000, v{X[i]}")
        for i in range(10):
            self(f"  v_mul_f32 v{xs[i]}, v{xs[i]}, v{s}")
        for i in range(5):
            self(f"  v_cvt_pk_bf16_f32 v{X[i]}, v{xs[2 * i]}, v{xs[2 * i + 1]}")
        self(f"  v_lshlrev_b32 v{u}, 2, v0")
        for i in range(5):
            self(f"  ds_write_b32 v{u}, v{X[i]} offset:{L_XN + 256 * i}")

    def xn_rows(self, XL, XH, t, n=10, base="s5", mul=80):
        self(f"  v_lshrrev_b32 v{t}, 3, v0")
        self(f"  s_mul_i32 s6, {base}, {mul}")
        self(f"  v_add_u32 v{t}, s6, v{t}")
        self(f"  v_lshlrev_b32 v{t}, 1, v{t}")
        self("  s_waitcnt lgkmcnt(0)")
        for i in range(n):
            self(f"  ds_read_u16 v{XL[i]}, v{t} offset:{L_XN + 16 * i}")
        self("  s_waitcnt lgkmcnt(0)")
        for i in range(n):
            self(f"  v_lshlrev_b32 v{XH[i]}, 16, v{XL[i]}")

    def gemv64(self, W, XL, XH, ACC, n):
        for i in range(n):
            for k in range(4):
                c0 = "0" if i == 0 else f"v{ACC[2 * k]}"
                c1 = "0" if i == 0 else f"v{ACC[2 * k + 1]}"
                self(f"  v_dot2_f32_bf16 v{ACC[2 * k]}, v{W + 4 * i + k}, v{XL[i]}, {c0}")
                self(f"  v_dot2_f32_bf16 v{ACC[2 * k + 1]}, v{W + 4 * i + k}, v{XH[i]}, {c1}")

    def gather_h1(self, nparts, dst, addr):
        def issue():
            for p in range(nparts):
                for c in range(8):
                    so = ["0", "s60", "s61", "s62"][c // 2]
                    imm = BOX * (c % 2) + 256 * p
                    o = f" offset:{imm}" if imm else ""
                    self(f"  buffer_load_dword v{dst[p * 8 + c]}, v{addr}, s[44:47], {so} offen{o} sc1")
        self.poll_loop("h1", issue, dst[:nparts * 8], dst[nparts * 8], sleep=2)

    def own_box(self, dst="s6", tmp="s56"):
        self(f"  s_mul_i32 {dst}, s4, {GBOX}")
        self(f"  s_mul_i32 {tmp}, s5, {BOX}")
        self(f"  s_add_u32 {dst}, {dst}, {tmp}")

    def helper(self):
        self.in_stream = False
        X = list(range(4, 9))
        xs = list(range(10, 20))
        t = [20, 21, 22, 23]
        XL = list(range(24, 34))
        XH = list(range(34, 44))
        ACC = list(range(44, 60))
        W = 64
        self("L_helper:")
        if self.prio:
            self(f"  s_setprio {self.prio}")
        self("  s_sub_u32 s7, s3, 8")
        self("  v_lshlrev_b32 v1, 2, v0       ; 4*lane")
        self(f"  s_mov_b32 s60, {2 * BOX}")
        self(f"  s_mov_b32 s61, {4 * BOX}")
        self(f"  s_mov_b32 s62, {6 * BOX}")
        self("  s_waitcnt lgkmcnt(0)")
        self.srd(32, 8, None, 1280)
        self.srd(44, 30, None, WS_SIZE)
        self.srd(48, 28, None, 256)
        self("  s_cmp_eq_u32 s3, 11")
        self("  s_cbranch_scc1 L_h3")
        self("  s_mul_i32 s6, s5, 983040      ; 80*12288*c")
        self("  s_mul_i32 s56, s4, 384")
        self("  s_add_u32 s6, s6, s56")
        self.srd(36, 14, "s6", 79 * 12288 + 384)
        self(f"  v_lshrrev_b32 v2, 3, v0")
        self(f"  v_mul_u32_u24 v2, 12288, v2")
        self(f"  v_and_b32 v3, 7, v0")
        self(f"  v_lshl_add_u32 v2, v3, 4, v2")
        self("  s_lshl_b32 s6, s7, 7")
        self(f"  v_add_u32 v2, s6, v2")
        for i in range(5):
            o = f" offset:{256 * i}" if i else ""
            self(f"  buffer_load_dword v{X[i]}, v1, s[32:35], 0 offen{o}")
        for i in range(10):
            self(f"  s_mov_b32 s6, {98304 * i}")
            self(f"  buffer_load_dwordx4 v[{W + 4 * i}:{W + 4 * i + 3}], v2, s[36:39], s6 offen nt")
        if self.touch & 2:
            self("  s_mul_i32 s6, s4, 245760      ; 192*1280*h")
            self("  s_mul_i32 s56, s5, 160")
            self("  s_add_u32 s6, s6, s56")
            self.srd(40, 16, "s6", 191 * 1280 + 160)
            self("  s_mul_i32 s6, s7, 81920")
            self("  v_mov_b32 v3, s6")
            self("  s_mov_b64 exec, 1")
            self("  buffer_load_dword v60, v3, s[40:43], 0 offen")
            self("  s_mov_b64 exec, -1")
        self("  s_barrier            ; B0")
        self(f"  s_waitcnt vmcnt({11 if self.touch & 2 else 10})")
        self.ln(X, xs, t)
        self.xn_rows(XL, XH, t[0])
        self.stamp(1)
        self("  s_waitcnt vmcnt(0)")
        self.stamp(2)
        for i in range(10):
            for k in range(4):
                c0 = "0" if i == 0 else f"v{ACC[2 * k]}"
                c1 = "0" if i == 0 else f"v{ACC[2 * k + 1]}"
                self(f"  v_dot2_f32_bf16 v{ACC[2 * k]}, v{W + 4 * i + k}, v{XL[i]}, {c0}")
                self(f"  v_dot2_f32_bf16 v{ACC[2 * k + 1]}, v{W + 4 * i + k}, v{XH[i]}, {c1}")
        self.treduce8(ACC[:8], t[1])
        self(f"  v_min_u32 v{t[1]}, -2, v{t[1]}")
        self(f"  s_mul_i32 s6, s4, {GBOX}")
        self("  s_lshl_b32 s56, s7, 8")
        self("  s_add_u32 s6, s6, s56")
        self(f"  v_add_u32 v14, s6, v1")
        self(f"  s_mul_i32 s56, s5, {BOX}")
        self("  v_add_u32 v15, s56, v14")
        self(f"  v_mov_b32 v12, 0")
        if self.early_pub:
            self.lds_spin("clr", 12, L_CLR, 13, target=None, sdst="s58")
            self(f"  buffer_store_dword v{t[1]}, v15, s[44:47], 0 offen sc1")
            self.lds_spin("mode", 12, L_MODE, 13, target=None, sdst="s59")
        else:
            self.lds_spin("mode", 12, L_MODE, 13, target=None, sdst="s59")
            self.mode_store([f"buffer_store_dword v{t[1]}, v15, s[44:47], 0 offen"])
        self.stamp(3)
        G8 = list(range(64, 73))
        self.gather_h1(1, G8, 14)
        self.stamp(4)
        self(f"  v_add_f32 v{G8[0]}, v{G8[0]}, v{G8[1]}")
        self(f"  v_add_f32 v{G8[2]}, v{G8[2]}, v{G8[3]}")
        self(f"  v_add_f32 v{G8[4]}, v{G8[4]}, v{G8[5]}")
        self(f"  v_add_f32 v{G8[6]}, v{G8[6]}, v{G8[7]}")
        self(f"  v_add_f32 v{G8[0]}, v{G8[0]}, v{G8[2]}")
        self(f"  v_add_f32 v{G8[4]}, v{G8[4]}, v{G8[6]}")
        self(f"  v_add_f32 v{G8[0]}, v{G8[0]}, v{G8[4]}")
        self(f"  v_cvt_pk_bf16_f32 v{G8[0]}, v{G8[0]}, v{G8[0]}")
        self("  v_and_b32 v16, 7, v0")
        self("  v_lshrrev_b32 v17, 3, v0")
        self("  v_lshl_add_u32 v16, v16, 3, v17")
        self("  s_lshl_b32 s6, s7, 6")
        self("  v_add_u32 v16, s6, v16")
        self("  v_lshlrev_b32 v16, 1, v16")
        self(f"  ds_write_b16 v16, v{G8[0]} offset:{L_Q}")
        self("  v_mov_b32 v13, 1")
        self("  s_waitcnt lgkmcnt(0)")
        self("  s_mov_b64 exec, 1")
        self(f"  ds_add_u32 v12, v13 offset:{L_QF}")
        self("  s_mov_b64 exec, -1")
        self.stamp(5)
        self("  s_cmp_eq_u32 s3, 8")
        self("  s_cbranch_scc1 L_h0")
        self("  s_cmp_eq_u32 s3, 10")
        self("  s_cbranch_scc1 L_h2")
        self("  s_mov_b32 s56, -1")
        for tt in range(5):
            self(f"  s_cmp_eq_u32 s4, {6 * tt + 1}")
            self(f"  s_cselect_b32 s56, {tt}, s56")
        self("  s_cmp_eq_u32 s56, -1")
        self("  s_cbranch_scc1 L_exit_stamped")
        self.final_consumer()

        self("L_h2:")
        if self.bulkprio is not None:
            self(f"  s_setprio {self.bulkprio}")
        self("  s_mul_i32 s6, s4, 245760      ; 192*1280*h")
        self("  s_lshl_b32 s56, s5, 7")
        self("  s_add_u32 s6, s6, s56")
        self.srd(40, 16, "s6", 191 * 1280 + 128)
        self("  v_lshrrev_b32 v2, 3, v0")
        self("  v_and_b32 v3, 3, v2")
        self("  v_lshlrev_b32 v3, 1, v3")
        self("  v_and_b32 v4, 7, v0")
        self("  v_xor_b32 v3, v3, v4")
        self("  v_mul_u32_u24 v2, 1280, v2")
        self("  v_lshl_add_u32 v2, v3, 4, v2")
        self("  s_mov_b32 s6, 0")
        self(f"  s_mov_b32 m0, {L_WO}")
        nt = ' nt' if self.wnt & 1 else ''

        def wo_loop(name, n, srd):
            self(f"{name}:")
            self(f"  buffer_load_dwordx4 v2, {srd}, s6 offen{nt} lds")
            self("  s_add_u32 m0, m0, 1024")
            self("  s_add_u32 s6, s6, 10240")
            if self.wo_throttle:
                self(f"  s_waitcnt vmcnt({self.wo_throttle})")
            self(f"  s_cmp_lt_u32 s6, {10240 * n}")
            self(f"  s_cbranch_scc1 {name}")
        wo_loop("L_wo_loop", 24, "s[40:43]")
        self("  s_cmp_ge_u32 s5, 6")
        self("  s_cbranch_scc1 L_wo_done")
        self("  s_cmp_ge_u32 s5, 3")
        self("  s_cselect_b32 s7, 128, 0")
        self("  s_cselect_b32 s56, 3, 0")
        self("  s_sub_u32 s56, s5, s56        ; third")
        self("  s_mul_i32 s56, s56, 81920     ; 64*1280")
        self("  s_add_u32 s7, s7, s56")
        self("  s_mul_i32 s6, s4, 245760")
        self("  s_add_u32 s6, s6, s7")
        self("  s_add_u32 s6, s6, 1024")
        self.srd(52, 16, "s6", 63 * 1280 + 128)
        self("  s_mov_b32 s6, 0")
        wo_loop("L_wo2_loop", 8, "s[52:55]")
        self("L_wo_done:")
        self("  s_waitcnt vmcnt(0)")
        self.stamp(6)
        self("  s_branch L_exit_stamped")

        self("L_h0:")
        self("  v_mov_b32 v12, 0")
        self.lds_spin("cnt", 12, L_CNT, 13, target=8, sdst="s58", sleep=2)
        self("  v_and_b32 v14, 7, v0")
        self("  v_lshlrev_b32 v14, 2, v14")
        self(f"  ds_read_b32 v16, v14 offset:{L_M}")
        self(f"  ds_read_b32 v17, v14 offset:{L_L}")
        self("  s_waitcnt lgkmcnt(0)")
        self("  v_mov_b32 v18, v16")
        for r in (1, 2, 4):
            self(f"  v_max_f32_dpp v18, v18, v18 row_ror:{r} row_mask:0xf bank_mask:0xf")
        self("  v_sub_f32 v19, v16, v18")
        self(f"  v_mul_f32 v19, {LOG2E}, v19")
        self("  v_exp_f32 v19, v19")
        self("  s_nop 0")
        self("  v_mul_f32 v19, v19, v17")
        for r in (1, 2, 4):
            self(f"  v_add_f32_dpp v19, v19, v19 row_ror:{r} row_mask:0xf bank_mask:0xf")
        self("  v_min_u32 v20, -2, v18")
        self("  v_min_u32 v21, -2, v19")
        self("  v_mov_b32 v16, v18                ; M_c")
        self.own_box()
        self(f"  s_add_u32 s6, s6, {O_LSE}")
        self("  v_mov_b32 v15, s6")
        self("  s_mov_b64 exec, 1")
        self.mode_store(["buffer_store_dwordx2 v[20:21], v15, s[44:47], 0 offen"])
        self("  s_mov_b64 exec, -1")
        self("  v_and_b32 v15, 7, v0")
        self(f"  v_mul_u32_u24 v15, {BOX}, v15")
        self(f"  s_mul_i32 s6, s4, {GBOX}")
        self(f"  s_add_u32 s6, s6, {O_LSE}")
        self("  v_add_u32 v15, s6, v15")

        def issue_lse():
            self("  buffer_load_dwordx2 v[22:23], v15, s[44:47], 0 offen sc1")
        self.poll_loop("lse", issue_lse, [22, 23], 24, sleep=1)
        self("  v_mov_b32 v18, v22")
        for r in (1, 2, 4):
            self(f"  v_max_f32_dpp v18, v18, v18 row_ror:{r} row_mask:0xf bank_mask:0xf")
        self("  v_sub_f32 v19, v22, v18")
        self(f"  v_mul_f32 v19, {LOG2E}, v19")
        self("  v_exp_f32 v19, v19")
        self("  s_nop 0")
        self("  v_mul_f32 v19, v19, v23")
        for r in (1, 2, 4):
            self(f"  v_add_f32_dpp v19, v19, v19 row_ror:{r} row_mask:0xf bank_mask:0xf")
        self("  v_rcp_f32 v19, v19")
        self("  v_sub_f32 v16, v16, v18")
        self(f"  v_mul_f32 v16, {LOG2E}, v16")
        self("  v_exp_f32 v16, v16")
        self("  s_nop 0")
        self("  v_mul_f32 v16, v16, v19          ; G = exp(M_c - M_h) / L_h")
        self.stamp(6)
        self("  v_lshlrev_b32 v14, 4, v0")
        self.own_box()
        self(f"  s_add_u32 s6, s6, {O_O2}")
        self("  v_lshlrev_b32 v15, 3, v0")
        self("  v_add_u32 v15, s6, v15")
        self(f"  s_mul_i32 s6, s4, {GBOX}")
        self(f"  s_add_u32 s6, s6, {O_O2}")
        GA, LA = [4, 5, 6], [7, 8, 9]
        for i in range(3):
            self(f"  v_add_u32 v17, {64 * i}, v0")
            self("  v_mul_u32_u24 v18, 171, v17")
            self("  v_lshrrev_b32 v18, 12, v18")
            self("  v_mul_u32_u24 v19, 24, v18")
            self("  v_sub_u32 v19, v17, v19           ; chunk")
            self(f"  v_mul_u32_u24 v20, {BOX}, v18")
            self("  v_lshl_add_u32 v20, v19, 4, v20")
            self(f"  v_add_u32 v{GA[i]}, s6, v20")
            self("  v_mul_u32_u24 v20, 400, v18")
            self(f"  v_lshl_add_u32 v{LA[i]}, v19, 4, v20")
        self("  s_mov_b32 exec_hi, 0xffff         ; 48 lanes")
        self("  s_barrier            ; B2")
        PR = 24
        for w in range(8):
            self(f"  ds_read_b128 v[{PR + 4 * w}:{PR + 4 * w + 3}], v14 offset:{L_PART + 768 * w}")
        for (a_, b_, cnt) in ((0, 1, 6), (2, 3, 4), (0, 2, None), (4, 5, 2), (6, 7, 0), (4, 6, None), (0, 4, None)):
            if cnt is not None:
                self(f"  s_waitcnt lgkmcnt({cnt if not self.stamps else 0})")
            for k in range(4):
                self(f"  v_add_f32 v{PR + 4 * a_ + k}, v{PR + 4 * a_ + k}, v{PR + 4 * b_ + k}")
        for k in range(4):
            self(f"  v_mul_f32 v{PR + k}, v16, v{PR + k}")
        self(f"  v_cvt_pk_bf16_f32 v20, v{PR}, v{PR + 1}")
        self(f"  v_cvt_pk_bf16_f32 v21, v{PR + 2}, v{PR + 3}")
        self("  v_min_u32 v20, -2, v20")
        self("  v_min_u32 v21, -2, v21")
        self.mode_store(["buffer_store_dwordx2 v[20:21], v15, s[44:47], 0 offen"])
        self("  s_mov_b64 exec, -1")
        self.stamp(7)
        AG = 56

        def issueA():
            for i in range(3):
                self(f"  buffer_load_dwordx4 v[{AG + 4 * i}:{AG + 4 * i + 3}], v{GA[i]}, s[44:47], 0 offen sc1")
        self.poll_loop("pollA", issueA, range(AG, AG + 12), 17)
        self.stamp(8)
        for i in range(3):
            self(f"  ds_write_b128 v{LA[i]}, v[{AG + 4 * i}:{AG + 4 * i + 3}] offset:{L_A}")
        self("  s_waitcnt lgkmcnt(0)")
        self("  s_barrier            ; B3")
        self("  s_branch L_exit_stamped")

        self("L_h3:")
        self("  s_lshr_b32 s6, s2, 3")
        self("  s_sub_u32 s64, s6, 2             ; fi")
        self("  s_cselect_b32 s66, 0, 1")
        self("  s_cselect_b32 s64, 0, s64")
        self("  s_mul_i32 s6, s64, 26")
        self("  s_lshr_b32 s6, s6, 8             ; l")
        self("  s_mul_i32 s56, s6, 10")
        self("  s_sub_u32 s64, s64, s56          ; m")
        self("  s_and_b32 s65, s2, 7")
        self("  s_mul_i32 s65, s65, 3")
        self("  s_add_u32 s65, s65, s6           ; j")
        self("  v_mov_b32 v16, 0")
        self("  v_mov_b32 v17, 0")
        self("  v_mov_b32 v18, 0")
        self("  v_mov_b32 v19, 0")
        self("  v_lshlrev_b32 v3, 4, v0")
        self("  v_mov_b32 v8, -1")
        self("  v_mov_b32 v9, -1")
        self("  v_mov_b32 v10, -1")
        self("  v_mov_b32 v11, -1")
        self.own_box()
        self("  v_add_u32 v12, s6, v3")
        self("  buffer_store_dwordx4 v[8:11], v12, s[44:47], 0 offen sc1")
        self("  s_mul_i32 s56, s65, 10")
        self("  s_add_u32 s56, s56, s64")
        self(f"  s_mul_i32 s56, s56, {FSTR}")
        self(f"  s_add_u32 s67, s56, {FB_BASE}")
        self("  s_cmp_lg_u32 s66, 0")
        self(f"  s_cselect_b32 s56, s67, {OOB}")
        self("  s_sub_u32 s56, s56, 256")
        self("  v_add_u32 v13, s56, v3")
        self("  v_add_u32 v12, 1024, v12")
        self("  v_cmp_gt_u32 vcc, 16, v0")
        self("  v_cndmask_b32 v12, v13, v12, vcc")
        self("  s_mov_b32 exec_hi, 0xffff")
        self("  buffer_store_dwordx4 v[8:11], v12, s[44:47], 0 offen sc1")
        self("  s_lshl_b32 s6, s5, 2")
        self(f"  s_mul_i32 s6, s6, {SDSTR}")
        self("  s_lshl_b32 s56, s4, 6")
        self("  s_add_u32 s6, s6, s56")
        self(f"  s_add_u32 s6, s6, {SD_BASE}")
        self("  v_mov_b32 v13, s6                ; main")
        self("  s_cmp_ge_u32 s5, 3")
        self("  s_cselect_b32 s7, 36, 32")
        self("  s_cselect_b32 s56, 3, 0")
        self("  s_sub_u32 s56, s5, s56           ; third")
        self(f"  s_mul_i32 s6, s7, {SDSTR}")
        self("  s_mul_i32 s7, s4, 3")
        self("  s_add_u32 s7, s7, s56")
        self("  s_lshl_b32 s7, s7, 6")
        self("  s_add_u32 s6, s6, s7")
        self(f"  s_add_u32 s6, s6, {SD_BASE}")
        self("  s_cmp_ge_u32 s5, 6")
        self(f"  s_cselect_b32 s6, {OOB}, s6")
        self("  v_mov_b32 v14, s6                ; extra")
        self("  s_lshl_b32 s6, s64, 2")
        self(f"  s_mul_i32 s6, s6, {SDSTR}")
        self("  s_lshl_b32 s56, s65, 6")
        self("  s_add_u32 s6, s6, s56")
        self(f"  s_add_u32 s68, s6, {SD_BASE + O_D3}")
        self("  s_cmp_lg_u32 s66, 0")
        self(f"  s_cselect_b32 s6, s68, {OOB}")
        self("  v_mov_b32 v15, s6                ; down")
        self("  v_cmp_gt_u32 vcc, 16, v0")
        self("  v_cndmask_b32 v14, v14, v13, vcc")
        self("  v_cmp_gt_u32 vcc, 32, v0")
        self("  v_cndmask_b32 v13, v15, v14, vcc")
        self("  v_bfe_u32 v14, v0, 2, 2")
        self(f"  v_mul_u32_u24 v14, {SDSTR}, v14")
        self("  v_add_u32 v13, v13, v14")
        self("  v_and_b32 v14, 3, v0")
        self("  v_lshl_add_u32 v13, v14, 4, v13")
        self("  buffer_store_dwordx4 v[8:11], v13, s[44:47], 0 offen sc1")
        self("  s_mov_b32 exec_hi, 0")
        self("  s_mov_b32 exec_lo, 0xff")
        self(f"  ds_write_b128 v3, v[16:19] offset:{L_MODE}")
        self("  s_mov_b64 exec, -1")
        for i in range(5):
            o = f" offset:{256 * i}" if i else ""
            self(f"  buffer_load_dword v{X[i]}, v1, s[32:35], 0 offen{o}")
        self("  s_waitcnt lgkmcnt(0)")
        self("  s_barrier            ; B0")
        self("  s_getreg_b32 s6, hwreg(HW_REG_XCC_ID, 0, 4)")
        self("  s_mul_i32 s56, s6, s6")
        self("  s_lshl_b32 s56, s56, 16")
        self("  s_lshl_b32 s6, s6, 8")
        self("  s_add_u32 s6, s6, s56")
        self("  s_add_u32 s63, s6, 1")
        self("  s_lshl_b32 s6, s4, 3")
        self("  v_mov_b32 v12, s6")
        self("  v_mov_b32 v13, s63")
        self("  v_mov_b32 v14, 0")
        self("  v_mov_b32 v15, 1")
        self("  s_waitcnt vmcnt(5)")
        self("  s_mov_b64 exec, 1")
        self("  buffer_atomic_add v13, v12, s[48:51], 0 offen sc1")
        self(f"  ds_write_b32 v14, v15 offset:{L_CLR}")
        self("  s_mov_b64 exec, -1")
        self.stamp(6)
        self("  s_waitcnt vmcnt(1)")
        self.ln(X, xs, t)
        self.xn_rows(XL, XH, t[0], n=8, base="s64", mul=64)
        self.stamp(1)
        self("  v_lshlrev_b32 v12, 3, v0")
        self("  v_mov_b32 v14, 0")
        Lp = self.lab("cntpoll")
        Lpd = self.lab("cntpolld")
        self("  s_mov_b32 s57, 0")
        if self.poll_delay:
            self(f"  s_sleep {self.poll_delay}")
        self("  s_mov_b32 exec_hi, 0")
        self(f"{Lp}:")
        self("  buffer_load_dword v60, v12, s[48:51], 0 offen sc1")
        self("  s_add_u32 s57, s57, 1")
        self(f"  s_cmp_gt_u32 s57, {SPIN_MAX}")
        self("  s_waitcnt vmcnt(0)")
        self("  v_readlane_b32 s58, v60, s4")
        self(f"  s_cbranch_scc1 {Lpd}")
        self("  s_and_b32 s6, s58, 0xff")
        self("  s_cmp_eq_u32 s6, 8")
        self(f"  s_cbranch_scc0 {Lp}")
        self(f"{Lpd}:")
        self("  s_lshl_b32 s6, s63, 3")
        self("  s_cmp_eq_u32 s58, s6")
        if self.force_slow:
            self("  s_mov_b32 s59, 1")
        else:
            self("  s_cselect_b32 s59, 2, 1")
        self("  v_mov_b32 v13, s59")
        self("  v_and_b32 v61, 0xff, v60")
        self("  v_cmp_ne_u32 vcc, 8, v61")
        self("  s_mov_b64 exec, 1")
        self(f"  ds_write_b32 v14, v13 offset:{L_MODE}")
        self("  s_mov_b64 exec, -1")
        self("  s_mov_b64 s[54:55], vcc")
        self.stamp(3)

        def all_cleared():
            La = self.lab("allcnt")
            Lad = self.lab("allcntd")
            self("  s_cmp_eq_u64 s[54:55], 0")
            self(f"  s_cbranch_scc1 {Lad}")
            self("  s_mov_b32 s57, 0")
            self("  s_mov_b32 exec_hi, 0")
            self(f"{La}:")
            self("  buffer_load_dword v60, v12, s[48:51], 0 offen sc1")
            self("  s_add_u32 s57, s57, 1")
            self(f"  s_cmp_gt_u32 s57, {SPIN_MAX}")
            self("  s_waitcnt vmcnt(0)")
            self(f"  s_cbranch_scc1 {Lad}")
            self("  v_and_b32 v61, 0xff, v60")
            self("  v_cmp_ne_u32 vcc, 8, v61")
            self(f"  s_cbranch_vccnz {La}")
            self(f"{Lad}:")
            self("  v_mov_b32 v13, 1")
            self("  v_mov_b32 v14, 0")
            self("  s_mov_b64 exec, 1")
            self(f"  ds_write_b32 v14, v13 offset:{L_ALL}")
            self("  s_mov_b64 exec, -1")

        Lact = self.lab("ffn")
        self("  s_cmp_lg_u32 s66, 0")
        self(f"  s_cbranch_scc1 {Lact}")
        all_cleared()
        self("  s_waitcnt lgkmcnt(0)")
        self("  s_branch L_exit_stamped")
        self(f"{Lact}:")
        if self.bulkprio is not None:
            self(f"  s_setprio {self.bulkprio}")
        self("  s_mul_i32 s6, s64, 196608      ; 64*3072*m")
        self("  s_lshl_b32 s56, s65, 7")
        self("  s_add_u32 s6, s6, s56")
        self.srd(36, 20, "s6", 63 * 3072 + 128)
        self.srd(40, 22, "s6", 63 * 3072 + 128)
        self("  v_lshrrev_b32 v2, 3, v0")
        self("  v_and_b32 v3, 7, v0")
        self("  v_mul_u32_u24 v9, 1280, v2")
        self("  v_lshl_add_u32 v9, v3, 4, v9")
        self("  v_mul_u32_u24 v2, 3072, v2")
        self("  v_lshl_add_u32 v2, v3, 4, v2")
        WG, WU = 64, 96
        ntg = ' nt' if self.wnt & 2 else ''
        for i in range(8):
            self(f"  s_mov_b32 s6, {24576 * i}")
            self(f"  buffer_load_dwordx4 v[{WG + 4 * i}:{WG + 4 * i + 3}], v2, s[36:39], s6 offen{ntg}")
        for i in range(8):
            self(f"  s_mov_b32 s6, {24576 * i}")
            self(f"  buffer_load_dwordx4 v[{WU + 4 * i}:{WU + 4 * i + 3}], v2, s[40:43], s6 offen{ntg}")
        self("  s_mul_i32 s6, s65, 81920       ; 64*1280*j")
        self("  s_lshl_b32 s56, s64, 7")
        self("  s_add_u32 s6, s6, s56")
        self.srd(36, 24, "s6", 63 * 1280 + 128)
        GA = list(range(44, 52))
        UA = list(range(52, 60))
        self("  s_waitcnt vmcnt(8)")
        self.gemv64(WG, XL, XH, GA, 8)
        self("  s_waitcnt vmcnt(0)")
        self.stamp(2)
        self.gemv64(WU, XL, XH, UA, 8)
        WD = 64
        ntd = ' nt' if self.wnt & 4 else ''
        for n in range(8):
            self(f"  s_mov_b32 s6, {10240 * n}")
            self(f"  buffer_load_dwordx4 v[{WD + 4 * n}:{WD + 4 * n + 3}], v9, s[36:39], s6 offen{ntd}")
        self.treduce8(GA, t[1])
        self.treduce8(UA, t[2])
        self(f"  v_min_u32 v{t[1]}, -2, v{t[1]}")
        self(f"  v_min_u32 v{t[2]}, -2, v{t[2]}")
        self("  v_add_u32 v15, s67, v1")
        self(f"  buffer_store_dword v{t[1]}, v15, s[44:47], 0 offen sc1")
        self(f"  buffer_store_dword v{t[2]}, v15, s[44:47], 0 offen offset:256 sc1")
        all_cleared()
        self(f"  s_mul_i32 s6, s65, {10 * FSTR}")
        self(f"  s_add_u32 s6, s6, {FB_BASE}")
        self("  v_lshrrev_b32 v14, 5, v0")
        self(f"  v_mul_u32_u24 v14, {FSTR}, v14")
        self("  v_and_b32 v15, 31, v0")
        self("  v_lshl_add_u32 v14, v15, 4, v14")
        self("  v_add_u32 v14, s6, v14")
        self(f"  v_add_u32 v15, {6 * FSTR}, v14")
        G = 128

        def issueF():
            for u in range(5):
                a, o = (14, 2 * FSTR * u) if u < 3 else (15, 2 * FSTR * (u - 3))
                oo = f" offset:{o}" if o else ""
                self(f"  buffer_load_dwordx4 v[{G + 4 * u}:{G + 4 * u + 3}], v{a}, s[44:47], 0 offen{oo} sc1")
        self.poll_loop("pollF", issueF, range(G, G + 20), G + 20, sleep=4)
        self.stamp(4)
        for e in range(4):
            self(f"  v_add_f32 v{G + e}, v{G + e}, v{G + 4 + e}")
            self(f"  v_add_f32 v{G + 8 + e}, v{G + 8 + e}, v{G + 12 + e}")
        for e in range(4):
            self(f"  v_add_f32 v{G + e}, v{G + e}, v{G + 16 + e}")
        for e in range(4):
            self(f"  v_add_f32 v{G + e}, v{G + e}, v{G + 8 + e}")
        for e in range(4):
            self(f"  v_mov_b32 v{G + 4 + e}, v{G + e}")
        for e in range(4):
            self(f"  v_permlane32_swap_b32 v{G + e}, v{G + 4 + e}")
        for e in range(4):
            self(f"  v_add_f32 v{G + e}, v{G + e}, v{G + 4 + e}")
        for e in range(4):
            self(f"  v_mov_b32 v{G + 4 + e}, v{G + e}")
        for e in range(4):
            self(f"  v_permlane16_swap_b32 v{G + e}, v{G + 4 + e}")
        for e in range(4):
            self(f"  v_cvt_pk_bf16_f32 v{G + e}, v{G + e}, v{G + 4 + e}")
        for e in range(4):
            self(f"  v_lshlrev_b32 v{G + 4 + e}, 16, v{G + e}      ; gate")
            self(f"  v_and_b32 v{G + e}, 0xffff0000, v{G + e}    ; up")
        for e in range(4):
            self(f"  v_max_f32 v{G + 4 + e}, 0, v{G + 4 + e}")
        for e in range(4):
            self(f"  v_mul_f32 v{G + e}, v{G + 4 + e}, v{G + e}")
        for e in range(4):
            self(f"  v_cvt_pk_bf16_f32 v{G + e}, v{G + e}, v{G + e}    ; h")
        self("  v_and_b32 v18, 1, v0")
        self("  v_lshlrev_b32 v18, 5, v18")
        self("  v_bfe_u32 v19, v0, 1, 3")
        self("  v_add_u32 v18, v18, v19")
        self("  v_lshlrev_b32 v18, 1, v18")
        self("  s_mov_b32 exec_lo, 0xffff")
        self("  s_mov_b32 exec_hi, 0")
        for e in range(4):
            self(f"  ds_write_b16 v18, v{G + e} offset:{L_HB + 16 * e}")
        self("  s_mov_b64 exec, -1")
        self("  v_lshrrev_b32 v18, 3, v0")
        self("  v_lshlrev_b32 v18, 1, v18")
        self("  s_waitcnt lgkmcnt(0)")
        for i in range(8):
            self(f"  ds_read_u16 v{XL[i]}, v18 offset:{L_HB + 16 * i}")
        self("  v_bfe_u32 v19, v0, 1, 2")
        self(f"  v_mul_u32_u24 v19, {SDSTR}, v19")
        self("  v_and_b32 v20, 1, v0")
        self("  v_lshl_add_u32 v19, v20, 5, v19")
        self("  v_lshrrev_b32 v20, 3, v0")
        self("  v_lshl_add_u32 v19, v20, 2, v19")
        self("  v_add_u32 v19, s68, v19")
        self("  s_waitcnt lgkmcnt(0)")
        for i in range(8):
            self(f"  v_lshlrev_b32 v{XH[i]}, 16, v{XL[i]}")
        self("  s_waitcnt vmcnt(0)")
        self.gemv64(WD, XL, XH, GA, 8)
        self.treduce8(GA, t[1])
        self(f"  v_min_u32 v{t[1]}, -2, v{t[1]}")
        self(f"  buffer_store_dword v{t[1]}, v19, s[44:47], 0 offen sc1")
        self.stamp(5)
        self("  s_branch L_exit_stamped")

    def final_consumer(self):
        self("  v_mov_b32 v12, 0")
        self("  s_mov_b32 s55, s56")
        self.lds_spin("allc", 12, L_ALL, 13, target=None, sdst="s58", sleep=4)
        self("  s_mul_i32 s7, s5, 5")
        self("  s_add_u32 s55, s55, s7           ; cg")
        self(f"  s_mul_i32 s6, s55, {SDSTR}")
        self(f"  s_add_u32 s6, s6, {SD_BASE}")
        self("  v_lshlrev_b32 v14, 4, v0")
        self("  v_add_u32 v14, s6, v14")
        self(f"  v_add_u32 v13, {O_D3}, v14")
        self("  v_and_b32 v15, 3, v0")
        self("  v_lshlrev_b32 v15, 2, v15")
        self("  v_lshrrev_b32 v16, 5, v0")
        self("  v_lshl_add_u32 v15, v16, 1, v15")
        self("  v_bfe_u32 v16, v0, 4, 1")
        self("  v_add_u32 v15, v15, v16")
        self("  s_lshl_b32 s6, s55, 4")
        self("  v_add_u32 v15, s6, v15")
        self("  v_lshlrev_b32 v15, 1, v15")
        self("  buffer_load_ushort v17, v15, s[32:35], 0 offen")
        self.srd(40, 26, None, 1280)

        def red(base):
            for k in range(4):
                self(f"  v_add_f32 v{base + k}, v{base + k}, v{base + 4 + k}")
            self(f"  v_permlane32_swap_b32 v{base}, v{base + 2}")
            self(f"  v_permlane32_swap_b32 v{base + 1}, v{base + 3}")
            self(f"  v_add_f32 v{base}, v{base}, v{base + 2}")
            self(f"  v_add_f32 v{base + 1}, v{base + 1}, v{base + 3}")
            self(f"  v_permlane16_swap_b32 v{base}, v{base + 1}")
            self(f"  v_add_f32 v{base}, v{base}, v{base + 1}")
            self(f"  v_add_f32_dpp v{base}, v{base}, v{base} row_ror:4 row_mask:0xf bank_mask:0xf")
            self(f"  v_add_f32_dpp v{base}, v{base}, v{base} row_ror:8 row_mask:0xf bank_mask:0xf")

        for k in range(4):
            self(f"  v_mov_b32 v{28 + k}, 0")

        def issueD():
            self("  buffer_load_dwordx4 v[24:27], v13, s[44:47], 0 offen sc1")
            self("  s_mov_b32 exec_hi, 0")
            self("  buffer_load_dwordx4 v[28:31], v13, s[44:47], 0 offen offset:1024 sc1")
            self("  s_mov_b32 exec_hi, -1")
        self.poll_loop("pollD", issueD, range(24, 32), 32, sleep=8)
        red(24)
        self("  v_cvt_pk_bf16_f32 v24, v24, v24")
        self("  v_lshlrev_b32 v24, 16, v24")
        self(f"  v_mul_f32 v25, {f2h(-1.4426950408889634)}, v24")
        self("  v_exp_f32 v25, v25")
        self("  s_nop 0")
        self("  v_add_f32 v25, 1.0, v25")
        self("  v_rcp_f32 v25, v25")
        self("  s_nop 0")
        self("  v_mul_f32 v24, v24, v25")
        self("  v_cvt_pk_bf16_f32 v24, v24, v24")
        self("  v_lshlrev_b32 v18, 16, v24          ; g")
        self("  v_lshlrev_b32 v17, 16, v17          ; x")
        self.stamp(6)
        self("  s_barrier            ; B2")
        self("  s_barrier            ; B3")

        def finish():
            red(24)
            self("  v_cvt_pk_bf16_f32 v24, v24, v24")
            self("  v_lshlrev_b32 v24, 16, v24          ; s")
            self("  v_mul_f32 v24, v24, v18")
            self("  v_cvt_pk_bf16_f32 v24, v24, v24")
            self("  v_lshlrev_b32 v24, 16, v24")
            self("  v_add_f32 v24, v17, v24")
            self("  v_cvt_pk_bf16_f32 v24, v24, v24")
            self("  s_mov_b32 exec_lo, 0x000f000f")
            self("  s_mov_b32 exec_hi, 0x000f000f")
            self("  buffer_store_short v24, v15, s[40:43], 0 offen")
            self("  s_mov_b64 exec, -1")
            self.stamp(7)
            self("  s_branch L_exit_stamped")

        Lbig = self.lab("big")
        self("  s_cmp_ge_u32 s55, 32")
        self(f"  s_cbranch_scc1 {Lbig}")

        def issueS():
            self("  buffer_load_dwordx4 v[24:27], v14, s[44:47], 0 offen sc1")
            self("  buffer_load_dwordx4 v[28:31], v14, s[44:47], 0 offen offset:1024 sc1")
        self.poll_loop("pollS", issueS, range(24, 32), 32)
        finish()
        self(f"{Lbig}:")
        self("  v_add_u32 v13, 4096, v14")

        def issueS6():
            for k in range(4):
                o = f" offset:{1024 * k}" if k else ""
                self(f"  buffer_load_dwordx4 v[{24 + 4 * k}:{27 + 4 * k}], v14, s[44:47], 0 offen{o} sc1")
            self("  buffer_load_dwordx4 v[40:43], v13, s[44:47], 0 offen sc1")
            self("  buffer_load_dwordx4 v[44:47], v13, s[44:47], 0 offen offset:1024 sc1")
        self.poll_loop("pollS6", issueS6, range(24, 48), 48)
        for k in range(8):
            self(f"  v_add_f32 v{24 + k}, v{24 + k}, v{32 + k}")
        for k in range(8):
            self(f"  v_add_f32 v{24 + k}, v{24 + k}, v{40 + k}")
        finish()

    def epilogue(self):
        self("L_exit_stamped:")
        if self.stamps:
            self.srd(44, 30, None, WS_SIZE)
            self.stamps_out()
        self("L_end:")
        self("  s_endpgm")
        self(f""".section .rodata,"a"
.p2align 6
.amdhsa_kernel {KNAME}
  .amdhsa_next_free_vgpr 168
  .amdhsa_next_free_sgpr 102
  .amdhsa_accum_offset 168
  .amdhsa_group_segment_fixed_size 0
  .amdhsa_kernarg_size 96
  .amdhsa_user_sgpr_count 2
  .amdhsa_user_sgpr_kernarg_segment_ptr 1
  .amdhsa_system_sgpr_workgroup_id_x 1
.end_amdhsa_kernel""")

    def build(self):
        self.prologue()
        self.stream()
        self.helper()
        self.epilogue()
        return fix("\n".join(self.lines) + "\n", verbose=True)


if __name__ == "__main__":
    import argparse
    ap = argparse.ArgumentParser()
    ap.add_argument("-o", default="k.s")
    ap.add_argument("--D", type=int, default=5)
    ap.add_argument("--E", type=int, default=5)
    ap.add_argument("--SB", type=int, default=19)
    ap.add_argument("--stamps", action="store_true")
    ap.add_argument("--slow", action="store_true")
    ap.add_argument("--b0post", action="store_true")
    ap.add_argument("--prio", type=int, default=3)
    ap.add_argument("--dbgst", action="store_true")
    ap.add_argument("--fine", action="store_true")
    ap.add_argument("--ds", default="", help="D schedule: slot:D,slot:D")
    ap.add_argument("--qkn", type=int, default=2)
    ap.add_argument("--wot", type=int, default=0)
    ap.add_argument("--npoll", type=int, default=2)
    ap.add_argument("--bp", type=int, default=None)
    ap.add_argument("--ilv", action="store_true")
    ap.add_argument("--prog", default="")
    ap.add_argument("--latepub", action="store_true")
    ap.add_argument("--pdelay", type=int, default=0)
    ap.add_argument("--adapt", default="", help="lo:hi slots with optional tighter throttle")
    ap.add_argument("--nocnt", type=int, default=0, help="diagnosis only: 1 = no atomic, no polls; 2 = atomic but no polls")
    ap.add_argument("--pgap", type=int, default=8)
    ap.add_argument("--hwid", action="store_true")
    ap.add_argument("--map2", action="store_true")
    ap.add_argument("--b0late", type=int, default=0)
    ap.add_argument("--kvnt", type=int, default=3, help="nt hint bits: 1 K, 2 V")
    ap.add_argument("--wnt", type=int, default=7, help="nt hint bits: 1 wo, 2 gate/up, 4 down")
    ap.add_argument("--touch", type=int, default=0, help="1: V, 2: wo, 4: FFN weights early page touch")
    ap.add_argument("--rot", default="", help="a:b:w block rotation = h*a + c*b + wave*w")
    a = ap.parse_args()
    g = G(D=a.D, E=a.E, SB=a.SB, stamps=a.stamps, force_slow=a.slow, b0pre=not a.b0post, prio=a.prio, dbgst=a.dbgst, fine=a.fine,
          dsched=[tuple(int(v) for v in p.split(':')) for p in a.ds.split(',') if p], qk_per_slot=a.qkn, wo_throttle=a.wot, npoll=a.npoll, poll_gap=a.pgap, bulkprio=a.bp, ilv=a.ilv, prog=[int(v) for v in a.prog.split(',') if v], early_pub=not a.latepub, poll_delay=a.pdelay, nocnt=a.nocnt, adapt=tuple(int(v) for v in a.adapt.split(':')) if a.adapt else None, hwid=a.hwid, map2=a.map2, b0late=a.b0late, kvnt=a.kvnt, wnt=a.wnt, touch=a.touch, rot=tuple(int(v) for v in a.rot.split(':')) if a.rot else None)
    open(a.o, "w").write(g.build())
```

```python
import sys, struct
sys.path.insert(0, "dev")
from hz import fix

KNAME = "recurrent_scan__sliding_block_cached__glu_gated_reglu__decode_kernel"


def f2h(x):
    return "0x%08x" % struct.unpack("<I", struct.pack("<f", x))[0]


LOG2E = f2h(1.4426950408889634)
SCALE = f2h(192 ** -0.5)
INV640 = f2h(1.0 / 640)
EPS = f2h(1e-5)

BOX = 1280
GBOX = 8 * BOX
O_H1 = 0
O_O2 = 768
O_LSE = 1152
FB_BASE = 327680
FSTR = 768
SD_BASE = 524288
SDSTR = 8448
O_D3 = 6144
OOB = 0x70000000
STAMP_BASE = 1 << 20
WS_SIZE = 2 << 20

L_Q = 0
L_MODE = 384
L_CNT = 388
L_QF = 392
L_CLR = 396
L_M = 400
L_L = 432
L_XN = 1280
L_HB = 2560
L_ALL = 464
L_WO = 4096
L_WO2 = L_WO + 192 * 128
L_PART = L_WO2 + 64 * 128
L_A = L_PART + 8 * 768
LDS_BYTES = L_A + 8 * 400

SPIN_MAX = 30000


class G:
    def __init__(self, D=5, E=5, SB=19, stamps=False, force_slow=False, wo_slot=32, b0pre=True, prio=3, dbgst=False, fine=False, dsched=(), qk_per_slot=2, wo_throttle=0, npoll=2, poll_gap=8, bulkprio=None, ilv=False, prog=(), early_pub=True, poll_delay=0, nocnt=0, adapt=None, hwid=False, map2=False, rot=None, touch=0, wnt=7, kvnt=3, b0late=0, kvm=None):
        self.kvm = kvm or ((196608, 1536, 12288) if ilv else (196608, 24576, 1536))
        self.b0late = b0late
        self.kvnt = kvnt
        self.wnt = wnt
        self.touch = touch
        self.map2 = map2
        self.rot = rot
        self.hwid = hwid
        self.adapt = adapt
        self.nocnt = nocnt
        self.early_pub = early_pub
        self.poll_delay = poll_delay
        self.prog = list(prog)
        self.ilv = ilv
        self.bulkprio = bulkprio
        self.wo_throttle = wo_throttle
        self.npoll = npoll
        self.poll_gap = poll_gap
        self.dsched = list(dsched)
        self.qk_per_slot = qk_per_slot
        self.dbgst = dbgst
        self.fine = fine
        self.in_stream = False
        self.prio = prio
        self.b0pre = b0pre
        self.D, self.E, self.SB = D, E, SB
        self.stamps = stamps
        self.force_slow = force_slow
        self.wo_slot = wo_slot
        self.lines = []
        self.uid = 0
        self.vm = []

    def Dof(self, i):
        for (slot, d) in reversed(self.dsched):
            if i >= slot:
                return d
        return self.D

    def __call__(self, s=""):
        for l in s.split("\n"):
            self.lines.append(l)

    def lab(self, base):
        self.uid += 1
        return f"L_{base}_{self.uid}"

    def vm_reset(self):
        self.vm = []

    def vm_issue(self, tag):
        self.vm.append(tag)

    def vm_wait(self, tag):
        idx = [i for i, t in enumerate(self.vm) if t == tag]
        if not idx:
            return
        last = idx[-1]
        n = len(self.vm) - 1 - last
        assert n <= 63
        self(f"  s_waitcnt vmcnt({n})")
        self.vm = self.vm[last + 1:]

    def stamp(self, i):
        if self.prog and self.in_stream and i != 0:
            return
        if self.stamps and not (self.fine and self.in_stream and i in (1, 2, 3, 5, 6, 7)):
            self(f"  s_memrealtime s[{70 + 2 * i}:{71 + 2 * i}]")

    def fstamp(self, i, clk=False):
        if self.stamps and self.fine:
            op = "s_memtime" if clk else "s_memrealtime"
            self(f"  {op} s[{70 + 2 * i}:{71 + 2 * i}]")

    def stamps_out(self):
        if not self.stamps:
            return
        self("  s_waitcnt lgkmcnt(0) vmcnt(0)")
        self("  s_mul_i32 s6, s2, 12")
        self("  s_add_u32 s6, s6, s3")
        self("  s_lshl_b32 s6, s6, 6")
        self(f"  s_add_u32 s6, s6, {STAMP_BASE}")
        self("  v_mov_b32 v2, s6")
        for i in range(12):
            self(f"  v_mov_b32 v{4 + i}, s{70 + 2 * i}")
        self("  s_mov_b64 exec, 1")
        self("  buffer_store_dwordx4 v[4:7], v2, s[44:47], 0 offen")
        self("  buffer_store_dwordx4 v[8:11], v2, s[44:47], 0 offen offset:16")
        self("  buffer_store_dwordx4 v[12:15], v2, s[44:47], 0 offen offset:32")
        if self.dbgst:
            self("  s_load_dwordx2 s[6:7], s[0:1], 80")
            self("  s_waitcnt lgkmcnt(0)")
            self.srd(48, 6, None, 256)
            for (wg, wv, lst) in ((0, 0, ((0, 1), (2, 3), (4, 5))), (8, 9, ((0, 7), (6, 9), (7, 11))), (255, 0, ((0, 13), (4, 15)))):
                Ls = self.lab("dbgskip")
                self(f"  s_cmp_eq_u32 s2, {wg}")
                self(f"  s_cbranch_scc0 {Ls}")
                self(f"  s_cmp_eq_u32 s3, {wv}")
                self(f"  s_cbranch_scc0 {Ls}")
                for (st, dw) in lst:
                    self(f"  v_mov_b32 v2, {4 * dw}")
                    self(f"  buffer_store_dword v{4 + st}, v2, s[48:51], 0 offen")
                self(f"{Ls}:")
        self("  s_mov_b64 exec, -1")

    def srd(self, s, base_lo, off, nrec):
        if off is None:
            self(f"  s_mov_b32 s{s}, s{base_lo}")
            self(f"  s_mov_b32 s{s + 1}, s{base_lo + 1}")
        else:
            self(f"  s_add_u32 s{s}, s{base_lo}, {off}")
            self(f"  s_addc_u32 s{s + 1}, s{base_lo + 1}, 0")
        self(f"  s_mov_b32 s{s + 2}, {nrec}")
        self(f"  s_mov_b32 s{s + 3}, 0x20000")

    def allreduce(self, op, v, t):
        for r in (1, 2, 4, 8):
            self(f"  {op}_dpp v{v}, v{v}, v{v} row_ror:{r} row_mask:0xf bank_mask:0xf")
        self(f"  v_mov_b32 v{t}, v{v}")
        self(f"  v_permlane16_swap_b32 v{v}, v{t}")
        self(f"  {op} v{v}, v{v}, v{t}")
        self(f"  v_mov_b32 v{t}, v{v}")
        self(f"  v_permlane32_swap_b32 v{v}, v{t}")
        self(f"  {op} v{v}, v{v}, v{t}")

    def cross_rows(self, op, v, t):
        self(f"  v_mov_b32 v{t}, v{v}")
        self(f"  v_permlane16_swap_b32 v{v}, v{t}")
        self(f"  {op} v{v}, v{v}, v{t}")
        self(f"  v_mov_b32 v{t}, v{v}")
        self(f"  v_permlane32_swap_b32 v{v}, v{t}")
        self(f"  {op} v{v}, v{v}, v{t}")

    def treduce8(self, A, T):
        for a in range(4):
            self(f"  v_permlane32_swap_b32 v{A[a]}, v{A[a + 4]}")
        for a in range(4):
            self(f"  v_add_f32 v{A[a]}, v{A[a]}, v{A[a + 4]}")
        for a in range(2):
            self(f"  v_permlane16_swap_b32 v{A[a]}, v{A[a + 2]}")
        for a in range(2):
            self(f"  v_add_f32 v{A[a]}, v{A[a]}, v{A[a + 2]}")
        self(f"  v_add_f32_dpp v{T}, v{A[0]}, v{A[0]} row_ror:8 row_mask:0xf bank_mask:0x3")
        self(f"  v_add_f32_dpp v{T}, v{A[1]}, v{A[1]} row_ror:8 row_mask:0xf bank_mask:0xc")

    def treduce4rows(self, A, out_pairs=None):
        n = len(A) // 4
        for k in range(n):
            a = A[4 * k:4 * k + 4]
            self(f"  v_permlane32_swap_b32 v{a[0]}, v{a[2]}")
            self(f"  v_permlane32_swap_b32 v{a[1]}, v{a[3]}")
        for k in range(n):
            a = A[4 * k:4 * k + 4]
            self(f"  v_add_f32 v{a[0]}, v{a[0]}, v{a[2]}")
            self(f"  v_add_f32 v{a[1]}, v{a[1]}, v{a[3]}")
        for k in range(n):
            a = A[4 * k:4 * k + 4]
            self(f"  v_permlane16_swap_b32 v{a[0]}, v{a[1]}")
        for k in range(n):
            a = A[4 * k:4 * k + 4]
            self(f"  v_add_f32 v{a[0]}, v{a[0]}, v{a[1]}")
        return [A[4 * k] for k in range(n)]

    def sentinel_check(self, regs, t):
        regs = list(regs)
        if len(regs) == 1:
            self(f"  v_cmp_eq_u32 vcc, -1, v{regs[0]}")
            return
        if len(regs) == 2:
            self(f"  v_max_u32 v{t}, v{regs[0]}, v{regs[1]}")
            regs = []
        else:
            self(f"  v_max3_u32 v{t}, v{regs[0]}, v{regs[1]}, v{regs[2]}")
            regs = regs[3:]
        while regs:
            if len(regs) >= 2:
                self(f"  v_max3_u32 v{t}, v{t}, v{regs[0]}, v{regs[1]}")
                regs = regs[2:]
            else:
                self(f"  v_max_u32 v{t}, v{t}, v{regs[0]}")
                regs = regs[1:]
        self(f"  v_cmp_eq_u32 vcc, -1, v{t}")

    def poll_loop(self, name, issue, regs, t, sleep=0):
        L = self.lab(name)
        Ld = self.lab(name + "d")
        self("  s_mov_b32 s57, 0")
        self(f"{L}:")
        issue()
        self("  s_waitcnt vmcnt(0)")
        self.sentinel_check(regs, t)
        self("  s_add_u32 s57, s57, 1")
        self(f"  s_cmp_gt_u32 s57, {SPIN_MAX}")
        self(f"  s_cbranch_scc1 {Ld}")
        if sleep:
            self(f"  s_cbranch_vccz {Ld}")
            self(f"  s_sleep {sleep}")
            self(f"  s_branch {L}")
        else:
            self(f"  s_cbranch_vccnz {L}")
        self(f"{Ld}:")

    def lds_spin(self, name, addr_v, off, t, target=None, sdst="s58", sleep=1):
        L = self.lab(name)
        Ld = self.lab(name + "d")
        self("  s_mov_b32 s57, 0")
        self(f"{L}:")
        self(f"  ds_read_b32 v{t}, v{addr_v} offset:{off}")
        self("  s_waitcnt lgkmcnt(0)")
        self(f"  v_readfirstlane_b32 {sdst}, v{t}")
        self("  s_add_u32 s57, s57, 1")
        self(f"  s_cmp_gt_u32 s57, {SPIN_MAX * 8}")
        self(f"  s_cbranch_scc1 {Ld}")
        if target is None:
            self(f"  s_cmp_lg_u32 {sdst}, 0")
        else:
            self(f"  s_cmp_eq_u32 {sdst}, {target}")
        self(f"  s_cbranch_scc1 {Ld}")
        if sleep:
            self(f"  s_sleep {sleep}")
        self(f"  s_branch {L}")
        self(f"{Ld}:")

    def mode_store(self, instr):
        Lf = self.lab("fast")
        Lj = self.lab("join")
        self("  s_cmp_eq_u32 s59, 2")
        self(f"  s_cbranch_scc1 {Lf}")
        for i in instr:
            self(f"  {i} sc1")
        self(f"  s_branch {Lj}")
        self(f"{Lf}:")
        for i in instr:
            self(f"  {i}")
        self(f"{Lj}:")

    def prologue(self):
        self(f"""; Fused decode step: LN -> q -> sliding-window attention (split over 8 WGs per head) -> wo,
; @launch grid=(256,1,1) block=(768,1,1) lds={LDS_BYTES}
.amdgcn_target "amdgcn-amd-amdhsa--gfx950"
.text
.globl {KNAME}
.p2align 8
.type {KNAME},@function
{KNAME}:
  s_cmp_ge_u32 s2, 256
  s_cbranch_scc1 L_end""")
        self.stamp(0)
        if self.hwid:
            self("  s_getreg_b32 s88, hwreg(HW_REG_HW_ID)")
            self("  s_getreg_b32 s90, hwreg(HW_REG_XCC_ID)")
        self(f"""  s_load_dwordx16 s[8:23], s[0:1], 0
  s_load_dwordx8 s[24:31], s[0:1], 64
  v_readfirstlane_b32 s3, v0
  v_and_b32 v0, 63, v0
  s_lshr_b32 s3, s3, 6
  s_and_b32 s4, s2, 7
  s_lshl_b32 s4, s4, 2""")
        if self.map2:
            self("""  s_lshr_b32 s5, s2, 6
  s_add_u32 s4, s4, s5          ; h
  s_lshr_b32 s5, s2, 3
  s_and_b32 s5, s5, 7           ; c""")
        else:
            self("""  s_lshr_b32 s5, s2, 3
  s_and_b32 s5, s5, 3
  s_add_u32 s4, s4, s5          ; h
  s_lshr_b32 s5, s2, 5          ; c""")
        self("""  s_cmp_ge_u32 s3, 8
  s_cbranch_scc1 L_helper""")

    def stream(self):
        self.in_stream = True
        D, E, SB = self.D, self.E, self.SB
        Q = list(range(4, 10))
        A = list(range(10, 22))
        P = list(range(22, 26))
        T = [26, 27]
        U = list(range(28, 32))
        PL = list(range(32, 36))
        PH = list(range(36, 40))
        t0, t1 = 40, 41
        RING = 42
        nbuf = 16 + E

        def kbuf(b):
            return RING + 6 * b

        def vbuf(j):
            return RING + 6 * (16 + j) if j < E else RING + 6 * (j - E)

        self(f"""  ; ---------------- stream waves ----------------
  s_mul_i32 s6, s4, 12582912
  s_mul_i32 s7, s5, {self.kvm[0]}
  s_add_u32 s6, s6, s7
  s_add_u32 s6, s6, {28672 * 384}
  s_mul_i32 s7, s3, {self.kvm[1]}
  v_lshrrev_b32 v3, 4, v0
  v_and_b32 v2, 15, v0
  v_mul_u32_u24 v3, 384, v3
  v_add_u32 v3, s7, v3
  v_lshl_add_u32 v1, v2, 4, v3      ; x4 offset
  v_lshl_add_u32 v2, v2, 3, v3
  v_add_u32 v2, 256, v2             ; x2 offset""")
        for k in range(1, 6):
            self(f"  s_mov_b32 s{59 + k}, {4608 * k}")
        if self.rot:
            self(f"  s_mul_i32 s66, s4, {self.rot[0]}")
            self(f"  s_mul_i32 s7, s5, {self.rot[1]}")
            self("  s_add_u32 s66, s66, s7")
            self(f"  s_mul_i32 s7, s3, {self.rot[2]}")
            self("  s_add_u32 s66, s66, s7")
        if self.adapt:
            self("  s_and_b32 s65, s2, 1")
        self("  s_waitcnt lgkmcnt(0)")
        nrec = 1572864 - 7 * self.kvm[0]
        self.srd(32, 10, "s6", nrec)
        self.srd(36, 12, "s6", nrec)
        self.vm_reset()

        def issue(i):
            t, b = (0, i) if i < 16 else (1, i - 16)
            srd = "s[32:35]" if t == 0 else "s[36:39]"
            r = kbuf(b) if t == 0 else vbuf(b)
            so = "0" if b < 3 else f"s{59 + b // 3}"
            imm = 1536 * (b % 3)
            if self.ilv:
                imm = 0
                so = "0" if b == 0 else "s60"
                if self.rot:
                    so = "s60"
                    self(f"  s_add_u32 s60, s66, {b}")
                    self("  s_and_b32 s60, s60, 15")
                    self(f"  s_mul_i32 s60, s60, {self.kvm[2]}")
                elif b:
                    self(f"  s_mov_b32 s60, {self.kvm[2] * b}")
            o = f" offset:{imm}" if imm else ""
            nt = " nt" if self.kvnt & (1 << t) else ""
            self(f"  buffer_load_dwordx4 v[{r}:{r + 3}], v1, {srd}, {so} offen{o}{nt}")
            self(f"  buffer_load_dwordx2 v[{r + 4}:{r + 5}], v2, {srd}, {so} offen{o}{nt}")
            self.vm_issue(("L", i))
            self.vm_issue(("L", i))

        def qk_group(g):
            bs = [kbuf(4 * g + k) for k in range(4)]
            for i in range(6):
                for k in range(4):
                    c = "0" if i == 0 else f"v{P[k]}"
                    self(f"  v_dot2_f32_bf16 v{P[k]}, v{bs[k] + i}, v{Q[i]}, {c}")
            self(f"  v_add_f32_dpp v{T[0]}, v{P[0]}, v{P[0]} row_ror:8 row_mask:0xf bank_mask:0x3")
            self(f"  v_add_f32_dpp v{T[1]}, v{P[1]}, v{P[1]} row_ror:8 row_mask:0xf bank_mask:0x3")
            self(f"  v_add_f32_dpp v{T[0]}, v{P[2]}, v{P[2]} row_ror:8 row_mask:0xf bank_mask:0xc")
            self(f"  v_add_f32_dpp v{T[1]}, v{P[3]}, v{P[3]} row_ror:8 row_mask:0xf bank_mask:0xc")
            self(f"  v_add_f32_dpp v{U[g]}, v{T[0]}, v{T[0]} row_shl:4 row_mask:0xf bank_mask:0x5")
            self(f"  v_add_f32_dpp v{U[g]}, v{T[1]}, v{T[1]} row_shr:4 row_mask:0xf bank_mask:0xa")
            self(f"  v_add_f32_dpp v{U[g]}, v{U[g]}, v{U[g]} quad_perm:[1,0,3,2] row_mask:0xf bank_mask:0xf")
            self(f"  v_add_f32_dpp v{U[g]}, v{U[g]}, v{U[g]} quad_perm:[2,3,0,1] row_mask:0xf bank_mask:0xf")

        def softmax():
            self(f"  v_cvt_pk_bf16_f32 v{P[0]}, v{U[0]}, v{U[1]}")
            self(f"  v_cvt_pk_bf16_f32 v{P[1]}, v{U[2]}, v{U[3]}")
            self(f"  v_lshlrev_b32 v{U[0]}, 16, v{P[0]}")
            self(f"  v_and_b32 v{U[1]}, 0xffff0000, v{P[0]}")
            self(f"  v_lshlrev_b32 v{U[2]}, 16, v{P[1]}")
            self(f"  v_and_b32 v{U[3]}, 0xffff0000, v{P[1]}")
            for g in range(4):
                self(f"  v_mul_f32 v{U[g]}, {SCALE}, v{U[g]}")
            self(f"  v_cvt_pk_bf16_f32 v{P[0]}, v{U[0]}, v{U[1]}")
            self(f"  v_cvt_pk_bf16_f32 v{P[1]}, v{U[2]}, v{U[3]}")
            self(f"  v_lshlrev_b32 v{U[0]}, 16, v{P[0]}")
            self(f"  v_and_b32 v{U[1]}, 0xffff0000, v{P[0]}")
            self(f"  v_lshlrev_b32 v{U[2]}, 16, v{P[1]}")
            self(f"  v_and_b32 v{U[3]}, 0xffff0000, v{P[1]}")
            self(f"  v_max3_f32 v{t0}, v{U[0]}, v{U[1]}, v{U[2]}")
            self(f"  v_max_f32 v{t0}, v{t0}, v{U[3]}")
            self(f"  v_max_f32_dpp v{t0}, v{t0}, v{t0} row_ror:4 row_mask:0xf bank_mask:0xf")
            self(f"  v_max_f32_dpp v{t0}, v{t0}, v{t0} row_ror:8 row_mask:0xf bank_mask:0xf")
            self.cross_rows("v_max_f32", t0, t1)
            for g in range(4):
                self(f"  v_sub_f32 v{U[g]}, v{U[g]}, v{t0}")
            for g in range(4):
                self(f"  v_mul_f32 v{U[g]}, {LOG2E}, v{U[g]}")
            for g in range(4):
                self(f"  v_exp_f32 v{U[g]}, v{U[g]}")
            self("  s_nop 0")
            for g in range(4):
                self(f"  v_cvt_pk_bf16_f32 v{PL[g]}, v{U[g]}, 0")
                self(f"  v_cvt_pk_bf16_f32 v{PH[g]}, 0, v{U[g]}")
            self(f"  v_add_f32 v{T[0]}, v{U[0]}, v{U[1]}")
            self(f"  v_add_f32 v{T[1]}, v{U[2]}, v{U[3]}")
            self(f"  v_add_f32 v{T[0]}, v{T[0]}, v{T[1]}")
            self(f"  v_add_f32_dpp v{T[0]}, v{T[0]}, v{T[0]} row_ror:4 row_mask:0xf bank_mask:0xf")
            self(f"  v_add_f32_dpp v{T[0]}, v{T[0]}, v{T[0]} row_ror:8 row_mask:0xf bank_mask:0xf")
            self.cross_rows("v_add_f32", T[0], t1)
            self(f"  s_lshl_b32 s6, s3, 2")
            self(f"  v_mov_b32 v{t1}, s6")
            self(f"  v_mov_b32 v{T[1]}, 1")
            self(f"  v_mov_b32 v{P[0]}, 0")
            self("  s_mov_b64 exec, 1")
            self(f"  ds_write_b32 v{t1}, v{t0} offset:{L_M}")
            self(f"  ds_write_b32 v{t1}, v{T[0]} offset:{L_L}")
            self("  s_waitcnt lgkmcnt(0)")
            self(f"  ds_add_u32 v{P[0]}, v{T[1]} offset:{L_CNT}")
            self("  s_mov_b64 exec, -1")
            for a in A:
                self(f"  v_mov_b32 v{a}, 0")

        def pv(j):
            g, k = j // 4, j % 4
            r = vbuf(j)
            for i in range(6):
                self(f"  v_dot2c_f32_bf16_dpp v{A[2 * i]}, v{PL[g]}, v{r + i} row_newbcast:{4 * k} row_mask:0xf bank_mask:0xf")
                self(f"  v_dot2c_f32_bf16_dpp v{A[2 * i + 1]}, v{PH[g]}, v{r + i} row_newbcast:{4 * k} row_mask:0xf bank_mask:0xf")

        qk_next = 0
        sm_done = False
        pv_next = 0
        landed = -1
        MO, FF, PA0, PA1 = 4, 5, 6, 7

        if self.touch & 1:
            self(f"  s_mul_i32 s7, s3, 24576")
            self(f"  v_mov_b32 v{t1}, s7")
            self("  s_mov_b64 exec, 1")
            self(f"  buffer_load_dword v{t0}, v{t1}, s[36:39], 0 offen")
            self("  s_mov_b64 exec, -1")
            self.vm_issue(("T", 0))
        if not self.b0late:
            self("  s_barrier            ; B0")
        for i in range(32):
            Di = self.Dof(i)
            if i - Di > landed:
                self.vm_wait(("L", i - Di))
                landed = i - Di
            if self.adapt and self.adapt[0] <= i < self.adapt[1]:
                tag = ("L", i - (Di - 1))
                idx = [k for k, tg in enumerate(self.vm) if tg == tag]
                if idx:
                    n = len(self.vm) - 1 - idx[-1]
                    Ls = self.lab("deep")
                    self("  s_cmp_lg_u32 s65, 0")
                    self(f"  s_cbranch_scc1 {Ls}")
                    self(f"  s_waitcnt vmcnt({n})")
                    self(f"{Ls}:")
            if i >= 16 and (i - 16) >= E:
                need_g = (i - 16 - E) // 4
                assert qk_next > need_g, f"schedule: V{i - 16} needs QK group {need_g} (slot {i})"
            if self.prog and self.stamps and i in self.prog:
                k = 1 + self.prog.index(i)
                self(f"  s_memrealtime s[{70 + 2 * k}:{71 + 2 * k}]")
            issue(i)
            if self.b0late and i == self.b0late - 1:
                self("  s_barrier            ; B0")
            if i == SB:
                self.stamp(1)
                self(f"  v_mov_b32 v{t1}, 0")
                self.lds_spin("qf", t1, L_QF, t0, target=3, sdst="s58", sleep=1)
                self.stamp(2)
                self(f"  v_and_b32 v{t0}, 15, v0")
                self(f"  v_lshlrev_b32 v{t1}, 4, v{t0}")
                self(f"  v_lshlrev_b32 v{t0}, 3, v{t0}")
                self(f"  ds_read_b128 v[{Q[0]}:{Q[3]}], v{t1} offset:{L_Q}")
                self(f"  ds_read_b64 v[{Q[4]}:{Q[5]}], v{t0} offset:{L_Q + 256}")
                self("  s_waitcnt lgkmcnt(0)")
            if i >= SB:
                n = 0
                while qk_next < 4 and 4 * qk_next + 3 <= landed and n < self.qk_per_slot:
                    qk_group(qk_next)
                    qk_next += 1
                    n += 1
                if qk_next == 4 and not sm_done:
                    softmax()
                    self(f"  v_mov_b32 v{MO}, v{t0}")
                    sm_done = True
                    self.stamp(3)
                elif sm_done:
                    n = 0
                    while pv_next < 16 and 16 + pv_next <= landed and n < 3:
                        pv(pv_next)
                        pv_next += 1
                        n += 1
        assert sm_done
        self(f"  v_mov_b32 v{t1}, 0")
        self.lds_spin("cnt8", t1, L_CNT, t0, target=8, sdst="s58", sleep=1)
        self(f"  v_and_b32 v{t1}, 7, v0")
        self(f"  v_lshlrev_b32 v{t1}, 2, v{t1}")
        self(f"  ds_read_b32 v{t0}, v{t1} offset:{L_M}")
        self(f"  v_and_b32 v{P[0]}, 15, v0")
        self(f"  v_lshrrev_b32 v{P[1]}, 4, v0")
        self(f"  v_lshlrev_b32 v{P[1]}, 2, v{P[1]}")
        self("  s_mul_i32 s6, s3, 768")
        self(f"  v_add_u32 v{P[1]}, s6, v{P[1]}")
        self(f"  v_lshl_add_u32 v{PA0}, v{P[0]}, 5, v{P[1]}")
        self(f"  v_lshl_add_u32 v{PA1}, v{P[0]}, 4, v{P[1]}")
        self("  s_waitcnt lgkmcnt(0)")
        for r in (1, 2, 4):
            self(f"  v_max_f32_dpp v{t0}, v{t0}, v{t0} row_ror:{r} row_mask:0xf bank_mask:0xf")
        self(f"  v_sub_f32 v{FF}, v{MO}, v{t0}")
        self(f"  v_mul_f32 v{FF}, {LOG2E}, v{FF}")
        self(f"  v_exp_f32 v{FF}, v{FF}")
        for j in range(pv_next, 16):
            self.vm_wait(("L", 16 + j))
            if j == 15:
                self.stamp(4)
                if self.prog and self.stamps:
                    self(f"  s_memrealtime s[92:93]")
            pv(j)
        R = self.treduce4rows(A)
        for r in R:
            self(f"  v_mul_f32 v{r}, v{FF}, v{r}")
        self(f"  ds_write_b32 v{PA0}, v{R[0]} offset:{L_PART}")
        self(f"  ds_write_b32 v{PA0}, v{R[1]} offset:{L_PART + 16}")
        self(f"  ds_write_b32 v{PA1}, v{R[2]} offset:{L_PART + 512}")
        Bf = RING
        Af = RING + 24
        Dd = RING + 48
        aB, aA, aS = RING + 52, RING + 53, RING + 54
        self(f"  v_lshrrev_b32 v{P[0]}, 4, v0          ; g")
        self(f"  v_bfe_u32 v{P[2]}, v0, 2, 2           ; r4")
        self(f"  v_and_b32 v{P[3]}, 3, v0              ; cq")
        self(f"  v_lshl_add_u32 v{aB}, v{P[0]}, 3, v{P[2]}   ; 8g + r4")
        self(f"  v_lshlrev_b32 v{aB}, 7, v{aB}")
        self("  s_and_b32 s6, s3, 3           ; tile")
        self("  s_lshl_b32 s7, s6, 1")
        self(f"  v_lshrrev_b32 v{aA}, 1, v{P[3]}")
        self(f"  v_add_u32 v{aA}, s7, v{aA}")
        self(f"  v_lshlrev_b32 v{aS}, 1, v{P[2]}")
        self(f"  v_xor_b32 v{aA}, v{aA}, v{aS}")
        self(f"  v_lshl_add_u32 v{aB}, v{aA}, 4, v{aB}")
        self(f"  v_and_b32 v{aA}, 1, v{P[3]}")
        self(f"  v_lshl_add_u32 v{aB}, v{aA}, 3, v{aB}")
        self(f"  v_and_b32 v{aA}, 7, v0")
        self(f"  v_mul_u32_u24 v{aA}, 400, v{aA}")
        self(f"  v_lshl_add_u32 v{aA}, v{P[0]}, 4, v{aA}")
        self(f"  v_lshlrev_b32 v{aS}, 2, v0")
        for d in range(4):
            self(f"  v_mov_b32 v{Dd + d}, 0")
        self.srd(44, 30, None, WS_SIZE)
        self("  s_waitcnt lgkmcnt(0)")
        self.stamp(5)
        self("  s_cmp_ge_u32 s3, 4")
        self("  s_cbranch_scc1 L_tail_extra")

        def tail_part(nk, wo_off):
            self("  s_barrier")
            for k in range(nk):
                self(f"  ds_read_b64_tr_b16 v[{Bf + 4 * k}:{Bf + 4 * k + 1}], v{aB} offset:{wo_off + 4096 * k}")
                self(f"  ds_read_b64_tr_b16 v[{Bf + 4 * k + 2}:{Bf + 4 * k + 3}], v{aB} offset:{wo_off + 4096 * k + 512}")
            self(f"  v_add_u32 v{aS}, s6, v{aS}")
            self("  s_waitcnt lgkmcnt(0)")
            self("  s_barrier")
            for k in range(nk):
                self(f"  ds_read_b128 v[{Af + 4 * k}:{Af + 4 * k + 3}], v{aA} offset:{L_A + 64 * k}")
            self.stamp(6)
            for k in range(nk):
                if self.stamps:
                    if k == 0:
                        self("  s_waitcnt lgkmcnt(0)")
                else:
                    self(f"  s_waitcnt lgkmcnt({nk - 1 - k})")
                self(f"  v_mfma_f32_16x16x32_bf16 v[{Dd}:{Dd + 3}], v[{Af + 4 * k}:{Af + 4 * k + 3}], v[{Bf + 4 * k}:{Bf + 4 * k + 3}], v[{Dd}:{Dd + 3}]")
            self(f"  v_add_f32 v{Dd}, v{Dd}, v{Dd + 1}")
            self(f"  v_add_f32 v{Dd + 2}, v{Dd + 2}, v{Dd + 3}")
            self(f"  v_add_f32 v{Dd}, v{Dd}, v{Dd + 2}")
            self(f"  v_mov_b32 v{t0}, v{Dd}")
            self(f"  v_permlane16_swap_b32 v{Dd}, v{t0}")
            self(f"  v_add_f32 v{Dd}, v{Dd}, v{t0}")
            self(f"  v_min_u32 v{Dd}, -2, v{Dd}")
            self("  s_mov_b32 exec_lo, 0xffff")
            self("  s_mov_b32 exec_hi, 0")
            self(f"  buffer_store_dword v{Dd}, v{aS}, s[44:47], 0 offen sc1")
            self("  s_mov_b64 exec, -1")
            self.stamp(7)
            self("  s_branch L_exit_stamped")

        self("  s_lshl_b32 s7, s5, 2")
        self("  s_add_u32 s6, s6, s7")
        self(f"  s_mul_i32 s6, s6, {SDSTR}")
        self("  s_lshl_b32 s7, s4, 6")
        self("  s_add_u32 s6, s6, s7")
        self(f"  s_add_u32 s6, s6, {SD_BASE}")
        tail_part(6, L_WO)
        self("L_tail_extra:")
        self("  s_cmp_ge_u32 s5, 6")
        self("  s_cbranch_scc1 L_exit_stamped")
        self("  s_cmp_ge_u32 s5, 3")
        self("  s_cselect_b32 s7, 4, 0        ; 4e")
        self("  s_cselect_b32 s56, 3, 0")
        self("  s_sub_u32 s56, s5, s56        ; third")
        self("  s_add_u32 s6, s6, s7")
        self("  s_add_u32 s6, s6, 32")
        self(f"  s_mul_i32 s6, s6, {SDSTR}")
        self("  s_mul_i32 s7, s4, 3")
        self("  s_add_u32 s7, s7, s56")
        self("  s_lshl_b32 s7, s7, 6")
        self("  s_add_u32 s6, s6, s7")
        self(f"  s_add_u32 s6, s6, {SD_BASE}")
        self("  s_lshl_b32 s7, s56, 7")
        self(f"  v_add_u32 v{aA}, s7, v{aA}")
        tail_part(2, L_WO2)

    def ln(self, X, xs, t):
        for i in range(5):
            self(f"  v_lshlrev_b32 v{xs[2 * i]}, 16, v{X[i]}")
            self(f"  v_and_b32 v{xs[2 * i + 1]}, 0xffff0000, v{X[i]}")
        s, u, m = t[0], t[1], t[2]
        self(f"  v_add_f32 v{s}, v{xs[0]}, v{xs[1]}")
        for i in range(2, 10):
            self(f"  v_add_f32 v{s}, v{s}, v{xs[i]}")
        self.allreduce("v_add_f32", s, u)
        self(f"  v_mul_f32 v{m}, {INV640}, v{s}")
        self(f"  v_sub_f32 v{u}, v{xs[0]}, v{m}")
        self(f"  v_mul_f32 v{s}, v{u}, v{u}")
        for i in range(1, 10):
            self(f"  v_sub_f32 v{u}, v{xs[i]}, v{m}")
            self(f"  v_fmac_f32 v{s}, v{u}, v{u}")
        self.allreduce("v_add_f32", s, u)
        self(f"  v_mul_f32 v{s}, {INV640}, v{s}          ; var")
        self(f"  v_cvt_pk_bf16_f32 v{u}, v{s}, v{m}")
        self(f"  v_lshlrev_b32 v{s}, 16, v{u}            ; bf16(var)")
        self(f"  v_and_b32 v{m}, 0xffff0000, v{u}        ; bf16(mean)")
        self(f"  v_add_f32 v{s}, {EPS}, v{s}")
        self(f"  v_cvt_pk_bf16_f32 v{s}, v{s}, v{s}")
        self(f"  v_lshlrev_b32 v{s}, 16, v{s}")
        self(f"  v_sqrt_f32 v{s}, v{s}")
        self("  s_nop 0")
        self(f"  v_cvt_pk_bf16_f32 v{s}, v{s}, v{s}")
        self(f"  v_lshlrev_b32 v{s}, 16, v{s}")
        self(f"  v_rcp_f32 v{s}, v{s}")
        for i in range(10):
            self(f"  v_sub_f32 v{xs[i]}, v{xs[i]}, v{m}")
        for i in range(5):
            self(f"  v_cvt_pk_bf16_f32 v{X[i]}, v{xs[2 * i]}, v{xs[2 * i + 1]}")
        for i in range(5):
            self(f"  v_lshlrev_b32 v{xs[2 * i]}, 16, v{X[i]}")
            self(f"  v_and_b32 v{xs[2 * i + 1]}, 0xffff0000, v{X[i]}")
        for i in range(10):
            self(f"  v_mul_f32 v{xs[i]}, v{xs[i]}, v{s}")
        for i in range(5):
            self(f"  v_cvt_pk_bf16_f32 v{X[i]}, v{xs[2 * i]}, v{xs[2 * i + 1]}")
        self(f"  v_lshlrev_b32 v{u}, 2, v0")
        for i in range(5):
            self(f"  ds_write_b32 v{u}, v{X[i]} offset:{L_XN + 256 * i}")

    def xn_rows(self, XL, XH, t, n=10, base="s5", mul=80):
        self(f"  v_lshrrev_b32 v{t}, 3, v0")
        self(f"  s_mul_i32 s6, {base}, {mul}")
        self(f"  v_add_u32 v{t}, s6, v{t}")
        self(f"  v_lshlrev_b32 v{t}, 1, v{t}")
        self("  s_waitcnt lgkmcnt(0)")
        for i in range(n):
            self(f"  ds_read_u16 v{XL[i]}, v{t} offset:{L_XN + 16 * i}")
        self("  s_waitcnt lgkmcnt(0)")
        for i in range(n):
            self(f"  v_lshlrev_b32 v{XH[i]}, 16, v{XL[i]}")

    def gemv64(self, W, XL, XH, ACC, n):
        for i in range(n):
            for k in range(4):
                c0 = "0" if i == 0 else f"v{ACC[2 * k]}"
                c1 = "0" if i == 0 else f"v{ACC[2 * k + 1]}"
                self(f"  v_dot2_f32_bf16 v{ACC[2 * k]}, v{W + 4 * i + k}, v{XL[i]}, {c0}")
                self(f"  v_dot2_f32_bf16 v{ACC[2 * k + 1]}, v{W + 4 * i + k}, v{XH[i]}, {c1}")

    def gather_h1(self, nparts, dst, addr):
        def issue():
            for p in range(nparts):
                for c in range(8):
                    so = ["0", "s60", "s61", "s62"][c // 2]
                    imm = BOX * (c % 2) + 256 * p
                    o = f" offset:{imm}" if imm else ""
                    self(f"  buffer_load_dword v{dst[p * 8 + c]}, v{addr}, s[44:47], {so} offen{o} sc1")
        self.poll_loop("h1", issue, dst[:nparts * 8], dst[nparts * 8], sleep=2)

    def own_box(self, dst="s6", tmp="s56"):
        self(f"  s_mul_i32 {dst}, s4, {GBOX}")
        self(f"  s_mul_i32 {tmp}, s5, {BOX}")
        self(f"  s_add_u32 {dst}, {dst}, {tmp}")

    def helper(self):
        self.in_stream = False
        X = list(range(4, 9))
        xs = list(range(10, 20))
        t = [20, 21, 22, 23]
        XL = list(range(24, 34))
        XH = list(range(34, 44))
        ACC = list(range(44, 60))
        W = 64
        self("L_helper:")
        if self.prio:
            self(f"  s_setprio {self.prio}")
        self("  s_sub_u32 s7, s3, 8")
        self("  v_lshlrev_b32 v1, 2, v0       ; 4*lane")
        self(f"  s_mov_b32 s60, {2 * BOX}")
        self(f"  s_mov_b32 s61, {4 * BOX}")
        self(f"  s_mov_b32 s62, {6 * BOX}")
        self("  s_waitcnt lgkmcnt(0)")
        self.srd(32, 8, None, 1280)
        self.srd(44, 30, None, WS_SIZE)
        self.srd(48, 28, None, 256)
        self("  s_cmp_eq_u32 s3, 11")
        self("  s_cbranch_scc1 L_h3")
        self("  s_mul_i32 s6, s5, 983040      ; 80*12288*c")
        self("  s_mul_i32 s56, s4, 384")
        self("  s_add_u32 s6, s6, s56")
        self.srd(36, 14, "s6", 79 * 12288 + 384)
        self(f"  v_lshrrev_b32 v2, 3, v0")
        self(f"  v_mul_u32_u24 v2, 12288, v2")
        self(f"  v_and_b32 v3, 7, v0")
        self(f"  v_lshl_add_u32 v2, v3, 4, v2")
        self("  s_lshl_b32 s6, s7, 7")
        self(f"  v_add_u32 v2, s6, v2")
        for i in range(5):
            o = f" offset:{256 * i}" if i else ""
            self(f"  buffer_load_dword v{X[i]}, v1, s[32:35], 0 offen{o}")
        for i in range(10):
            self(f"  s_mov_b32 s6, {98304 * i}")
            self(f"  buffer_load_dwordx4 v[{W + 4 * i}:{W + 4 * i + 3}], v2, s[36:39], s6 offen nt")
        if self.touch & 2:
            self("  s_mul_i32 s6, s4, 245760      ; 192*1280*h")
            self("  s_mul_i32 s56, s5, 160")
            self("  s_add_u32 s6, s6, s56")
            self.srd(40, 16, "s6", 191 * 1280 + 160)
            self("  s_mul_i32 s6, s7, 81920")
            self("  v_mov_b32 v3, s6")
            self("  s_mov_b64 exec, 1")
            self("  buffer_load_dword v60, v3, s[40:43], 0 offen")
            self("  s_mov_b64 exec, -1")
        self("  s_barrier            ; B0")
        self(f"  s_waitcnt vmcnt({11 if self.touch & 2 else 10})")
        self.ln(X, xs, t)
        self.xn_rows(XL, XH, t[0])
        self.stamp(1)
        self("  s_waitcnt vmcnt(0)")
        self.stamp(2)
        for i in range(10):
            for k in range(4):
                c0 = "0" if i == 0 else f"v{ACC[2 * k]}"
                c1 = "0" if i == 0 else f"v{ACC[2 * k + 1]}"
                self(f"  v_dot2_f32_bf16 v{ACC[2 * k]}, v{W + 4 * i + k}, v{XL[i]}, {c0}")
                self(f"  v_dot2_f32_bf16 v{ACC[2 * k + 1]}, v{W + 4 * i + k}, v{XH[i]}, {c1}")
        self.treduce8(ACC[:8], t[1])
        self(f"  v_min_u32 v{t[1]}, -2, v{t[1]}")
        self(f"  s_mul_i32 s6, s4, {GBOX}")
        self("  s_lshl_b32 s56, s7, 8")
        self("  s_add_u32 s6, s6, s56")
        self(f"  v_add_u32 v14, s6, v1")
        self(f"  s_mul_i32 s56, s5, {BOX}")
        self("  v_add_u32 v15, s56, v14")
        self(f"  v_mov_b32 v12, 0")
        if self.early_pub:
            self.lds_spin("clr", 12, L_CLR, 13, target=None, sdst="s58")
            self(f"  buffer_store_dword v{t[1]}, v15, s[44:47], 0 offen sc1")
            self.lds_spin("mode", 12, L_MODE, 13, target=None, sdst="s59")
        else:
            self.lds_spin("mode", 12, L_MODE, 13, target=None, sdst="s59")
            self.mode_store([f"buffer_store_dword v{t[1]}, v15, s[44:47], 0 offen"])
        self.stamp(3)
        G8 = list(range(64, 73))
        self.gather_h1(1, G8, 14)
        self.stamp(4)
        self(f"  v_add_f32 v{G8[0]}, v{G8[0]}, v{G8[1]}")
        self(f"  v_add_f32 v{G8[2]}, v{G8[2]}, v{G8[3]}")
        self(f"  v_add_f32 v{G8[4]}, v{G8[4]}, v{G8[5]}")
        self(f"  v_add_f32 v{G8[6]}, v{G8[6]}, v{G8[7]}")
        self(f"  v_add_f32 v{G8[0]}, v{G8[0]}, v{G8[2]}")
        self(f"  v_add_f32 v{G8[4]}, v{G8[4]}, v{G8[6]}")
        self(f"  v_add_f32 v{G8[0]}, v{G8[0]}, v{G8[4]}")
        self(f"  v_cvt_pk_bf16_f32 v{G8[0]}, v{G8[0]}, v{G8[0]}")
        self("  v_and_b32 v16, 7, v0")
        self("  v_lshrrev_b32 v17, 3, v0")
        self("  v_lshl_add_u32 v16, v16, 3, v17")
        self("  s_lshl_b32 s6, s7, 6")
        self("  v_add_u32 v16, s6, v16")
        self("  v_lshlrev_b32 v16, 1, v16")
        self(f"  ds_write_b16 v16, v{G8[0]} offset:{L_Q}")
        self("  v_mov_b32 v13, 1")
        self("  s_waitcnt lgkmcnt(0)")
        self("  s_mov_b64 exec, 1")
        self(f"  ds_add_u32 v12, v13 offset:{L_QF}")
        self("  s_mov_b64 exec, -1")
        self.stamp(5)
        self("  s_cmp_eq_u32 s3, 8")
        self("  s_cbranch_scc1 L_h0")
        self("  s_cmp_eq_u32 s3, 10")
        self("  s_cbranch_scc1 L_h2")
        self("  s_mov_b32 s56, -1")
        for tt in range(5):
            self(f"  s_cmp_eq_u32 s4, {6 * tt + 1}")
            self(f"  s_cselect_b32 s56, {tt}, s56")
        self("  s_cmp_eq_u32 s56, -1")
        self("  s_cbranch_scc1 L_exit_stamped")
        self.final_consumer()

        self("L_h2:")
        if self.bulkprio is not None:
            self(f"  s_setprio {self.bulkprio}")
        self("  s_mul_i32 s6, s4, 245760      ; 192*1280*h")
        self("  s_lshl_b32 s56, s5, 7")
        self("  s_add_u32 s6, s6, s56")
        self.srd(40, 16, "s6", 191 * 1280 + 128)
        self("  v_lshrrev_b32 v2, 3, v0")
        self("  v_and_b32 v3, 3, v2")
        self("  v_lshlrev_b32 v3, 1, v3")
        self("  v_and_b32 v4, 7, v0")
        self("  v_xor_b32 v3, v3, v4")
        self("  v_mul_u32_u24 v2, 1280, v2")
        self("  v_lshl_add_u32 v2, v3, 4, v2")
        self("  s_mov_b32 s6, 0")
        self(f"  s_mov_b32 m0, {L_WO}")
        nt = ' nt' if self.wnt & 1 else ''

        def wo_loop(name, n, srd):
            self(f"{name}:")
            self(f"  buffer_load_dwordx4 v2, {srd}, s6 offen{nt} lds")
            self("  s_add_u32 m0, m0, 1024")
            self("  s_add_u32 s6, s6, 10240")
            if self.wo_throttle:
                self(f"  s_waitcnt vmcnt({self.wo_throttle})")
            self(f"  s_cmp_lt_u32 s6, {10240 * n}")
            self(f"  s_cbranch_scc1 {name}")
        wo_loop("L_wo_loop", 24, "s[40:43]")
        self("  s_cmp_ge_u32 s5, 6")
        self("  s_cbranch_scc1 L_wo_done")
        self("  s_cmp_ge_u32 s5, 3")
        self("  s_cselect_b32 s7, 128, 0")
        self("  s_cselect_b32 s56, 3, 0")
        self("  s_sub_u32 s56, s5, s56        ; third")
        self("  s_mul_i32 s56, s56, 81920     ; 64*1280")
        self("  s_add_u32 s7, s7, s56")
        self("  s_mul_i32 s6, s4, 245760")
        self("  s_add_u32 s6, s6, s7")
        self("  s_add_u32 s6, s6, 1024")
        self.srd(52, 16, "s6", 63 * 1280 + 128)
        self("  s_mov_b32 s6, 0")
        wo_loop("L_wo2_loop", 8, "s[52:55]")
        self("L_wo_done:")
        self("  s_waitcnt vmcnt(0)")
        self.stamp(6)
        self("  s_branch L_exit_stamped")

        self("L_h0:")
        self("  v_mov_b32 v12, 0")
        self.lds_spin("cnt", 12, L_CNT, 13, target=8, sdst="s58", sleep=2)
        self("  v_and_b32 v14, 7, v0")
        self("  v_lshlrev_b32 v14, 2, v14")
        self(f"  ds_read_b32 v16, v14 offset:{L_M}")
        self(f"  ds_read_b32 v17, v14 offset:{L_L}")
        self("  s_waitcnt lgkmcnt(0)")
        self("  v_mov_b32 v18, v16")
        for r in (1, 2, 4):
            self(f"  v_max_f32_dpp v18, v18, v18 row_ror:{r} row_mask:0xf bank_mask:0xf")
        self("  v_sub_f32 v19, v16, v18")
        self(f"  v_mul_f32 v19, {LOG2E}, v19")
        self("  v_exp_f32 v19, v19")
        self("  s_nop 0")
        self("  v_mul_f32 v19, v19, v17")
        for r in (1, 2, 4):
            self(f"  v_add_f32_dpp v19, v19, v19 row_ror:{r} row_mask:0xf bank_mask:0xf")
        self("  v_min_u32 v20, -2, v18")
        self("  v_min_u32 v21, -2, v19")
        self("  v_mov_b32 v16, v18                ; M_c")
        self.own_box()
        self(f"  s_add_u32 s6, s6, {O_LSE}")
        self("  v_mov_b32 v15, s6")
        self("  s_mov_b64 exec, 1")
        self.mode_store(["buffer_store_dwordx2 v[20:21], v15, s[44:47], 0 offen"])
        self("  s_mov_b64 exec, -1")
        self("  v_and_b32 v15, 7, v0")
        self(f"  v_mul_u32_u24 v15, {BOX}, v15")
        self(f"  s_mul_i32 s6, s4, {GBOX}")
        self(f"  s_add_u32 s6, s6, {O_LSE}")
        self("  v_add_u32 v15, s6, v15")

        def issue_lse():
            self("  buffer_load_dwordx2 v[22:23], v15, s[44:47], 0 offen sc1")
        self.poll_loop("lse", issue_lse, [22, 23], 24, sleep=1)
        self("  v_mov_b32 v18, v22")
        for r in (1, 2, 4):
            self(f"  v_max_f32_dpp v18, v18, v18 row_ror:{r} row_mask:0xf bank_mask:0xf")
        self("  v_sub_f32 v19, v22, v18")
        self(f"  v_mul_f32 v19, {LOG2E}, v19")
        self("  v_exp_f32 v19, v19")
        self("  s_nop 0")
        self("  v_mul_f32 v19, v19, v23")
        for r in (1, 2, 4):
            self(f"  v_add_f32_dpp v19, v19, v19 row_ror:{r} row_mask:0xf bank_mask:0xf")
        self("  v_rcp_f32 v19, v19")
        self("  v_sub_f32 v16, v16, v18")
        self(f"  v_mul_f32 v16, {LOG2E}, v16")
        self("  v_exp_f32 v16, v16")
        self("  s_nop 0")
        self("  v_mul_f32 v16, v16, v19          ; G = exp(M_c - M_h) / L_h")
        self.stamp(6)
        self("  v_lshlrev_b32 v14, 4, v0")
        self.own_box()
        self(f"  s_add_u32 s6, s6, {O_O2}")
        self("  v_lshlrev_b32 v15, 3, v0")
        self("  v_add_u32 v15, s6, v15")
        self(f"  s_mul_i32 s6, s4, {GBOX}")
        self(f"  s_add_u32 s6, s6, {O_O2}")
        GA, LA = [4, 5, 6], [7, 8, 9]
        for i in range(3):
            self(f"  v_add_u32 v17, {64 * i}, v0")
            self("  v_mul_u32_u24 v18, 171, v17")
            self("  v_lshrrev_b32 v18, 12, v18")
            self("  v_mul_u32_u24 v19, 24, v18")
            self("  v_sub_u32 v19, v17, v19           ; chunk")
            self(f"  v_mul_u32_u24 v20, {BOX}, v18")
            self("  v_lshl_add_u32 v20, v19, 4, v20")
            self(f"  v_add_u32 v{GA[i]}, s6, v20")
            self("  v_mul_u32_u24 v20, 400, v18")
            self(f"  v_lshl_add_u32 v{LA[i]}, v19, 4, v20")
        self("  s_mov_b32 exec_hi, 0xffff         ; 48 lanes")
        self("  s_barrier            ; B2")
        PR = 24
        for w in range(8):
            self(f"  ds_read_b128 v[{PR + 4 * w}:{PR + 4 * w + 3}], v14 offset:{L_PART + 768 * w}")
        for (a_, b_, cnt) in ((0, 1, 6), (2, 3, 4), (0, 2, None), (4, 5, 2), (6, 7, 0), (4, 6, None), (0, 4, None)):
            if cnt is not None:
                self(f"  s_waitcnt lgkmcnt({cnt if not self.stamps else 0})")
            for k in range(4):
                self(f"  v_add_f32 v{PR + 4 * a_ + k}, v{PR + 4 * a_ + k}, v{PR + 4 * b_ + k}")
        for k in range(4):
            self(f"  v_mul_f32 v{PR + k}, v16, v{PR + k}")
        self(f"  v_cvt_pk_bf16_f32 v20, v{PR}, v{PR + 1}")
        self(f"  v_cvt_pk_bf16_f32 v21, v{PR + 2}, v{PR + 3}")
        self("  v_min_u32 v20, -2, v20")
        self("  v_min_u32 v21, -2, v21")
        self.mode_store(["buffer_store_dwordx2 v[20:21], v15, s[44:47], 0 offen"])
        self("  s_mov_b64 exec, -1")
        self.stamp(7)
        AG = 56

        def issueA():
            for i in range(3):
                self(f"  buffer_load_dwordx4 v[{AG + 4 * i}:{AG + 4 * i + 3}], v{GA[i]}, s[44:47], 0 offen sc1")
        self.poll_loop("pollA", issueA, range(AG, AG + 12), 17)
        self.stamp(8)
        for i in range(3):
            self(f"  ds_write_b128 v{LA[i]}, v[{AG + 4 * i}:{AG + 4 * i + 3}] offset:{L_A}")
        self("  s_waitcnt lgkmcnt(0)")
        self("  s_barrier            ; B3")
        self("  s_branch L_exit_stamped")

        self("L_h3:")
        self("  s_lshr_b32 s6, s2, 3")
        self("  s_sub_u32 s64, s6, 2             ; fi")
        self("  s_cselect_b32 s66, 0, 1")
        self("  s_cselect_b32 s64, 0, s64")
        self("  s_mul_i32 s6, s64, 26")
        self("  s_lshr_b32 s6, s6, 8             ; l")
        self("  s_mul_i32 s56, s6, 10")
        self("  s_sub_u32 s64, s64, s56          ; m")
        self("  s_and_b32 s65, s2, 7")
        self("  s_mul_i32 s65, s65, 3")
        self("  s_add_u32 s65, s65, s6           ; j")
        self("  v_mov_b32 v16, 0")
        self("  v_mov_b32 v17, 0")
        self("  v_mov_b32 v18, 0")
        self("  v_mov_b32 v19, 0")
        self("  v_lshlrev_b32 v3, 4, v0")
        self("  v_mov_b32 v8, -1")
        self("  v_mov_b32 v9, -1")
        self("  v_mov_b32 v10, -1")
        self("  v_mov_b32 v11, -1")
        self.own_box()
        self("  v_add_u32 v12, s6, v3")
        self("  buffer_store_dwordx4 v[8:11], v12, s[44:47], 0 offen sc1")
        self("  s_mul_i32 s56, s65, 10")
        self("  s_add_u32 s56, s56, s64")
        self(f"  s_mul_i32 s56, s56, {FSTR}")
        self(f"  s_add_u32 s67, s56, {FB_BASE}")
        self("  s_cmp_lg_u32 s66, 0")
        self(f"  s_cselect_b32 s56, s67, {OOB}")
        self("  s_sub_u32 s56, s56, 256")
        self("  v_add_u32 v13, s56, v3")
        self("  v_add_u32 v12, 1024, v12")
        self("  v_cmp_gt_u32 vcc, 16, v0")
        self("  v_cndmask_b32 v12, v13, v12, vcc")
        self("  s_mov_b32 exec_hi, 0xffff")
        self("  buffer_store_dwordx4 v[8:11], v12, s[44:47], 0 offen sc1")
        self("  s_lshl_b32 s6, s5, 2")
        self(f"  s_mul_i32 s6, s6, {SDSTR}")
        self("  s_lshl_b32 s56, s4, 6")
        self("  s_add_u32 s6, s6, s56")
        self(f"  s_add_u32 s6, s6, {SD_BASE}")
        self("  v_mov_b32 v13, s6                ; main")
        self("  s_cmp_ge_u32 s5, 3")
        self("  s_cselect_b32 s7, 36, 32")
        self("  s_cselect_b32 s56, 3, 0")
        self("  s_sub_u32 s56, s5, s56           ; third")
        self(f"  s_mul_i32 s6, s7, {SDSTR}")
        self("  s_mul_i32 s7, s4, 3")
        self("  s_add_u32 s7, s7, s56")
        self("  s_lshl_b32 s7, s7, 6")
        self("  s_add_u32 s6, s6, s7")
        self(f"  s_add_u32 s6, s6, {SD_BASE}")
        self("  s_cmp_ge_u32 s5, 6")
        self(f"  s_cselect_b32 s6, {OOB}, s6")
        self("  v_mov_b32 v14, s6                ; extra")
        self("  s_lshl_b32 s6, s64, 2")
        self(f"  s_mul_i32 s6, s6, {SDSTR}")
        self("  s_lshl_b32 s56, s65, 6")
        self("  s_add_u32 s6, s6, s56")
        self(f"  s_add_u32 s68, s6, {SD_BASE + O_D3}")
        self("  s_cmp_lg_u32 s66, 0")
        self(f"  s_cselect_b32 s6, s68, {OOB}")
        self("  v_mov_b32 v15, s6                ; down")
        self("  v_cmp_gt_u32 vcc, 16, v0")
        self("  v_cndmask_b32 v14, v14, v13, vcc")
        self("  v_cmp_gt_u32 vcc, 32, v0")
        self("  v_cndmask_b32 v13, v15, v14, vcc")
        self("  v_bfe_u32 v14, v0, 2, 2")
        self(f"  v_mul_u32_u24 v14, {SDSTR}, v14")
        self("  v_add_u32 v13, v13, v14")
        self("  v_and_b32 v14, 3, v0")
        self("  v_lshl_add_u32 v13, v14, 4, v13")
        self("  buffer_store_dwordx4 v[8:11], v13, s[44:47], 0 offen sc1")
        self("  s_mov_b32 exec_hi, 0")
        self("  s_mov_b32 exec_lo, 0xff")
        self(f"  ds_write_b128 v3, v[16:19] offset:{L_MODE}")
        self("  s_mov_b64 exec, -1")
        for i in range(5):
            o = f" offset:{256 * i}" if i else ""
            self(f"  buffer_load_dword v{X[i]}, v1, s[32:35], 0 offen{o}")
        self("  s_waitcnt lgkmcnt(0)")
        self("  s_barrier            ; B0")
        self("  s_getreg_b32 s6, hwreg(HW_REG_XCC_ID, 0, 4)")
        self("  s_mul_i32 s56, s6, s6")
        self("  s_lshl_b32 s56, s56, 16")
        self("  s_lshl_b32 s6, s6, 8")
        self("  s_add_u32 s6, s6, s56")
        self("  s_add_u32 s63, s6, 1")
        self("  s_lshl_b32 s6, s4, 3")
        self("  v_mov_b32 v12, s6")
        self("  v_mov_b32 v13, s63")
        self("  v_mov_b32 v14, 0")
        self("  v_mov_b32 v15, 1")
        self("  s_waitcnt vmcnt(5)")
        self("  s_mov_b64 exec, 1")
        self("  buffer_atomic_add v13, v12, s[48:51], 0 offen sc1")
        self(f"  ds_write_b32 v14, v15 offset:{L_CLR}")
        self("  s_mov_b64 exec, -1")
        self.stamp(6)
        self("  s_waitcnt vmcnt(1)")
        self.ln(X, xs, t)
        self.xn_rows(XL, XH, t[0], n=8, base="s64", mul=64)
        self.stamp(1)
        self("  v_lshlrev_b32 v12, 3, v0")
        self("  v_mov_b32 v14, 0")
        Lp = self.lab("cntpoll")
        Lpd = self.lab("cntpolld")
        self("  s_mov_b32 s57, 0")
        if self.poll_delay:
            self(f"  s_sleep {self.poll_delay}")
        self("  s_mov_b32 exec_hi, 0")
        self(f"{Lp}:")
        self("  buffer_load_dword v60, v12, s[48:51], 0 offen sc1")
        self("  s_add_u32 s57, s57, 1")
        self(f"  s_cmp_gt_u32 s57, {SPIN_MAX}")
        self("  s_waitcnt vmcnt(0)")
        self("  v_readlane_b32 s58, v60, s4")
        self(f"  s_cbranch_scc1 {Lpd}")
        self("  s_and_b32 s6, s58, 0xff")
        self("  s_cmp_eq_u32 s6, 8")
        self(f"  s_cbranch_scc0 {Lp}")
        self(f"{Lpd}:")
        self("  s_lshl_b32 s6, s63, 3")
        self("  s_cmp_eq_u32 s58, s6")
        if self.force_slow:
            self("  s_mov_b32 s59, 1")
        else:
            self("  s_cselect_b32 s59, 2, 1")
        self("  v_mov_b32 v13, s59")
        self("  v_and_b32 v61, 0xff, v60")
        self("  v_cmp_ne_u32 vcc, 8, v61")
        self("  s_mov_b64 exec, 1")
        self(f"  ds_write_b32 v14, v13 offset:{L_MODE}")
        self("  s_mov_b64 exec, -1")
        self("  s_mov_b64 s[54:55], vcc")
        self.stamp(3)

        def all_cleared():
            La = self.lab("allcnt")
            Lad = self.lab("allcntd")
            self("  s_cmp_eq_u64 s[54:55], 0")
            self(f"  s_cbranch_scc1 {Lad}")
            self("  s_mov_b32 s57, 0")
            self("  s_mov_b32 exec_hi, 0")
            self(f"{La}:")
            self("  buffer_load_dword v60, v12, s[48:51], 0 offen sc1")
            self("  s_add_u32 s57, s57, 1")
            self(f"  s_cmp_gt_u32 s57, {SPIN_MAX}")
            self("  s_waitcnt vmcnt(0)")
            self(f"  s_cbranch_scc1 {Lad}")
            self("  v_and_b32 v61, 0xff, v60")
            self("  v_cmp_ne_u32 vcc, 8, v61")
            self(f"  s_cbranch_vccnz {La}")
            self(f"{Lad}:")
            self("  v_mov_b32 v13, 1")
            self("  v_mov_b32 v14, 0")
            self("  s_mov_b64 exec, 1")
            self(f"  ds_write_b32 v14, v13 offset:{L_ALL}")
            self("  s_mov_b64 exec, -1")

        Lact = self.lab("ffn")
        self("  s_cmp_lg_u32 s66, 0")
        self(f"  s_cbranch_scc1 {Lact}")
        all_cleared()
        self("  s_waitcnt lgkmcnt(0)")
        self("  s_branch L_exit_stamped")
        self(f"{Lact}:")
        if self.bulkprio is not None:
            self(f"  s_setprio {self.bulkprio}")
        self("  s_mul_i32 s6, s64, 196608      ; 64*3072*m")
        self("  s_lshl_b32 s56, s65, 7")
        self("  s_add_u32 s6, s6, s56")
        self.srd(36, 20, "s6", 63 * 3072 + 128)
        self.srd(40, 22, "s6", 63 * 3072 + 128)
        self("  v_lshrrev_b32 v2, 3, v0")
        self("  v_and_b32 v3, 7, v0")
        self("  v_mul_u32_u24 v9, 1280, v2")
        self("  v_lshl_add_u32 v9, v3, 4, v9")
        self("  v_mul_u32_u24 v2, 3072, v2")
        self("  v_lshl_add_u32 v2, v3, 4, v2")
        WG, WU = 64, 96
        ntg = ' nt' if self.wnt & 2 else ''
        for i in range(8):
            self(f"  s_mov_b32 s6, {24576 * i}")
            self(f"  buffer_load_dwordx4 v[{WG + 4 * i}:{WG + 4 * i + 3}], v2, s[36:39], s6 offen{ntg}")
        for i in range(8):
            self(f"  s_mov_b32 s6, {24576 * i}")
            self(f"  buffer_load_dwordx4 v[{WU + 4 * i}:{WU + 4 * i + 3}], v2, s[40:43], s6 offen{ntg}")
        self("  s_mul_i32 s6, s65, 81920       ; 64*1280*j")
        self("  s_lshl_b32 s56, s64, 7")
        self("  s_add_u32 s6, s6, s56")
        self.srd(36, 24, "s6", 63 * 1280 + 128)
        GA = list(range(44, 52))
        UA = list(range(52, 60))
        self("  s_waitcnt vmcnt(8)")
        self.gemv64(WG, XL, XH, GA, 8)
        self("  s_waitcnt vmcnt(0)")
        self.stamp(2)
        self.gemv64(WU, XL, XH, UA, 8)
        WD = 64
        ntd = ' nt' if self.wnt & 4 else ''
        for n in range(8):
            self(f"  s_mov_b32 s6, {10240 * n}")
            self(f"  buffer_load_dwordx4 v[{WD + 4 * n}:{WD + 4 * n + 3}], v9, s[36:39], s6 offen{ntd}")
        self.treduce8(GA, t[1])
        self.treduce8(UA, t[2])
        self(f"  v_min_u32 v{t[1]}, -2, v{t[1]}")
        self(f"  v_min_u32 v{t[2]}, -2, v{t[2]}")
        self("  v_add_u32 v15, s67, v1")
        self(f"  buffer_store_dword v{t[1]}, v15, s[44:47], 0 offen sc1")
        self(f"  buffer_store_dword v{t[2]}, v15, s[44:47], 0 offen offset:256 sc1")
        all_cleared()
        self(f"  s_mul_i32 s6, s65, {10 * FSTR}")
        self(f"  s_add_u32 s6, s6, {FB_BASE}")
        self("  v_lshrrev_b32 v14, 5, v0")
        self(f"  v_mul_u32_u24 v14, {FSTR}, v14")
        self("  v_and_b32 v15, 31, v0")
        self("  v_lshl_add_u32 v14, v15, 4, v14")
        self("  v_add_u32 v14, s6, v14")
        self(f"  v_add_u32 v15, {6 * FSTR}, v14")
        G = 128

        def issueF():
            for u in range(5):
                a, o = (14, 2 * FSTR * u) if u < 3 else (15, 2 * FSTR * (u - 3))
                oo = f" offset:{o}" if o else ""
                self(f"  buffer_load_dwordx4 v[{G + 4 * u}:{G + 4 * u + 3}], v{a}, s[44:47], 0 offen{oo} sc1")
        self.poll_loop("pollF", issueF, range(G, G + 20), G + 20, sleep=4)
        self.stamp(4)
        for e in range(4):
            self(f"  v_add_f32 v{G + e}, v{G + e}, v{G + 4 + e}")
            self(f"  v_add_f32 v{G + 8 + e}, v{G + 8 + e}, v{G + 12 + e}")
        for e in range(4):
            self(f"  v_add_f32 v{G + e}, v{G + e}, v{G + 16 + e}")
        for e in range(4):
            self(f"  v_add_f32 v{G + e}, v{G + e}, v{G + 8 + e}")
        for e in range(4):
            self(f"  v_mov_b32 v{G + 4 + e}, v{G + e}")
        for e in range(4):
            self(f"  v_permlane32_swap_b32 v{G + e}, v{G + 4 + e}")
        for e in range(4):
            self(f"  v_add_f32 v{G + e}, v{G + e}, v{G + 4 + e}")
        for e in range(4):
            self(f"  v_mov_b32 v{G + 4 + e}, v{G + e}")
        for e in range(4):
            self(f"  v_permlane16_swap_b32 v{G + e}, v{G + 4 + e}")
        for e in range(4):
            self(f"  v_cvt_pk_bf16_f32 v{G + e}, v{G + e}, v{G + 4 + e}")
        for e in range(4):
            self(f"  v_lshlrev_b32 v{G + 4 + e}, 16, v{G + e}      ; gate")
            self(f"  v_and_b32 v{G + e}, 0xffff0000, v{G + e}    ; up")
        for e in range(4):
            self(f"  v_max_f32 v{G + 4 + e}, 0, v{G + 4 + e}")
        for e in range(4):
            self(f"  v_mul_f32 v{G + e}, v{G + 4 + e}, v{G + e}")
        for e in range(4):
            self(f"  v_cvt_pk_bf16_f32 v{G + e}, v{G + e}, v{G + e}    ; h")
        self("  v_and_b32 v18, 1, v0")
        self("  v_lshlrev_b32 v18, 5, v18")
        self("  v_bfe_u32 v19, v0, 1, 3")
        self("  v_add_u32 v18, v18, v19")
        self("  v_lshlrev_b32 v18, 1, v18")
        self("  s_mov_b32 exec_lo, 0xffff")
        self("  s_mov_b32 exec_hi, 0")
        for e in range(4):
            self(f"  ds_write_b16 v18, v{G + e} offset:{L_HB + 16 * e}")
        self("  s_mov_b64 exec, -1")
        self("  v_lshrrev_b32 v18, 3, v0")
        self("  v_lshlrev_b32 v18, 1, v18")
        self("  s_waitcnt lgkmcnt(0)")
        for i in range(8):
            self(f"  ds_read_u16 v{XL[i]}, v18 offset:{L_HB + 16 * i}")
        self("  v_bfe_u32 v19, v0, 1, 2")
        self(f"  v_mul_u32_u24 v19, {SDSTR}, v19")
        self("  v_and_b32 v20, 1, v0")
        self("  v_lshl_add_u32 v19, v20, 5, v19")
        self("  v_lshrrev_b32 v20, 3, v0")
        self("  v_lshl_add_u32 v19, v20, 2, v19")
        self("  v_add_u32 v19, s68, v19")
        self("  s_waitcnt lgkmcnt(0)")
        for i in range(8):
            self(f"  v_lshlrev_b32 v{XH[i]}, 16, v{XL[i]}")
        self("  s_waitcnt vmcnt(0)")
        self.gemv64(WD, XL, XH, GA, 8)
        self.treduce8(GA, t[1])
        self(f"  v_min_u32 v{t[1]}, -2, v{t[1]}")
        self(f"  buffer_store_dword v{t[1]}, v19, s[44:47], 0 offen sc1")
        self.stamp(5)
        self("  s_branch L_exit_stamped")

    def final_consumer(self):
        self("  v_mov_b32 v12, 0")
        self("  s_mov_b32 s55, s56")
        self.lds_spin("allc", 12, L_ALL, 13, target=None, sdst="s58", sleep=4)
        self("  s_mul_i32 s7, s5, 5")
        self("  s_add_u32 s55, s55, s7           ; cg")
        self(f"  s_mul_i32 s6, s55, {SDSTR}")
        self(f"  s_add_u32 s6, s6, {SD_BASE}")
        self("  v_lshlrev_b32 v14, 4, v0")
        self("  v_add_u32 v14, s6, v14")
        self(f"  v_add_u32 v13, {O_D3}, v14")
        self("  v_and_b32 v15, 3, v0")
        self("  v_lshlrev_b32 v15, 2, v15")
        self("  v_lshrrev_b32 v16, 5, v0")
        self("  v_lshl_add_u32 v15, v16, 1, v15")
        self("  v_bfe_u32 v16, v0, 4, 1")
        self("  v_add_u32 v15, v15, v16")
        self("  s_lshl_b32 s6, s55, 4")
        self("  v_add_u32 v15, s6, v15")
        self("  v_lshlrev_b32 v15, 1, v15")
        self("  buffer_load_ushort v17, v15, s[32:35], 0 offen")
        self.srd(40, 26, None, 1280)

        def red(base):
            for k in range(4):
                self(f"  v_add_f32 v{base + k}, v{base + k}, v{base + 4 + k}")
            self(f"  v_permlane32_swap_b32 v{base}, v{base + 2}")
            self(f"  v_permlane32_swap_b32 v{base + 1}, v{base + 3}")
            self(f"  v_add_f32 v{base}, v{base}, v{base + 2}")
            self(f"  v_add_f32 v{base + 1}, v{base + 1}, v{base + 3}")
            self(f"  v_permlane16_swap_b32 v{base}, v{base + 1}")
            self(f"  v_add_f32 v{base}, v{base}, v{base + 1}")
            self(f"  v_add_f32_dpp v{base}, v{base}, v{base} row_ror:4 row_mask:0xf bank_mask:0xf")
            self(f"  v_add_f32_dpp v{base}, v{base}, v{base} row_ror:8 row_mask:0xf bank_mask:0xf")

        for k in range(4):
            self(f"  v_mov_b32 v{28 + k}, 0")

        def issueD():
            self("  buffer_load_dwordx4 v[24:27], v13, s[44:47], 0 offen sc1")
            self("  s_mov_b32 exec_hi, 0")
            self("  buffer_load_dwordx4 v[28:31], v13, s[44:47], 0 offen offset:1024 sc1")
            self("  s_mov_b32 exec_hi, -1")
        self.poll_loop("pollD", issueD, range(24, 32), 32, sleep=8)
        red(24)
        self("  v_cvt_pk_bf16_f32 v24, v24, v24")
        self("  v_lshlrev_b32 v24, 16, v24")
        self(f"  v_mul_f32 v25, {f2h(-1.4426950408889634)}, v24")
        self("  v_exp_f32 v25, v25")
        self("  s_nop 0")
        self("  v_add_f32 v25, 1.0, v25")
        self("  v_rcp_f32 v25, v25")
        self("  s_nop 0")
        self("  v_mul_f32 v24, v24, v25")
        self("  v_cvt_pk_bf16_f32 v24, v24, v24")
        self("  v_lshlrev_b32 v18, 16, v24          ; g")
        self("  v_lshlrev_b32 v17, 16, v17          ; x")
        self.stamp(6)
        self("  s_barrier            ; B2")
        self("  s_barrier            ; B3")

        def finish():
            red(24)
            self("  v_cvt_pk_bf16_f32 v24, v24, v24")
            self("  v_lshlrev_b32 v24, 16, v24          ; s")
            self("  v_mul_f32 v24, v24, v18")
            self("  v_cvt_pk_bf16_f32 v24, v24, v24")
            self("  v_lshlrev_b32 v24, 16, v24")
            self("  v_add_f32 v24, v17, v24")
            self("  v_cvt_pk_bf16_f32 v24, v24, v24")
            self("  s_mov_b32 exec_lo, 0x000f000f")
            self("  s_mov_b32 exec_hi, 0x000f000f")
            self("  buffer_store_short v24, v15, s[40:43], 0 offen")
            self("  s_mov_b64 exec, -1")
            self.stamp(7)
            self("  s_branch L_exit_stamped")

        Lbig = self.lab("big")
        self("  s_cmp_ge_u32 s55, 32")
        self(f"  s_cbranch_scc1 {Lbig}")

        def issueS():
            self("  buffer_load_dwordx4 v[24:27], v14, s[44:47], 0 offen sc1")
            self("  buffer_load_dwordx4 v[28:31], v14, s[44:47], 0 offen offset:1024 sc1")
        self.poll_loop("pollS", issueS, range(24, 32), 32)
        finish()
        self(f"{Lbig}:")
        self("  v_add_u32 v13, 4096, v14")

        def issueS6():
            for k in range(4):
                o = f" offset:{1024 * k}" if k else ""
                self(f"  buffer_load_dwordx4 v[{24 + 4 * k}:{27 + 4 * k}], v14, s[44:47], 0 offen{o} sc1")
            self("  buffer_load_dwordx4 v[40:43], v13, s[44:47], 0 offen sc1")
            self("  buffer_load_dwordx4 v[44:47], v13, s[44:47], 0 offen offset:1024 sc1")
        self.poll_loop("pollS6", issueS6, range(24, 48), 48)
        for k in range(8):
            self(f"  v_add_f32 v{24 + k}, v{24 + k}, v{32 + k}")
        for k in range(8):
            self(f"  v_add_f32 v{24 + k}, v{24 + k}, v{40 + k}")
        finish()

    def epilogue(self):
        self("L_exit_stamped:")
        if self.stamps:
            self.srd(44, 30, None, WS_SIZE)
            self.stamps_out()
        self("L_end:")
        self("  s_endpgm")
        self(f""".section .rodata,"a"
.p2align 6
.amdhsa_kernel {KNAME}
  .amdhsa_next_free_vgpr 168
  .amdhsa_next_free_sgpr 102
  .amdhsa_accum_offset 168
  .amdhsa_group_segment_fixed_size 0
  .amdhsa_kernarg_size 96
  .amdhsa_user_sgpr_count 2
  .amdhsa_user_sgpr_kernarg_segment_ptr 1
  .amdhsa_system_sgpr_workgroup_id_x 1
.end_amdhsa_kernel""")

    def build(self):
        self.prologue()
        self.stream()
        self.helper()
        self.epilogue()
        return fix("\n".join(self.lines) + "\n", verbose=True)


if __name__ == "__main__":
    import argparse
    ap = argparse.ArgumentParser()
    ap.add_argument("-o", default="k.s")
    ap.add_argument("--D", type=int, default=5)
    ap.add_argument("--E", type=int, default=5)
    ap.add_argument("--SB", type=int, default=19)
    ap.add_argument("--stamps", action="store_true")
    ap.add_argument("--slow", action="store_true")
    ap.add_argument("--b0post", action="store_true")
    ap.add_argument("--prio", type=int, default=3)
    ap.add_argument("--dbgst", action="store_true")
    ap.add_argument("--fine", action="store_true")
    ap.add_argument("--ds", default="", help="D schedule: slot:D,slot:D")
    ap.add_argument("--qkn", type=int, default=2)
    ap.add_argument("--wot", type=int, default=0)
    ap.add_argument("--npoll", type=int, default=2)
    ap.add_argument("--bp", type=int, default=None)
    ap.add_argument("--ilv", action="store_true")
    ap.add_argument("--prog", default="")
    ap.add_argument("--latepub", action="store_true")
    ap.add_argument("--pdelay", type=int, default=0)
    ap.add_argument("--adapt", default="", help="lo:hi slots with optional tighter throttle")
    ap.add_argument("--nocnt", type=int, default=0, help="diagnosis only: 1 = no atomic, no polls; 2 = atomic but no polls")
    ap.add_argument("--pgap", type=int, default=8)
    ap.add_argument("--hwid", action="store_true")
    ap.add_argument("--map2", action="store_true")
    ap.add_argument("--kvm", default="", help="c_stride:wave_stride:block_stride (bytes) of the key assignment (needs --ilv)")
    ap.add_argument("--b0late", type=int, default=0)
    ap.add_argument("--kvnt", type=int, default=3, help="nt hint bits: 1 K, 2 V")
    ap.add_argument("--wnt", type=int, default=7, help="nt hint bits: 1 wo, 2 gate/up, 4 down")
    ap.add_argument("--touch", type=int, default=0, help="1: V, 2: wo, 4: FFN weights early page touch")
    ap.add_argument("--rot", default="", help="a:b:w block rotation = h*a + c*b + wave*w")
    a = ap.parse_args()
    g = G(D=a.D, E=a.E, SB=a.SB, stamps=a.stamps, force_slow=a.slow, b0pre=not a.b0post, prio=a.prio, dbgst=a.dbgst, fine=a.fine,
          dsched=[tuple(int(v) for v in p.split(':')) for p in a.ds.split(',') if p], qk_per_slot=a.qkn, wo_throttle=a.wot, npoll=a.npoll, poll_gap=a.pgap, bulkprio=a.bp, ilv=a.ilv, prog=[int(v) for v in a.prog.split(',') if v], early_pub=not a.latepub, poll_delay=a.pdelay, nocnt=a.nocnt, adapt=tuple(int(v) for v in a.adapt.split(':')) if a.adapt else None, hwid=a.hwid, map2=a.map2, kvm=tuple(int(v) for v in a.kvm.split(':')) if a.kvm else None, b0late=a.b0late, kvnt=a.kvnt, wnt=a.wnt, touch=a.touch, rot=tuple(int(v) for v in a.rot.split(':')) if a.rot else None)
    open(a.o, "w").write(g.build())
```

```python
import sys, struct
sys.path.insert(0, "dev")
from hz import fix

KNAME = "recurrent_scan__sliding_block_cached__glu_gated_reglu__decode_kernel"


def f2h(x):
    return "0x%08x" % struct.unpack("<I", struct.pack("<f", x))[0]


LOG2E = f2h(1.4426950408889634)
SCALE = f2h(192 ** -0.5)
INV640 = f2h(1.0 / 640)
EPS = f2h(1e-5)

BOX = 1280
GBOX = 8 * BOX
O_H1 = 0
O_O2 = 768
O_LSE = 1152
FB_BASE = 327680
FSTR = 768
SD_BASE = 524288
SDSTR = 8448
O_D3 = 6144
OOB = 0x70000000
STAMP_BASE = 1 << 20
WS_SIZE = 2 << 20

L_Q = 0
L_MODE = 384
L_CNT = 388
L_QF = 392
L_CLR = 396
L_M = 400
L_L = 432
L_XN = 1280
L_HB = 2560
L_ALL = 464
L_RANK = 468
L_PROG = 472
L_WO = 4096
L_WO2 = L_WO + 192 * 128
L_PART = L_WO2 + 64 * 128
L_A = L_PART + 8 * 768
LDS_BYTES = L_A + 8 * 400

SPIN_MAX = 30000


class G:
    def __init__(self, D=5, E=5, SB=19, stamps=False, force_slow=False, wo_slot=32, b0pre=True, prio=3, dbgst=False, fine=False, dsched=(), qk_per_slot=2, wo_throttle=0, npoll=2, poll_gap=8, bulkprio=None, ilv=False, prog=(), early_pub=True, poll_delay=0, nocnt=0, adapt=None, hwid=False, map2=False, rot=None, touch=0, wnt=7, kvnt=3, b0late=0, kvm=None, hrot=0, adaptbit=0, pipeS=None, pipeA=None, rank=None, rankp=None, ckp=(), rshard=0, lated=False):
        self.kvm = kvm or ((196608, 1536, 12288) if ilv else (196608, 24576, 1536))
        self.b0late = b0late
        self.hrot = hrot
        self.rank = rank
        self.lated = lated
        self.rshard = rshard
        self.ckp = list(ckp)
        self.rankp = rankp
        self.pipeS = pipeS
        self.pipeA = pipeA
        self.adaptbit = adaptbit
        self.kvnt = kvnt
        self.wnt = wnt
        self.touch = touch
        self.map2 = map2
        self.rot = rot
        self.hwid = hwid
        self.adapt = adapt
        self.nocnt = nocnt
        self.early_pub = early_pub
        self.poll_delay = poll_delay
        self.prog = list(prog)
        self.ilv = ilv
        self.bulkprio = bulkprio
        self.wo_throttle = wo_throttle
        self.npoll = npoll
        self.poll_gap = poll_gap
        self.dsched = list(dsched)
        self.qk_per_slot = qk_per_slot
        self.dbgst = dbgst
        self.fine = fine
        self.in_stream = False
        self.prio = prio
        self.b0pre = b0pre
        self.D, self.E, self.SB = D, E, SB
        self.stamps = stamps
        self.force_slow = force_slow
        self.wo_slot = wo_slot
        self.lines = []
        self.uid = 0
        self.vm = []

    def Dof(self, i):
        for (slot, d) in reversed(self.dsched):
            if i >= slot:
                return d
        return self.D

    def __call__(self, s=""):
        for l in s.split("\n"):
            self.lines.append(l)

    def lab(self, base):
        self.uid += 1
        return f"L_{base}_{self.uid}"

    def vm_reset(self):
        self.vm = []

    def vm_issue(self, tag):
        self.vm.append(tag)

    def vm_wait(self, tag):
        idx = [i for i, t in enumerate(self.vm) if t == tag]
        if not idx:
            return
        last = idx[-1]
        n = len(self.vm) - 1 - last
        assert n <= 63
        self(f"  s_waitcnt vmcnt({n})")
        self.vm = self.vm[last + 1:]

    def stamp(self, i):
        if self.prog and self.in_stream and i != 0:
            return
        if self.stamps and not (self.fine and self.in_stream and i in (1, 2, 3, 5, 6, 7)):
            self(f"  s_memrealtime s[{70 + 2 * i}:{71 + 2 * i}]")

    def fstamp(self, i, clk=False):
        if self.stamps and self.fine:
            op = "s_memtime" if clk else "s_memrealtime"
            self(f"  {op} s[{70 + 2 * i}:{71 + 2 * i}]")

    def stamps_out(self):
        if not self.stamps:
            return
        self("  s_waitcnt lgkmcnt(0) vmcnt(0)")
        self("  s_mul_i32 s6, s2, 12")
        self("  s_add_u32 s6, s6, s3")
        self("  s_lshl_b32 s6, s6, 6")
        self(f"  s_add_u32 s6, s6, {STAMP_BASE}")
        self("  v_mov_b32 v2, s6")
        for i in range(12):
            self(f"  v_mov_b32 v{4 + i}, s{70 + 2 * i}")
        self("  s_mov_b64 exec, 1")
        self("  buffer_store_dwordx4 v[4:7], v2, s[44:47], 0 offen")
        self("  buffer_store_dwordx4 v[8:11], v2, s[44:47], 0 offen offset:16")
        self("  buffer_store_dwordx4 v[12:15], v2, s[44:47], 0 offen offset:32")
        if self.dbgst:
            self("  s_load_dwordx2 s[6:7], s[0:1], 80")
            self("  s_waitcnt lgkmcnt(0)")
            self.srd(48, 6, None, 256)
            for (wg, wv, lst) in ((0, 0, ((0, 1), (2, 3), (4, 5))), (8, 9, ((0, 7), (6, 9), (7, 11))), (255, 0, ((0, 13), (4, 15)))):
                Ls = self.lab("dbgskip")
                self(f"  s_cmp_eq_u32 s2, {wg}")
                self(f"  s_cbranch_scc0 {Ls}")
                self(f"  s_cmp_eq_u32 s3, {wv}")
                self(f"  s_cbranch_scc0 {Ls}")
                for (st, dw) in lst:
                    self(f"  v_mov_b32 v2, {4 * dw}")
                    self(f"  buffer_store_dword v{4 + st}, v2, s[48:51], 0 offen")
                self(f"{Ls}:")
        self("  s_mov_b64 exec, -1")

    def srd(self, s, base_lo, off, nrec):
        if off is None:
            self(f"  s_mov_b32 s{s}, s{base_lo}")
            self(f"  s_mov_b32 s{s + 1}, s{base_lo + 1}")
        else:
            self(f"  s_add_u32 s{s}, s{base_lo}, {off}")
            self(f"  s_addc_u32 s{s + 1}, s{base_lo + 1}, 0")
        self(f"  s_mov_b32 s{s + 2}, {nrec}")
        self(f"  s_mov_b32 s{s + 3}, 0x20000")

    def allreduce(self, op, v, t):
        for r in (1, 2, 4, 8):
            self(f"  {op}_dpp v{v}, v{v}, v{v} row_ror:{r} row_mask:0xf bank_mask:0xf")
        self(f"  v_mov_b32 v{t}, v{v}")
        self(f"  v_permlane16_swap_b32 v{v}, v{t}")
        self(f"  {op} v{v}, v{v}, v{t}")
        self(f"  v_mov_b32 v{t}, v{v}")
        self(f"  v_permlane32_swap_b32 v{v}, v{t}")
        self(f"  {op} v{v}, v{v}, v{t}")

    def cross_rows(self, op, v, t):
        self(f"  v_mov_b32 v{t}, v{v}")
        self(f"  v_permlane16_swap_b32 v{v}, v{t}")
        self(f"  {op} v{v}, v{v}, v{t}")
        self(f"  v_mov_b32 v{t}, v{v}")
        self(f"  v_permlane32_swap_b32 v{v}, v{t}")
        self(f"  {op} v{v}, v{v}, v{t}")

    def treduce8(self, A, T):
        for a in range(4):
            self(f"  v_permlane32_swap_b32 v{A[a]}, v{A[a + 4]}")
        for a in range(4):
            self(f"  v_add_f32 v{A[a]}, v{A[a]}, v{A[a + 4]}")
        for a in range(2):
            self(f"  v_permlane16_swap_b32 v{A[a]}, v{A[a + 2]}")
        for a in range(2):
            self(f"  v_add_f32 v{A[a]}, v{A[a]}, v{A[a + 2]}")
        self(f"  v_add_f32_dpp v{T}, v{A[0]}, v{A[0]} row_ror:8 row_mask:0xf bank_mask:0x3")
        self(f"  v_add_f32_dpp v{T}, v{A[1]}, v{A[1]} row_ror:8 row_mask:0xf bank_mask:0xc")

    def treduce4rows(self, A, out_pairs=None):
        n = len(A) // 4
        for k in range(n):
            a = A[4 * k:4 * k + 4]
            self(f"  v_permlane32_swap_b32 v{a[0]}, v{a[2]}")
            self(f"  v_permlane32_swap_b32 v{a[1]}, v{a[3]}")
        for k in range(n):
            a = A[4 * k:4 * k + 4]
            self(f"  v_add_f32 v{a[0]}, v{a[0]}, v{a[2]}")
            self(f"  v_add_f32 v{a[1]}, v{a[1]}, v{a[3]}")
        for k in range(n):
            a = A[4 * k:4 * k + 4]
            self(f"  v_permlane16_swap_b32 v{a[0]}, v{a[1]}")
        for k in range(n):
            a = A[4 * k:4 * k + 4]
            self(f"  v_add_f32 v{a[0]}, v{a[0]}, v{a[1]}")
        return [A[4 * k] for k in range(n)]

    def sentinel_check(self, regs, t):
        regs = list(regs)
        if len(regs) == 1:
            self(f"  v_cmp_eq_u32 vcc, -1, v{regs[0]}")
            return
        if len(regs) == 2:
            self(f"  v_max_u32 v{t}, v{regs[0]}, v{regs[1]}")
            regs = []
        else:
            self(f"  v_max3_u32 v{t}, v{regs[0]}, v{regs[1]}, v{regs[2]}")
            regs = regs[3:]
        while regs:
            if len(regs) >= 2:
                self(f"  v_max3_u32 v{t}, v{t}, v{regs[0]}, v{regs[1]}")
                regs = regs[2:]
            else:
                self(f"  v_max_u32 v{t}, v{t}, v{regs[0]}")
                regs = regs[1:]
        self(f"  v_cmp_eq_u32 vcc, -1, v{t}")

    def poll_loop(self, name, issue, regs, t, sleep=0):
        L = self.lab(name)
        Ld = self.lab(name + "d")
        self("  s_mov_b32 s57, 0")
        self(f"{L}:")
        issue()
        self("  s_waitcnt vmcnt(0)")
        self.sentinel_check(regs, t)
        self("  s_add_u32 s57, s57, 1")
        self(f"  s_cmp_gt_u32 s57, {SPIN_MAX}")
        self(f"  s_cbranch_scc1 {Ld}")
        if sleep:
            self(f"  s_cbranch_vccz {Ld}")
            self(f"  s_sleep {sleep}")
            self(f"  s_branch {L}")
        else:
            self(f"  s_cbranch_vccnz {L}")
        self(f"{Ld}:")

    def poll_loop2(self, name, issue, regs, t, between, sleep=0):
        L = self.lab(name)
        Ld = self.lab(name + "d")
        self("  s_mov_b32 s57, 0")
        issue()
        between()
        self(f"{L}:")
        self("  s_waitcnt vmcnt(0)")
        self.sentinel_check(regs, t)
        self("  s_add_u32 s57, s57, 1")
        self(f"  s_cmp_gt_u32 s57, {SPIN_MAX}")
        self(f"  s_cbranch_scc1 {Ld}")
        self(f"  s_cbranch_vccz {Ld}")
        if sleep:
            self(f"  s_sleep {sleep}")
        issue()
        self(f"  s_branch {L}")
        self(f"{Ld}:")

    def poll_pipe(self, name, cfg, nl, issue, regs, t, done):
        N, gap, gap2 = cfg
        L = self.lab(name)
        Lj = self.lab(name + "j")
        Ls = [self.lab(name + f"d{k}") for k in range(N)]
        self("  s_mov_b32 s57, 0")
        for k in range(N):
            issue(k)
            if gap and k < N - 1:
                self(f"  s_sleep {gap}")
        self(f"{L}:")
        for k in range(N):
            self(f"  s_waitcnt vmcnt({(N - 1) * nl})")
            self.sentinel_check(regs(k), t)
            self(f"  s_cbranch_vccz {Ls[k]}")
            issue(k)
            if gap2:
                self(f"  s_sleep {gap2}")
        self("  s_add_u32 s57, s57, 1")
        self(f"  s_cmp_gt_u32 s57, {SPIN_MAX // N}")
        self(f"  s_cbranch_scc0 {L}")
        for k in range(N):
            self(f"{Ls[k]}:")
            done(k)
            if k < N - 1:
                self(f"  s_branch {Lj}")
        self(f"{Lj}:")

    def lds_spin(self, name, addr_v, off, t, target=None, sdst="s58", sleep=1):
        L = self.lab(name)
        Ld = self.lab(name + "d")
        self("  s_mov_b32 s57, 0")
        self(f"{L}:")
        self(f"  ds_read_b32 v{t}, v{addr_v} offset:{off}")
        self("  s_waitcnt lgkmcnt(0)")
        self(f"  v_readfirstlane_b32 {sdst}, v{t}")
        self("  s_add_u32 s57, s57, 1")
        self(f"  s_cmp_gt_u32 s57, {SPIN_MAX * 8}")
        self(f"  s_cbranch_scc1 {Ld}")
        if target is None:
            self(f"  s_cmp_lg_u32 {sdst}, 0")
        else:
            self(f"  s_cmp_eq_u32 {sdst}, {target}")
        self(f"  s_cbranch_scc1 {Ld}")
        if sleep:
            self(f"  s_sleep {sleep}")
        self(f"  s_branch {L}")
        self(f"{Ld}:")

    def mode_store(self, instr):
        Lf = self.lab("fast")
        Lj = self.lab("join")
        self("  s_cmp_eq_u32 s59, 2")
        self(f"  s_cbranch_scc1 {Lf}")
        for i in instr:
            self(f"  {i} sc1")
        self(f"  s_branch {Lj}")
        self(f"{Lf}:")
        for i in instr:
            self(f"  {i}")
        self(f"{Lj}:")

    def prologue(self):
        self(f"""; Fused decode step: LN -> q -> sliding-window attention (split over 8 WGs per head) -> wo,
; @launch grid=(256,1,1) block=(768,1,1) lds={LDS_BYTES}
.amdgcn_target "amdgcn-amd-amdhsa--gfx950"
.text
.globl {KNAME}
.p2align 8
.type {KNAME},@function
{KNAME}:
  s_cmp_ge_u32 s2, 256
  s_cbranch_scc1 L_end""")
        self.stamp(0)
        if self.hwid:
            self("  s_getreg_b32 s88, hwreg(HW_REG_HW_ID)")
            self("  s_getreg_b32 s90, hwreg(HW_REG_XCC_ID)")
        self(f"""  s_load_dwordx16 s[8:23], s[0:1], 0
  s_load_dwordx8 s[24:31], s[0:1], 64
  v_readfirstlane_b32 s3, v0
  v_and_b32 v0, 63, v0
  s_lshr_b32 s3, s3, 6
  s_add_u32 s4, s2, {self.hrot}
  s_and_b32 s4, s4, 7
  s_lshl_b32 s4, s4, 2""" if self.hrot else f"""  s_load_dwordx16 s[8:23], s[0:1], 0
  s_load_dwordx8 s[24:31], s[0:1], 64
  v_readfirstlane_b32 s3, v0
  v_and_b32 v0, 63, v0
  s_lshr_b32 s3, s3, 6
  s_and_b32 s4, s2, 7
  s_lshl_b32 s4, s4, 2""")
        if self.map2:
            self("""  s_lshr_b32 s5, s2, 6
  s_add_u32 s4, s4, s5          ; h
  s_lshr_b32 s5, s2, 3
  s_and_b32 s5, s5, 7           ; c""")
        else:
            self("""  s_lshr_b32 s5, s2, 3
  s_and_b32 s5, s5, 3
  s_add_u32 s4, s4, s5          ; h
  s_lshr_b32 s5, s2, 5          ; c""")
        self("""  s_cmp_ge_u32 s3, 8
  s_cbranch_scc1 L_helper""")

    def stream(self):
        self.in_stream = True
        D, E, SB = self.D, self.E, self.SB
        Q = list(range(4, 10))
        A = list(range(10, 22))
        P = list(range(22, 26))
        T = [26, 27]
        U = list(range(28, 32))
        PL = list(range(32, 36))
        PH = list(range(36, 40))
        t0, t1 = 40, 41
        RING = 42
        nbuf = 16 + E

        def kbuf(b):
            return RING + 6 * b

        def vbuf(j):
            return RING + 6 * (16 + j) if j < E else RING + 6 * (j - E)

        self(f"""  ; ---------------- stream waves ----------------
  s_mul_i32 s6, s4, 12582912
  s_mul_i32 s7, s5, {self.kvm[0]}
  s_add_u32 s6, s6, s7
  s_add_u32 s6, s6, {28672 * 384}
  s_mul_i32 s7, s3, {self.kvm[1]}
  v_lshrrev_b32 v3, 4, v0
  v_and_b32 v2, 15, v0
  v_mul_u32_u24 v3, 384, v3
  v_add_u32 v3, s7, v3
  v_lshl_add_u32 v1, v2, 4, v3      ; x4 offset
  v_lshl_add_u32 v2, v2, 3, v3
  v_add_u32 v2, 256, v2             ; x2 offset""")
        for k in range(1, 6):
            self(f"  s_mov_b32 s{59 + k}, {4608 * k}")
        if self.rot:
            self(f"  s_mul_i32 s66, s4, {self.rot[0]}")
            self(f"  s_mul_i32 s7, s5, {self.rot[1]}")
            self("  s_add_u32 s66, s66, s7")
            self(f"  s_mul_i32 s7, s3, {self.rot[2]}")
            self("  s_add_u32 s66, s66, s7")
        if self.adapt:
            self(f"  s_lshr_b32 s65, s2, {self.adaptbit}")
            self("  s_and_b32 s65, s65, 1")
        if self.rank:
            self("  s_mov_b32 s67, 0")
            self("  s_mov_b32 s66, 0")
        self("  s_waitcnt lgkmcnt(0)")
        nrec = 1572864 - 7 * self.kvm[0]
        self.srd(32, 10, "s6", nrec)
        self.srd(36, 12, "s6", nrec)
        self.vm_reset()

        def issue(i):
            t, b = (0, i) if i < 16 else (1, i - 16)
            srd = "s[32:35]" if t == 0 else "s[36:39]"
            r = kbuf(b) if t == 0 else vbuf(b)
            so = "0" if b < 3 else f"s{59 + b // 3}"
            imm = 1536 * (b % 3)
            if self.ilv:
                imm = 0
                so = "0" if b == 0 else "s60"
                if self.rot:
                    so = "s60"
                    self(f"  s_add_u32 s60, s66, {b}")
                    self("  s_and_b32 s60, s60, 15")
                    self(f"  s_mul_i32 s60, s60, {self.kvm[2]}")
                elif b:
                    self(f"  s_mov_b32 s60, {self.kvm[2] * b}")
            o = f" offset:{imm}" if imm else ""
            nt = " nt" if self.kvnt & (1 << t) else ""
            self(f"  buffer_load_dwordx4 v[{r}:{r + 3}], v1, {srd}, {so} offen{o}{nt}")
            self(f"  buffer_load_dwordx2 v[{r + 4}:{r + 5}], v2, {srd}, {so} offen{o}{nt}")
            self.vm_issue(("L", i))
            self.vm_issue(("L", i))

        def qk_group(g):
            bs = [kbuf(4 * g + k) for k in range(4)]
            for i in range(6):
                for k in range(4):
                    c = "0" if i == 0 else f"v{P[k]}"
                    self(f"  v_dot2_f32_bf16 v{P[k]}, v{bs[k] + i}, v{Q[i]}, {c}")
            self(f"  v_add_f32_dpp v{T[0]}, v{P[0]}, v{P[0]} row_ror:8 row_mask:0xf bank_mask:0x3")
            self(f"  v_add_f32_dpp v{T[1]}, v{P[1]}, v{P[1]} row_ror:8 row_mask:0xf bank_mask:0x3")
            self(f"  v_add_f32_dpp v{T[0]}, v{P[2]}, v{P[2]} row_ror:8 row_mask:0xf bank_mask:0xc")
            self(f"  v_add_f32_dpp v{T[1]}, v{P[3]}, v{P[3]} row_ror:8 row_mask:0xf bank_mask:0xc")
            self(f"  v_add_f32_dpp v{U[g]}, v{T[0]}, v{T[0]} row_shl:4 row_mask:0xf bank_mask:0x5")
            self(f"  v_add_f32_dpp v{U[g]}, v{T[1]}, v{T[1]} row_shr:4 row_mask:0xf bank_mask:0xa")
            self(f"  v_add_f32_dpp v{U[g]}, v{U[g]}, v{U[g]} quad_perm:[1,0,3,2] row_mask:0xf bank_mask:0xf")
            self(f"  v_add_f32_dpp v{U[g]}, v{U[g]}, v{U[g]} quad_perm:[2,3,0,1] row_mask:0xf bank_mask:0xf")

        def softmax():
            self(f"  v_cvt_pk_bf16_f32 v{P[0]}, v{U[0]}, v{U[1]}")
            self(f"  v_cvt_pk_bf16_f32 v{P[1]}, v{U[2]}, v{U[3]}")
            self(f"  v_lshlrev_b32 v{U[0]}, 16, v{P[0]}")
            self(f"  v_and_b32 v{U[1]}, 0xffff0000, v{P[0]}")
            self(f"  v_lshlrev_b32 v{U[2]}, 16, v{P[1]}")
            self(f"  v_and_b32 v{U[3]}, 0xffff0000, v{P[1]}")
            for g in range(4):
                self(f"  v_mul_f32 v{U[g]}, {SCALE}, v{U[g]}")
            self(f"  v_cvt_pk_bf16_f32 v{P[0]}, v{U[0]}, v{U[1]}")
            self(f"  v_cvt_pk_bf16_f32 v{P[1]}, v{U[2]}, v{U[3]}")
            self(f"  v_lshlrev_b32 v{U[0]}, 16, v{P[0]}")
            self(f"  v_and_b32 v{U[1]}, 0xffff0000, v{P[0]}")
            self(f"  v_lshlrev_b32 v{U[2]}, 16, v{P[1]}")
            self(f"  v_and_b32 v{U[3]}, 0xffff0000, v{P[1]}")
            self(f"  v_max3_f32 v{t0}, v{U[0]}, v{U[1]}, v{U[2]}")
            self(f"  v_max_f32 v{t0}, v{t0}, v{U[3]}")
            self(f"  v_max_f32_dpp v{t0}, v{t0}, v{t0} row_ror:4 row_mask:0xf bank_mask:0xf")
            self(f"  v_max_f32_dpp v{t0}, v{t0}, v{t0} row_ror:8 row_mask:0xf bank_mask:0xf")
            self.cross_rows("v_max_f32", t0, t1)
            for g in range(4):
                self(f"  v_sub_f32 v{U[g]}, v{U[g]}, v{t0}")
            for g in range(4):
                self(f"  v_mul_f32 v{U[g]}, {LOG2E}, v{U[g]}")
            for g in range(4):
                self(f"  v_exp_f32 v{U[g]}, v{U[g]}")
            self("  s_nop 0")
            for g in range(4):
                self(f"  v_cvt_pk_bf16_f32 v{PL[g]}, v{U[g]}, 0")
                self(f"  v_cvt_pk_bf16_f32 v{PH[g]}, 0, v{U[g]}")
            self(f"  v_add_f32 v{T[0]}, v{U[0]}, v{U[1]}")
            self(f"  v_add_f32 v{T[1]}, v{U[2]}, v{U[3]}")
            self(f"  v_add_f32 v{T[0]}, v{T[0]}, v{T[1]}")
            self(f"  v_add_f32_dpp v{T[0]}, v{T[0]}, v{T[0]} row_ror:4 row_mask:0xf bank_mask:0xf")
            self(f"  v_add_f32_dpp v{T[0]}, v{T[0]}, v{T[0]} row_ror:8 row_mask:0xf bank_mask:0xf")
            self.cross_rows("v_add_f32", T[0], t1)
            self(f"  s_lshl_b32 s6, s3, 2")
            self(f"  v_mov_b32 v{t1}, s6")
            self(f"  v_mov_b32 v{T[1]}, 1")
            self(f"  v_mov_b32 v{P[0]}, 0")
            self("  s_mov_b64 exec, 1")
            self(f"  ds_write_b32 v{t1}, v{t0} offset:{L_M}")
            self(f"  ds_write_b32 v{t1}, v{T[0]} offset:{L_L}")
            self("  s_waitcnt lgkmcnt(0)")
            self(f"  ds_add_u32 v{P[0]}, v{T[1]} offset:{L_CNT}")
            self("  s_mov_b64 exec, -1")
            for a in A:
                self(f"  v_mov_b32 v{a}, 0")

        def pv(j):
            g, k = j // 4, j % 4
            r = vbuf(j)
            for i in range(6):
                self(f"  v_dot2c_f32_bf16_dpp v{A[2 * i]}, v{PL[g]}, v{r + i} row_newbcast:{4 * k} row_mask:0xf bank_mask:0xf")
                self(f"  v_dot2c_f32_bf16_dpp v{A[2 * i + 1]}, v{PH[g]}, v{r + i} row_newbcast:{4 * k} row_mask:0xf bank_mask:0xf")

        qk_next = 0
        sm_done = False
        pv_next = 0
        landed = -1
        MO, FF, PA0, PA1 = 4, 5, 6, 7

        if self.touch & 9:
            self(f"  s_mul_i32 s7, s3, 196608")
            self(f"  v_mov_b32 v{t1}, s7")
            self("  s_mov_b64 exec, 1")
            if self.touch & 1:
                self(f"  buffer_load_dword v{t0}, v{t1}, s[36:39], 0 offen")
                self.vm_issue(("T", 0))
            if self.touch & 8:
                self(f"  buffer_load_dword v{T[0]}, v{t1}, s[32:35], 0 offen")
                self.vm_issue(("T", 1))
            self("  s_mov_b64 exec, -1")
        if not self.b0late:
            self("  s_barrier            ; B0")
        for i in range(32):
            Di = self.Dof(i)
            rk = self.rank and self.rank[0] <= i < self.rank[1]
            if rk:
                self("  v_mov_b32 v3, 0")
                self(f"  ds_read_b32 v3, v3 offset:{L_RANK}")
            if i - Di > landed:
                self.vm_wait(("L", i - Di))
                landed = i - Di
            if rk:
                def cnt_for(blk):
                    idx = [k for k, tg in enumerate(self.vm) if tg == ("L", blk)]
                    return len(self.vm) - 1 - idx[-1]
                Ls = self.lab("rk")
                Lh = self.lab("rkh")
                Le = self.lab("rke")
                self("  s_waitcnt lgkmcnt(0)")
                self("  v_readfirstlane_b32 s65, v3")
                self("  s_cmp_eq_u32 s65, s67")
                self(f"  s_cbranch_scc1 {Lh}")
                self("  s_mov_b32 s67, s65")
                self("  s_and_b32 s66, s65, 0xff")
                self(f"{Lh}:")
                self("  s_bitcmp1_b32 s67, 8")
                self(f"  s_cbranch_scc1 {Ls}")
                self(f"  s_waitcnt vmcnt({cnt_for(i - Di + 1)})")
                self("  s_cmp_eq_u32 s66, 0")
                self(f"  s_cbranch_scc1 {Le}")
                self("  s_sub_u32 s66, s66, 1")
                self(f"  s_waitcnt vmcnt({cnt_for(i - Di + 3)})")
                self(f"{Le}:")
                self("  s_bitcmp1_b32 s67, 10")
                self(f"  s_cbranch_scc0 {Ls}")
                self(f"  s_waitcnt vmcnt({cnt_for(i - Di + 2)})")
                self(f"{Ls}:")
            if self.adapt and self.adapt[0] <= i < self.adapt[1]:
                tag = ("L", i - (Di - 1))
                idx = [k for k, tg in enumerate(self.vm) if tg == tag]
                if idx:
                    n = len(self.vm) - 1 - idx[-1]
                    Ls = self.lab("deep")
                    self("  s_cmp_lg_u32 s65, 0")
                    self(f"  s_cbranch_scc1 {Ls}")
                    self(f"  s_waitcnt vmcnt({n})")
                    self(f"{Ls}:")
            if i >= 16 and (i - 16) >= E:
                need_g = (i - 16 - E) // 4
                assert qk_next > need_g, f"schedule: V{i - 16} needs QK group {need_g} (slot {i})"
            if self.prog and self.stamps and i in self.prog:
                k = 1 + self.prog.index(i)
                self(f"  s_memrealtime s[{70 + 2 * k}:{71 + 2 * k}]")
            issue(i)
            if any(i == c[0] for c in self.ckp):
                assert sm_done
                self("  v_mov_b32 v8, 0")
                self("  v_mov_b32 v9, 1")
                self("  s_mov_b64 exec, 1")
                self(f"  ds_add_u32 v8, v9 offset:{L_PROG}")
                self("  s_mov_b64 exec, -1")
            if self.b0late and i == self.b0late - 1:
                self("  s_barrier            ; B0")
            if i == SB:
                self.stamp(1)
                self(f"  v_mov_b32 v{t1}, 0")
                self.lds_spin("qf", t1, L_QF, t0, target=3, sdst="s58", sleep=1)
                self.stamp(2)
                self(f"  v_and_b32 v{t0}, 15, v0")
                self(f"  v_lshlrev_b32 v{t1}, 4, v{t0}")
                self(f"  v_lshlrev_b32 v{t0}, 3, v{t0}")
                self(f"  ds_read_b128 v[{Q[0]}:{Q[3]}], v{t1} offset:{L_Q}")
                self(f"  ds_read_b64 v[{Q[4]}:{Q[5]}], v{t0} offset:{L_Q + 256}")
                self("  s_waitcnt lgkmcnt(0)")
            if i >= SB:
                n = 0
                while qk_next < 4 and 4 * qk_next + 3 <= landed and n < self.qk_per_slot:
                    qk_group(qk_next)
                    qk_next += 1
                    n += 1
                if qk_next == 4 and not sm_done:
                    softmax()
                    self(f"  v_mov_b32 v{MO}, v{t0}")
                    sm_done = True
                    self.stamp(3)
                elif sm_done:
                    n = 0
                    while pv_next < 16 and 16 + pv_next <= landed and n < 3:
                        pv(pv_next)
                        pv_next += 1
                        n += 1
        assert sm_done
        self(f"  v_mov_b32 v{t1}, 0")
        self.lds_spin("cnt8", t1, L_CNT, t0, target=8, sdst="s58", sleep=1)
        self(f"  v_and_b32 v{t1}, 7, v0")
        self(f"  v_lshlrev_b32 v{t1}, 2, v{t1}")
        self(f"  ds_read_b32 v{t0}, v{t1} offset:{L_M}")
        self(f"  v_and_b32 v{P[0]}, 15, v0")
        self(f"  v_lshrrev_b32 v{P[1]}, 4, v0")
        self(f"  v_lshlrev_b32 v{P[1]}, 2, v{P[1]}")
        self("  s_mul_i32 s6, s3, 768")
        self(f"  v_add_u32 v{P[1]}, s6, v{P[1]}")
        self(f"  v_lshl_add_u32 v{PA0}, v{P[0]}, 5, v{P[1]}")
        self(f"  v_lshl_add_u32 v{PA1}, v{P[0]}, 4, v{P[1]}")
        self("  s_waitcnt lgkmcnt(0)")
        for r in (1, 2, 4):
            self(f"  v_max_f32_dpp v{t0}, v{t0}, v{t0} row_ror:{r} row_mask:0xf bank_mask:0xf")
        self(f"  v_sub_f32 v{FF}, v{MO}, v{t0}")
        self(f"  v_mul_f32 v{FF}, {LOG2E}, v{FF}")
        self(f"  v_exp_f32 v{FF}, v{FF}")
        for j in range(pv_next, 16):
            self.vm_wait(("L", 16 + j))
            if j == 15:
                self.stamp(4)
                if self.prog and self.stamps:
                    self(f"  s_memrealtime s[92:93]")
            pv(j)
        R = self.treduce4rows(A)
        for r in R:
            self(f"  v_mul_f32 v{r}, v{FF}, v{r}")
        self(f"  ds_write_b32 v{PA0}, v{R[0]} offset:{L_PART}")
        self(f"  ds_write_b32 v{PA0}, v{R[1]} offset:{L_PART + 16}")
        self(f"  ds_write_b32 v{PA1}, v{R[2]} offset:{L_PART + 512}")
        Bf = RING
        Af = RING + 24
        Dd = RING + 48
        aB, aA, aS = RING + 52, RING + 53, RING + 54
        self(f"  v_lshrrev_b32 v{P[0]}, 4, v0          ; g")
        self(f"  v_bfe_u32 v{P[2]}, v0, 2, 2           ; r4")
        self(f"  v_and_b32 v{P[3]}, 3, v0              ; cq")
        self(f"  v_lshl_add_u32 v{aB}, v{P[0]}, 3, v{P[2]}   ; 8g + r4")
        self(f"  v_lshlrev_b32 v{aB}, 7, v{aB}")
        self("  s_and_b32 s6, s3, 3           ; tile")
        self("  s_lshl_b32 s7, s6, 1")
        self(f"  v_lshrrev_b32 v{aA}, 1, v{P[3]}")
        self(f"  v_add_u32 v{aA}, s7, v{aA}")
        self(f"  v_lshlrev_b32 v{aS}, 1, v{P[2]}")
        self(f"  v_xor_b32 v{aA}, v{aA}, v{aS}")
        self(f"  v_lshl_add_u32 v{aB}, v{aA}, 4, v{aB}")
        self(f"  v_and_b32 v{aA}, 1, v{P[3]}")
        self(f"  v_lshl_add_u32 v{aB}, v{aA}, 3, v{aB}")
        self(f"  v_and_b32 v{aA}, 7, v0")
        self(f"  v_mul_u32_u24 v{aA}, 400, v{aA}")
        self(f"  v_lshl_add_u32 v{aA}, v{P[0]}, 4, v{aA}")
        self(f"  v_lshlrev_b32 v{aS}, 2, v0")
        for d in range(4):
            self(f"  v_mov_b32 v{Dd + d}, 0")
        self.srd(44, 30, None, WS_SIZE)
        self("  s_waitcnt lgkmcnt(0)")
        self.stamp(5)
        self("  s_cmp_ge_u32 s3, 4")
        self("  s_cbranch_scc1 L_tail_extra")

        def tail_part(nk, wo_off):
            self("  s_barrier")
            for k in range(nk):
                self(f"  ds_read_b64_tr_b16 v[{Bf + 4 * k}:{Bf + 4 * k + 1}], v{aB} offset:{wo_off + 4096 * k}")
                self(f"  ds_read_b64_tr_b16 v[{Bf + 4 * k + 2}:{Bf + 4 * k + 3}], v{aB} offset:{wo_off + 4096 * k + 512}")
            self(f"  v_add_u32 v{aS}, s6, v{aS}")
            self("  s_waitcnt lgkmcnt(0)")
            self("  s_barrier")
            for k in range(nk):
                self(f"  ds_read_b128 v[{Af + 4 * k}:{Af + 4 * k + 3}], v{aA} offset:{L_A + 64 * k}")
            self.stamp(6)
            for k in range(nk):
                if self.stamps:
                    if k == 0:
                        self("  s_waitcnt lgkmcnt(0)")
                else:
                    self(f"  s_waitcnt lgkmcnt({nk - 1 - k})")
                self(f"  v_mfma_f32_16x16x32_bf16 v[{Dd}:{Dd + 3}], v[{Af + 4 * k}:{Af + 4 * k + 3}], v[{Bf + 4 * k}:{Bf + 4 * k + 3}], v[{Dd}:{Dd + 3}]")
            self(f"  v_add_f32 v{Dd}, v{Dd}, v{Dd + 1}")
            self(f"  v_add_f32 v{Dd + 2}, v{Dd + 2}, v{Dd + 3}")
            self(f"  v_add_f32 v{Dd}, v{Dd}, v{Dd + 2}")
            self(f"  v_mov_b32 v{t0}, v{Dd}")
            self(f"  v_permlane16_swap_b32 v{Dd}, v{t0}")
            self(f"  v_add_f32 v{Dd}, v{Dd}, v{t0}")
            self(f"  v_min_u32 v{Dd}, -2, v{Dd}")
            self("  s_mov_b32 exec_lo, 0xffff")
            self("  s_mov_b32 exec_hi, 0")
            self(f"  buffer_store_dword v{Dd}, v{aS}, s[44:47], 0 offen sc1")
            self("  s_mov_b64 exec, -1")
            self.stamp(7)
            self("  s_branch L_exit_stamped")

        self("  s_lshl_b32 s7, s5, 2")
        self("  s_add_u32 s6, s6, s7")
        self(f"  s_mul_i32 s6, s6, {SDSTR}")
        self("  s_lshl_b32 s7, s4, 6")
        self("  s_add_u32 s6, s6, s7")
        self(f"  s_add_u32 s6, s6, {SD_BASE}")
        tail_part(6, L_WO)
        self("L_tail_extra:")
        self("  s_cmp_ge_u32 s5, 6")
        self("  s_cbranch_scc1 L_exit_stamped")
        self("  s_cmp_ge_u32 s5, 3")
        self("  s_cselect_b32 s7, 4, 0        ; 4e")
        self("  s_cselect_b32 s56, 3, 0")
        self("  s_sub_u32 s56, s5, s56        ; third")
        self("  s_add_u32 s6, s6, s7")
        self("  s_add_u32 s6, s6, 32")
        self(f"  s_mul_i32 s6, s6, {SDSTR}")
        self("  s_mul_i32 s7, s4, 3")
        self("  s_add_u32 s7, s7, s56")
        self("  s_lshl_b32 s7, s7, 6")
        self("  s_add_u32 s6, s6, s7")
        self(f"  s_add_u32 s6, s6, {SD_BASE}")
        self("  s_lshl_b32 s7, s56, 7")
        self(f"  v_add_u32 v{aA}, s7, v{aA}")
        tail_part(2, L_WO2)

    def ln(self, X, xs, t):
        for i in range(5):
            self(f"  v_lshlrev_b32 v{xs[2 * i]}, 16, v{X[i]}")
            self(f"  v_and_b32 v{xs[2 * i + 1]}, 0xffff0000, v{X[i]}")
        s, u, m = t[0], t[1], t[2]
        self(f"  v_add_f32 v{s}, v{xs[0]}, v{xs[1]}")
        for i in range(2, 10):
            self(f"  v_add_f32 v{s}, v{s}, v{xs[i]}")
        self.allreduce("v_add_f32", s, u)
        self(f"  v_mul_f32 v{m}, {INV640}, v{s}")
        self(f"  v_sub_f32 v{u}, v{xs[0]}, v{m}")
        self(f"  v_mul_f32 v{s}, v{u}, v{u}")
        for i in range(1, 10):
            self(f"  v_sub_f32 v{u}, v{xs[i]}, v{m}")
            self(f"  v_fmac_f32 v{s}, v{u}, v{u}")
        self.allreduce("v_add_f32", s, u)
        self(f"  v_mul_f32 v{s}, {INV640}, v{s}          ; var")
        self(f"  v_cvt_pk_bf16_f32 v{u}, v{s}, v{m}")
        self(f"  v_lshlrev_b32 v{s}, 16, v{u}            ; bf16(var)")
        self(f"  v_and_b32 v{m}, 0xffff0000, v{u}        ; bf16(mean)")
        self(f"  v_add_f32 v{s}, {EPS}, v{s}")
        self(f"  v_cvt_pk_bf16_f32 v{s}, v{s}, v{s}")
        self(f"  v_lshlrev_b32 v{s}, 16, v{s}")
        self(f"  v_sqrt_f32 v{s}, v{s}")
        self("  s_nop 0")
        self(f"  v_cvt_pk_bf16_f32 v{s}, v{s}, v{s}")
        self(f"  v_lshlrev_b32 v{s}, 16, v{s}")
        self(f"  v_rcp_f32 v{s}, v{s}")
        for i in range(10):
            self(f"  v_sub_f32 v{xs[i]}, v{xs[i]}, v{m}")
        for i in range(5):
            self(f"  v_cvt_pk_bf16_f32 v{X[i]}, v{xs[2 * i]}, v{xs[2 * i + 1]}")
        for i in range(5):
            self(f"  v_lshlrev_b32 v{xs[2 * i]}, 16, v{X[i]}")
            self(f"  v_and_b32 v{xs[2 * i + 1]}, 0xffff0000, v{X[i]}")
        for i in range(10):
            self(f"  v_mul_f32 v{xs[i]}, v{xs[i]}, v{s}")
        for i in range(5):
            self(f"  v_cvt_pk_bf16_f32 v{X[i]}, v{xs[2 * i]}, v{xs[2 * i + 1]}")
        self(f"  v_lshlrev_b32 v{u}, 2, v0")
        for i in range(5):
            self(f"  ds_write_b32 v{u}, v{X[i]} offset:{L_XN + 256 * i}")

    def xn_rows(self, XL, XH, t, n=10, base="s5", mul=80):
        self(f"  v_lshrrev_b32 v{t}, 3, v0")
        self(f"  s_mul_i32 s6, {base}, {mul}")
        self(f"  v_add_u32 v{t}, s6, v{t}")
        self(f"  v_lshlrev_b32 v{t}, 1, v{t}")
        self("  s_waitcnt lgkmcnt(0)")
        for i in range(n):
            self(f"  ds_read_u16 v{XL[i]}, v{t} offset:{L_XN + 16 * i}")
        self("  s_waitcnt lgkmcnt(0)")
        for i in range(n):
            self(f"  v_lshlrev_b32 v{XH[i]}, 16, v{XL[i]}")

    def gemv64(self, W, XL, XH, ACC, n):
        for i in range(n):
            for k in range(4):
                c0 = "0" if i == 0 else f"v{ACC[2 * k]}"
                c1 = "0" if i == 0 else f"v{ACC[2 * k + 1]}"
                self(f"  v_dot2_f32_bf16 v{ACC[2 * k]}, v{W + 4 * i + k}, v{XL[i]}, {c0}")
                self(f"  v_dot2_f32_bf16 v{ACC[2 * k + 1]}, v{W + 4 * i + k}, v{XH[i]}, {c1}")

    def gather_h1(self, nparts, dst, addr):
        def issue():
            for p in range(nparts):
                for c in range(8):
                    so = ["0", "s60", "s61", "s62"][c // 2]
                    imm = BOX * (c % 2) + 256 * p
                    o = f" offset:{imm}" if imm else ""
                    self(f"  buffer_load_dword v{dst[p * 8 + c]}, v{addr}, s[44:47], {so} offen{o} sc1")
        self.poll_loop("h1", issue, dst[:nparts * 8], dst[nparts * 8], sleep=2)

    def ticket(self, k, pol, vz):
        if self.rshard == 0:
            self("  s_and_b32 s6, s4, 3")
            self("  s_lshl_b32 s6, s6, 6")
        else:
            self("  s_lshr_b32 s6, s4, 2")
            self("  s_lshl_b32 s6, s6, 5")
        self(f"  s_add_u32 s6, s6, {4 + 8 * k}")
        self("  v_mov_b32 v15, s6")
        self("  v_mov_b32 v16, 1")
        self("  s_mov_b64 exec, 1")
        self("  buffer_atomic_add v16, v15, s[48:51], 0 offen sc0 sc1")
        self("  s_waitcnt vmcnt(0)")
        self("  v_readfirstlane_b32 s6, v16")
        word = lambda n1, d: 512 | (k << 12) | n1 | (256 if d == 4 else 0) | (1024 if d == 2 else 0)
        self(f"  s_mov_b32 s56, {word(*pol[-1][1:])}")
        for (ub, n1, d) in reversed(pol[:-1]):
            self(f"  s_cmp_lt_u32 s6, {ub}")
            self(f"  s_cselect_b32 s56, {word(n1, d)}, s56")
        self("  v_mov_b32 v16, s56")
        self(f"  ds_write_b32 v{vz}, v16 offset:{L_RANK}")
        self("  s_mov_b64 exec, -1")

    def later_tickets(self):
        for k, (slot, pol) in enumerate(self.ckp):
            L = self.lab("ck")
            Ld = self.lab("ckd")
            self("  v_mov_b32 v12, 0")
            self("  s_mov_b32 s57, 0")
            self(f"{L}:")
            self(f"  ds_read_b32 v13, v12 offset:{L_PROG}")
            self("  s_waitcnt lgkmcnt(0)")
            self("  v_readfirstlane_b32 s58, v13")
            self("  s_add_u32 s57, s57, 1")
            self(f"  s_cmp_gt_u32 s57, {SPIN_MAX * 8}")
            self(f"  s_cbranch_scc1 {Ld}")
            self(f"  s_cmp_ge_u32 s58, {8 * (k + 1)}")
            self(f"  s_cbranch_scc1 {Ld}")
            self("  s_sleep 2")
            self(f"  s_branch {L}")
            self(f"{Ld}:")
            self.ticket(k + 1, pol, 12)

    def own_box(self, dst="s6", tmp="s56"):
        self(f"  s_mul_i32 {dst}, s4, {GBOX}")
        self(f"  s_mul_i32 {tmp}, s5, {BOX}")
        self(f"  s_add_u32 {dst}, {dst}, {tmp}")

    def helper(self):
        self.in_stream = False
        X = list(range(4, 9))
        xs = list(range(10, 20))
        t = [20, 21, 22, 23]
        XL = list(range(24, 34))
        XH = list(range(34, 44))
        ACC = list(range(44, 60))
        W = 64
        self("L_helper:")
        if self.prio:
            self(f"  s_setprio {self.prio}")
        self("  s_sub_u32 s7, s3, 8")
        self("  v_lshlrev_b32 v1, 2, v0       ; 4*lane")
        self(f"  s_mov_b32 s60, {2 * BOX}")
        self(f"  s_mov_b32 s61, {4 * BOX}")
        self(f"  s_mov_b32 s62, {6 * BOX}")
        self("  s_waitcnt lgkmcnt(0)")
        self.srd(32, 8, None, 1280)
        self.srd(44, 30, None, WS_SIZE)
        self.srd(48, 28, None, 256)
        self("  s_cmp_eq_u32 s3, 11")
        self("  s_cbranch_scc1 L_h3")
        self("  s_mul_i32 s6, s5, 983040      ; 80*12288*c")
        self("  s_mul_i32 s56, s4, 384")
        self("  s_add_u32 s6, s6, s56")
        self.srd(36, 14, "s6", 79 * 12288 + 384)
        self(f"  v_lshrrev_b32 v2, 3, v0")
        self(f"  v_mul_u32_u24 v2, 12288, v2")
        self(f"  v_and_b32 v3, 7, v0")
        self(f"  v_lshl_add_u32 v2, v3, 4, v2")
        self("  s_lshl_b32 s6, s7, 7")
        self(f"  v_add_u32 v2, s6, v2")
        for i in range(5):
            o = f" offset:{256 * i}" if i else ""
            self(f"  buffer_load_dword v{X[i]}, v1, s[32:35], 0 offen{o}")
        for i in range(10):
            self(f"  s_mov_b32 s6, {98304 * i}")
            self(f"  buffer_load_dwordx4 v[{W + 4 * i}:{W + 4 * i + 3}], v2, s[36:39], s6 offen nt")
        if self.touch & 2:
            self("  s_mul_i32 s6, s4, 245760      ; 192*1280*h")
            self("  s_mul_i32 s56, s5, 160")
            self("  s_add_u32 s6, s6, s56")
            self.srd(40, 16, "s6", 191 * 1280 + 160)
            self("  s_mul_i32 s6, s7, 81920")
            self("  v_mov_b32 v3, s6")
            self("  s_mov_b64 exec, 1")
            self("  buffer_load_dword v60, v3, s[40:43], 0 offen")
            self("  s_mov_b64 exec, -1")
        self("  s_barrier            ; B0")
        self(f"  s_waitcnt vmcnt({11 if self.touch & 2 else 10})")
        self.ln(X, xs, t)
        self.xn_rows(XL, XH, t[0])
        self.stamp(1)
        self("  s_waitcnt vmcnt(0)")
        self.stamp(2)
        for i in range(10):
            for k in range(4):
                c0 = "0" if i == 0 else f"v{ACC[2 * k]}"
                c1 = "0" if i == 0 else f"v{ACC[2 * k + 1]}"
                self(f"  v_dot2_f32_bf16 v{ACC[2 * k]}, v{W + 4 * i + k}, v{XL[i]}, {c0}")
                self(f"  v_dot2_f32_bf16 v{ACC[2 * k + 1]}, v{W + 4 * i + k}, v{XH[i]}, {c1}")
        self.treduce8(ACC[:8], t[1])
        self(f"  v_min_u32 v{t[1]}, -2, v{t[1]}")
        self(f"  s_mul_i32 s6, s4, {GBOX}")
        self("  s_lshl_b32 s56, s7, 8")
        self("  s_add_u32 s6, s6, s56")
        self(f"  v_add_u32 v14, s6, v1")
        self(f"  s_mul_i32 s56, s5, {BOX}")
        self("  v_add_u32 v15, s56, v14")
        self(f"  v_mov_b32 v12, 0")
        if self.early_pub:
            self.lds_spin("clr", 12, L_CLR, 13, target=None, sdst="s58")
            self(f"  buffer_store_dword v{t[1]}, v15, s[44:47], 0 offen sc1")
            self.lds_spin("mode", 12, L_MODE, 13, target=None, sdst="s59")
        else:
            self.lds_spin("mode", 12, L_MODE, 13, target=None, sdst="s59")
            self.mode_store([f"buffer_store_dword v{t[1]}, v15, s[44:47], 0 offen"])
        self.stamp(3)
        G8 = list(range(64, 73))
        self.gather_h1(1, G8, 14)
        self.stamp(4)
        self(f"  v_add_f32 v{G8[0]}, v{G8[0]}, v{G8[1]}")
        self(f"  v_add_f32 v{G8[2]}, v{G8[2]}, v{G8[3]}")
        self(f"  v_add_f32 v{G8[4]}, v{G8[4]}, v{G8[5]}")
        self(f"  v_add_f32 v{G8[6]}, v{G8[6]}, v{G8[7]}")
        self(f"  v_add_f32 v{G8[0]}, v{G8[0]}, v{G8[2]}")
        self(f"  v_add_f32 v{G8[4]}, v{G8[4]}, v{G8[6]}")
        self(f"  v_add_f32 v{G8[0]}, v{G8[0]}, v{G8[4]}")
        self(f"  v_cvt_pk_bf16_f32 v{G8[0]}, v{G8[0]}, v{G8[0]}")
        self("  v_and_b32 v16, 7, v0")
        self("  v_lshrrev_b32 v17, 3, v0")
        self("  v_lshl_add_u32 v16, v16, 3, v17")
        self("  s_lshl_b32 s6, s7, 6")
        self("  v_add_u32 v16, s6, v16")
        self("  v_lshlrev_b32 v16, 1, v16")
        self(f"  ds_write_b16 v16, v{G8[0]} offset:{L_Q}")
        self("  v_mov_b32 v13, 1")
        self("  s_waitcnt lgkmcnt(0)")
        self("  s_mov_b64 exec, 1")
        self(f"  ds_add_u32 v12, v13 offset:{L_QF}")
        self("  s_mov_b64 exec, -1")
        self.stamp(5)
        self("  s_cmp_eq_u32 s3, 8")
        self("  s_cbranch_scc1 L_h0")
        self("  s_cmp_eq_u32 s3, 10")
        self("  s_cbranch_scc1 L_h2")
        self("  s_mov_b32 s56, -1")
        for tt in range(5):
            self(f"  s_cmp_eq_u32 s4, {6 * tt + 1}")
            self(f"  s_cselect_b32 s56, {tt}, s56")
        self("  s_cmp_eq_u32 s56, -1")
        self("  s_cbranch_scc1 L_exit_stamped")
        self.final_consumer()

        self("L_h2:")
        if self.bulkprio is not None:
            self(f"  s_setprio {self.bulkprio}")
        self("  s_mul_i32 s6, s4, 245760      ; 192*1280*h")
        self("  s_lshl_b32 s56, s5, 7")
        self("  s_add_u32 s6, s6, s56")
        self.srd(40, 16, "s6", 191 * 1280 + 128)
        self("  v_lshrrev_b32 v2, 3, v0")
        self("  v_and_b32 v3, 3, v2")
        self("  v_lshlrev_b32 v3, 1, v3")
        self("  v_and_b32 v4, 7, v0")
        self("  v_xor_b32 v3, v3, v4")
        self("  v_mul_u32_u24 v2, 1280, v2")
        self("  v_lshl_add_u32 v2, v3, 4, v2")
        self("  s_mov_b32 s6, 0")
        self(f"  s_mov_b32 m0, {L_WO}")
        nt = ' nt' if self.wnt & 1 else ''

        def wo_loop(name, n, srd):
            self(f"{name}:")
            self(f"  buffer_load_dwordx4 v2, {srd}, s6 offen{nt} lds")
            self("  s_add_u32 m0, m0, 1024")
            self("  s_add_u32 s6, s6, 10240")
            if self.wo_throttle:
                self(f"  s_waitcnt vmcnt({self.wo_throttle})")
            self(f"  s_cmp_lt_u32 s6, {10240 * n}")
            self(f"  s_cbranch_scc1 {name}")
        wo_loop("L_wo_loop", 24, "s[40:43]")
        self("  s_cmp_ge_u32 s5, 6")
        self("  s_cbranch_scc1 L_wo_done")
        self("  s_cmp_ge_u32 s5, 3")
        self("  s_cselect_b32 s7, 128, 0")
        self("  s_cselect_b32 s56, 3, 0")
        self("  s_sub_u32 s56, s5, s56        ; third")
        self("  s_mul_i32 s56, s56, 81920     ; 64*1280")
        self("  s_add_u32 s7, s7, s56")
        self("  s_mul_i32 s6, s4, 245760")
        self("  s_add_u32 s6, s6, s7")
        self("  s_add_u32 s6, s6, 1024")
        self.srd(52, 16, "s6", 63 * 1280 + 128)
        self("  s_mov_b32 s6, 0")
        wo_loop("L_wo2_loop", 8, "s[52:55]")
        self("L_wo_done:")
        self("  s_waitcnt vmcnt(0)")
        self.stamp(6)
        self("  s_branch L_exit_stamped")

        self("L_h0:")
        self("  v_mov_b32 v12, 0")
        self.lds_spin("cnt", 12, L_CNT, 13, target=8, sdst="s58", sleep=2)
        if self.rank:
            self.ticket(0, self.rankp, 12)
        self("  v_and_b32 v14, 7, v0")
        self("  v_lshlrev_b32 v14, 2, v14")
        self(f"  ds_read_b32 v16, v14 offset:{L_M}")
        self(f"  ds_read_b32 v17, v14 offset:{L_L}")
        self("  s_waitcnt lgkmcnt(0)")
        self("  v_mov_b32 v18, v16")
        for r in (1, 2, 4):
            self(f"  v_max_f32_dpp v18, v18, v18 row_ror:{r} row_mask:0xf bank_mask:0xf")
        self("  v_sub_f32 v19, v16, v18")
        self(f"  v_mul_f32 v19, {LOG2E}, v19")
        self("  v_exp_f32 v19, v19")
        self("  s_nop 0")
        self("  v_mul_f32 v19, v19, v17")
        for r in (1, 2, 4):
            self(f"  v_add_f32_dpp v19, v19, v19 row_ror:{r} row_mask:0xf bank_mask:0xf")
        self("  v_min_u32 v20, -2, v18")
        self("  v_min_u32 v21, -2, v19")
        self("  v_mov_b32 v16, v18                ; M_c")
        self.own_box()
        self(f"  s_add_u32 s6, s6, {O_LSE}")
        self("  v_mov_b32 v15, s6")
        self("  s_mov_b64 exec, 1")
        self.mode_store(["buffer_store_dwordx2 v[20:21], v15, s[44:47], 0 offen"])
        self("  s_mov_b64 exec, -1")
        self("  v_and_b32 v15, 7, v0")
        self(f"  v_mul_u32_u24 v15, {BOX}, v15")
        self(f"  s_mul_i32 s6, s4, {GBOX}")
        self(f"  s_add_u32 s6, s6, {O_LSE}")
        self("  v_add_u32 v15, s6, v15")

        def issue_lse():
            self("  buffer_load_dwordx2 v[22:23], v15, s[44:47], 0 offen sc1")
        self.poll_loop("lse", issue_lse, [22, 23], 24, sleep=1)
        self("  v_mov_b32 v18, v22")
        for r in (1, 2, 4):
            self(f"  v_max_f32_dpp v18, v18, v18 row_ror:{r} row_mask:0xf bank_mask:0xf")
        self("  v_sub_f32 v19, v22, v18")
        self(f"  v_mul_f32 v19, {LOG2E}, v19")
        self("  v_exp_f32 v19, v19")
        self("  s_nop 0")
        self("  v_mul_f32 v19, v19, v23")
        for r in (1, 2, 4):
            self(f"  v_add_f32_dpp v19, v19, v19 row_ror:{r} row_mask:0xf bank_mask:0xf")
        self("  v_rcp_f32 v19, v19")
        self("  v_sub_f32 v16, v16, v18")
        self(f"  v_mul_f32 v16, {LOG2E}, v16")
        self("  v_exp_f32 v16, v16")
        self("  s_nop 0")
        self("  v_mul_f32 v16, v16, v19          ; G = exp(M_c - M_h) / L_h")
        self.stamp(6)
        self("  v_lshlrev_b32 v14, 4, v0")
        self.own_box()
        self(f"  s_add_u32 s6, s6, {O_O2}")
        self("  v_lshlrev_b32 v15, 3, v0")
        self("  v_add_u32 v15, s6, v15")
        self(f"  s_mul_i32 s6, s4, {GBOX}")
        self(f"  s_add_u32 s6, s6, {O_O2}")
        GA, LA = [4, 5, 6], [7, 8, 9]
        for i in range(3):
            self(f"  v_add_u32 v17, {64 * i}, v0")
            self("  v_mul_u32_u24 v18, 171, v17")
            self("  v_lshrrev_b32 v18, 12, v18")
            self("  v_mul_u32_u24 v19, 24, v18")
            self("  v_sub_u32 v19, v17, v19           ; chunk")
            self(f"  v_mul_u32_u24 v20, {BOX}, v18")
            self("  v_lshl_add_u32 v20, v19, 4, v20")
            self(f"  v_add_u32 v{GA[i]}, s6, v20")
            self("  v_mul_u32_u24 v20, 400, v18")
            self(f"  v_lshl_add_u32 v{LA[i]}, v19, 4, v20")
        self("  s_mov_b32 exec_hi, 0xffff         ; 48 lanes")
        self("  s_barrier            ; B2")
        self.stamp(9)
        PR = 24
        for w in range(8):
            self(f"  ds_read_b128 v[{PR + 4 * w}:{PR + 4 * w + 3}], v14 offset:{L_PART + 768 * w}")
        for (a_, b_, cnt) in ((0, 1, 6), (2, 3, 4), (0, 2, None), (4, 5, 2), (6, 7, 0), (4, 6, None), (0, 4, None)):
            if cnt is not None:
                self(f"  s_waitcnt lgkmcnt({cnt if not self.stamps else 0})")
            for k in range(4):
                self(f"  v_add_f32 v{PR + 4 * a_ + k}, v{PR + 4 * a_ + k}, v{PR + 4 * b_ + k}")
        for k in range(4):
            self(f"  v_mul_f32 v{PR + k}, v16, v{PR + k}")
        self(f"  v_cvt_pk_bf16_f32 v20, v{PR}, v{PR + 1}")
        self(f"  v_cvt_pk_bf16_f32 v21, v{PR + 2}, v{PR + 3}")
        self("  v_min_u32 v20, -2, v20")
        self("  v_min_u32 v21, -2, v21")
        self.mode_store(["buffer_store_dwordx2 v[20:21], v15, s[44:47], 0 offen"])
        self("  s_mov_b64 exec, -1")
        self.stamp(7)
        AG = 56

        def issueA():
            for i in range(3):
                self(f"  buffer_load_dwordx4 v[{AG + 4 * i}:{AG + 4 * i + 3}], v{GA[i]}, s[44:47], 0 offen sc1")
        if self.pipeA:
            def issueAk(k):
                for i in range(3):
                    b = AG + 12 * k + 4 * i
                    self(f"  buffer_load_dwordx4 v[{b}:{b + 3}], v{GA[i]}, s[44:47], 0 offen sc1")

            def doneA(k):
                self.stamp(8)
                for i in range(3):
                    b = AG + 12 * k + 4 * i
                    self(f"  ds_write_b128 v{LA[i]}, v[{b}:{b + 3}] offset:{L_A}")
            self.poll_pipe("pollA", self.pipeA, 3, issueAk, lambda k: range(AG + 12 * k, AG + 12 * k + 12), 17, doneA)
        else:
            self.poll_loop("pollA", issueA, range(AG, AG + 12), 17)
            self.stamp(8)
            for i in range(3):
                self(f"  ds_write_b128 v{LA[i]}, v[{AG + 4 * i}:{AG + 4 * i + 3}] offset:{L_A}")
        self("  s_waitcnt lgkmcnt(0)")
        self.stamp(10)
        self("  s_barrier            ; B3")
        self("  s_branch L_exit_stamped")

        self("L_h3:")
        self("  s_lshr_b32 s6, s2, 3")
        self("  s_sub_u32 s64, s6, 2             ; fi")
        self("  s_cselect_b32 s66, 0, 1")
        self("  s_cselect_b32 s64, 0, s64")
        self("  s_mul_i32 s6, s64, 26")
        self("  s_lshr_b32 s6, s6, 8             ; l")
        self("  s_mul_i32 s56, s6, 10")
        self("  s_sub_u32 s64, s64, s56          ; m")
        self("  s_and_b32 s65, s2, 7")
        self("  s_mul_i32 s65, s65, 3")
        self("  s_add_u32 s65, s65, s6           ; j")
        self("  v_mov_b32 v16, 0")
        self("  v_mov_b32 v17, 0")
        self("  v_mov_b32 v18, 0")
        self("  v_mov_b32 v19, 0")
        self("  v_lshlrev_b32 v3, 4, v0")
        self("  v_mov_b32 v8, -1")
        self("  v_mov_b32 v9, -1")
        self("  v_mov_b32 v10, -1")
        self("  v_mov_b32 v11, -1")
        self.own_box()
        self("  v_add_u32 v12, s6, v3")
        self("  buffer_store_dwordx4 v[8:11], v12, s[44:47], 0 offen sc1")
        self("  s_mul_i32 s56, s65, 10")
        self("  s_add_u32 s56, s56, s64")
        self(f"  s_mul_i32 s56, s56, {FSTR}")
        self(f"  s_add_u32 s67, s56, {FB_BASE}")
        self("  s_cmp_lg_u32 s66, 0")
        self(f"  s_cselect_b32 s56, s67, {OOB}")
        self("  s_sub_u32 s56, s56, 256")
        self("  v_add_u32 v13, s56, v3")
        self("  v_add_u32 v12, 1024, v12")
        self("  v_cmp_gt_u32 vcc, 16, v0")
        self("  v_cndmask_b32 v12, v13, v12, vcc")
        self("  s_mov_b32 exec_hi, 0xffff")
        self("  buffer_store_dwordx4 v[8:11], v12, s[44:47], 0 offen sc1")
        self("  s_lshl_b32 s6, s5, 2")
        self(f"  s_mul_i32 s6, s6, {SDSTR}")
        self("  s_lshl_b32 s56, s4, 6")
        self("  s_add_u32 s6, s6, s56")
        self(f"  s_add_u32 s6, s6, {SD_BASE}")
        self("  v_mov_b32 v13, s6                ; main")
        self("  s_cmp_ge_u32 s5, 3")
        self("  s_cselect_b32 s7, 36, 32")
        self("  s_cselect_b32 s56, 3, 0")
        self("  s_sub_u32 s56, s5, s56           ; third")
        self(f"  s_mul_i32 s6, s7, {SDSTR}")
        self("  s_mul_i32 s7, s4, 3")
        self("  s_add_u32 s7, s7, s56")
        self("  s_lshl_b32 s7, s7, 6")
        self("  s_add_u32 s6, s6, s7")
        self(f"  s_add_u32 s6, s6, {SD_BASE}")
        self("  s_cmp_ge_u32 s5, 6")
        self(f"  s_cselect_b32 s6, {OOB}, s6")
        self("  v_mov_b32 v14, s6                ; extra")
        self("  s_lshl_b32 s6, s64, 2")
        self(f"  s_mul_i32 s6, s6, {SDSTR}")
        self("  s_lshl_b32 s56, s65, 6")
        self("  s_add_u32 s6, s6, s56")
        self(f"  s_add_u32 s68, s6, {SD_BASE + O_D3}")
        self("  s_cmp_lg_u32 s66, 0")
        self(f"  s_cselect_b32 s6, s68, {OOB}")
        self("  v_mov_b32 v15, s6                ; down")
        self("  v_cmp_gt_u32 vcc, 16, v0")
        self("  v_cndmask_b32 v14, v14, v13, vcc")
        self("  v_cmp_gt_u32 vcc, 32, v0")
        self("  v_cndmask_b32 v13, v15, v14, vcc")
        self("  v_bfe_u32 v14, v0, 2, 2")
        self(f"  v_mul_u32_u24 v14, {SDSTR}, v14")
        self("  v_add_u32 v13, v13, v14")
        self("  v_and_b32 v14, 3, v0")
        self("  v_lshl_add_u32 v13, v14, 4, v13")
        self("  buffer_store_dwordx4 v[8:11], v13, s[44:47], 0 offen sc1")
        self("  s_mov_b32 exec_hi, 0")
        self("  s_mov_b32 exec_lo, 0xff")
        self(f"  ds_write_b128 v3, v[16:19] offset:{L_MODE}")
        self("  s_mov_b64 exec, -1")
        for i in range(5):
            o = f" offset:{256 * i}" if i else ""
            self(f"  buffer_load_dword v{X[i]}, v1, s[32:35], 0 offen{o}")
        self("  s_waitcnt lgkmcnt(0)")
        self("  s_barrier            ; B0")
        self("  s_getreg_b32 s6, hwreg(HW_REG_XCC_ID, 0, 4)")
        self("  s_mul_i32 s56, s6, s6")
        self("  s_lshl_b32 s56, s56, 16")
        self("  s_lshl_b32 s6, s6, 8")
        self("  s_add_u32 s6, s6, s56")
        self("  s_add_u32 s63, s6, 1")
        self("  s_lshl_b32 s6, s4, 3")
        self("  v_mov_b32 v12, s6")
        self("  v_mov_b32 v13, s63")
        self("  v_mov_b32 v14, 0")
        self("  v_mov_b32 v15, 1")
        self("  s_waitcnt vmcnt(5)")
        self("  s_mov_b64 exec, 1")
        self("  buffer_atomic_add v13, v12, s[48:51], 0 offen sc1")
        self(f"  ds_write_b32 v14, v15 offset:{L_CLR}")
        self("  s_mov_b64 exec, -1")
        self.stamp(6)
        self("  s_waitcnt vmcnt(1)")
        self.ln(X, xs, t)
        self.xn_rows(XL, XH, t[0], n=8, base="s64", mul=64)
        self.stamp(1)
        self("  v_lshlrev_b32 v12, 3, v0")
        self("  v_mov_b32 v14, 0")
        Lp = self.lab("cntpoll")
        Lpd = self.lab("cntpolld")
        self("  s_mov_b32 s57, 0")
        if self.poll_delay:
            self(f"  s_sleep {self.poll_delay}")
        self("  s_mov_b32 exec_hi, 0")
        self(f"{Lp}:")
        self("  buffer_load_dword v60, v12, s[48:51], 0 offen sc1")
        self("  s_add_u32 s57, s57, 1")
        self(f"  s_cmp_gt_u32 s57, {SPIN_MAX}")
        self("  s_waitcnt vmcnt(0)")
        self("  v_readlane_b32 s58, v60, s4")
        self(f"  s_cbranch_scc1 {Lpd}")
        self("  s_and_b32 s6, s58, 0xff")
        self("  s_cmp_eq_u32 s6, 8")
        self(f"  s_cbranch_scc0 {Lp}")
        self(f"{Lpd}:")
        self("  s_lshl_b32 s6, s63, 3")
        self("  s_cmp_eq_u32 s58, s6")
        if self.force_slow:
            self("  s_mov_b32 s59, 1")
        else:
            self("  s_cselect_b32 s59, 2, 1")
        self("  v_mov_b32 v13, s59")
        self("  v_and_b32 v61, 0xff, v60")
        self("  v_cmp_ne_u32 vcc, 8, v61")
        self("  s_mov_b64 exec, 1")
        self(f"  ds_write_b32 v14, v13 offset:{L_MODE}")
        self("  s_mov_b64 exec, -1")
        self("  s_mov_b64 s[54:55], vcc")
        self.stamp(3)

        def all_cleared():
            La = self.lab("allcnt")
            Lad = self.lab("allcntd")
            self("  s_cmp_eq_u64 s[54:55], 0")
            self(f"  s_cbranch_scc1 {Lad}")
            self("  s_mov_b32 s57, 0")
            self("  s_mov_b32 exec_hi, 0")
            self(f"{La}:")
            self("  buffer_load_dword v60, v12, s[48:51], 0 offen sc1")
            self("  s_add_u32 s57, s57, 1")
            self(f"  s_cmp_gt_u32 s57, {SPIN_MAX}")
            self("  s_waitcnt vmcnt(0)")
            self(f"  s_cbranch_scc1 {Lad}")
            self("  v_and_b32 v61, 0xff, v60")
            self("  v_cmp_ne_u32 vcc, 8, v61")
            self(f"  s_cbranch_vccnz {La}")
            self(f"{Lad}:")
            self("  v_mov_b32 v13, 1")
            self("  v_mov_b32 v14, 0")
            self("  s_mov_b64 exec, 1")
            self(f"  ds_write_b32 v14, v13 offset:{L_ALL}")
            self("  s_mov_b64 exec, -1")

        Lact = self.lab("ffn")
        self("  s_cmp_lg_u32 s66, 0")
        self(f"  s_cbranch_scc1 {Lact}")
        all_cleared()
        self("  s_waitcnt lgkmcnt(0)")
        self.later_tickets()
        self("  s_branch L_exit_stamped")
        self(f"{Lact}:")
        if self.bulkprio is not None:
            self(f"  s_setprio {self.bulkprio}")
        self("  s_mul_i32 s6, s64, 196608      ; 64*3072*m")
        self("  s_lshl_b32 s56, s65, 7")
        self("  s_add_u32 s6, s6, s56")
        self.srd(36, 20, "s6", 63 * 3072 + 128)
        self.srd(40, 22, "s6", 63 * 3072 + 128)
        self("  v_lshrrev_b32 v2, 3, v0")
        self("  v_and_b32 v3, 7, v0")
        self("  v_mul_u32_u24 v9, 1280, v2")
        self("  v_lshl_add_u32 v9, v3, 4, v9")
        self("  v_mul_u32_u24 v2, 3072, v2")
        self("  v_lshl_add_u32 v2, v3, 4, v2")
        WG, WU = 64, 96
        ntg = ' nt' if self.wnt & 2 else ''
        for i in range(8):
            self(f"  s_mov_b32 s6, {24576 * i}")
            self(f"  buffer_load_dwordx4 v[{WG + 4 * i}:{WG + 4 * i + 3}], v2, s[36:39], s6 offen{ntg}")
        for i in range(8):
            self(f"  s_mov_b32 s6, {24576 * i}")
            self(f"  buffer_load_dwordx4 v[{WU + 4 * i}:{WU + 4 * i + 3}], v2, s[40:43], s6 offen{ntg}")
        self("  s_mul_i32 s6, s65, 81920       ; 64*1280*j")
        self("  s_lshl_b32 s56, s64, 7")
        self("  s_add_u32 s6, s6, s56")
        self.srd(36, 24, "s6", 63 * 1280 + 128)
        GA = list(range(44, 52))
        UA = list(range(52, 60))
        self("  s_waitcnt vmcnt(8)")
        self.gemv64(WG, XL, XH, GA, 8)
        self("  s_waitcnt vmcnt(0)")
        self.stamp(2)
        self.gemv64(WU, XL, XH, UA, 8)
        WD = 64
        ntd = ' nt' if self.wnt & 4 else ''
        for n in range(8):
            self(f"  s_mov_b32 s6, {10240 * n}")
            self(f"  buffer_load_dwordx4 v[{WD + 4 * n}:{WD + 4 * n + 3}], v9, s[36:39], s6 offen{ntd}")
        self.treduce8(GA, t[1])
        self.treduce8(UA, t[2])
        self(f"  v_min_u32 v{t[1]}, -2, v{t[1]}")
        self(f"  v_min_u32 v{t[2]}, -2, v{t[2]}")
        self("  v_add_u32 v15, s67, v1")
        self(f"  buffer_store_dword v{t[1]}, v15, s[44:47], 0 offen sc1")
        self(f"  buffer_store_dword v{t[2]}, v15, s[44:47], 0 offen offset:256 sc1")
        all_cleared()
        self(f"  s_mul_i32 s6, s65, {10 * FSTR}")
        self(f"  s_add_u32 s6, s6, {FB_BASE}")
        self("  v_lshrrev_b32 v14, 5, v0")
        self(f"  v_mul_u32_u24 v14, {FSTR}, v14")
        self("  v_and_b32 v15, 31, v0")
        self("  v_lshl_add_u32 v14, v15, 4, v14")
        self("  v_add_u32 v14, s6, v14")
        self(f"  v_add_u32 v15, {6 * FSTR}, v14")
        G = 128

        def issueF():
            for u in range(5):
                a, o = (14, 2 * FSTR * u) if u < 3 else (15, 2 * FSTR * (u - 3))
                oo = f" offset:{o}" if o else ""
                self(f"  buffer_load_dwordx4 v[{G + 4 * u}:{G + 4 * u + 3}], v{a}, s[44:47], 0 offen{oo} sc1")
        self.poll_loop("pollF", issueF, range(G, G + 20), G + 20, sleep=4)
        self.stamp(4)
        for e in range(4):
            self(f"  v_add_f32 v{G + e}, v{G + e}, v{G + 4 + e}")
            self(f"  v_add_f32 v{G + 8 + e}, v{G + 8 + e}, v{G + 12 + e}")
        for e in range(4):
            self(f"  v_add_f32 v{G + e}, v{G + e}, v{G + 16 + e}")
        for e in range(4):
            self(f"  v_add_f32 v{G + e}, v{G + e}, v{G + 8 + e}")
        for e in range(4):
            self(f"  v_mov_b32 v{G + 4 + e}, v{G + e}")
        for e in range(4):
            self(f"  v_permlane32_swap_b32 v{G + e}, v{G + 4 + e}")
        for e in range(4):
            self(f"  v_add_f32 v{G + e}, v{G + e}, v{G + 4 + e}")
        for e in range(4):
            self(f"  v_mov_b32 v{G + 4 + e}, v{G + e}")
        for e in range(4):
            self(f"  v_permlane16_swap_b32 v{G + e}, v{G + 4 + e}")
        for e in range(4):
            self(f"  v_cvt_pk_bf16_f32 v{G + e}, v{G + e}, v{G + 4 + e}")
        for e in range(4):
            self(f"  v_lshlrev_b32 v{G + 4 + e}, 16, v{G + e}      ; gate")
            self(f"  v_and_b32 v{G + e}, 0xffff0000, v{G + e}    ; up")
        for e in range(4):
            self(f"  v_max_f32 v{G + 4 + e}, 0, v{G + 4 + e}")
        for e in range(4):
            self(f"  v_mul_f32 v{G + e}, v{G + 4 + e}, v{G + e}")
        for e in range(4):
            self(f"  v_cvt_pk_bf16_f32 v{G + e}, v{G + e}, v{G + e}    ; h")
        self("  v_and_b32 v18, 1, v0")
        self("  v_lshlrev_b32 v18, 5, v18")
        self("  v_bfe_u32 v19, v0, 1, 3")
        self("  v_add_u32 v18, v18, v19")
        self("  v_lshlrev_b32 v18, 1, v18")
        self("  s_mov_b32 exec_lo, 0xffff")
        self("  s_mov_b32 exec_hi, 0")
        for e in range(4):
            self(f"  ds_write_b16 v18, v{G + e} offset:{L_HB + 16 * e}")
        self("  s_mov_b64 exec, -1")
        self("  v_lshrrev_b32 v18, 3, v0")
        self("  v_lshlrev_b32 v18, 1, v18")
        self("  s_waitcnt lgkmcnt(0)")
        for i in range(8):
            self(f"  ds_read_u16 v{XL[i]}, v18 offset:{L_HB + 16 * i}")
        self("  v_bfe_u32 v19, v0, 1, 2")
        self(f"  v_mul_u32_u24 v19, {SDSTR}, v19")
        self("  v_and_b32 v20, 1, v0")
        self("  v_lshl_add_u32 v19, v20, 5, v19")
        self("  v_lshrrev_b32 v20, 3, v0")
        self("  v_lshl_add_u32 v19, v20, 2, v19")
        self("  v_add_u32 v19, s68, v19")
        self("  s_waitcnt lgkmcnt(0)")
        for i in range(8):
            self(f"  v_lshlrev_b32 v{XH[i]}, 16, v{XL[i]}")
        self("  s_waitcnt vmcnt(0)")
        self.gemv64(WD, XL, XH, GA, 8)
        self.treduce8(GA, t[1])
        self(f"  v_min_u32 v{t[1]}, -2, v{t[1]}")
        self(f"  buffer_store_dword v{t[1]}, v19, s[44:47], 0 offen sc1")
        self.stamp(5)
        self.later_tickets()
        self("  s_branch L_exit_stamped")

    def final_consumer(self):
        self("  v_mov_b32 v12, 0")
        self("  s_mov_b32 s55, s56")
        self.lds_spin("allc", 12, L_ALL, 13, target=None, sdst="s58", sleep=4)
        self("  s_mul_i32 s7, s5, 5")
        self("  s_add_u32 s55, s55, s7           ; cg")
        self(f"  s_mul_i32 s6, s55, {SDSTR}")
        self(f"  s_add_u32 s6, s6, {SD_BASE}")
        self("  v_lshlrev_b32 v14, 4, v0")
        self("  v_add_u32 v14, s6, v14")
        self(f"  v_add_u32 v13, {O_D3}, v14")
        self("  v_and_b32 v15, 3, v0")
        self("  v_lshlrev_b32 v15, 2, v15")
        self("  v_lshrrev_b32 v16, 5, v0")
        self("  v_lshl_add_u32 v15, v16, 1, v15")
        self("  v_bfe_u32 v16, v0, 4, 1")
        self("  v_add_u32 v15, v15, v16")
        self("  s_lshl_b32 s6, s55, 4")
        self("  v_add_u32 v15, s6, v15")
        self("  v_lshlrev_b32 v15, 1, v15")
        self("  buffer_load_ushort v17, v15, s[32:35], 0 offen")
        self.srd(40, 26, None, 1280)

        def red(base, first=True):
            for k in range(4 if first else 0):
                self(f"  v_add_f32 v{base + k}, v{base + k}, v{base + 4 + k}")
            self(f"  v_permlane32_swap_b32 v{base}, v{base + 2}")
            self(f"  v_permlane32_swap_b32 v{base + 1}, v{base + 3}")
            self(f"  v_add_f32 v{base}, v{base}, v{base + 2}")
            self(f"  v_add_f32 v{base + 1}, v{base + 1}, v{base + 3}")
            self(f"  v_permlane16_swap_b32 v{base}, v{base + 1}")
            self(f"  v_add_f32 v{base}, v{base}, v{base + 1}")
            self(f"  v_add_f32_dpp v{base}, v{base}, v{base} row_ror:4 row_mask:0xf bank_mask:0xf")
            self(f"  v_add_f32_dpp v{base}, v{base}, v{base} row_ror:8 row_mask:0xf bank_mask:0xf")

        for k in range(4):
            self(f"  v_mov_b32 v{28 + k}, 0")

        def issueD():
            self("  buffer_load_dwordx4 v[24:27], v13, s[44:47], 0 offen sc1")
            self("  s_mov_b32 exec_hi, 0")
            self("  buffer_load_dwordx4 v[28:31], v13, s[44:47], 0 offen offset:1024 sc1")
            self("  s_mov_b32 exec_hi, -1")
        if self.lated:
            self("  s_barrier            ; B2")
            self.poll_loop2("pollD", issueD, range(24, 32), 32, lambda: self("  s_barrier            ; B3"), sleep=4)
        else:
            self.poll_loop("pollD", issueD, range(24, 32), 32, sleep=8)
        red(24)
        self("  v_cvt_pk_bf16_f32 v24, v24, v24")
        self("  v_lshlrev_b32 v24, 16, v24")
        self(f"  v_mul_f32 v25, {f2h(-1.4426950408889634)}, v24")
        self("  v_exp_f32 v25, v25")
        self("  s_nop 0")
        self("  v_add_f32 v25, 1.0, v25")
        self("  v_rcp_f32 v25, v25")
        self("  s_nop 0")
        self("  v_mul_f32 v24, v24, v25")
        self("  v_cvt_pk_bf16_f32 v24, v24, v24")
        self("  v_lshlrev_b32 v18, 16, v24          ; g")
        self("  v_lshlrev_b32 v17, 16, v17          ; x")
        self.stamp(6)
        if not self.lated:
            self("  s_barrier            ; B2")
            self("  s_barrier            ; B3")

        def finish(first=True):
            red(24, first)
            self("  v_cvt_pk_bf16_f32 v24, v24, v24")
            self("  v_lshlrev_b32 v24, 16, v24          ; s")
            self("  v_mul_f32 v24, v24, v18")
            self("  v_cvt_pk_bf16_f32 v24, v24, v24")
            self("  v_lshlrev_b32 v24, 16, v24")
            self("  v_add_f32 v24, v17, v24")
            self("  v_cvt_pk_bf16_f32 v24, v24, v24")
            self("  s_mov_b32 exec_lo, 0x000f000f")
            self("  s_mov_b32 exec_hi, 0x000f000f")
            self("  buffer_store_short v24, v15, s[40:43], 0 offen")
            self("  s_mov_b64 exec, -1")
            self.stamp(7)
            self("  s_branch L_exit_stamped")

        Lbig = self.lab("big")
        self("  s_cmp_ge_u32 s55, 32")
        self(f"  s_cbranch_scc1 {Lbig}")

        def issueS():
            self("  buffer_load_dwordx4 v[24:27], v14, s[44:47], 0 offen sc1")
            self("  buffer_load_dwordx4 v[28:31], v14, s[44:47], 0 offen offset:1024 sc1")
        if self.pipeS:
            PS = 48

            def issueSk(k):
                b = PS + 8 * k
                self(f"  buffer_load_dwordx4 v[{b}:{b + 3}], v14, s[44:47], 0 offen sc1")
                self(f"  buffer_load_dwordx4 v[{b + 4}:{b + 7}], v14, s[44:47], 0 offen offset:1024 sc1")

            def doneS(k):
                self.stamp(8)
                b = PS + 8 * k
                for j in range(4):
                    self(f"  v_add_f32 v{24 + j}, v{b + j}, v{b + 4 + j}")
            self.poll_pipe("pollS", self.pipeS, 2, issueSk, lambda k: range(PS + 8 * k, PS + 8 * k + 8), 32, doneS)
            finish(False)
        else:
            self.poll_loop("pollS", issueS, range(24, 32), 32)
            self.stamp(8)
            finish()
        self(f"{Lbig}:")
        self("  v_add_u32 v13, 4096, v14")

        def issueS6():
            for k in range(4):
                o = f" offset:{1024 * k}" if k else ""
                self(f"  buffer_load_dwordx4 v[{24 + 4 * k}:{27 + 4 * k}], v14, s[44:47], 0 offen{o} sc1")
            self("  buffer_load_dwordx4 v[40:43], v13, s[44:47], 0 offen sc1")
            self("  buffer_load_dwordx4 v[44:47], v13, s[44:47], 0 offen offset:1024 sc1")
        if self.pipeS:
            PS = 48
            cfg = (self.pipeS[0], self.pipeS[1], max(self.pipeS[2] - 1, 0))

            def issueS6k(k):
                b = PS + 24 * k
                for j in range(4):
                    o = f" offset:{1024 * j}" if j else ""
                    self(f"  buffer_load_dwordx4 v[{b + 4 * j}:{b + 3 + 4 * j}], v14, s[44:47], 0 offen{o} sc1")
                self(f"  buffer_load_dwordx4 v[{b + 16}:{b + 19}], v13, s[44:47], 0 offen sc1")
                self(f"  buffer_load_dwordx4 v[{b + 20}:{b + 23}], v13, s[44:47], 0 offen offset:1024 sc1")

            def doneS6(k):
                self.stamp(8)
                b = PS + 24 * k
                for j in range(8):
                    self(f"  v_add_f32 v{24 + j}, v{b + j}, v{b + 8 + j}")
                for j in range(8):
                    self(f"  v_add_f32 v{24 + j}, v{24 + j}, v{b + 16 + j}")
            self.poll_pipe("pollS6", cfg, 6, issueS6k, lambda k: range(PS + 24 * k, PS + 24 * k + 24), 32, doneS6)
        else:
            self.poll_loop("pollS6", issueS6, range(24, 48), 48)
            self.stamp(8)
            for k in range(8):
                self(f"  v_add_f32 v{24 + k}, v{24 + k}, v{32 + k}")
            for k in range(8):
                self(f"  v_add_f32 v{24 + k}, v{24 + k}, v{40 + k}")
        finish()

    def epilogue(self):
        self("L_exit_stamped:")
        if self.stamps:
            self.srd(44, 30, None, WS_SIZE)
            self.stamps_out()
        self("L_end:")
        self("  s_endpgm")
        self(f""".section .rodata,"a"
.p2align 6
.amdhsa_kernel {KNAME}
  .amdhsa_next_free_vgpr 168
  .amdhsa_next_free_sgpr 102
  .amdhsa_accum_offset 168
  .amdhsa_group_segment_fixed_size 0
  .amdhsa_kernarg_size 96
  .amdhsa_user_sgpr_count 2
  .amdhsa_user_sgpr_kernarg_segment_ptr 1
  .amdhsa_system_sgpr_workgroup_id_x 1
.end_amdhsa_kernel""")

    def build(self):
        self.prologue()
        self.stream()
        self.helper()
        self.epilogue()
        return fix("\n".join(self.lines) + "\n", verbose=True)


if __name__ == "__main__":
    import argparse
    ap = argparse.ArgumentParser()
    ap.add_argument("-o", default="k.s")
    ap.add_argument("--D", type=int, default=5)
    ap.add_argument("--E", type=int, default=5)
    ap.add_argument("--SB", type=int, default=19)
    ap.add_argument("--stamps", action="store_true")
    ap.add_argument("--slow", action="store_true")
    ap.add_argument("--b0post", action="store_true")
    ap.add_argument("--prio", type=int, default=3)
    ap.add_argument("--dbgst", action="store_true")
    ap.add_argument("--fine", action="store_true")
    ap.add_argument("--ds", default="", help="D schedule: slot:D,slot:D")
    ap.add_argument("--qkn", type=int, default=2)
    ap.add_argument("--wot", type=int, default=0)
    ap.add_argument("--npoll", type=int, default=2)
    ap.add_argument("--bp", type=int, default=None)
    ap.add_argument("--ilv", action="store_true")
    ap.add_argument("--prog", default="")
    ap.add_argument("--latepub", action="store_true")
    ap.add_argument("--pdelay", type=int, default=0)
    ap.add_argument("--adapt", default="", help="lo:hi slots with optional tighter throttle")
    ap.add_argument("--nocnt", type=int, default=0, help="diagnosis only: 1 = no atomic, no polls; 2 = atomic but no polls")
    ap.add_argument("--pgap", type=int, default=8)
    ap.add_argument("--hwid", action="store_true")
    ap.add_argument("--map2", action="store_true")
    ap.add_argument("--kvm", default="", help="c_stride:wave_stride:block_stride (bytes) of the key assignment (needs --ilv)")
    ap.add_argument("--b0late", type=int, default=0)
    ap.add_argument("--hrot", type=int, default=0)
    ap.add_argument("--lated", action="store_true", help="down partials read after B2")
    ap.add_argument("--rshard", type=int, default=0, help="0: tickets among h&3 (64), 1: among id&7 (32)")
    ap.add_argument("--ck", default="", help="slot=ub:n1:d,...;slot=... later checkpoints")
    ap.add_argument("--rank", default="", help="lo:hi rank-adaptive depth (slots)")
    ap.add_argument("--rankp", default="", help="ub:n1:d,... policy per arrival rank")
    ap.add_argument("--pipeS", default="", help="N:gap:gap2 pipelined S3 poll")
    ap.add_argument("--pipeA", default="", help="N:gap:gap2 pipelined O gather poll")
    ap.add_argument("--adaptbit", type=int, default=0)
    ap.add_argument("--kvnt", type=int, default=3, help="nt hint bits: 1 K, 2 V")
    ap.add_argument("--wnt", type=int, default=7, help="nt hint bits: 1 wo, 2 gate/up, 4 down")
    ap.add_argument("--touch", type=int, default=0, help="1: V, 2: wo, 4: FFN weights early page touch")
    ap.add_argument("--rot", default="", help="a:b:w block rotation = h*a + c*b + wave*w")
    a = ap.parse_args()
    g = G(D=a.D, E=a.E, SB=a.SB, stamps=a.stamps, force_slow=a.slow, b0pre=not a.b0post, prio=a.prio, dbgst=a.dbgst, fine=a.fine,
          dsched=[tuple(int(v) for v in p.split(':')) for p in a.ds.split(',') if p], qk_per_slot=a.qkn, wo_throttle=a.wot, npoll=a.npoll, poll_gap=a.pgap, bulkprio=a.bp, ilv=a.ilv, prog=[int(v) for v in a.prog.split(',') if v], early_pub=not a.latepub, poll_delay=a.pdelay, nocnt=a.nocnt, adapt=tuple(int(v) for v in a.adapt.split(':')) if a.adapt else None, hwid=a.hwid, map2=a.map2, kvm=tuple(int(v) for v in a.kvm.split(':')) if a.kvm else None, b0late=a.b0late, hrot=a.hrot, lated=a.lated, rshard=a.rshard, ckp=[(int(c.split('=')[0]), [tuple(int(v) for v in p.split(':')) for p in c.split('=')[1].split(',')]) for c in a.ck.split(';') if c], rankp=[tuple(int(v) for v in p.split(':')) for p in a.rankp.split(',') if p], rank=tuple(int(v) for v in a.rank.split(':')) if a.rank else None, pipeS=tuple(int(v) for v in a.pipeS.split(':')) if a.pipeS else None, pipeA=tuple(int(v) for v in a.pipeA.split(':')) if a.pipeA else None, adaptbit=a.adaptbit, kvnt=a.kvnt, wnt=a.wnt, touch=a.touch, rot=tuple(int(v) for v in a.rot.split(':')) if a.rot else None)
    open(a.o, "w").write(g.build())
```

```python
import sys, struct
sys.path.insert(0, "dev")
from hz import fix

KNAME = "recurrent_scan__sliding_block_cached__glu_gated_reglu__decode_kernel"


def f2h(x):
    return "0x%08x" % struct.unpack("<I", struct.pack("<f", x))[0]


LOG2E = f2h(1.4426950408889634)
SCALE = f2h(192 ** -0.5)
INV640 = f2h(1.0 / 640)
EPS = f2h(1e-5)

BOX = 1280
GBOX = 8 * BOX
O_H1 = 0
O_O2 = 768
O_LSE = 1152
FB_BASE = 327680
FSTR = 768
SD_BASE = 524288
SDSTR = 8448
O_D3 = 6144
OOB = 0x70000000
STAMP_BASE = 1 << 20
WS_SIZE = 2 << 20

L_Q = 0
L_MODE = 384
L_CNT = 388
L_QF = 392
L_CLR = 396
L_M = 400
L_L = 432
L_XN = 1280
L_HB = 2560
L_ALL = 464
L_RANK = 468
L_PROG = 472
L_WOK = 476
L_PARTS = 480
L_WO = 4096
L_WO2 = L_WO + 192 * 128
L_PART = L_WO2 + 64 * 128
L_A = L_PART + 8 * 768
LDS_BYTES = L_A + 8 * 400

SPIN_MAX = 30000


class G:
    def __init__(self, D=5, E=5, SB=19, stamps=False, force_slow=False, wo_slot=32, b0pre=True, prio=3, dbgst=False, fine=False, dsched=(), qk_per_slot=2, wo_throttle=0, npoll=2, poll_gap=8, bulkprio=None, ilv=False, prog=(), early_pub=True, poll_delay=0, nocnt=0, adapt=None, hwid=False, map2=False, rot=None, touch=0, wnt=7, kvnt=3, b0late=0, kvm=None, hrot=0, adaptbit=0, pipeS=None, pipeA=None, rank=None, rankp=None, ckp=(), rshard=0, lated=False, wol=None):
        self.kvm = kvm or ((196608, 1536, 12288) if ilv else (196608, 24576, 1536))
        self.b0late = b0late
        self.hrot = hrot
        self.rank = rank
        self.lated = lated
        self.wol = wol
        self.nob2 = bool(wol and len(wol) > 3 and wol[3])
        self.rshard = rshard
        self.ckp = list(ckp)
        self.rankp = rankp
        self.pipeS = pipeS
        self.pipeA = pipeA
        self.adaptbit = adaptbit
        self.kvnt = kvnt
        self.wnt = wnt
        self.touch = touch
        self.map2 = map2
        self.rot = rot
        self.hwid = hwid
        self.adapt = adapt
        self.nocnt = nocnt
        self.early_pub = early_pub
        self.poll_delay = poll_delay
        self.prog = list(prog)
        self.ilv = ilv
        self.bulkprio = bulkprio
        self.wo_throttle = wo_throttle
        self.npoll = npoll
        self.poll_gap = poll_gap
        self.dsched = list(dsched)
        self.qk_per_slot = qk_per_slot
        self.dbgst = dbgst
        self.fine = fine
        self.in_stream = False
        self.prio = prio
        self.b0pre = b0pre
        self.D, self.E, self.SB = D, E, SB
        self.stamps = stamps
        self.force_slow = force_slow
        self.wo_slot = wo_slot
        self.lines = []
        self.uid = 0
        self.vm = []

    def Dof(self, i):
        for (slot, d) in reversed(self.dsched):
            if i >= slot:
                return d
        return self.D

    def __call__(self, s=""):
        for l in s.split("\n"):
            self.lines.append(l)

    def lab(self, base):
        self.uid += 1
        return f"L_{base}_{self.uid}"

    def vm_reset(self):
        self.vm = []

    def vm_issue(self, tag):
        self.vm.append(tag)

    def vm_wait(self, tag):
        idx = [i for i, t in enumerate(self.vm) if t == tag]
        if not idx:
            return
        last = idx[-1]
        n = len(self.vm) - 1 - last
        assert n <= 63
        self(f"  s_waitcnt vmcnt({n})")
        self.vm = self.vm[last + 1:]

    def stamp(self, i):
        if self.prog and self.in_stream and i != 0:
            return
        if self.stamps and not (self.fine and self.in_stream and i in (1, 2, 3, 5, 6, 7)):
            self(f"  s_memrealtime s[{70 + 2 * i}:{71 + 2 * i}]")

    def fstamp(self, i, clk=False):
        if self.stamps and self.fine:
            op = "s_memtime" if clk else "s_memrealtime"
            self(f"  {op} s[{70 + 2 * i}:{71 + 2 * i}]")

    def stamps_out(self):
        if not self.stamps:
            return
        self("  s_waitcnt lgkmcnt(0) vmcnt(0)")
        self("  s_mul_i32 s6, s2, 12")
        self("  s_add_u32 s6, s6, s3")
        self("  s_lshl_b32 s6, s6, 6")
        self(f"  s_add_u32 s6, s6, {STAMP_BASE}")
        self("  v_mov_b32 v2, s6")
        for i in range(12):
            self(f"  v_mov_b32 v{4 + i}, s{70 + 2 * i}")
        self("  s_mov_b64 exec, 1")
        self("  buffer_store_dwordx4 v[4:7], v2, s[44:47], 0 offen")
        self("  buffer_store_dwordx4 v[8:11], v2, s[44:47], 0 offen offset:16")
        self("  buffer_store_dwordx4 v[12:15], v2, s[44:47], 0 offen offset:32")
        if self.dbgst:
            self("  s_load_dwordx2 s[6:7], s[0:1], 80")
            self("  s_waitcnt lgkmcnt(0)")
            self.srd(48, 6, None, 256)
            for (wg, wv, lst) in ((0, 0, ((0, 1), (2, 3), (4, 5))), (8, 9, ((0, 7), (6, 9), (7, 11))), (255, 0, ((0, 13), (4, 15)))):
                Ls = self.lab("dbgskip")
                self(f"  s_cmp_eq_u32 s2, {wg}")
                self(f"  s_cbranch_scc0 {Ls}")
                self(f"  s_cmp_eq_u32 s3, {wv}")
                self(f"  s_cbranch_scc0 {Ls}")
                for (st, dw) in lst:
                    self(f"  v_mov_b32 v2, {4 * dw}")
                    self(f"  buffer_store_dword v{4 + st}, v2, s[48:51], 0 offen")
                self(f"{Ls}:")
        self("  s_mov_b64 exec, -1")

    def srd(self, s, base_lo, off, nrec):
        if off is None:
            self(f"  s_mov_b32 s{s}, s{base_lo}")
            self(f"  s_mov_b32 s{s + 1}, s{base_lo + 1}")
        else:
            self(f"  s_add_u32 s{s}, s{base_lo}, {off}")
            self(f"  s_addc_u32 s{s + 1}, s{base_lo + 1}, 0")
        self(f"  s_mov_b32 s{s + 2}, {nrec}")
        self(f"  s_mov_b32 s{s + 3}, 0x20000")

    def allreduce(self, op, v, t):
        for r in (1, 2, 4, 8):
            self(f"  {op}_dpp v{v}, v{v}, v{v} row_ror:{r} row_mask:0xf bank_mask:0xf")
        self(f"  v_mov_b32 v{t}, v{v}")
        self(f"  v_permlane16_swap_b32 v{v}, v{t}")
        self(f"  {op} v{v}, v{v}, v{t}")
        self(f"  v_mov_b32 v{t}, v{v}")
        self(f"  v_permlane32_swap_b32 v{v}, v{t}")
        self(f"  {op} v{v}, v{v}, v{t}")

    def cross_rows(self, op, v, t):
        self(f"  v_mov_b32 v{t}, v{v}")
        self(f"  v_permlane16_swap_b32 v{v}, v{t}")
        self(f"  {op} v{v}, v{v}, v{t}")
        self(f"  v_mov_b32 v{t}, v{v}")
        self(f"  v_permlane32_swap_b32 v{v}, v{t}")
        self(f"  {op} v{v}, v{v}, v{t}")

    def treduce8(self, A, T):
        for a in range(4):
            self(f"  v_permlane32_swap_b32 v{A[a]}, v{A[a + 4]}")
        for a in range(4):
            self(f"  v_add_f32 v{A[a]}, v{A[a]}, v{A[a + 4]}")
        for a in range(2):
            self(f"  v_permlane16_swap_b32 v{A[a]}, v{A[a + 2]}")
        for a in range(2):
            self(f"  v_add_f32 v{A[a]}, v{A[a]}, v{A[a + 2]}")
        self(f"  v_add_f32_dpp v{T}, v{A[0]}, v{A[0]} row_ror:8 row_mask:0xf bank_mask:0x3")
        self(f"  v_add_f32_dpp v{T}, v{A[1]}, v{A[1]} row_ror:8 row_mask:0xf bank_mask:0xc")

    def treduce4rows(self, A, out_pairs=None):
        n = len(A) // 4
        for k in range(n):
            a = A[4 * k:4 * k + 4]
            self(f"  v_permlane32_swap_b32 v{a[0]}, v{a[2]}")
            self(f"  v_permlane32_swap_b32 v{a[1]}, v{a[3]}")
        for k in range(n):
            a = A[4 * k:4 * k + 4]
            self(f"  v_add_f32 v{a[0]}, v{a[0]}, v{a[2]}")
            self(f"  v_add_f32 v{a[1]}, v{a[1]}, v{a[3]}")
        for k in range(n):
            a = A[4 * k:4 * k + 4]
            self(f"  v_permlane16_swap_b32 v{a[0]}, v{a[1]}")
        for k in range(n):
            a = A[4 * k:4 * k + 4]
            self(f"  v_add_f32 v{a[0]}, v{a[0]}, v{a[1]}")
        return [A[4 * k] for k in range(n)]

    def sentinel_check(self, regs, t):
        regs = list(regs)
        if len(regs) == 1:
            self(f"  v_cmp_eq_u32 vcc, -1, v{regs[0]}")
            return
        if len(regs) == 2:
            self(f"  v_max_u32 v{t}, v{regs[0]}, v{regs[1]}")
            regs = []
        else:
            self(f"  v_max3_u32 v{t}, v{regs[0]}, v{regs[1]}, v{regs[2]}")
            regs = regs[3:]
        while regs:
            if len(regs) >= 2:
                self(f"  v_max3_u32 v{t}, v{t}, v{regs[0]}, v{regs[1]}")
                regs = regs[2:]
            else:
                self(f"  v_max_u32 v{t}, v{t}, v{regs[0]}")
                regs = regs[1:]
        self(f"  v_cmp_eq_u32 vcc, -1, v{t}")

    def poll_loop(self, name, issue, regs, t, sleep=0):
        L = self.lab(name)
        Ld = self.lab(name + "d")
        self("  s_mov_b32 s57, 0")
        self(f"{L}:")
        issue()
        self("  s_waitcnt vmcnt(0)")
        self.sentinel_check(regs, t)
        self("  s_add_u32 s57, s57, 1")
        self(f"  s_cmp_gt_u32 s57, {SPIN_MAX}")
        self(f"  s_cbranch_scc1 {Ld}")
        if sleep:
            self(f"  s_cbranch_vccz {Ld}")
            self(f"  s_sleep {sleep}")
            self(f"  s_branch {L}")
        else:
            self(f"  s_cbranch_vccnz {L}")
        self(f"{Ld}:")

    def poll_loop2(self, name, issue, regs, t, between, sleep=0):
        L = self.lab(name)
        Ld = self.lab(name + "d")
        self("  s_mov_b32 s57, 0")
        issue()
        between()
        self(f"{L}:")
        self("  s_waitcnt vmcnt(0)")
        self.sentinel_check(regs, t)
        self("  s_add_u32 s57, s57, 1")
        self(f"  s_cmp_gt_u32 s57, {SPIN_MAX}")
        self(f"  s_cbranch_scc1 {Ld}")
        self(f"  s_cbranch_vccz {Ld}")
        if sleep:
            self(f"  s_sleep {sleep}")
        issue()
        self(f"  s_branch {L}")
        self(f"{Ld}:")

    def poll_pipe(self, name, cfg, nl, issue, regs, t, done):
        N, gap, gap2 = cfg
        L = self.lab(name)
        Lj = self.lab(name + "j")
        Ls = [self.lab(name + f"d{k}") for k in range(N)]
        self("  s_mov_b32 s57, 0")
        for k in range(N):
            issue(k)
            if gap and k < N - 1:
                self(f"  s_sleep {gap}")
        self(f"{L}:")
        for k in range(N):
            self(f"  s_waitcnt vmcnt({(N - 1) * nl})")
            self.sentinel_check(regs(k), t)
            self(f"  s_cbranch_vccz {Ls[k]}")
            issue(k)
            if gap2:
                self(f"  s_sleep {gap2}")
        self("  s_add_u32 s57, s57, 1")
        self(f"  s_cmp_gt_u32 s57, {SPIN_MAX // N}")
        self(f"  s_cbranch_scc0 {L}")
        for k in range(N):
            self(f"{Ls[k]}:")
            done(k)
            if k < N - 1:
                self(f"  s_branch {Lj}")
        self(f"{Lj}:")

    def lds_spin(self, name, addr_v, off, t, target=None, sdst="s58", sleep=1):
        L = self.lab(name)
        Ld = self.lab(name + "d")
        self("  s_mov_b32 s57, 0")
        self(f"{L}:")
        self(f"  ds_read_b32 v{t}, v{addr_v} offset:{off}")
        self("  s_waitcnt lgkmcnt(0)")
        self(f"  v_readfirstlane_b32 {sdst}, v{t}")
        self("  s_add_u32 s57, s57, 1")
        self(f"  s_cmp_gt_u32 s57, {SPIN_MAX * 8}")
        self(f"  s_cbranch_scc1 {Ld}")
        if target is None:
            self(f"  s_cmp_lg_u32 {sdst}, 0")
        else:
            self(f"  s_cmp_eq_u32 {sdst}, {target}")
        self(f"  s_cbranch_scc1 {Ld}")
        if sleep:
            self(f"  s_sleep {sleep}")
        self(f"  s_branch {L}")
        self(f"{Ld}:")

    def mode_store(self, instr):
        Lf = self.lab("fast")
        Lj = self.lab("join")
        self("  s_cmp_eq_u32 s59, 2")
        self(f"  s_cbranch_scc1 {Lf}")
        for i in instr:
            self(f"  {i} sc1")
        self(f"  s_branch {Lj}")
        self(f"{Lf}:")
        for i in instr:
            self(f"  {i}")
        self(f"{Lj}:")

    def prologue(self):
        self(f"""; Fused decode step: LN -> q -> sliding-window attention (split over 8 WGs per head) -> wo,
; @launch grid=(256,1,1) block=(768,1,1) lds={LDS_BYTES}
.amdgcn_target "amdgcn-amd-amdhsa--gfx950"
.text
.globl {KNAME}
.p2align 8
.type {KNAME},@function
{KNAME}:
  s_cmp_ge_u32 s2, 256
  s_cbranch_scc1 L_end""")
        self.stamp(0)
        if self.hwid:
            self("  s_getreg_b32 s88, hwreg(HW_REG_HW_ID)")
            self("  s_getreg_b32 s90, hwreg(HW_REG_XCC_ID)")
        self(f"""  s_load_dwordx16 s[8:23], s[0:1], 0
  s_load_dwordx8 s[24:31], s[0:1], 64
  v_readfirstlane_b32 s3, v0
  v_and_b32 v0, 63, v0
  s_lshr_b32 s3, s3, 6
  s_add_u32 s4, s2, {self.hrot}
  s_and_b32 s4, s4, 7
  s_lshl_b32 s4, s4, 2""" if self.hrot else f"""  s_load_dwordx16 s[8:23], s[0:1], 0
  s_load_dwordx8 s[24:31], s[0:1], 64
  v_readfirstlane_b32 s3, v0
  v_and_b32 v0, 63, v0
  s_lshr_b32 s3, s3, 6
  s_and_b32 s4, s2, 7
  s_lshl_b32 s4, s4, 2""")
        if self.map2:
            self("""  s_lshr_b32 s5, s2, 6
  s_add_u32 s4, s4, s5          ; h
  s_lshr_b32 s5, s2, 3
  s_and_b32 s5, s5, 7           ; c""")
        else:
            self("""  s_lshr_b32 s5, s2, 3
  s_and_b32 s5, s5, 3
  s_add_u32 s4, s4, s5          ; h
  s_lshr_b32 s5, s2, 5          ; c""")
        self("""  s_cmp_ge_u32 s3, 8
  s_cbranch_scc1 L_helper""")

    def stream(self):
        self.in_stream = True
        D, E, SB = self.D, self.E, self.SB
        Q = list(range(4, 10))
        A = list(range(10, 22))
        P = list(range(22, 26))
        T = [26, 27]
        U = list(range(28, 32))
        PL = list(range(32, 36))
        PH = list(range(36, 40))
        t0, t1 = 40, 41
        RING = 42
        nbuf = 16 + E

        def kbuf(b):
            return RING + 6 * b

        def vbuf(j):
            return RING + 6 * (16 + j) if j < E else RING + 6 * (j - E)

        self(f"""  ; ---------------- stream waves ----------------
  s_mul_i32 s6, s4, 12582912
  s_mul_i32 s7, s5, {self.kvm[0]}
  s_add_u32 s6, s6, s7
  s_add_u32 s6, s6, {28672 * 384}
  s_mul_i32 s7, s3, {self.kvm[1]}
  v_lshrrev_b32 v3, 4, v0
  v_and_b32 v2, 15, v0
  v_mul_u32_u24 v3, 384, v3
  v_add_u32 v3, s7, v3
  v_lshl_add_u32 v1, v2, 4, v3      ; x4 offset
  v_lshl_add_u32 v2, v2, 3, v3
  v_add_u32 v2, 256, v2             ; x2 offset""")
        for k in range(1, 6):
            self(f"  s_mov_b32 s{59 + k}, {4608 * k}")
        if self.rot:
            self(f"  s_mul_i32 s66, s4, {self.rot[0]}")
            self(f"  s_mul_i32 s7, s5, {self.rot[1]}")
            self("  s_add_u32 s66, s66, s7")
            self(f"  s_mul_i32 s7, s3, {self.rot[2]}")
            self("  s_add_u32 s66, s66, s7")
        if self.adapt:
            self(f"  s_lshr_b32 s65, s2, {self.adaptbit}")
            self("  s_and_b32 s65, s65, 1")
        if self.rank:
            self("  s_mov_b32 s67, 0")
            self("  s_mov_b32 s66, 0")
        self("  s_waitcnt lgkmcnt(0)")
        nrec = 1572864 - 7 * self.kvm[0]
        self.srd(32, 10, "s6", nrec)
        self.srd(36, 12, "s6", nrec)
        self.vm_reset()

        def issue(i):
            t, b = (0, i) if i < 16 else (1, i - 16)
            srd = "s[32:35]" if t == 0 else "s[36:39]"
            r = kbuf(b) if t == 0 else vbuf(b)
            so = "0" if b < 3 else f"s{59 + b // 3}"
            imm = 1536 * (b % 3)
            if self.ilv:
                imm = 0
                so = "0" if b == 0 else "s60"
                if self.rot:
                    so = "s60"
                    self(f"  s_add_u32 s60, s66, {b}")
                    self("  s_and_b32 s60, s60, 15")
                    self(f"  s_mul_i32 s60, s60, {self.kvm[2]}")
                elif b:
                    self(f"  s_mov_b32 s60, {self.kvm[2] * b}")
            o = f" offset:{imm}" if imm else ""
            nt = " nt" if self.kvnt & (1 << t) else ""
            self(f"  buffer_load_dwordx4 v[{r}:{r + 3}], v1, {srd}, {so} offen{o}{nt}")
            self(f"  buffer_load_dwordx2 v[{r + 4}:{r + 5}], v2, {srd}, {so} offen{o}{nt}")
            self.vm_issue(("L", i))
            self.vm_issue(("L", i))

        def qk_group(g):
            bs = [kbuf(4 * g + k) for k in range(4)]
            for i in range(6):
                for k in range(4):
                    c = "0" if i == 0 else f"v{P[k]}"
                    self(f"  v_dot2_f32_bf16 v{P[k]}, v{bs[k] + i}, v{Q[i]}, {c}")
            self(f"  v_add_f32_dpp v{T[0]}, v{P[0]}, v{P[0]} row_ror:8 row_mask:0xf bank_mask:0x3")
            self(f"  v_add_f32_dpp v{T[1]}, v{P[1]}, v{P[1]} row_ror:8 row_mask:0xf bank_mask:0x3")
            self(f"  v_add_f32_dpp v{T[0]}, v{P[2]}, v{P[2]} row_ror:8 row_mask:0xf bank_mask:0xc")
            self(f"  v_add_f32_dpp v{T[1]}, v{P[3]}, v{P[3]} row_ror:8 row_mask:0xf bank_mask:0xc")
            self(f"  v_add_f32_dpp v{U[g]}, v{T[0]}, v{T[0]} row_shl:4 row_mask:0xf bank_mask:0x5")
            self(f"  v_add_f32_dpp v{U[g]}, v{T[1]}, v{T[1]} row_shr:4 row_mask:0xf bank_mask:0xa")
            self(f"  v_add_f32_dpp v{U[g]}, v{U[g]}, v{U[g]} quad_perm:[1,0,3,2] row_mask:0xf bank_mask:0xf")
            self(f"  v_add_f32_dpp v{U[g]}, v{U[g]}, v{U[g]} quad_perm:[2,3,0,1] row_mask:0xf bank_mask:0xf")

        def softmax():
            self(f"  v_cvt_pk_bf16_f32 v{P[0]}, v{U[0]}, v{U[1]}")
            self(f"  v_cvt_pk_bf16_f32 v{P[1]}, v{U[2]}, v{U[3]}")
            self(f"  v_lshlrev_b32 v{U[0]}, 16, v{P[0]}")
            self(f"  v_and_b32 v{U[1]}, 0xffff0000, v{P[0]}")
            self(f"  v_lshlrev_b32 v{U[2]}, 16, v{P[1]}")
            self(f"  v_and_b32 v{U[3]}, 0xffff0000, v{P[1]}")
            for g in range(4):
                self(f"  v_mul_f32 v{U[g]}, {SCALE}, v{U[g]}")
            self(f"  v_cvt_pk_bf16_f32 v{P[0]}, v{U[0]}, v{U[1]}")
            self(f"  v_cvt_pk_bf16_f32 v{P[1]}, v{U[2]}, v{U[3]}")
            self(f"  v_lshlrev_b32 v{U[0]}, 16, v{P[0]}")
            self(f"  v_and_b32 v{U[1]}, 0xffff0000, v{P[0]}")
            self(f"  v_lshlrev_b32 v{U[2]}, 16, v{P[1]}")
            self(f"  v_and_b32 v{U[3]}, 0xffff0000, v{P[1]}")
            self(f"  v_max3_f32 v{t0}, v{U[0]}, v{U[1]}, v{U[2]}")
            self(f"  v_max_f32 v{t0}, v{t0}, v{U[3]}")
            self(f"  v_max_f32_dpp v{t0}, v{t0}, v{t0} row_ror:4 row_mask:0xf bank_mask:0xf")
            self(f"  v_max_f32_dpp v{t0}, v{t0}, v{t0} row_ror:8 row_mask:0xf bank_mask:0xf")
            self.cross_rows("v_max_f32", t0, t1)
            for g in range(4):
                self(f"  v_sub_f32 v{U[g]}, v{U[g]}, v{t0}")
            for g in range(4):
                self(f"  v_mul_f32 v{U[g]}, {LOG2E}, v{U[g]}")
            for g in range(4):
                self(f"  v_exp_f32 v{U[g]}, v{U[g]}")
            self("  s_nop 0")
            for g in range(4):
                self(f"  v_cvt_pk_bf16_f32 v{PL[g]}, v{U[g]}, 0")
                self(f"  v_cvt_pk_bf16_f32 v{PH[g]}, 0, v{U[g]}")
            self(f"  v_add_f32 v{T[0]}, v{U[0]}, v{U[1]}")
            self(f"  v_add_f32 v{T[1]}, v{U[2]}, v{U[3]}")
            self(f"  v_add_f32 v{T[0]}, v{T[0]}, v{T[1]}")
            self(f"  v_add_f32_dpp v{T[0]}, v{T[0]}, v{T[0]} row_ror:4 row_mask:0xf bank_mask:0xf")
            self(f"  v_add_f32_dpp v{T[0]}, v{T[0]}, v{T[0]} row_ror:8 row_mask:0xf bank_mask:0xf")
            self.cross_rows("v_add_f32", T[0], t1)
            self(f"  s_lshl_b32 s6, s3, 2")
            self(f"  v_mov_b32 v{t1}, s6")
            self(f"  v_mov_b32 v{T[1]}, 1")
            self(f"  v_mov_b32 v{P[0]}, 0")
            self("  s_mov_b64 exec, 1")
            self(f"  ds_write_b32 v{t1}, v{t0} offset:{L_M}")
            self(f"  ds_write_b32 v{t1}, v{T[0]} offset:{L_L}")
            self("  s_waitcnt lgkmcnt(0)")
            self(f"  ds_add_u32 v{P[0]}, v{T[1]} offset:{L_CNT}")
            self("  s_mov_b64 exec, -1")
            for a in A:
                self(f"  v_mov_b32 v{a}, 0")

        def pv(j):
            g, k = j // 4, j % 4
            r = vbuf(j)
            for i in range(6):
                self(f"  v_dot2c_f32_bf16_dpp v{A[2 * i]}, v{PL[g]}, v{r + i} row_newbcast:{4 * k} row_mask:0xf bank_mask:0xf")
                self(f"  v_dot2c_f32_bf16_dpp v{A[2 * i + 1]}, v{PH[g]}, v{r + i} row_newbcast:{4 * k} row_mask:0xf bank_mask:0xf")

        qk_next = 0
        sm_done = False
        pv_next = 0
        landed = -1
        MO, FF, PA0, PA1 = 4, 5, 6, 7

        if self.touch & 9:
            self(f"  s_mul_i32 s7, s3, 196608")
            self(f"  v_mov_b32 v{t1}, s7")
            self("  s_mov_b64 exec, 1")
            if self.touch & 1:
                self(f"  buffer_load_dword v{t0}, v{t1}, s[36:39], 0 offen")
                self.vm_issue(("T", 0))
            if self.touch & 8:
                self(f"  buffer_load_dword v{T[0]}, v{t1}, s[32:35], 0 offen")
                self.vm_issue(("T", 1))
            self("  s_mov_b64 exec, -1")
        if not self.b0late:
            self("  s_barrier            ; B0")
        for i in range(32):
            Di = self.Dof(i)
            rk = self.rank and self.rank[0] <= i < self.rank[1]
            if rk:
                self("  v_mov_b32 v3, 0")
                self(f"  ds_read_b32 v3, v3 offset:{L_RANK}")
            if i - Di > landed:
                self.vm_wait(("L", i - Di))
                landed = i - Di
            if rk:
                def cnt_for(blk):
                    idx = [k for k, tg in enumerate(self.vm) if tg == ("L", blk)]
                    return len(self.vm) - 1 - idx[-1]
                Ls = self.lab("rk")
                Lh = self.lab("rkh")
                Le = self.lab("rke")
                self("  s_waitcnt lgkmcnt(0)")
                self("  v_readfirstlane_b32 s65, v3")
                self("  s_cmp_eq_u32 s65, s67")
                self(f"  s_cbranch_scc1 {Lh}")
                self("  s_mov_b32 s67, s65")
                self("  s_and_b32 s66, s65, 0xff")
                self(f"{Lh}:")
                self("  s_bitcmp1_b32 s67, 8")
                self(f"  s_cbranch_scc1 {Ls}")
                self(f"  s_waitcnt vmcnt({cnt_for(i - Di + 1)})")
                self("  s_cmp_eq_u32 s66, 0")
                self(f"  s_cbranch_scc1 {Le}")
                self("  s_sub_u32 s66, s66, 1")
                self(f"  s_waitcnt vmcnt({cnt_for(i - Di + 3)})")
                self(f"{Le}:")
                self("  s_bitcmp1_b32 s67, 10")
                self(f"  s_cbranch_scc0 {Ls}")
                self(f"  s_waitcnt vmcnt({cnt_for(i - Di + 2)})")
                self(f"{Ls}:")
            if self.adapt and self.adapt[0] <= i < self.adapt[1]:
                tag = ("L", i - (Di - 1))
                idx = [k for k, tg in enumerate(self.vm) if tg == tag]
                if idx:
                    n = len(self.vm) - 1 - idx[-1]
                    Ls = self.lab("deep")
                    self("  s_cmp_lg_u32 s65, 0")
                    self(f"  s_cbranch_scc1 {Ls}")
                    self(f"  s_waitcnt vmcnt({n})")
                    self(f"{Ls}:")
            if i >= 16 and (i - 16) >= E:
                need_g = (i - 16 - E) // 4
                assert qk_next > need_g, f"schedule: V{i - 16} needs QK group {need_g} (slot {i})"
            if self.prog and self.stamps and i in self.prog:
                k = 1 + self.prog.index(i)
                self(f"  s_memrealtime s[{70 + 2 * k}:{71 + 2 * k}]")
            issue(i)
            if any(i == c[0] for c in self.ckp) or (self.wol and i == self.wol[0]):
                assert sm_done
                self("  v_mov_b32 v8, 0")
                self("  v_mov_b32 v9, 1")
                self("  s_mov_b64 exec, 1")
                self(f"  ds_add_u32 v8, v9 offset:{L_PROG}")
                self("  s_mov_b64 exec, -1")
            if self.b0late and i == self.b0late - 1:
                self("  s_barrier            ; B0")
            if i == SB:
                self.stamp(1)
                self(f"  v_mov_b32 v{t1}, 0")
                self.lds_spin("qf", t1, L_QF, t0, target=3, sdst="s58", sleep=1)
                self.stamp(2)
                self(f"  v_and_b32 v{t0}, 15, v0")
                self(f"  v_lshlrev_b32 v{t1}, 4, v{t0}")
                self(f"  v_lshlrev_b32 v{t0}, 3, v{t0}")
                self(f"  ds_read_b128 v[{Q[0]}:{Q[3]}], v{t1} offset:{L_Q}")
                self(f"  ds_read_b64 v[{Q[4]}:{Q[5]}], v{t0} offset:{L_Q + 256}")
                self("  s_waitcnt lgkmcnt(0)")
            if i >= SB:
                n = 0
                while qk_next < 4 and 4 * qk_next + 3 <= landed and n < self.qk_per_slot:
                    qk_group(qk_next)
                    qk_next += 1
                    n += 1
                if qk_next == 4 and not sm_done:
                    softmax()
                    self(f"  v_mov_b32 v{MO}, v{t0}")
                    sm_done = True
                    self.stamp(3)
                elif sm_done:
                    n = 0
                    while pv_next < 16 and 16 + pv_next <= landed and n < 3:
                        pv(pv_next)
                        pv_next += 1
                        n += 1
        assert sm_done
        self(f"  v_mov_b32 v{t1}, 0")
        self.lds_spin("cnt8", t1, L_CNT, t0, target=8, sdst="s58", sleep=1)
        self(f"  v_and_b32 v{t1}, 7, v0")
        self(f"  v_lshlrev_b32 v{t1}, 2, v{t1}")
        self(f"  ds_read_b32 v{t0}, v{t1} offset:{L_M}")
        self(f"  v_and_b32 v{P[0]}, 15, v0")
        self(f"  v_lshrrev_b32 v{P[1]}, 4, v0")
        self(f"  v_lshlrev_b32 v{P[1]}, 2, v{P[1]}")
        self("  s_mul_i32 s6, s3, 768")
        self(f"  v_add_u32 v{P[1]}, s6, v{P[1]}")
        self(f"  v_lshl_add_u32 v{PA0}, v{P[0]}, 5, v{P[1]}")
        self(f"  v_lshl_add_u32 v{PA1}, v{P[0]}, 4, v{P[1]}")
        self("  s_waitcnt lgkmcnt(0)")
        for r in (1, 2, 4):
            self(f"  v_max_f32_dpp v{t0}, v{t0}, v{t0} row_ror:{r} row_mask:0xf bank_mask:0xf")
        self(f"  v_sub_f32 v{FF}, v{MO}, v{t0}")
        self(f"  v_mul_f32 v{FF}, {LOG2E}, v{FF}")
        self(f"  v_exp_f32 v{FF}, v{FF}")
        for j in range(pv_next, 16):
            self.vm_wait(("L", 16 + j))
            if j == 15:
                self.stamp(4)
                if self.prog and self.stamps:
                    self(f"  s_memrealtime s[92:93]")
            pv(j)
        R = self.treduce4rows(A)
        for r in R:
            self(f"  v_mul_f32 v{r}, v{FF}, v{r}")
        self(f"  ds_write_b32 v{PA0}, v{R[0]} offset:{L_PART}")
        self(f"  ds_write_b32 v{PA0}, v{R[1]} offset:{L_PART + 16}")
        self(f"  ds_write_b32 v{PA1}, v{R[2]} offset:{L_PART + 512}")
        if self.nob2:
            self("  s_mov_b64 exec, 1")
            self(f"  ds_add_u32 v8, v9 offset:{L_PARTS}")
            self("  s_mov_b64 exec, -1")
        Bf = RING
        Af = RING + 24
        Dd = RING + 48
        aB, aA, aS = RING + 52, RING + 53, RING + 54
        self(f"  v_lshrrev_b32 v{P[0]}, 4, v0          ; g")
        self(f"  v_bfe_u32 v{P[2]}, v0, 2, 2           ; r4")
        self(f"  v_and_b32 v{P[3]}, 3, v0              ; cq")
        self(f"  v_lshl_add_u32 v{aB}, v{P[0]}, 3, v{P[2]}   ; 8g + r4")
        self(f"  v_lshlrev_b32 v{aB}, 7, v{aB}")
        self("  s_and_b32 s6, s3, 3           ; tile")
        self("  s_lshl_b32 s7, s6, 1")
        self(f"  v_lshrrev_b32 v{aA}, 1, v{P[3]}")
        self(f"  v_add_u32 v{aA}, s7, v{aA}")
        self(f"  v_lshlrev_b32 v{aS}, 1, v{P[2]}")
        self(f"  v_xor_b32 v{aA}, v{aA}, v{aS}")
        self(f"  v_lshl_add_u32 v{aB}, v{aA}, 4, v{aB}")
        self(f"  v_and_b32 v{aA}, 1, v{P[3]}")
        self(f"  v_lshl_add_u32 v{aB}, v{aA}, 3, v{aB}")
        self(f"  v_and_b32 v{aA}, 7, v0")
        self(f"  v_mul_u32_u24 v{aA}, 400, v{aA}")
        self(f"  v_lshl_add_u32 v{aA}, v{P[0]}, 4, v{aA}")
        self(f"  v_lshlrev_b32 v{aS}, 2, v0")
        for d in range(4):
            self(f"  v_mov_b32 v{Dd + d}, 0")
        self.srd(44, 30, None, WS_SIZE)
        self("  s_waitcnt lgkmcnt(0)")
        self.stamp(5)
        self("  s_cmp_ge_u32 s3, 4")
        self("  s_cbranch_scc1 L_tail_extra")

        def tail_part(nk, wo_off):
            if not self.nob2:
                self("  s_barrier")
            if self.wol:
                self(f"  v_mov_b32 v{t1}, 0")
                self.lds_spin("wok", t1, L_WOK, t0, target=None, sdst="s58", sleep=1 if self.nob2 else 0)
            for k in range(nk):
                self(f"  ds_read_b64_tr_b16 v[{Bf + 4 * k}:{Bf + 4 * k + 1}], v{aB} offset:{wo_off + 4096 * k}")
                self(f"  ds_read_b64_tr_b16 v[{Bf + 4 * k + 2}:{Bf + 4 * k + 3}], v{aB} offset:{wo_off + 4096 * k + 512}")
            self(f"  v_add_u32 v{aS}, s6, v{aS}")
            self("  s_waitcnt lgkmcnt(0)")
            self("  s_barrier")
            for k in range(nk):
                self(f"  ds_read_b128 v[{Af + 4 * k}:{Af + 4 * k + 3}], v{aA} offset:{L_A + 64 * k}")
            self.stamp(6)
            for k in range(nk):
                if self.stamps:
                    if k == 0:
                        self("  s_waitcnt lgkmcnt(0)")
                else:
                    self(f"  s_waitcnt lgkmcnt({nk - 1 - k})")
                self(f"  v_mfma_f32_16x16x32_bf16 v[{Dd}:{Dd + 3}], v[{Af + 4 * k}:{Af + 4 * k + 3}], v[{Bf + 4 * k}:{Bf + 4 * k + 3}], v[{Dd}:{Dd + 3}]")
            self(f"  v_add_f32 v{Dd}, v{Dd}, v{Dd + 1}")
            self(f"  v_add_f32 v{Dd + 2}, v{Dd + 2}, v{Dd + 3}")
            self(f"  v_add_f32 v{Dd}, v{Dd}, v{Dd + 2}")
            self(f"  v_mov_b32 v{t0}, v{Dd}")
            self(f"  v_permlane16_swap_b32 v{Dd}, v{t0}")
            self(f"  v_add_f32 v{Dd}, v{Dd}, v{t0}")
            self(f"  v_min_u32 v{Dd}, -2, v{Dd}")
            self("  s_mov_b32 exec_lo, 0xffff")
            self("  s_mov_b32 exec_hi, 0")
            self(f"  buffer_store_dword v{Dd}, v{aS}, s[44:47], 0 offen sc1")
            self("  s_mov_b64 exec, -1")
            self.stamp(7)
            self("  s_branch L_exit_stamped")

        self("  s_lshl_b32 s7, s5, 2")
        self("  s_add_u32 s6, s6, s7")
        self(f"  s_mul_i32 s6, s6, {SDSTR}")
        self("  s_lshl_b32 s7, s4, 6")
        self("  s_add_u32 s6, s6, s7")
        self(f"  s_add_u32 s6, s6, {SD_BASE}")
        tail_part(6, L_WO)
        self("L_tail_extra:")
        self("  s_cmp_ge_u32 s5, 6")
        self("  s_cbranch_scc1 L_exit_stamped")
        self("  s_cmp_ge_u32 s5, 3")
        self("  s_cselect_b32 s7, 4, 0        ; 4e")
        self("  s_cselect_b32 s56, 3, 0")
        self("  s_sub_u32 s56, s5, s56        ; third")
        self("  s_add_u32 s6, s6, s7")
        self("  s_add_u32 s6, s6, 32")
        self(f"  s_mul_i32 s6, s6, {SDSTR}")
        self("  s_mul_i32 s7, s4, 3")
        self("  s_add_u32 s7, s7, s56")
        self("  s_lshl_b32 s7, s7, 6")
        self("  s_add_u32 s6, s6, s7")
        self(f"  s_add_u32 s6, s6, {SD_BASE}")
        self("  s_lshl_b32 s7, s56, 7")
        self(f"  v_add_u32 v{aA}, s7, v{aA}")
        tail_part(2, L_WO2)

    def ln(self, X, xs, t):
        for i in range(5):
            self(f"  v_lshlrev_b32 v{xs[2 * i]}, 16, v{X[i]}")
            self(f"  v_and_b32 v{xs[2 * i + 1]}, 0xffff0000, v{X[i]}")
        s, u, m = t[0], t[1], t[2]
        self(f"  v_add_f32 v{s}, v{xs[0]}, v{xs[1]}")
        for i in range(2, 10):
            self(f"  v_add_f32 v{s}, v{s}, v{xs[i]}")
        self.allreduce("v_add_f32", s, u)
        self(f"  v_mul_f32 v{m}, {INV640}, v{s}")
        self(f"  v_sub_f32 v{u}, v{xs[0]}, v{m}")
        self(f"  v_mul_f32 v{s}, v{u}, v{u}")
        for i in range(1, 10):
            self(f"  v_sub_f32 v{u}, v{xs[i]}, v{m}")
            self(f"  v_fmac_f32 v{s}, v{u}, v{u}")
        self.allreduce("v_add_f32", s, u)
        self(f"  v_mul_f32 v{s}, {INV640}, v{s}          ; var")
        self(f"  v_cvt_pk_bf16_f32 v{u}, v{s}, v{m}")
        self(f"  v_lshlrev_b32 v{s}, 16, v{u}            ; bf16(var)")
        self(f"  v_and_b32 v{m}, 0xffff0000, v{u}        ; bf16(mean)")
        self(f"  v_add_f32 v{s}, {EPS}, v{s}")
        self(f"  v_cvt_pk_bf16_f32 v{s}, v{s}, v{s}")
        self(f"  v_lshlrev_b32 v{s}, 16, v{s}")
        self(f"  v_sqrt_f32 v{s}, v{s}")
        self("  s_nop 0")
        self(f"  v_cvt_pk_bf16_f32 v{s}, v{s}, v{s}")
        self(f"  v_lshlrev_b32 v{s}, 16, v{s}")
        self(f"  v_rcp_f32 v{s}, v{s}")
        for i in range(10):
            self(f"  v_sub_f32 v{xs[i]}, v{xs[i]}, v{m}")
        for i in range(5):
            self(f"  v_cvt_pk_bf16_f32 v{X[i]}, v{xs[2 * i]}, v{xs[2 * i + 1]}")
        for i in range(5):
            self(f"  v_lshlrev_b32 v{xs[2 * i]}, 16, v{X[i]}")
            self(f"  v_and_b32 v{xs[2 * i + 1]}, 0xffff0000, v{X[i]}")
        for i in range(10):
            self(f"  v_mul_f32 v{xs[i]}, v{xs[i]}, v{s}")
        for i in range(5):
            self(f"  v_cvt_pk_bf16_f32 v{X[i]}, v{xs[2 * i]}, v{xs[2 * i + 1]}")
        self(f"  v_lshlrev_b32 v{u}, 2, v0")
        for i in range(5):
            self(f"  ds_write_b32 v{u}, v{X[i]} offset:{L_XN + 256 * i}")

    def xn_rows(self, XL, XH, t, n=10, base="s5", mul=80):
        self(f"  v_lshrrev_b32 v{t}, 3, v0")
        self(f"  s_mul_i32 s6, {base}, {mul}")
        self(f"  v_add_u32 v{t}, s6, v{t}")
        self(f"  v_lshlrev_b32 v{t}, 1, v{t}")
        self("  s_waitcnt lgkmcnt(0)")
        for i in range(n):
            self(f"  ds_read_u16 v{XL[i]}, v{t} offset:{L_XN + 16 * i}")
        self("  s_waitcnt lgkmcnt(0)")
        for i in range(n):
            self(f"  v_lshlrev_b32 v{XH[i]}, 16, v{XL[i]}")

    def gemv64(self, W, XL, XH, ACC, n):
        for i in range(n):
            for k in range(4):
                c0 = "0" if i == 0 else f"v{ACC[2 * k]}"
                c1 = "0" if i == 0 else f"v{ACC[2 * k + 1]}"
                self(f"  v_dot2_f32_bf16 v{ACC[2 * k]}, v{W + 4 * i + k}, v{XL[i]}, {c0}")
                self(f"  v_dot2_f32_bf16 v{ACC[2 * k + 1]}, v{W + 4 * i + k}, v{XH[i]}, {c1}")

    def gather_h1(self, nparts, dst, addr):
        def issue():
            for p in range(nparts):
                for c in range(8):
                    so = ["0", "s60", "s61", "s62"][c // 2]
                    imm = BOX * (c % 2) + 256 * p
                    o = f" offset:{imm}" if imm else ""
                    self(f"  buffer_load_dword v{dst[p * 8 + c]}, v{addr}, s[44:47], {so} offen{o} sc1")
        self.poll_loop("h1", issue, dst[:nparts * 8], dst[nparts * 8], sleep=2)

    def ticket(self, k, pol, vz):
        if self.rshard == 0:
            self("  s_and_b32 s6, s4, 3")
            self("  s_lshl_b32 s6, s6, 6")
        else:
            self("  s_lshr_b32 s6, s4, 2")
            self("  s_lshl_b32 s6, s6, 5")
        self(f"  s_add_u32 s6, s6, {4 + 8 * k}")
        self("  v_mov_b32 v15, s6")
        self("  v_mov_b32 v16, 1")
        self("  s_mov_b64 exec, 1")
        self("  buffer_atomic_add v16, v15, s[48:51], 0 offen sc0 sc1")
        self("  s_waitcnt vmcnt(0)")
        self("  v_readfirstlane_b32 s6, v16")
        word = lambda n1, d: 512 | (k << 12) | n1 | (256 if d == 4 else 0) | (1024 if d == 2 else 0)
        self(f"  s_mov_b32 s56, {word(*pol[-1][1:])}")
        for (ub, n1, d) in reversed(pol[:-1]):
            self(f"  s_cmp_lt_u32 s6, {ub}")
            self(f"  s_cselect_b32 s56, {word(n1, d)}, s56")
        self("  v_mov_b32 v16, s56")
        self(f"  ds_write_b32 v{vz}, v16 offset:{L_RANK}")
        self("  s_mov_b64 exec, -1")

    def later_tickets(self):
        for k, (slot, pol) in enumerate(self.ckp):
            L = self.lab("ck")
            Ld = self.lab("ckd")
            self("  v_mov_b32 v12, 0")
            self("  s_mov_b32 s57, 0")
            self(f"{L}:")
            self(f"  ds_read_b32 v13, v12 offset:{L_PROG}")
            self("  s_waitcnt lgkmcnt(0)")
            self("  v_readfirstlane_b32 s58, v13")
            self("  s_add_u32 s57, s57, 1")
            self(f"  s_cmp_gt_u32 s57, {SPIN_MAX * 8}")
            self(f"  s_cbranch_scc1 {Ld}")
            self(f"  s_cmp_ge_u32 s58, {8 * (k + 1)}")
            self(f"  s_cbranch_scc1 {Ld}")
            self("  s_sleep 2")
            self(f"  s_branch {L}")
            self(f"{Ld}:")
            self.ticket(k + 1, pol, 12)

    def own_box(self, dst="s6", tmp="s56"):
        self(f"  s_mul_i32 {dst}, s4, {GBOX}")
        self(f"  s_mul_i32 {tmp}, s5, {BOX}")
        self(f"  s_add_u32 {dst}, {dst}, {tmp}")

    def helper(self):
        self.in_stream = False
        X = list(range(4, 9))
        xs = list(range(10, 20))
        t = [20, 21, 22, 23]
        XL = list(range(24, 34))
        XH = list(range(34, 44))
        ACC = list(range(44, 60))
        W = 64
        self("L_helper:")
        if self.prio:
            self(f"  s_setprio {self.prio}")
        self("  s_sub_u32 s7, s3, 8")
        self("  v_lshlrev_b32 v1, 2, v0       ; 4*lane")
        self(f"  s_mov_b32 s60, {2 * BOX}")
        self(f"  s_mov_b32 s61, {4 * BOX}")
        self(f"  s_mov_b32 s62, {6 * BOX}")
        self("  s_waitcnt lgkmcnt(0)")
        self.srd(32, 8, None, 1280)
        self.srd(44, 30, None, WS_SIZE)
        self.srd(48, 28, None, 256)
        self("  s_cmp_eq_u32 s3, 11")
        self("  s_cbranch_scc1 L_h3")
        self("  s_mul_i32 s6, s5, 983040      ; 80*12288*c")
        self("  s_mul_i32 s56, s4, 384")
        self("  s_add_u32 s6, s6, s56")
        self.srd(36, 14, "s6", 79 * 12288 + 384)
        self(f"  v_lshrrev_b32 v2, 3, v0")
        self(f"  v_mul_u32_u24 v2, 12288, v2")
        self(f"  v_and_b32 v3, 7, v0")
        self(f"  v_lshl_add_u32 v2, v3, 4, v2")
        self("  s_lshl_b32 s6, s7, 7")
        self(f"  v_add_u32 v2, s6, v2")
        for i in range(5):
            o = f" offset:{256 * i}" if i else ""
            self(f"  buffer_load_dword v{X[i]}, v1, s[32:35], 0 offen{o}")
        for i in range(10):
            self(f"  s_mov_b32 s6, {98304 * i}")
            self(f"  buffer_load_dwordx4 v[{W + 4 * i}:{W + 4 * i + 3}], v2, s[36:39], s6 offen nt")
        if self.touch & 2:
            self("  s_mul_i32 s6, s4, 245760      ; 192*1280*h")
            self("  s_mul_i32 s56, s5, 160")
            self("  s_add_u32 s6, s6, s56")
            self.srd(40, 16, "s6", 191 * 1280 + 160)
            self("  s_mul_i32 s6, s7, 81920")
            self("  v_mov_b32 v3, s6")
            self("  s_mov_b64 exec, 1")
            self("  buffer_load_dword v60, v3, s[40:43], 0 offen")
            self("  s_mov_b64 exec, -1")
        self("  s_barrier            ; B0")
        self(f"  s_waitcnt vmcnt({11 if self.touch & 2 else 10})")
        self.ln(X, xs, t)
        self.xn_rows(XL, XH, t[0])
        self.stamp(1)
        self("  s_waitcnt vmcnt(0)")
        self.stamp(2)
        for i in range(10):
            for k in range(4):
                c0 = "0" if i == 0 else f"v{ACC[2 * k]}"
                c1 = "0" if i == 0 else f"v{ACC[2 * k + 1]}"
                self(f"  v_dot2_f32_bf16 v{ACC[2 * k]}, v{W + 4 * i + k}, v{XL[i]}, {c0}")
                self(f"  v_dot2_f32_bf16 v{ACC[2 * k + 1]}, v{W + 4 * i + k}, v{XH[i]}, {c1}")
        self.treduce8(ACC[:8], t[1])
        self(f"  v_min_u32 v{t[1]}, -2, v{t[1]}")
        self(f"  s_mul_i32 s6, s4, {GBOX}")
        self("  s_lshl_b32 s56, s7, 8")
        self("  s_add_u32 s6, s6, s56")
        self(f"  v_add_u32 v14, s6, v1")
        self(f"  s_mul_i32 s56, s5, {BOX}")
        self("  v_add_u32 v15, s56, v14")
        self(f"  v_mov_b32 v12, 0")
        if self.early_pub:
            self.lds_spin("clr", 12, L_CLR, 13, target=None, sdst="s58")
            self(f"  buffer_store_dword v{t[1]}, v15, s[44:47], 0 offen sc1")
            self.lds_spin("mode", 12, L_MODE, 13, target=None, sdst="s59")
        else:
            self.lds_spin("mode", 12, L_MODE, 13, target=None, sdst="s59")
            self.mode_store([f"buffer_store_dword v{t[1]}, v15, s[44:47], 0 offen"])
        self.stamp(3)
        G8 = list(range(64, 73))
        self.gather_h1(1, G8, 14)
        self.stamp(4)
        self(f"  v_add_f32 v{G8[0]}, v{G8[0]}, v{G8[1]}")
        self(f"  v_add_f32 v{G8[2]}, v{G8[2]}, v{G8[3]}")
        self(f"  v_add_f32 v{G8[4]}, v{G8[4]}, v{G8[5]}")
        self(f"  v_add_f32 v{G8[6]}, v{G8[6]}, v{G8[7]}")
        self(f"  v_add_f32 v{G8[0]}, v{G8[0]}, v{G8[2]}")
        self(f"  v_add_f32 v{G8[4]}, v{G8[4]}, v{G8[6]}")
        self(f"  v_add_f32 v{G8[0]}, v{G8[0]}, v{G8[4]}")
        self(f"  v_cvt_pk_bf16_f32 v{G8[0]}, v{G8[0]}, v{G8[0]}")
        self("  v_and_b32 v16, 7, v0")
        self("  v_lshrrev_b32 v17, 3, v0")
        self("  v_lshl_add_u32 v16, v16, 3, v17")
        self("  s_lshl_b32 s6, s7, 6")
        self("  v_add_u32 v16, s6, v16")
        self("  v_lshlrev_b32 v16, 1, v16")
        self(f"  ds_write_b16 v16, v{G8[0]} offset:{L_Q}")
        self("  v_mov_b32 v13, 1")
        self("  s_waitcnt lgkmcnt(0)")
        self("  s_mov_b64 exec, 1")
        self(f"  ds_add_u32 v12, v13 offset:{L_QF}")
        self("  s_mov_b64 exec, -1")
        self.stamp(5)
        self("  s_cmp_eq_u32 s3, 8")
        self("  s_cbranch_scc1 L_h0")
        self("  s_cmp_eq_u32 s3, 10")
        self("  s_cbranch_scc1 L_h2")
        self("  s_mov_b32 s56, -1")
        for tt in range(5):
            self(f"  s_cmp_eq_u32 s4, {6 * tt + 1}")
            self(f"  s_cselect_b32 s56, {tt}, s56")
        self("  s_cmp_eq_u32 s56, -1")
        self("  s_cbranch_scc1 L_exit_stamped")
        self.final_consumer()

        self("L_h2:")
        if self.bulkprio is not None:
            self(f"  s_setprio {self.bulkprio}")
        self("  s_mul_i32 s6, s4, 245760      ; 192*1280*h")
        self("  s_lshl_b32 s56, s5, 7")
        self("  s_add_u32 s6, s6, s56")
        self.srd(40, 16, "s6", 191 * 1280 + 128)
        self("  v_lshrrev_b32 v2, 3, v0")
        self("  v_and_b32 v3, 3, v2")
        self("  v_lshlrev_b32 v3, 1, v3")
        self("  v_and_b32 v4, 7, v0")
        self("  v_xor_b32 v3, v3, v4")
        self("  v_mul_u32_u24 v2, 1280, v2")
        self("  v_lshl_add_u32 v2, v3, 4, v2")
        self("  s_mov_b32 s6, 0")
        self(f"  s_mov_b32 m0, {L_WO}")
        nt = ' nt' if self.wnt & 1 else ''
        def wo_loop(name, n, srd, thr):
            self(f"{name}:")
            self(f"  buffer_load_dwordx4 v2, {srd}, s6 offen{nt} lds")
            self("  s_add_u32 m0, m0, 1024")
            self("  s_add_u32 s6, s6, 10240")
            if thr:
                self(f"  s_waitcnt vmcnt({thr})")
            self(f"  s_cmp_lt_u32 s6, {10240 * n}")
            self(f"  s_cbranch_scc1 {name}")

        def extra_srd():
            self("  s_cmp_ge_u32 s5, 3")
            self("  s_cselect_b32 s7, 128, 0")
            self("  s_cselect_b32 s56, 3, 0")
            self("  s_sub_u32 s56, s5, s56        ; third")
            self("  s_mul_i32 s56, s56, 81920     ; 64*1280")
            self("  s_add_u32 s7, s7, s56")
            self("  s_mul_i32 s6, s4, 245760")
            self("  s_add_u32 s6, s6, s7")
            self("  s_add_u32 s6, s6, 1024")
            self.srd(52, 16, "s6", 63 * 1280 + 128)
        if not self.wol:
            wo_loop("L_wo_loop", 24, "s[40:43]", self.wo_throttle)
            self("  s_cmp_ge_u32 s5, 6")
            self("  s_cbranch_scc1 L_wo_done")
            extra_srd()
            self("  s_mov_b32 s6, 0")
            wo_loop("L_wo2_loop", 8, "s[52:55]", self.wo_throttle)
        else:
            wl = list(self.wol) + [0, 0, 0, 0, 2, 0][len(self.wol) - 2:]
            X_, N_, T_, _, K0, xe, slp, pr = wl[:8]
            extra_srd()
            if xe:
                self("  s_cmp_ge_u32 s5, 6")
                self("  s_cbranch_scc1 L_wo2_skip")
                self(f"  s_mov_b32 m0, {L_WO2}")
                self("  s_mov_b32 s6, 0")
                wo_loop("L_wo2_loop", 8, "s[52:55]", self.wo_throttle)
                self("L_wo2_skip:")
            self(f"  s_mov_b32 m0, {L_WO}")
            self("  s_mov_b32 s6, 0")
            if K0:
                wo_loop("L_wo0_loop", K0, "s[40:43]", self.wo_throttle)
            Lw = self.lab("wol")
            Lwd = self.lab("wold")
            self("  v_mov_b32 v12, 0")
            self("  s_mov_b32 s57, 0")
            if pr:
                self(f"  s_setprio {pr}")
            self(f"{Lw}:")
            self(f"  ds_read_b32 v13, v12 offset:{L_PROG}")
            self("  s_waitcnt lgkmcnt(0)")
            self("  v_readfirstlane_b32 s58, v13")
            self("  s_add_u32 s57, s57, 1")
            self(f"  s_cmp_gt_u32 s57, {SPIN_MAX * 8}")
            self(f"  s_cbranch_scc1 {Lwd}")
            self(f"  s_cmp_ge_u32 s58, {N_}")
            self(f"  s_cbranch_scc1 {Lwd}")
            if slp:
                self(f"  s_sleep {slp}")
            self(f"  s_branch {Lw}")
            self(f"{Lwd}:")
            self.stamp(7)
            wo_loop("L_wo_loop", 24, "s[40:43]", T_)
            if not xe:
                self("  s_cmp_ge_u32 s5, 6")
                self("  s_cbranch_scc1 L_wo_done")
                self("  s_mov_b32 s6, 0")
                wo_loop("L_wo2_loop", 8, "s[52:55]", T_)
        self("L_wo_done:")
        if self.wol:
            self.stamp(8)
            if not self.nob2:
                self("  s_barrier            ; B2")
        self("  s_waitcnt vmcnt(0)")
        if self.wol:
            self("  v_mov_b32 v13, 1")
            self("  s_mov_b64 exec, 1")
            self(f"  ds_write_b32 v12, v13 offset:{L_WOK}")
            self("  s_mov_b64 exec, -1")
        self.stamp(6)
        self("  s_branch L_exit_stamped")

        self("L_h0:")
        self("  v_mov_b32 v12, 0")
        self.lds_spin("cnt", 12, L_CNT, 13, target=8, sdst="s58", sleep=2)
        if self.rank:
            self.ticket(0, self.rankp, 12)
        self("  v_and_b32 v14, 7, v0")
        self("  v_lshlrev_b32 v14, 2, v14")
        self(f"  ds_read_b32 v16, v14 offset:{L_M}")
        self(f"  ds_read_b32 v17, v14 offset:{L_L}")
        self("  s_waitcnt lgkmcnt(0)")
        self("  v_mov_b32 v18, v16")
        for r in (1, 2, 4):
            self(f"  v_max_f32_dpp v18, v18, v18 row_ror:{r} row_mask:0xf bank_mask:0xf")
        self("  v_sub_f32 v19, v16, v18")
        self(f"  v_mul_f32 v19, {LOG2E}, v19")
        self("  v_exp_f32 v19, v19")
        self("  s_nop 0")
        self("  v_mul_f32 v19, v19, v17")
        for r in (1, 2, 4):
            self(f"  v_add_f32_dpp v19, v19, v19 row_ror:{r} row_mask:0xf bank_mask:0xf")
        self("  v_min_u32 v20, -2, v18")
        self("  v_min_u32 v21, -2, v19")
        self("  v_mov_b32 v16, v18                ; M_c")
        self.own_box()
        self(f"  s_add_u32 s6, s6, {O_LSE}")
        self("  v_mov_b32 v15, s6")
        self("  s_mov_b64 exec, 1")
        self.mode_store(["buffer_store_dwordx2 v[20:21], v15, s[44:47], 0 offen"])
        self("  s_mov_b64 exec, -1")
        self("  v_and_b32 v15, 7, v0")
        self(f"  v_mul_u32_u24 v15, {BOX}, v15")
        self(f"  s_mul_i32 s6, s4, {GBOX}")
        self(f"  s_add_u32 s6, s6, {O_LSE}")
        self("  v_add_u32 v15, s6, v15")

        def issue_lse():
            self("  buffer_load_dwordx2 v[22:23], v15, s[44:47], 0 offen sc1")
        self.poll_loop("lse", issue_lse, [22, 23], 24, sleep=1)
        self("  v_mov_b32 v18, v22")
        for r in (1, 2, 4):
            self(f"  v_max_f32_dpp v18, v18, v18 row_ror:{r} row_mask:0xf bank_mask:0xf")
        self("  v_sub_f32 v19, v22, v18")
        self(f"  v_mul_f32 v19, {LOG2E}, v19")
        self("  v_exp_f32 v19, v19")
        self("  s_nop 0")
        self("  v_mul_f32 v19, v19, v23")
        for r in (1, 2, 4):
            self(f"  v_add_f32_dpp v19, v19, v19 row_ror:{r} row_mask:0xf bank_mask:0xf")
        self("  v_rcp_f32 v19, v19")
        self("  v_sub_f32 v16, v16, v18")
        self(f"  v_mul_f32 v16, {LOG2E}, v16")
        self("  v_exp_f32 v16, v16")
        self("  s_nop 0")
        self("  v_mul_f32 v16, v16, v19          ; G = exp(M_c - M_h) / L_h")
        self.stamp(6)
        self("  v_lshlrev_b32 v14, 4, v0")
        self.own_box()
        self(f"  s_add_u32 s6, s6, {O_O2}")
        self("  v_lshlrev_b32 v15, 3, v0")
        self("  v_add_u32 v15, s6, v15")
        self(f"  s_mul_i32 s6, s4, {GBOX}")
        self(f"  s_add_u32 s6, s6, {O_O2}")
        GA, LA = [4, 5, 6], [7, 8, 9]
        for i in range(3):
            self(f"  v_add_u32 v17, {64 * i}, v0")
            self("  v_mul_u32_u24 v18, 171, v17")
            self("  v_lshrrev_b32 v18, 12, v18")
            self("  v_mul_u32_u24 v19, 24, v18")
            self("  v_sub_u32 v19, v17, v19           ; chunk")
            self(f"  v_mul_u32_u24 v20, {BOX}, v18")
            self("  v_lshl_add_u32 v20, v19, 4, v20")
            self(f"  v_add_u32 v{GA[i]}, s6, v20")
            self("  v_mul_u32_u24 v20, 400, v18")
            self(f"  v_lshl_add_u32 v{LA[i]}, v19, 4, v20")
        self("  s_mov_b32 exec_hi, 0xffff         ; 48 lanes")
        if self.nob2:
            self("  v_mov_b32 v12, 0")
            self.lds_spin("parts", 12, L_PARTS, 13, target=8, sdst="s58", sleep=0)
        else:
            self("  s_barrier            ; B2")
        self.stamp(9)
        PR = 24
        for w in range(8):
            self(f"  ds_read_b128 v[{PR + 4 * w}:{PR + 4 * w + 3}], v14 offset:{L_PART + 768 * w}")
        for (a_, b_, cnt) in ((0, 1, 6), (2, 3, 4), (0, 2, None), (4, 5, 2), (6, 7, 0), (4, 6, None), (0, 4, None)):
            if cnt is not None:
                self(f"  s_waitcnt lgkmcnt({cnt if not self.stamps else 0})")
            for k in range(4):
                self(f"  v_add_f32 v{PR + 4 * a_ + k}, v{PR + 4 * a_ + k}, v{PR + 4 * b_ + k}")
        for k in range(4):
            self(f"  v_mul_f32 v{PR + k}, v16, v{PR + k}")
        self(f"  v_cvt_pk_bf16_f32 v20, v{PR}, v{PR + 1}")
        self(f"  v_cvt_pk_bf16_f32 v21, v{PR + 2}, v{PR + 3}")
        self("  v_min_u32 v20, -2, v20")
        self("  v_min_u32 v21, -2, v21")
        self.mode_store(["buffer_store_dwordx2 v[20:21], v15, s[44:47], 0 offen"])
        self("  s_mov_b64 exec, -1")
        self.stamp(7)
        AG = 56

        def issueA():
            for i in range(3):
                self(f"  buffer_load_dwordx4 v[{AG + 4 * i}:{AG + 4 * i + 3}], v{GA[i]}, s[44:47], 0 offen sc1")
        if self.pipeA:
            def issueAk(k):
                for i in range(3):
                    b = AG + 12 * k + 4 * i
                    self(f"  buffer_load_dwordx4 v[{b}:{b + 3}], v{GA[i]}, s[44:47], 0 offen sc1")

            def doneA(k):
                self.stamp(8)
                for i in range(3):
                    b = AG + 12 * k + 4 * i
                    self(f"  ds_write_b128 v{LA[i]}, v[{b}:{b + 3}] offset:{L_A}")
            self.poll_pipe("pollA", self.pipeA, 3, issueAk, lambda k: range(AG + 12 * k, AG + 12 * k + 12), 17, doneA)
        else:
            self.poll_loop("pollA", issueA, range(AG, AG + 12), 17)
            self.stamp(8)
            for i in range(3):
                self(f"  ds_write_b128 v{LA[i]}, v[{AG + 4 * i}:{AG + 4 * i + 3}] offset:{L_A}")
        self("  s_waitcnt lgkmcnt(0)")
        self.stamp(10)
        self("  s_barrier            ; B3")
        self("  s_branch L_exit_stamped")

        self("L_h3:")
        self("  s_lshr_b32 s6, s2, 3")
        self("  s_sub_u32 s64, s6, 2             ; fi")
        self("  s_cselect_b32 s66, 0, 1")
        self("  s_cselect_b32 s64, 0, s64")
        self("  s_mul_i32 s6, s64, 26")
        self("  s_lshr_b32 s6, s6, 8             ; l")
        self("  s_mul_i32 s56, s6, 10")
        self("  s_sub_u32 s64, s64, s56          ; m")
        self("  s_and_b32 s65, s2, 7")
        self("  s_mul_i32 s65, s65, 3")
        self("  s_add_u32 s65, s65, s6           ; j")
        self("  v_mov_b32 v16, 0")
        self("  v_mov_b32 v17, 0")
        self("  v_mov_b32 v18, 0")
        self("  v_mov_b32 v19, 0")
        self("  v_lshlrev_b32 v3, 4, v0")
        self("  v_mov_b32 v8, -1")
        self("  v_mov_b32 v9, -1")
        self("  v_mov_b32 v10, -1")
        self("  v_mov_b32 v11, -1")
        self.own_box()
        self("  v_add_u32 v12, s6, v3")
        self("  buffer_store_dwordx4 v[8:11], v12, s[44:47], 0 offen sc1")
        self("  s_mul_i32 s56, s65, 10")
        self("  s_add_u32 s56, s56, s64")
        self(f"  s_mul_i32 s56, s56, {FSTR}")
        self(f"  s_add_u32 s67, s56, {FB_BASE}")
        self("  s_cmp_lg_u32 s66, 0")
        self(f"  s_cselect_b32 s56, s67, {OOB}")
        self("  s_sub_u32 s56, s56, 256")
        self("  v_add_u32 v13, s56, v3")
        self("  v_add_u32 v12, 1024, v12")
        self("  v_cmp_gt_u32 vcc, 16, v0")
        self("  v_cndmask_b32 v12, v13, v12, vcc")
        self("  s_mov_b32 exec_hi, 0xffff")
        self("  buffer_store_dwordx4 v[8:11], v12, s[44:47], 0 offen sc1")
        self("  s_lshl_b32 s6, s5, 2")
        self(f"  s_mul_i32 s6, s6, {SDSTR}")
        self("  s_lshl_b32 s56, s4, 6")
        self("  s_add_u32 s6, s6, s56")
        self(f"  s_add_u32 s6, s6, {SD_BASE}")
        self("  v_mov_b32 v13, s6                ; main")
        self("  s_cmp_ge_u32 s5, 3")
        self("  s_cselect_b32 s7, 36, 32")
        self("  s_cselect_b32 s56, 3, 0")
        self("  s_sub_u32 s56, s5, s56           ; third")
        self(f"  s_mul_i32 s6, s7, {SDSTR}")
        self("  s_mul_i32 s7, s4, 3")
        self("  s_add_u32 s7, s7, s56")
        self("  s_lshl_b32 s7, s7, 6")
        self("  s_add_u32 s6, s6, s7")
        self(f"  s_add_u32 s6, s6, {SD_BASE}")
        self("  s_cmp_ge_u32 s5, 6")
        self(f"  s_cselect_b32 s6, {OOB}, s6")
        self("  v_mov_b32 v14, s6                ; extra")
        self("  s_lshl_b32 s6, s64, 2")
        self(f"  s_mul_i32 s6, s6, {SDSTR}")
        self("  s_lshl_b32 s56, s65, 6")
        self("  s_add_u32 s6, s6, s56")
        self(f"  s_add_u32 s68, s6, {SD_BASE + O_D3}")
        self("  s_cmp_lg_u32 s66, 0")
        self(f"  s_cselect_b32 s6, s68, {OOB}")
        self("  v_mov_b32 v15, s6                ; down")
        self("  v_cmp_gt_u32 vcc, 16, v0")
        self("  v_cndmask_b32 v14, v14, v13, vcc")
        self("  v_cmp_gt_u32 vcc, 32, v0")
        self("  v_cndmask_b32 v13, v15, v14, vcc")
        self("  v_bfe_u32 v14, v0, 2, 2")
        self(f"  v_mul_u32_u24 v14, {SDSTR}, v14")
        self("  v_add_u32 v13, v13, v14")
        self("  v_and_b32 v14, 3, v0")
        self("  v_lshl_add_u32 v13, v14, 4, v13")
        self("  buffer_store_dwordx4 v[8:11], v13, s[44:47], 0 offen sc1")
        self("  s_mov_b32 exec_hi, 0")
        self("  s_mov_b32 exec_lo, 0xff")
        self(f"  ds_write_b128 v3, v[16:19] offset:{L_MODE}")
        self("  s_mov_b64 exec, -1")
        for i in range(5):
            o = f" offset:{256 * i}" if i else ""
            self(f"  buffer_load_dword v{X[i]}, v1, s[32:35], 0 offen{o}")
        self("  s_waitcnt lgkmcnt(0)")
        self("  s_barrier            ; B0")
        self("  s_getreg_b32 s6, hwreg(HW_REG_XCC_ID, 0, 4)")
        self("  s_mul_i32 s56, s6, s6")
        self("  s_lshl_b32 s56, s56, 16")
        self("  s_lshl_b32 s6, s6, 8")
        self("  s_add_u32 s6, s6, s56")
        self("  s_add_u32 s63, s6, 1")
        self("  s_lshl_b32 s6, s4, 3")
        self("  v_mov_b32 v12, s6")
        self("  v_mov_b32 v13, s63")
        self("  v_mov_b32 v14, 0")
        self("  v_mov_b32 v15, 1")
        self("  s_waitcnt vmcnt(5)")
        self("  s_mov_b64 exec, 1")
        self("  buffer_atomic_add v13, v12, s[48:51], 0 offen sc1")
        self(f"  ds_write_b32 v14, v15 offset:{L_CLR}")
        self("  s_mov_b64 exec, -1")
        self.stamp(6)
        self("  s_waitcnt vmcnt(1)")
        self.ln(X, xs, t)
        self.xn_rows(XL, XH, t[0], n=8, base="s64", mul=64)
        self.stamp(1)
        self("  v_lshlrev_b32 v12, 3, v0")
        self("  v_mov_b32 v14, 0")
        Lp = self.lab("cntpoll")
        Lpd = self.lab("cntpolld")
        self("  s_mov_b32 s57, 0")
        if self.poll_delay:
            self(f"  s_sleep {self.poll_delay}")
        self("  s_mov_b32 exec_hi, 0")
        self(f"{Lp}:")
        self("  buffer_load_dword v60, v12, s[48:51], 0 offen sc1")
        self("  s_add_u32 s57, s57, 1")
        self(f"  s_cmp_gt_u32 s57, {SPIN_MAX}")
        self("  s_waitcnt vmcnt(0)")
        self("  v_readlane_b32 s58, v60, s4")
        self(f"  s_cbranch_scc1 {Lpd}")
        self("  s_and_b32 s6, s58, 0xff")
        self("  s_cmp_eq_u32 s6, 8")
        self(f"  s_cbranch_scc0 {Lp}")
        self(f"{Lpd}:")
        self("  s_lshl_b32 s6, s63, 3")
        self("  s_cmp_eq_u32 s58, s6")
        if self.force_slow:
            self("  s_mov_b32 s59, 1")
        else:
            self("  s_cselect_b32 s59, 2, 1")
        self("  v_mov_b32 v13, s59")
        self("  v_and_b32 v61, 0xff, v60")
        self("  v_cmp_ne_u32 vcc, 8, v61")
        self("  s_mov_b64 exec, 1")
        self(f"  ds_write_b32 v14, v13 offset:{L_MODE}")
        self("  s_mov_b64 exec, -1")
        self("  s_mov_b64 s[54:55], vcc")
        self.stamp(3)

        def all_cleared():
            La = self.lab("allcnt")
            Lad = self.lab("allcntd")
            self("  s_cmp_eq_u64 s[54:55], 0")
            self(f"  s_cbranch_scc1 {Lad}")
            self("  s_mov_b32 s57, 0")
            self("  s_mov_b32 exec_hi, 0")
            self(f"{La}:")
            self("  buffer_load_dword v60, v12, s[48:51], 0 offen sc1")
            self("  s_add_u32 s57, s57, 1")
            self(f"  s_cmp_gt_u32 s57, {SPIN_MAX}")
            self("  s_waitcnt vmcnt(0)")
            self(f"  s_cbranch_scc1 {Lad}")
            self("  v_and_b32 v61, 0xff, v60")
            self("  v_cmp_ne_u32 vcc, 8, v61")
            self(f"  s_cbranch_vccnz {La}")
            self(f"{Lad}:")
            self("  v_mov_b32 v13, 1")
            self("  v_mov_b32 v14, 0")
            self("  s_mov_b64 exec, 1")
            self(f"  ds_write_b32 v14, v13 offset:{L_ALL}")
            self("  s_mov_b64 exec, -1")

        Lact = self.lab("ffn")
        self("  s_cmp_lg_u32 s66, 0")
        self(f"  s_cbranch_scc1 {Lact}")
        all_cleared()
        self("  s_waitcnt lgkmcnt(0)")
        self.later_tickets()
        self("  s_branch L_exit_stamped")
        self(f"{Lact}:")
        if self.bulkprio is not None:
            self(f"  s_setprio {self.bulkprio}")
        self("  s_mul_i32 s6, s64, 196608      ; 64*3072*m")
        self("  s_lshl_b32 s56, s65, 7")
        self("  s_add_u32 s6, s6, s56")
        self.srd(36, 20, "s6", 63 * 3072 + 128)
        self.srd(40, 22, "s6", 63 * 3072 + 128)
        self("  v_lshrrev_b32 v2, 3, v0")
        self("  v_and_b32 v3, 7, v0")
        self("  v_mul_u32_u24 v9, 1280, v2")
        self("  v_lshl_add_u32 v9, v3, 4, v9")
        self("  v_mul_u32_u24 v2, 3072, v2")
        self("  v_lshl_add_u32 v2, v3, 4, v2")
        WG, WU = 64, 96
        ntg = ' nt' if self.wnt & 2 else ''
        for i in range(8):
            self(f"  s_mov_b32 s6, {24576 * i}")
            self(f"  buffer_load_dwordx4 v[{WG + 4 * i}:{WG + 4 * i + 3}], v2, s[36:39], s6 offen{ntg}")
        for i in range(8):
            self(f"  s_mov_b32 s6, {24576 * i}")
            self(f"  buffer_load_dwordx4 v[{WU + 4 * i}:{WU + 4 * i + 3}], v2, s[40:43], s6 offen{ntg}")
        self("  s_mul_i32 s6, s65, 81920       ; 64*1280*j")
        self("  s_lshl_b32 s56, s64, 7")
        self("  s_add_u32 s6, s6, s56")
        self.srd(36, 24, "s6", 63 * 1280 + 128)
        GA = list(range(44, 52))
        UA = list(range(52, 60))
        self("  s_waitcnt vmcnt(8)")
        self.gemv64(WG, XL, XH, GA, 8)
        self("  s_waitcnt vmcnt(0)")
        self.stamp(2)
        self.gemv64(WU, XL, XH, UA, 8)
        WD = 64
        ntd = ' nt' if self.wnt & 4 else ''
        for n in range(8):
            self(f"  s_mov_b32 s6, {10240 * n}")
            self(f"  buffer_load_dwordx4 v[{WD + 4 * n}:{WD + 4 * n + 3}], v9, s[36:39], s6 offen{ntd}")
        self.treduce8(GA, t[1])
        self.treduce8(UA, t[2])
        self(f"  v_min_u32 v{t[1]}, -2, v{t[1]}")
        self(f"  v_min_u32 v{t[2]}, -2, v{t[2]}")
        self("  v_add_u32 v15, s67, v1")
        self(f"  buffer_store_dword v{t[1]}, v15, s[44:47], 0 offen sc1")
        self(f"  buffer_store_dword v{t[2]}, v15, s[44:47], 0 offen offset:256 sc1")
        all_cleared()
        self(f"  s_mul_i32 s6, s65, {10 * FSTR}")
        self(f"  s_add_u32 s6, s6, {FB_BASE}")
        self("  v_lshrrev_b32 v14, 5, v0")
        self(f"  v_mul_u32_u24 v14, {FSTR}, v14")
        self("  v_and_b32 v15, 31, v0")
        self("  v_lshl_add_u32 v14, v15, 4, v14")
        self("  v_add_u32 v14, s6, v14")
        self(f"  v_add_u32 v15, {6 * FSTR}, v14")
        G = 128

        def issueF():
            for u in range(5):
                a, o = (14, 2 * FSTR * u) if u < 3 else (15, 2 * FSTR * (u - 3))
                oo = f" offset:{o}" if o else ""
                self(f"  buffer_load_dwordx4 v[{G + 4 * u}:{G + 4 * u + 3}], v{a}, s[44:47], 0 offen{oo} sc1")
        self.poll_loop("pollF", issueF, range(G, G + 20), G + 20, sleep=4)
        self.stamp(4)
        for e in range(4):
            self(f"  v_add_f32 v{G + e}, v{G + e}, v{G + 4 + e}")
            self(f"  v_add_f32 v{G + 8 + e}, v{G + 8 + e}, v{G + 12 + e}")
        for e in range(4):
            self(f"  v_add_f32 v{G + e}, v{G + e}, v{G + 16 + e}")
        for e in range(4):
            self(f"  v_add_f32 v{G + e}, v{G + e}, v{G + 8 + e}")
        for e in range(4):
            self(f"  v_mov_b32 v{G + 4 + e}, v{G + e}")
        for e in range(4):
            self(f"  v_permlane32_swap_b32 v{G + e}, v{G + 4 + e}")
        for e in range(4):
            self(f"  v_add_f32 v{G + e}, v{G + e}, v{G + 4 + e}")
        for e in range(4):
            self(f"  v_mov_b32 v{G + 4 + e}, v{G + e}")
        for e in range(4):
            self(f"  v_permlane16_swap_b32 v{G + e}, v{G + 4 + e}")
        for e in range(4):
            self(f"  v_cvt_pk_bf16_f32 v{G + e}, v{G + e}, v{G + 4 + e}")
        for e in range(4):
            self(f"  v_lshlrev_b32 v{G + 4 + e}, 16, v{G + e}      ; gate")
            self(f"  v_and_b32 v{G + e}, 0xffff0000, v{G + e}    ; up")
        for e in range(4):
            self(f"  v_max_f32 v{G + 4 + e}, 0, v{G + 4 + e}")
        for e in range(4):
            self(f"  v_mul_f32 v{G + e}, v{G + 4 + e}, v{G + e}")
        for e in range(4):
            self(f"  v_cvt_pk_bf16_f32 v{G + e}, v{G + e}, v{G + e}    ; h")
        self("  v_and_b32 v18, 1, v0")
        self("  v_lshlrev_b32 v18, 5, v18")
        self("  v_bfe_u32 v19, v0, 1, 3")
        self("  v_add_u32 v18, v18, v19")
        self("  v_lshlrev_b32 v18, 1, v18")
        self("  s_mov_b32 exec_lo, 0xffff")
        self("  s_mov_b32 exec_hi, 0")
        for e in range(4):
            self(f"  ds_write_b16 v18, v{G + e} offset:{L_HB + 16 * e}")
        self("  s_mov_b64 exec, -1")
        self("  v_lshrrev_b32 v18, 3, v0")
        self("  v_lshlrev_b32 v18, 1, v18")
        self("  s_waitcnt lgkmcnt(0)")
        for i in range(8):
            self(f"  ds_read_u16 v{XL[i]}, v18 offset:{L_HB + 16 * i}")
        self("  v_bfe_u32 v19, v0, 1, 2")
        self(f"  v_mul_u32_u24 v19, {SDSTR}, v19")
        self("  v_and_b32 v20, 1, v0")
        self("  v_lshl_add_u32 v19, v20, 5, v19")
        self("  v_lshrrev_b32 v20, 3, v0")
        self("  v_lshl_add_u32 v19, v20, 2, v19")
        self("  v_add_u32 v19, s68, v19")
        self("  s_waitcnt lgkmcnt(0)")
        for i in range(8):
            self(f"  v_lshlrev_b32 v{XH[i]}, 16, v{XL[i]}")
        self("  s_waitcnt vmcnt(0)")
        self.gemv64(WD, XL, XH, GA, 8)
        self.treduce8(GA, t[1])
        self(f"  v_min_u32 v{t[1]}, -2, v{t[1]}")
        self(f"  buffer_store_dword v{t[1]}, v19, s[44:47], 0 offen sc1")
        self.stamp(5)
        self.later_tickets()
        self("  s_branch L_exit_stamped")

    def final_consumer(self):
        self("  v_mov_b32 v12, 0")
        self("  s_mov_b32 s55, s56")
        self.lds_spin("allc", 12, L_ALL, 13, target=None, sdst="s58", sleep=4)
        self("  s_mul_i32 s7, s5, 5")
        self("  s_add_u32 s55, s55, s7           ; cg")
        self(f"  s_mul_i32 s6, s55, {SDSTR}")
        self(f"  s_add_u32 s6, s6, {SD_BASE}")
        self("  v_lshlrev_b32 v14, 4, v0")
        self("  v_add_u32 v14, s6, v14")
        self(f"  v_add_u32 v13, {O_D3}, v14")
        self("  v_and_b32 v15, 3, v0")
        self("  v_lshlrev_b32 v15, 2, v15")
        self("  v_lshrrev_b32 v16, 5, v0")
        self("  v_lshl_add_u32 v15, v16, 1, v15")
        self("  v_bfe_u32 v16, v0, 4, 1")
        self("  v_add_u32 v15, v15, v16")
        self("  s_lshl_b32 s6, s55, 4")
        self("  v_add_u32 v15, s6, v15")
        self("  v_lshlrev_b32 v15, 1, v15")
        self("  buffer_load_ushort v17, v15, s[32:35], 0 offen")
        self.srd(40, 26, None, 1280)

        def red(base, first=True):
            for k in range(4 if first else 0):
                self(f"  v_add_f32 v{base + k}, v{base + k}, v{base + 4 + k}")
            self(f"  v_permlane32_swap_b32 v{base}, v{base + 2}")
            self(f"  v_permlane32_swap_b32 v{base + 1}, v{base + 3}")
            self(f"  v_add_f32 v{base}, v{base}, v{base + 2}")
            self(f"  v_add_f32 v{base + 1}, v{base + 1}, v{base + 3}")
            self(f"  v_permlane16_swap_b32 v{base}, v{base + 1}")
            self(f"  v_add_f32 v{base}, v{base}, v{base + 1}")
            self(f"  v_add_f32_dpp v{base}, v{base}, v{base} row_ror:4 row_mask:0xf bank_mask:0xf")
            self(f"  v_add_f32_dpp v{base}, v{base}, v{base} row_ror:8 row_mask:0xf bank_mask:0xf")

        for k in range(4):
            self(f"  v_mov_b32 v{28 + k}, 0")

        def issueD():
            self("  buffer_load_dwordx4 v[24:27], v13, s[44:47], 0 offen sc1")
            self("  s_mov_b32 exec_hi, 0")
            self("  buffer_load_dwordx4 v[28:31], v13, s[44:47], 0 offen offset:1024 sc1")
            self("  s_mov_b32 exec_hi, -1")
        if self.lated:
            self("  s_barrier            ; B2")
            self.poll_loop2("pollD", issueD, range(24, 32), 32, lambda: self("  s_barrier            ; B3"), sleep=4)
        else:
            self.poll_loop("pollD", issueD, range(24, 32), 32, sleep=8)
        red(24)
        self("  v_cvt_pk_bf16_f32 v24, v24, v24")
        self("  v_lshlrev_b32 v24, 16, v24")
        self(f"  v_mul_f32 v25, {f2h(-1.4426950408889634)}, v24")
        self("  v_exp_f32 v25, v25")
        self("  s_nop 0")
        self("  v_add_f32 v25, 1.0, v25")
        self("  v_rcp_f32 v25, v25")
        self("  s_nop 0")
        self("  v_mul_f32 v24, v24, v25")
        self("  v_cvt_pk_bf16_f32 v24, v24, v24")
        self("  v_lshlrev_b32 v18, 16, v24          ; g")
        self("  v_lshlrev_b32 v17, 16, v17          ; x")
        self.stamp(6)
        if not self.lated:
            if not self.nob2:
                self("  s_barrier            ; B2")
            self("  s_barrier            ; B3")

        def finish(first=True):
            red(24, first)
            self("  v_cvt_pk_bf16_f32 v24, v24, v24")
            self("  v_lshlrev_b32 v24, 16, v24          ; s")
            self("  v_mul_f32 v24, v24, v18")
            self("  v_cvt_pk_bf16_f32 v24, v24, v24")
            self("  v_lshlrev_b32 v24, 16, v24")
            self("  v_add_f32 v24, v17, v24")
            self("  v_cvt_pk_bf16_f32 v24, v24, v24")
            self("  s_mov_b32 exec_lo, 0x000f000f")
            self("  s_mov_b32 exec_hi, 0x000f000f")
            self("  buffer_store_short v24, v15, s[40:43], 0 offen")
            self("  s_mov_b64 exec, -1")
            self.stamp(7)
            self("  s_branch L_exit_stamped")

        Lbig = self.lab("big")
        self("  s_cmp_ge_u32 s55, 32")
        self(f"  s_cbranch_scc1 {Lbig}")

        def issueS():
            self("  buffer_load_dwordx4 v[24:27], v14, s[44:47], 0 offen sc1")
            self("  buffer_load_dwordx4 v[28:31], v14, s[44:47], 0 offen offset:1024 sc1")
        if self.pipeS:
            PS = 48

            def issueSk(k):
                b = PS + 8 * k
                self(f"  buffer_load_dwordx4 v[{b}:{b + 3}], v14, s[44:47], 0 offen sc1")
                self(f"  buffer_load_dwordx4 v[{b + 4}:{b + 7}], v14, s[44:47], 0 offen offset:1024 sc1")

            def doneS(k):
                self.stamp(8)
                b = PS + 8 * k
                for j in range(4):
                    self(f"  v_add_f32 v{24 + j}, v{b + j}, v{b + 4 + j}")
            self.poll_pipe("pollS", self.pipeS, 2, issueSk, lambda k: range(PS + 8 * k, PS + 8 * k + 8), 32, doneS)
            finish(False)
        else:
            self.poll_loop("pollS", issueS, range(24, 32), 32)
            self.stamp(8)
            finish()
        self(f"{Lbig}:")
        self("  v_add_u32 v13, 4096, v14")

        def issueS6():
            for k in range(4):
                o = f" offset:{1024 * k}" if k else ""
                self(f"  buffer_load_dwordx4 v[{24 + 4 * k}:{27 + 4 * k}], v14, s[44:47], 0 offen{o} sc1")
            self("  buffer_load_dwordx4 v[40:43], v13, s[44:47], 0 offen sc1")
            self("  buffer_load_dwordx4 v[44:47], v13, s[44:47], 0 offen offset:1024 sc1")
        if self.pipeS:
            PS = 48
            cfg = (self.pipeS[0], self.pipeS[1], max(self.pipeS[2] - 1, 0))

            def issueS6k(k):
                b = PS + 24 * k
                for j in range(4):
                    o = f" offset:{1024 * j}" if j else ""
                    self(f"  buffer_load_dwordx4 v[{b + 4 * j}:{b + 3 + 4 * j}], v14, s[44:47], 0 offen{o} sc1")
                self(f"  buffer_load_dwordx4 v[{b + 16}:{b + 19}], v13, s[44:47], 0 offen sc1")
                self(f"  buffer_load_dwordx4 v[{b + 20}:{b + 23}], v13, s[44:47], 0 offen offset:1024 sc1")

            def doneS6(k):
                self.stamp(8)
                b = PS + 24 * k
                for j in range(8):
                    self(f"  v_add_f32 v{24 + j}, v{b + j}, v{b + 8 + j}")
                for j in range(8):
                    self(f"  v_add_f32 v{24 + j}, v{24 + j}, v{b + 16 + j}")
            self.poll_pipe("pollS6", cfg, 6, issueS6k, lambda k: range(PS + 24 * k, PS + 24 * k + 24), 32, doneS6)
        else:
            self.poll_loop("pollS6", issueS6, range(24, 48), 48)
            self.stamp(8)
            for k in range(8):
                self(f"  v_add_f32 v{24 + k}, v{24 + k}, v{32 + k}")
            for k in range(8):
                self(f"  v_add_f32 v{24 + k}, v{24 + k}, v{40 + k}")
        finish()

    def epilogue(self):
        self("L_exit_stamped:")
        if self.stamps:
            self.srd(44, 30, None, WS_SIZE)
            self.stamps_out()
        self("L_end:")
        self("  s_endpgm")
        self(f""".section .rodata,"a"
.p2align 6
.amdhsa_kernel {KNAME}
  .amdhsa_next_free_vgpr 168
  .amdhsa_next_free_sgpr 102
  .amdhsa_accum_offset 168
  .amdhsa_group_segment_fixed_size 0
  .amdhsa_kernarg_size 96
  .amdhsa_user_sgpr_count 2
  .amdhsa_user_sgpr_kernarg_segment_ptr 1
  .amdhsa_system_sgpr_workgroup_id_x 1
.end_amdhsa_kernel""")

    def build(self):
        self.prologue()
        self.stream()
        self.helper()
        self.epilogue()
        return fix("\n".join(self.lines) + "\n", verbose=True)


if __name__ == "__main__":
    import argparse
    ap = argparse.ArgumentParser()
    ap.add_argument("-o", default="k.s")
    ap.add_argument("--D", type=int, default=5)
    ap.add_argument("--E", type=int, default=5)
    ap.add_argument("--SB", type=int, default=19)
    ap.add_argument("--stamps", action="store_true")
    ap.add_argument("--slow", action="store_true")
    ap.add_argument("--b0post", action="store_true")
    ap.add_argument("--prio", type=int, default=3)
    ap.add_argument("--dbgst", action="store_true")
    ap.add_argument("--fine", action="store_true")
    ap.add_argument("--ds", default="", help="D schedule: slot:D,slot:D")
    ap.add_argument("--qkn", type=int, default=2)
    ap.add_argument("--wot", type=int, default=0)
    ap.add_argument("--npoll", type=int, default=2)
    ap.add_argument("--bp", type=int, default=None)
    ap.add_argument("--ilv", action="store_true")
    ap.add_argument("--prog", default="")
    ap.add_argument("--latepub", action="store_true")
    ap.add_argument("--pdelay", type=int, default=0)
    ap.add_argument("--adapt", default="", help="lo:hi slots with optional tighter throttle")
    ap.add_argument("--nocnt", type=int, default=0, help="diagnosis only: 1 = no atomic, no polls; 2 = atomic but no polls")
    ap.add_argument("--pgap", type=int, default=8)
    ap.add_argument("--hwid", action="store_true")
    ap.add_argument("--map2", action="store_true")
    ap.add_argument("--kvm", default="", help="c_stride:wave_stride:block_stride (bytes) of the key assignment (needs --ilv)")
    ap.add_argument("--b0late", type=int, default=0)
    ap.add_argument("--hrot", type=int, default=0)
    ap.add_argument("--lated", action="store_true", help="down partials read after B2")
    ap.add_argument("--wol", default="", help="X:N:T wo cells requested once N stream waves issued slot X (throttle T)")
    ap.add_argument("--rshard", type=int, default=0, help="0: tickets among h&3 (64), 1: among id&7 (32)")
    ap.add_argument("--ck", default="", help="slot=ub:n1:d,...;slot=... later checkpoints")
    ap.add_argument("--rank", default="", help="lo:hi rank-adaptive depth (slots)")
    ap.add_argument("--rankp", default="", help="ub:n1:d,... policy per arrival rank")
    ap.add_argument("--pipeS", default="", help="N:gap:gap2 pipelined S3 poll")
    ap.add_argument("--pipeA", default="", help="N:gap:gap2 pipelined O gather poll")
    ap.add_argument("--adaptbit", type=int, default=0)
    ap.add_argument("--kvnt", type=int, default=3, help="nt hint bits: 1 K, 2 V")
    ap.add_argument("--wnt", type=int, default=7, help="nt hint bits: 1 wo, 2 gate/up, 4 down")
    ap.add_argument("--touch", type=int, default=0, help="1: V, 2: wo, 4: FFN weights early page touch")
    ap.add_argument("--rot", default="", help="a:b:w block rotation = h*a + c*b + wave*w")
    a = ap.parse_args()
    g = G(D=a.D, E=a.E, SB=a.SB, stamps=a.stamps, force_slow=a.slow, b0pre=not a.b0post, prio=a.prio, dbgst=a.dbgst, fine=a.fine,
          dsched=[tuple(int(v) for v in p.split(':')) for p in a.ds.split(',') if p], qk_per_slot=a.qkn, wo_throttle=a.wot, npoll=a.npoll, poll_gap=a.pgap, bulkprio=a.bp, ilv=a.ilv, prog=[int(v) for v in a.prog.split(',') if v], early_pub=not a.latepub, poll_delay=a.pdelay, nocnt=a.nocnt, adapt=tuple(int(v) for v in a.adapt.split(':')) if a.adapt else None, hwid=a.hwid, map2=a.map2, kvm=tuple(int(v) for v in a.kvm.split(':')) if a.kvm else None, b0late=a.b0late, hrot=a.hrot, lated=a.lated, wol=tuple(int(v) for v in a.wol.split(':')) if a.wol else None, rshard=a.rshard, ckp=[(int(c.split('=')[0]), [tuple(int(v) for v in p.split(':')) for p in c.split('=')[1].split(',')]) for c in a.ck.split(';') if c], rankp=[tuple(int(v) for v in p.split(':')) for p in a.rankp.split(',') if p], rank=tuple(int(v) for v in a.rank.split(':')) if a.rank else None, pipeS=tuple(int(v) for v in a.pipeS.split(':')) if a.pipeS else None, pipeA=tuple(int(v) for v in a.pipeA.split(':')) if a.pipeA else None, adaptbit=a.adaptbit, kvnt=a.kvnt, wnt=a.wnt, touch=a.touch, rot=tuple(int(v) for v in a.rot.split(':')) if a.rot else None)
    open(a.o, "w").write(g.build())
```

```python
import sys, struct
sys.path.insert(0, "dev")
from hz import fix

KNAME = "recurrent_scan__sliding_block_cached__glu_gated_reglu__decode_kernel"


def f2h(x):
    return "0x%08x" % struct.unpack("<I", struct.pack("<f", x))[0]


LOG2E = f2h(1.4426950408889634)
SCALE = f2h(192 ** -0.5)
INV640 = f2h(1.0 / 640)
EPS = f2h(1e-5)

BOX = 1280
GBOX = 8 * BOX
O_H1 = 0
O_O2 = 768
O_LSE = 1152
FB_BASE = 327680
FSTR = 768
SD_BASE = 524288
SDSTR = 8448
O_D3 = 6144
OOB = 0x70000000
STAMP_BASE = 1 << 20
WS_SIZE = 2 << 20

L_Q = 0
L_MODE = 384
L_CNT = 388
L_QF = 392
L_CLR = 396
L_M = 400
L_L = 432
L_XN = 1280
L_HB = 2560
L_ALL = 464
L_RANK = 468
L_PROG = 472
L_WOK = 476
L_PARTS = 480
L_WO = 4096
L_WO2 = L_WO + 192 * 128
L_PART = L_WO2 + 64 * 128
L_A = L_PART + 8 * 768
LDS_BYTES = L_A + 8 * 400

SPIN_MAX = 30000


class G:
    def __init__(self, D=5, E=5, SB=19, stamps=False, force_slow=False, wo_slot=32, b0pre=True, prio=3, dbgst=False, fine=False, dsched=(), qk_per_slot=2, wo_throttle=0, npoll=2, poll_gap=8, bulkprio=None, ilv=False, prog=(), early_pub=True, poll_delay=0, nocnt=0, adapt=None, hwid=False, map2=False, rot=None, touch=0, wnt=7, kvnt=3, b0late=0, kvm=None, hrot=0, adaptbit=0, pipeS=None, pipeA=None, rank=None, rankp=None, ckp=(), rshard=0, lated=False, wol=None, wop=0):
        self.kvm = kvm or ((196608, 1536, 12288) if ilv else (196608, 24576, 1536))
        self.b0late = b0late
        self.hrot = hrot
        self.rank = rank
        self.lated = lated
        self.wol = wol
        self.wop = wop
        self.nob2 = bool(wol and len(wol) > 3 and wol[3])
        self.rshard = rshard
        self.ckp = list(ckp)
        self.rankp = rankp
        self.pipeS = pipeS
        self.pipeA = pipeA
        self.adaptbit = adaptbit
        self.kvnt = kvnt
        self.wnt = wnt
        self.touch = touch
        self.map2 = map2
        self.rot = rot
        self.hwid = hwid
        self.adapt = adapt
        self.nocnt = nocnt
        self.early_pub = early_pub
        self.poll_delay = poll_delay
        self.prog = list(prog)
        self.ilv = ilv
        self.bulkprio = bulkprio
        self.wo_throttle = wo_throttle
        self.npoll = npoll
        self.poll_gap = poll_gap
        self.dsched = list(dsched)
        self.qk_per_slot = qk_per_slot
        self.dbgst = dbgst
        self.fine = fine
        self.in_stream = False
        self.prio = prio
        self.b0pre = b0pre
        self.D, self.E, self.SB = D, E, SB
        self.stamps = stamps
        self.force_slow = force_slow
        self.wo_slot = wo_slot
        self.lines = []
        self.uid = 0
        self.vm = []

    def Dof(self, i):
        for (slot, d) in reversed(self.dsched):
            if i >= slot:
                return d
        return self.D

    def __call__(self, s=""):
        for l in s.split("\n"):
            self.lines.append(l)

    def lab(self, base):
        self.uid += 1
        return f"L_{base}_{self.uid}"

    def vm_reset(self):
        self.vm = []

    def vm_issue(self, tag):
        self.vm.append(tag)

    def vm_wait(self, tag):
        idx = [i for i, t in enumerate(self.vm) if t == tag]
        if not idx:
            return
        last = idx[-1]
        n = len(self.vm) - 1 - last
        assert n <= 63
        self(f"  s_waitcnt vmcnt({n})")
        self.vm = self.vm[last + 1:]

    def stamp(self, i):
        if self.prog and self.in_stream and i != 0:
            return
        if self.stamps and not (self.fine and self.in_stream and i in (1, 2, 3, 5, 6, 7)):
            self(f"  s_memrealtime s[{70 + 2 * i}:{71 + 2 * i}]")

    def fstamp(self, i, clk=False):
        if self.stamps and self.fine:
            op = "s_memtime" if clk else "s_memrealtime"
            self(f"  {op} s[{70 + 2 * i}:{71 + 2 * i}]")

    def stamps_out(self):
        if not self.stamps:
            return
        self("  s_waitcnt lgkmcnt(0) vmcnt(0)")
        self("  s_mul_i32 s6, s2, 12")
        self("  s_add_u32 s6, s6, s3")
        self("  s_lshl_b32 s6, s6, 6")
        self(f"  s_add_u32 s6, s6, {STAMP_BASE}")
        self("  v_mov_b32 v2, s6")
        for i in range(12):
            self(f"  v_mov_b32 v{4 + i}, s{70 + 2 * i}")
        self("  s_mov_b64 exec, 1")
        self("  buffer_store_dwordx4 v[4:7], v2, s[44:47], 0 offen")
        self("  buffer_store_dwordx4 v[8:11], v2, s[44:47], 0 offen offset:16")
        self("  buffer_store_dwordx4 v[12:15], v2, s[44:47], 0 offen offset:32")
        if self.dbgst:
            self("  s_load_dwordx2 s[6:7], s[0:1], 80")
            self("  s_waitcnt lgkmcnt(0)")
            self.srd(48, 6, None, 256)
            for (wg, wv, lst) in ((0, 0, ((0, 1), (2, 3), (4, 5))), (8, 9, ((0, 7), (6, 9), (7, 11))), (255, 0, ((0, 13), (4, 15)))):
                Ls = self.lab("dbgskip")
                self(f"  s_cmp_eq_u32 s2, {wg}")
                self(f"  s_cbranch_scc0 {Ls}")
                self(f"  s_cmp_eq_u32 s3, {wv}")
                self(f"  s_cbranch_scc0 {Ls}")
                for (st, dw) in lst:
                    self(f"  v_mov_b32 v2, {4 * dw}")
                    self(f"  buffer_store_dword v{4 + st}, v2, s[48:51], 0 offen")
                self(f"{Ls}:")
        self("  s_mov_b64 exec, -1")

    def srd(self, s, base_lo, off, nrec):
        if off is None:
            self(f"  s_mov_b32 s{s}, s{base_lo}")
            self(f"  s_mov_b32 s{s + 1}, s{base_lo + 1}")
        else:
            self(f"  s_add_u32 s{s}, s{base_lo}, {off}")
            self(f"  s_addc_u32 s{s + 1}, s{base_lo + 1}, 0")
        self(f"  s_mov_b32 s{s + 2}, {nrec}")
        self(f"  s_mov_b32 s{s + 3}, 0x20000")

    def allreduce(self, op, v, t):
        for r in (1, 2, 4, 8):
            self(f"  {op}_dpp v{v}, v{v}, v{v} row_ror:{r} row_mask:0xf bank_mask:0xf")
        self(f"  v_mov_b32 v{t}, v{v}")
        self(f"  v_permlane16_swap_b32 v{v}, v{t}")
        self(f"  {op} v{v}, v{v}, v{t}")
        self(f"  v_mov_b32 v{t}, v{v}")
        self(f"  v_permlane32_swap_b32 v{v}, v{t}")
        self(f"  {op} v{v}, v{v}, v{t}")

    def cross_rows(self, op, v, t):
        self(f"  v_mov_b32 v{t}, v{v}")
        self(f"  v_permlane16_swap_b32 v{v}, v{t}")
        self(f"  {op} v{v}, v{v}, v{t}")
        self(f"  v_mov_b32 v{t}, v{v}")
        self(f"  v_permlane32_swap_b32 v{v}, v{t}")
        self(f"  {op} v{v}, v{v}, v{t}")

    def treduce8(self, A, T):
        for a in range(4):
            self(f"  v_permlane32_swap_b32 v{A[a]}, v{A[a + 4]}")
        for a in range(4):
            self(f"  v_add_f32 v{A[a]}, v{A[a]}, v{A[a + 4]}")
        for a in range(2):
            self(f"  v_permlane16_swap_b32 v{A[a]}, v{A[a + 2]}")
        for a in range(2):
            self(f"  v_add_f32 v{A[a]}, v{A[a]}, v{A[a + 2]}")
        self(f"  v_add_f32_dpp v{T}, v{A[0]}, v{A[0]} row_ror:8 row_mask:0xf bank_mask:0x3")
        self(f"  v_add_f32_dpp v{T}, v{A[1]}, v{A[1]} row_ror:8 row_mask:0xf bank_mask:0xc")

    def treduce4rows(self, A, out_pairs=None):
        n = len(A) // 4
        for k in range(n):
            a = A[4 * k:4 * k + 4]
            self(f"  v_permlane32_swap_b32 v{a[0]}, v{a[2]}")
            self(f"  v_permlane32_swap_b32 v{a[1]}, v{a[3]}")
        for k in range(n):
            a = A[4 * k:4 * k + 4]
            self(f"  v_add_f32 v{a[0]}, v{a[0]}, v{a[2]}")
            self(f"  v_add_f32 v{a[1]}, v{a[1]}, v{a[3]}")
        for k in range(n):
            a = A[4 * k:4 * k + 4]
            self(f"  v_permlane16_swap_b32 v{a[0]}, v{a[1]}")
        for k in range(n):
            a = A[4 * k:4 * k + 4]
            self(f"  v_add_f32 v{a[0]}, v{a[0]}, v{a[1]}")
        return [A[4 * k] for k in range(n)]

    def sentinel_check(self, regs, t):
        regs = list(regs)
        if len(regs) == 1:
            self(f"  v_cmp_eq_u32 vcc, -1, v{regs[0]}")
            return
        if len(regs) == 2:
            self(f"  v_max_u32 v{t}, v{regs[0]}, v{regs[1]}")
            regs = []
        else:
            self(f"  v_max3_u32 v{t}, v{regs[0]}, v{regs[1]}, v{regs[2]}")
            regs = regs[3:]
        while regs:
            if len(regs) >= 2:
                self(f"  v_max3_u32 v{t}, v{t}, v{regs[0]}, v{regs[1]}")
                regs = regs[2:]
            else:
                self(f"  v_max_u32 v{t}, v{t}, v{regs[0]}")
                regs = regs[1:]
        self(f"  v_cmp_eq_u32 vcc, -1, v{t}")

    def poll_loop(self, name, issue, regs, t, sleep=0):
        L = self.lab(name)
        Ld = self.lab(name + "d")
        self("  s_mov_b32 s57, 0")
        self(f"{L}:")
        issue()
        self("  s_waitcnt vmcnt(0)")
        self.sentinel_check(regs, t)
        self("  s_add_u32 s57, s57, 1")
        self(f"  s_cmp_gt_u32 s57, {SPIN_MAX}")
        self(f"  s_cbranch_scc1 {Ld}")
        if sleep:
            self(f"  s_cbranch_vccz {Ld}")
            self(f"  s_sleep {sleep}")
            self(f"  s_branch {L}")
        else:
            self(f"  s_cbranch_vccnz {L}")
        self(f"{Ld}:")

    def poll_loop2(self, name, issue, regs, t, between, sleep=0):
        L = self.lab(name)
        Ld = self.lab(name + "d")
        self("  s_mov_b32 s57, 0")
        issue()
        between()
        self(f"{L}:")
        self("  s_waitcnt vmcnt(0)")
        self.sentinel_check(regs, t)
        self("  s_add_u32 s57, s57, 1")
        self(f"  s_cmp_gt_u32 s57, {SPIN_MAX}")
        self(f"  s_cbranch_scc1 {Ld}")
        self(f"  s_cbranch_vccz {Ld}")
        if sleep:
            self(f"  s_sleep {sleep}")
        issue()
        self(f"  s_branch {L}")
        self(f"{Ld}:")

    def poll_pipe(self, name, cfg, nl, issue, regs, t, done):
        N, gap, gap2 = cfg
        L = self.lab(name)
        Lj = self.lab(name + "j")
        Ls = [self.lab(name + f"d{k}") for k in range(N)]
        self("  s_mov_b32 s57, 0")
        for k in range(N):
            issue(k)
            if gap and k < N - 1:
                self(f"  s_sleep {gap}")
        self(f"{L}:")
        for k in range(N):
            self(f"  s_waitcnt vmcnt({(N - 1) * nl})")
            self.sentinel_check(regs(k), t)
            self(f"  s_cbranch_vccz {Ls[k]}")
            issue(k)
            if gap2:
                self(f"  s_sleep {gap2}")
        self("  s_add_u32 s57, s57, 1")
        self(f"  s_cmp_gt_u32 s57, {SPIN_MAX // N}")
        self(f"  s_cbranch_scc0 {L}")
        for k in range(N):
            self(f"{Ls[k]}:")
            done(k)
            if k < N - 1:
                self(f"  s_branch {Lj}")
        self(f"{Lj}:")

    def lds_spin(self, name, addr_v, off, t, target=None, sdst="s58", sleep=1):
        L = self.lab(name)
        Ld = self.lab(name + "d")
        self("  s_mov_b32 s57, 0")
        self(f"{L}:")
        self(f"  ds_read_b32 v{t}, v{addr_v} offset:{off}")
        self("  s_waitcnt lgkmcnt(0)")
        self(f"  v_readfirstlane_b32 {sdst}, v{t}")
        self("  s_add_u32 s57, s57, 1")
        self(f"  s_cmp_gt_u32 s57, {SPIN_MAX * 8}")
        self(f"  s_cbranch_scc1 {Ld}")
        if target is None:
            self(f"  s_cmp_lg_u32 {sdst}, 0")
        else:
            self(f"  s_cmp_eq_u32 {sdst}, {target}")
        self(f"  s_cbranch_scc1 {Ld}")
        if sleep:
            self(f"  s_sleep {sleep}")
        self(f"  s_branch {L}")
        self(f"{Ld}:")

    def mode_store(self, instr):
        Lf = self.lab("fast")
        Lj = self.lab("join")
        self("  s_cmp_eq_u32 s59, 2")
        self(f"  s_cbranch_scc1 {Lf}")
        for i in instr:
            self(f"  {i} sc1")
        self(f"  s_branch {Lj}")
        self(f"{Lf}:")
        for i in instr:
            self(f"  {i}")
        self(f"{Lj}:")

    def prologue(self):
        self(f"""; Fused decode step: LN -> q -> sliding-window attention (split over 8 WGs per head) -> wo,
; @launch grid=(256,1,1) block=(768,1,1) lds={LDS_BYTES}
.amdgcn_target "amdgcn-amd-amdhsa--gfx950"
.text
.globl {KNAME}
.p2align 8
.type {KNAME},@function
{KNAME}:
  s_cmp_ge_u32 s2, 256
  s_cbranch_scc1 L_end""")
        self.stamp(0)
        if self.hwid:
            self("  s_getreg_b32 s88, hwreg(HW_REG_HW_ID)")
            self("  s_getreg_b32 s90, hwreg(HW_REG_XCC_ID)")
        self(f"""  s_load_dwordx16 s[8:23], s[0:1], 0
  s_load_dwordx8 s[24:31], s[0:1], 64
  v_readfirstlane_b32 s3, v0
  v_and_b32 v0, 63, v0
  s_lshr_b32 s3, s3, 6
  s_add_u32 s4, s2, {self.hrot}
  s_and_b32 s4, s4, 7
  s_lshl_b32 s4, s4, 2""" if self.hrot else f"""  s_load_dwordx16 s[8:23], s[0:1], 0
  s_load_dwordx8 s[24:31], s[0:1], 64
  v_readfirstlane_b32 s3, v0
  v_and_b32 v0, 63, v0
  s_lshr_b32 s3, s3, 6
  s_and_b32 s4, s2, 7
  s_lshl_b32 s4, s4, 2""")
        if self.map2:
            self("""  s_lshr_b32 s5, s2, 6
  s_add_u32 s4, s4, s5          ; h
  s_lshr_b32 s5, s2, 3
  s_and_b32 s5, s5, 7           ; c""")
        else:
            self("""  s_lshr_b32 s5, s2, 3
  s_and_b32 s5, s5, 3
  s_add_u32 s4, s4, s5          ; h
  s_lshr_b32 s5, s2, 5          ; c""")
        self("""  s_cmp_ge_u32 s3, 8
  s_cbranch_scc1 L_helper""")

    def stream(self):
        self.in_stream = True
        D, E, SB = self.D, self.E, self.SB
        Q = list(range(4, 10))
        A = list(range(10, 22))
        P = list(range(22, 26))
        T = [26, 27]
        U = list(range(28, 32))
        PL = list(range(32, 36))
        PH = list(range(36, 40))
        t0, t1 = 40, 41
        RING = 42
        nbuf = 16 + E

        def kbuf(b):
            return RING + 6 * b

        def vbuf(j):
            return RING + 6 * (16 + j) if j < E else RING + 6 * (j - E)

        self(f"""  ; ---------------- stream waves ----------------
  s_mul_i32 s6, s4, 12582912
  s_mul_i32 s7, s5, {self.kvm[0]}
  s_add_u32 s6, s6, s7
  s_add_u32 s6, s6, {28672 * 384}
  s_mul_i32 s7, s3, {self.kvm[1]}
  v_lshrrev_b32 v3, 4, v0
  v_and_b32 v2, 15, v0
  v_mul_u32_u24 v3, 384, v3
  v_add_u32 v3, s7, v3
  v_lshl_add_u32 v1, v2, 4, v3      ; x4 offset
  v_lshl_add_u32 v2, v2, 3, v3
  v_add_u32 v2, 256, v2             ; x2 offset""")
        for k in range(1, 6):
            self(f"  s_mov_b32 s{59 + k}, {4608 * k}")
        if self.rot:
            self(f"  s_mul_i32 s66, s4, {self.rot[0]}")
            self(f"  s_mul_i32 s7, s5, {self.rot[1]}")
            self("  s_add_u32 s66, s66, s7")
            self(f"  s_mul_i32 s7, s3, {self.rot[2]}")
            self("  s_add_u32 s66, s66, s7")
        if self.adapt:
            self(f"  s_lshr_b32 s65, s2, {self.adaptbit}")
            self("  s_and_b32 s65, s65, 1")
        if self.rank:
            self("  s_mov_b32 s67, 0")
            self("  s_mov_b32 s66, 0")
        self("  s_waitcnt lgkmcnt(0)")
        nrec = 1572864 - 7 * self.kvm[0]
        self.srd(32, 10, "s6", nrec)
        self.srd(36, 12, "s6", nrec)
        self.vm_reset()

        def issue(i):
            t, b = (0, i) if i < 16 else (1, i - 16)
            srd = "s[32:35]" if t == 0 else "s[36:39]"
            r = kbuf(b) if t == 0 else vbuf(b)
            so = "0" if b < 3 else f"s{59 + b // 3}"
            imm = 1536 * (b % 3)
            if self.ilv:
                imm = 0
                so = "0" if b == 0 else "s60"
                if self.rot:
                    so = "s60"
                    self(f"  s_add_u32 s60, s66, {b}")
                    self("  s_and_b32 s60, s60, 15")
                    self(f"  s_mul_i32 s60, s60, {self.kvm[2]}")
                elif b:
                    self(f"  s_mov_b32 s60, {self.kvm[2] * b}")
            o = f" offset:{imm}" if imm else ""
            nt = " nt" if self.kvnt & (1 << t) else ""
            self(f"  buffer_load_dwordx4 v[{r}:{r + 3}], v1, {srd}, {so} offen{o}{nt}")
            self(f"  buffer_load_dwordx2 v[{r + 4}:{r + 5}], v2, {srd}, {so} offen{o}{nt}")
            self.vm_issue(("L", i))
            self.vm_issue(("L", i))

        def qk_group(g):
            bs = [kbuf(4 * g + k) for k in range(4)]
            for i in range(6):
                for k in range(4):
                    c = "0" if i == 0 else f"v{P[k]}"
                    self(f"  v_dot2_f32_bf16 v{P[k]}, v{bs[k] + i}, v{Q[i]}, {c}")
            self(f"  v_add_f32_dpp v{T[0]}, v{P[0]}, v{P[0]} row_ror:8 row_mask:0xf bank_mask:0x3")
            self(f"  v_add_f32_dpp v{T[1]}, v{P[1]}, v{P[1]} row_ror:8 row_mask:0xf bank_mask:0x3")
            self(f"  v_add_f32_dpp v{T[0]}, v{P[2]}, v{P[2]} row_ror:8 row_mask:0xf bank_mask:0xc")
            self(f"  v_add_f32_dpp v{T[1]}, v{P[3]}, v{P[3]} row_ror:8 row_mask:0xf bank_mask:0xc")
            self(f"  v_add_f32_dpp v{U[g]}, v{T[0]}, v{T[0]} row_shl:4 row_mask:0xf bank_mask:0x5")
            self(f"  v_add_f32_dpp v{U[g]}, v{T[1]}, v{T[1]} row_shr:4 row_mask:0xf bank_mask:0xa")
            self(f"  v_add_f32_dpp v{U[g]}, v{U[g]}, v{U[g]} quad_perm:[1,0,3,2] row_mask:0xf bank_mask:0xf")
            self(f"  v_add_f32_dpp v{U[g]}, v{U[g]}, v{U[g]} quad_perm:[2,3,0,1] row_mask:0xf bank_mask:0xf")

        def softmax():
            self(f"  v_cvt_pk_bf16_f32 v{P[0]}, v{U[0]}, v{U[1]}")
            self(f"  v_cvt_pk_bf16_f32 v{P[1]}, v{U[2]}, v{U[3]}")
            self(f"  v_lshlrev_b32 v{U[0]}, 16, v{P[0]}")
            self(f"  v_and_b32 v{U[1]}, 0xffff0000, v{P[0]}")
            self(f"  v_lshlrev_b32 v{U[2]}, 16, v{P[1]}")
            self(f"  v_and_b32 v{U[3]}, 0xffff0000, v{P[1]}")
            for g in range(4):
                self(f"  v_mul_f32 v{U[g]}, {SCALE}, v{U[g]}")
            self(f"  v_cvt_pk_bf16_f32 v{P[0]}, v{U[0]}, v{U[1]}")
            self(f"  v_cvt_pk_bf16_f32 v{P[1]}, v{U[2]}, v{U[3]}")
            self(f"  v_lshlrev_b32 v{U[0]}, 16, v{P[0]}")
            self(f"  v_and_b32 v{U[1]}, 0xffff0000, v{P[0]}")
            self(f"  v_lshlrev_b32 v{U[2]}, 16, v{P[1]}")
            self(f"  v_and_b32 v{U[3]}, 0xffff0000, v{P[1]}")
            self(f"  v_max3_f32 v{t0}, v{U[0]}, v{U[1]}, v{U[2]}")
            self(f"  v_max_f32 v{t0}, v{t0}, v{U[3]}")
            self(f"  v_max_f32_dpp v{t0}, v{t0}, v{t0} row_ror:4 row_mask:0xf bank_mask:0xf")
            self(f"  v_max_f32_dpp v{t0}, v{t0}, v{t0} row_ror:8 row_mask:0xf bank_mask:0xf")
            self.cross_rows("v_max_f32", t0, t1)
            for g in range(4):
                self(f"  v_sub_f32 v{U[g]}, v{U[g]}, v{t0}")
            for g in range(4):
                self(f"  v_mul_f32 v{U[g]}, {LOG2E}, v{U[g]}")
            for g in range(4):
                self(f"  v_exp_f32 v{U[g]}, v{U[g]}")
            self("  s_nop 0")
            for g in range(4):
                self(f"  v_cvt_pk_bf16_f32 v{PL[g]}, v{U[g]}, 0")
                self(f"  v_cvt_pk_bf16_f32 v{PH[g]}, 0, v{U[g]}")
            self(f"  v_add_f32 v{T[0]}, v{U[0]}, v{U[1]}")
            self(f"  v_add_f32 v{T[1]}, v{U[2]}, v{U[3]}")
            self(f"  v_add_f32 v{T[0]}, v{T[0]}, v{T[1]}")
            self(f"  v_add_f32_dpp v{T[0]}, v{T[0]}, v{T[0]} row_ror:4 row_mask:0xf bank_mask:0xf")
            self(f"  v_add_f32_dpp v{T[0]}, v{T[0]}, v{T[0]} row_ror:8 row_mask:0xf bank_mask:0xf")
            self.cross_rows("v_add_f32", T[0], t1)
            self(f"  s_lshl_b32 s6, s3, 2")
            self(f"  v_mov_b32 v{t1}, s6")
            self(f"  v_mov_b32 v{T[1]}, 1")
            self(f"  v_mov_b32 v{P[0]}, 0")
            self("  s_mov_b64 exec, 1")
            self(f"  ds_write_b32 v{t1}, v{t0} offset:{L_M}")
            self(f"  ds_write_b32 v{t1}, v{T[0]} offset:{L_L}")
            self("  s_waitcnt lgkmcnt(0)")
            self(f"  ds_add_u32 v{P[0]}, v{T[1]} offset:{L_CNT}")
            self("  s_mov_b64 exec, -1")
            for a in A:
                self(f"  v_mov_b32 v{a}, 0")

        def pv(j):
            g, k = j // 4, j % 4
            r = vbuf(j)
            for i in range(6):
                self(f"  v_dot2c_f32_bf16_dpp v{A[2 * i]}, v{PL[g]}, v{r + i} row_newbcast:{4 * k} row_mask:0xf bank_mask:0xf")
                self(f"  v_dot2c_f32_bf16_dpp v{A[2 * i + 1]}, v{PH[g]}, v{r + i} row_newbcast:{4 * k} row_mask:0xf bank_mask:0xf")

        qk_next = 0
        sm_done = False
        pv_next = 0
        landed = -1
        MO, FF, PA0, PA1 = 4, 5, 6, 7

        if self.touch & 9:
            self(f"  s_mul_i32 s7, s3, 196608")
            self(f"  v_mov_b32 v{t1}, s7")
            self("  s_mov_b64 exec, 1")
            if self.touch & 1:
                self(f"  buffer_load_dword v{t0}, v{t1}, s[36:39], 0 offen")
                self.vm_issue(("T", 0))
            if self.touch & 8:
                self(f"  buffer_load_dword v{T[0]}, v{t1}, s[32:35], 0 offen")
                self.vm_issue(("T", 1))
            self("  s_mov_b64 exec, -1")
        if not self.b0late:
            self("  s_barrier            ; B0")
        for i in range(32):
            Di = self.Dof(i)
            rk = self.rank and self.rank[0] <= i < self.rank[1]
            if rk:
                self("  v_mov_b32 v3, 0")
                self(f"  ds_read_b32 v3, v3 offset:{L_RANK}")
            if i - Di > landed:
                self.vm_wait(("L", i - Di))
                landed = i - Di
            if rk:
                def cnt_for(blk):
                    idx = [k for k, tg in enumerate(self.vm) if tg == ("L", blk)]
                    return len(self.vm) - 1 - idx[-1]
                Ls = self.lab("rk")
                Lh = self.lab("rkh")
                Le = self.lab("rke")
                self("  s_waitcnt lgkmcnt(0)")
                self("  v_readfirstlane_b32 s65, v3")
                self("  s_cmp_eq_u32 s65, s67")
                self(f"  s_cbranch_scc1 {Lh}")
                self("  s_mov_b32 s67, s65")
                self("  s_and_b32 s66, s65, 0xff")
                self(f"{Lh}:")
                self("  s_bitcmp1_b32 s67, 8")
                self(f"  s_cbranch_scc1 {Ls}")
                self(f"  s_waitcnt vmcnt({cnt_for(i - Di + 1)})")
                self("  s_cmp_eq_u32 s66, 0")
                self(f"  s_cbranch_scc1 {Le}")
                self("  s_sub_u32 s66, s66, 1")
                self(f"  s_waitcnt vmcnt({cnt_for(i - Di + 3)})")
                self(f"{Le}:")
                self("  s_bitcmp1_b32 s67, 10")
                self(f"  s_cbranch_scc0 {Ls}")
                self(f"  s_waitcnt vmcnt({cnt_for(i - Di + 2)})")
                self(f"{Ls}:")
            if self.adapt and self.adapt[0] <= i < self.adapt[1]:
                tag = ("L", i - (Di - 1))
                idx = [k for k, tg in enumerate(self.vm) if tg == tag]
                if idx:
                    n = len(self.vm) - 1 - idx[-1]
                    Ls = self.lab("deep")
                    self("  s_cmp_lg_u32 s65, 0")
                    self(f"  s_cbranch_scc1 {Ls}")
                    self(f"  s_waitcnt vmcnt({n})")
                    self(f"{Ls}:")
            if i >= 16 and (i - 16) >= E:
                need_g = (i - 16 - E) // 4
                assert qk_next > need_g, f"schedule: V{i - 16} needs QK group {need_g} (slot {i})"
            if self.prog and self.stamps and i in self.prog:
                k = 1 + self.prog.index(i)
                self(f"  s_memrealtime s[{70 + 2 * k}:{71 + 2 * k}]")
            issue(i)
            if any(i == c[0] for c in self.ckp) or (self.wol and i == self.wol[0]):
                assert sm_done
                self("  v_mov_b32 v8, 0")
                self("  v_mov_b32 v9, 1")
                self("  s_mov_b64 exec, 1")
                self(f"  ds_add_u32 v8, v9 offset:{L_PROG}")
                self("  s_mov_b64 exec, -1")
            if self.b0late and i == self.b0late - 1:
                self("  s_barrier            ; B0")
            if i == SB:
                self.stamp(1)
                self(f"  v_mov_b32 v{t1}, 0")
                self.lds_spin("qf", t1, L_QF, t0, target=3, sdst="s58", sleep=1)
                self.stamp(2)
                self(f"  v_and_b32 v{t0}, 15, v0")
                self(f"  v_lshlrev_b32 v{t1}, 4, v{t0}")
                self(f"  v_lshlrev_b32 v{t0}, 3, v{t0}")
                self(f"  ds_read_b128 v[{Q[0]}:{Q[3]}], v{t1} offset:{L_Q}")
                self(f"  ds_read_b64 v[{Q[4]}:{Q[5]}], v{t0} offset:{L_Q + 256}")
                self("  s_waitcnt lgkmcnt(0)")
            if i >= SB:
                n = 0
                while qk_next < 4 and 4 * qk_next + 3 <= landed and n < self.qk_per_slot:
                    qk_group(qk_next)
                    qk_next += 1
                    n += 1
                if qk_next == 4 and not sm_done:
                    softmax()
                    self(f"  v_mov_b32 v{MO}, v{t0}")
                    sm_done = True
                    self.stamp(3)
                elif sm_done:
                    n = 0
                    while pv_next < 16 and 16 + pv_next <= landed and n < 3:
                        pv(pv_next)
                        pv_next += 1
                        n += 1
        assert sm_done
        self(f"  v_mov_b32 v{t1}, 0")
        self.lds_spin("cnt8", t1, L_CNT, t0, target=8, sdst="s58", sleep=1)
        self(f"  v_and_b32 v{t1}, 7, v0")
        self(f"  v_lshlrev_b32 v{t1}, 2, v{t1}")
        self(f"  ds_read_b32 v{t0}, v{t1} offset:{L_M}")
        self(f"  v_and_b32 v{P[0]}, 15, v0")
        self(f"  v_lshrrev_b32 v{P[1]}, 4, v0")
        self(f"  v_lshlrev_b32 v{P[1]}, 2, v{P[1]}")
        self("  s_mul_i32 s6, s3, 768")
        self(f"  v_add_u32 v{P[1]}, s6, v{P[1]}")
        self(f"  v_lshl_add_u32 v{PA0}, v{P[0]}, 5, v{P[1]}")
        self(f"  v_lshl_add_u32 v{PA1}, v{P[0]}, 4, v{P[1]}")
        self("  s_waitcnt lgkmcnt(0)")
        for r in (1, 2, 4):
            self(f"  v_max_f32_dpp v{t0}, v{t0}, v{t0} row_ror:{r} row_mask:0xf bank_mask:0xf")
        self(f"  v_sub_f32 v{FF}, v{MO}, v{t0}")
        self(f"  v_mul_f32 v{FF}, {LOG2E}, v{FF}")
        self(f"  v_exp_f32 v{FF}, v{FF}")
        for j in range(pv_next, 16):
            self.vm_wait(("L", 16 + j))
            if j == 15:
                self.stamp(4)
                if self.prog and self.stamps:
                    self(f"  s_memrealtime s[92:93]")
            pv(j)
        R = self.treduce4rows(A)
        for r in R:
            self(f"  v_mul_f32 v{r}, v{FF}, v{r}")
        self(f"  ds_write_b32 v{PA0}, v{R[0]} offset:{L_PART}")
        self(f"  ds_write_b32 v{PA0}, v{R[1]} offset:{L_PART + 16}")
        self(f"  ds_write_b32 v{PA1}, v{R[2]} offset:{L_PART + 512}")
        if self.nob2:
            self("  s_mov_b64 exec, 1")
            self(f"  ds_add_u32 v8, v9 offset:{L_PARTS}")
            self("  s_mov_b64 exec, -1")
        Bf = RING
        Af = RING + 24
        Dd = RING + 48
        aB, aA, aS = RING + 52, RING + 53, RING + 54
        self(f"  v_lshrrev_b32 v{P[0]}, 4, v0          ; g")
        self(f"  v_bfe_u32 v{P[2]}, v0, 2, 2           ; r4")
        self(f"  v_and_b32 v{P[3]}, 3, v0              ; cq")
        self(f"  v_lshl_add_u32 v{aB}, v{P[0]}, 3, v{P[2]}   ; 8g + r4")
        self(f"  v_lshlrev_b32 v{aB}, 7, v{aB}")
        self("  s_and_b32 s6, s3, 3           ; tile")
        self("  s_lshl_b32 s7, s6, 1")
        self(f"  v_lshrrev_b32 v{aA}, 1, v{P[3]}")
        self(f"  v_add_u32 v{aA}, s7, v{aA}")
        self(f"  v_lshlrev_b32 v{aS}, 1, v{P[2]}")
        self(f"  v_xor_b32 v{aA}, v{aA}, v{aS}")
        self(f"  v_lshl_add_u32 v{aB}, v{aA}, 4, v{aB}")
        self(f"  v_and_b32 v{aA}, 1, v{P[3]}")
        self(f"  v_lshl_add_u32 v{aB}, v{aA}, 3, v{aB}")
        self(f"  v_and_b32 v{aA}, 7, v0")
        self(f"  v_mul_u32_u24 v{aA}, 400, v{aA}")
        self(f"  v_lshl_add_u32 v{aA}, v{P[0]}, 4, v{aA}")
        self(f"  v_lshlrev_b32 v{aS}, 2, v0")
        for d in range(4):
            self(f"  v_mov_b32 v{Dd + d}, 0")
        self.srd(44, 30, None, WS_SIZE)
        self("  s_waitcnt lgkmcnt(0)")
        self.stamp(5)
        self("  s_cmp_ge_u32 s3, 4")
        self("  s_cbranch_scc1 L_tail_extra")

        def tail_part(nk, wo_off):
            if not self.nob2:
                self("  s_barrier")
            if self.wol:
                self(f"  v_mov_b32 v{t1}, 0")
                self.lds_spin("wok", t1, L_WOK, t0, target=None, sdst="s58", sleep=(1 if self.nob2 else 0) if self.wop != 2 else 0)
            for k in range(nk):
                if self.wop and k == 4:
                    self.lds_spin("wok2", t1, L_WOK, t0, target=2, sdst="s58", sleep=0)
                self(f"  ds_read_b64_tr_b16 v[{Bf + 4 * k}:{Bf + 4 * k + 1}], v{aB} offset:{wo_off + 4096 * k}")
                self(f"  ds_read_b64_tr_b16 v[{Bf + 4 * k + 2}:{Bf + 4 * k + 3}], v{aB} offset:{wo_off + 4096 * k + 512}")
            self(f"  v_add_u32 v{aS}, s6, v{aS}")
            self("  s_waitcnt lgkmcnt(0)")
            self("  s_barrier")
            for k in range(nk):
                self(f"  ds_read_b128 v[{Af + 4 * k}:{Af + 4 * k + 3}], v{aA} offset:{L_A + 64 * k}")
            self.stamp(6)
            for k in range(nk):
                if self.stamps:
                    if k == 0:
                        self("  s_waitcnt lgkmcnt(0)")
                else:
                    self(f"  s_waitcnt lgkmcnt({nk - 1 - k})")
                self(f"  v_mfma_f32_16x16x32_bf16 v[{Dd}:{Dd + 3}], v[{Af + 4 * k}:{Af + 4 * k + 3}], v[{Bf + 4 * k}:{Bf + 4 * k + 3}], v[{Dd}:{Dd + 3}]")
            self(f"  v_add_f32 v{Dd}, v{Dd}, v{Dd + 1}")
            self(f"  v_add_f32 v{Dd + 2}, v{Dd + 2}, v{Dd + 3}")
            self(f"  v_add_f32 v{Dd}, v{Dd}, v{Dd + 2}")
            self(f"  v_mov_b32 v{t0}, v{Dd}")
            self(f"  v_permlane16_swap_b32 v{Dd}, v{t0}")
            self(f"  v_add_f32 v{Dd}, v{Dd}, v{t0}")
            self(f"  v_min_u32 v{Dd}, -2, v{Dd}")
            self("  s_mov_b32 exec_lo, 0xffff")
            self("  s_mov_b32 exec_hi, 0")
            self(f"  buffer_store_dword v{Dd}, v{aS}, s[44:47], 0 offen sc1")
            self("  s_mov_b64 exec, -1")
            self.stamp(7)
            self("  s_branch L_exit_stamped")

        self("  s_lshl_b32 s7, s5, 2")
        self("  s_add_u32 s6, s6, s7")
        self(f"  s_mul_i32 s6, s6, {SDSTR}")
        self("  s_lshl_b32 s7, s4, 6")
        self("  s_add_u32 s6, s6, s7")
        self(f"  s_add_u32 s6, s6, {SD_BASE}")
        tail_part(6, L_WO)
        self("L_tail_extra:")
        self("  s_cmp_ge_u32 s5, 6")
        self("  s_cbranch_scc1 L_exit_stamped")
        self("  s_cmp_ge_u32 s5, 3")
        self("  s_cselect_b32 s7, 4, 0        ; 4e")
        self("  s_cselect_b32 s56, 3, 0")
        self("  s_sub_u32 s56, s5, s56        ; third")
        self("  s_add_u32 s6, s6, s7")
        self("  s_add_u32 s6, s6, 32")
        self(f"  s_mul_i32 s6, s6, {SDSTR}")
        self("  s_mul_i32 s7, s4, 3")
        self("  s_add_u32 s7, s7, s56")
        self("  s_lshl_b32 s7, s7, 6")
        self("  s_add_u32 s6, s6, s7")
        self(f"  s_add_u32 s6, s6, {SD_BASE}")
        self("  s_lshl_b32 s7, s56, 7")
        self(f"  v_add_u32 v{aA}, s7, v{aA}")
        tail_part(2, L_WO2)

    def ln(self, X, xs, t):
        for i in range(5):
            self(f"  v_lshlrev_b32 v{xs[2 * i]}, 16, v{X[i]}")
            self(f"  v_and_b32 v{xs[2 * i + 1]}, 0xffff0000, v{X[i]}")
        s, u, m = t[0], t[1], t[2]
        self(f"  v_add_f32 v{s}, v{xs[0]}, v{xs[1]}")
        for i in range(2, 10):
            self(f"  v_add_f32 v{s}, v{s}, v{xs[i]}")
        self.allreduce("v_add_f32", s, u)
        self(f"  v_mul_f32 v{m}, {INV640}, v{s}")
        self(f"  v_sub_f32 v{u}, v{xs[0]}, v{m}")
        self(f"  v_mul_f32 v{s}, v{u}, v{u}")
        for i in range(1, 10):
            self(f"  v_sub_f32 v{u}, v{xs[i]}, v{m}")
            self(f"  v_fmac_f32 v{s}, v{u}, v{u}")
        self.allreduce("v_add_f32", s, u)
        self(f"  v_mul_f32 v{s}, {INV640}, v{s}          ; var")
        self(f"  v_cvt_pk_bf16_f32 v{u}, v{s}, v{m}")
        self(f"  v_lshlrev_b32 v{s}, 16, v{u}            ; bf16(var)")
        self(f"  v_and_b32 v{m}, 0xffff0000, v{u}        ; bf16(mean)")
        self(f"  v_add_f32 v{s}, {EPS}, v{s}")
        self(f"  v_cvt_pk_bf16_f32 v{s}, v{s}, v{s}")
        self(f"  v_lshlrev_b32 v{s}, 16, v{s}")
        self(f"  v_sqrt_f32 v{s}, v{s}")
        self("  s_nop 0")
        self(f"  v_cvt_pk_bf16_f32 v{s}, v{s}, v{s}")
        self(f"  v_lshlrev_b32 v{s}, 16, v{s}")
        self(f"  v_rcp_f32 v{s}, v{s}")
        for i in range(10):
            self(f"  v_sub_f32 v{xs[i]}, v{xs[i]}, v{m}")
        for i in range(5):
            self(f"  v_cvt_pk_bf16_f32 v{X[i]}, v{xs[2 * i]}, v{xs[2 * i + 1]}")
        for i in range(5):
            self(f"  v_lshlrev_b32 v{xs[2 * i]}, 16, v{X[i]}")
            self(f"  v_and_b32 v{xs[2 * i + 1]}, 0xffff0000, v{X[i]}")
        for i in range(10):
            self(f"  v_mul_f32 v{xs[i]}, v{xs[i]}, v{s}")
        for i in range(5):
            self(f"  v_cvt_pk_bf16_f32 v{X[i]}, v{xs[2 * i]}, v{xs[2 * i + 1]}")
        self(f"  v_lshlrev_b32 v{u}, 2, v0")
        for i in range(5):
            self(f"  ds_write_b32 v{u}, v{X[i]} offset:{L_XN + 256 * i}")

    def xn_rows(self, XL, XH, t, n=10, base="s5", mul=80):
        self(f"  v_lshrrev_b32 v{t}, 3, v0")
        self(f"  s_mul_i32 s6, {base}, {mul}")
        self(f"  v_add_u32 v{t}, s6, v{t}")
        self(f"  v_lshlrev_b32 v{t}, 1, v{t}")
        self("  s_waitcnt lgkmcnt(0)")
        for i in range(n):
            self(f"  ds_read_u16 v{XL[i]}, v{t} offset:{L_XN + 16 * i}")
        self("  s_waitcnt lgkmcnt(0)")
        for i in range(n):
            self(f"  v_lshlrev_b32 v{XH[i]}, 16, v{XL[i]}")

    def gemv64(self, W, XL, XH, ACC, n):
        for i in range(n):
            for k in range(4):
                c0 = "0" if i == 0 else f"v{ACC[2 * k]}"
                c1 = "0" if i == 0 else f"v{ACC[2 * k + 1]}"
                self(f"  v_dot2_f32_bf16 v{ACC[2 * k]}, v{W + 4 * i + k}, v{XL[i]}, {c0}")
                self(f"  v_dot2_f32_bf16 v{ACC[2 * k + 1]}, v{W + 4 * i + k}, v{XH[i]}, {c1}")

    def gather_h1(self, nparts, dst, addr):
        def issue():
            for p in range(nparts):
                for c in range(8):
                    so = ["0", "s60", "s61", "s62"][c // 2]
                    imm = BOX * (c % 2) + 256 * p
                    o = f" offset:{imm}" if imm else ""
                    self(f"  buffer_load_dword v{dst[p * 8 + c]}, v{addr}, s[44:47], {so} offen{o} sc1")
        self.poll_loop("h1", issue, dst[:nparts * 8], dst[nparts * 8], sleep=2)

    def ticket(self, k, pol, vz):
        if self.rshard == 0:
            self("  s_and_b32 s6, s4, 3")
            self("  s_lshl_b32 s6, s6, 6")
        else:
            self("  s_lshr_b32 s6, s4, 2")
            self("  s_lshl_b32 s6, s6, 5")
        self(f"  s_add_u32 s6, s6, {4 + 8 * k}")
        self("  v_mov_b32 v15, s6")
        self("  v_mov_b32 v16, 1")
        self("  s_mov_b64 exec, 1")
        self("  buffer_atomic_add v16, v15, s[48:51], 0 offen sc0 sc1")
        self("  s_waitcnt vmcnt(0)")
        self("  v_readfirstlane_b32 s6, v16")
        word = lambda n1, d: 512 | (k << 12) | n1 | (256 if d == 4 else 0) | (1024 if d == 2 else 0)
        self(f"  s_mov_b32 s56, {word(*pol[-1][1:])}")
        for (ub, n1, d) in reversed(pol[:-1]):
            self(f"  s_cmp_lt_u32 s6, {ub}")
            self(f"  s_cselect_b32 s56, {word(n1, d)}, s56")
        self("  v_mov_b32 v16, s56")
        self(f"  ds_write_b32 v{vz}, v16 offset:{L_RANK}")
        self("  s_mov_b64 exec, -1")

    def later_tickets(self):
        for k, (slot, pol) in enumerate(self.ckp):
            L = self.lab("ck")
            Ld = self.lab("ckd")
            self("  v_mov_b32 v12, 0")
            self("  s_mov_b32 s57, 0")
            self(f"{L}:")
            self(f"  ds_read_b32 v13, v12 offset:{L_PROG}")
            self("  s_waitcnt lgkmcnt(0)")
            self("  v_readfirstlane_b32 s58, v13")
            self("  s_add_u32 s57, s57, 1")
            self(f"  s_cmp_gt_u32 s57, {SPIN_MAX * 8}")
            self(f"  s_cbranch_scc1 {Ld}")
            self(f"  s_cmp_ge_u32 s58, {8 * (k + 1)}")
            self(f"  s_cbranch_scc1 {Ld}")
            self("  s_sleep 2")
            self(f"  s_branch {L}")
            self(f"{Ld}:")
            self.ticket(k + 1, pol, 12)

    def own_box(self, dst="s6", tmp="s56"):
        self(f"  s_mul_i32 {dst}, s4, {GBOX}")
        self(f"  s_mul_i32 {tmp}, s5, {BOX}")
        self(f"  s_add_u32 {dst}, {dst}, {tmp}")

    def helper(self):
        self.in_stream = False
        X = list(range(4, 9))
        xs = list(range(10, 20))
        t = [20, 21, 22, 23]
        XL = list(range(24, 34))
        XH = list(range(34, 44))
        ACC = list(range(44, 60))
        W = 64
        self("L_helper:")
        if self.prio:
            self(f"  s_setprio {self.prio}")
        self("  s_sub_u32 s7, s3, 8")
        self("  v_lshlrev_b32 v1, 2, v0       ; 4*lane")
        self(f"  s_mov_b32 s60, {2 * BOX}")
        self(f"  s_mov_b32 s61, {4 * BOX}")
        self(f"  s_mov_b32 s62, {6 * BOX}")
        self("  s_waitcnt lgkmcnt(0)")
        self.srd(32, 8, None, 1280)
        self.srd(44, 30, None, WS_SIZE)
        self.srd(48, 28, None, 256)
        self("  s_cmp_eq_u32 s3, 11")
        self("  s_cbranch_scc1 L_h3")
        self("  s_mul_i32 s6, s5, 983040      ; 80*12288*c")
        self("  s_mul_i32 s56, s4, 384")
        self("  s_add_u32 s6, s6, s56")
        self.srd(36, 14, "s6", 79 * 12288 + 384)
        self(f"  v_lshrrev_b32 v2, 3, v0")
        self(f"  v_mul_u32_u24 v2, 12288, v2")
        self(f"  v_and_b32 v3, 7, v0")
        self(f"  v_lshl_add_u32 v2, v3, 4, v2")
        self("  s_lshl_b32 s6, s7, 7")
        self(f"  v_add_u32 v2, s6, v2")
        for i in range(5):
            o = f" offset:{256 * i}" if i else ""
            self(f"  buffer_load_dword v{X[i]}, v1, s[32:35], 0 offen{o}")
        for i in range(10):
            self(f"  s_mov_b32 s6, {98304 * i}")
            self(f"  buffer_load_dwordx4 v[{W + 4 * i}:{W + 4 * i + 3}], v2, s[36:39], s6 offen nt")
        if self.touch & 2:
            self("  s_mul_i32 s6, s4, 245760      ; 192*1280*h")
            self("  s_mul_i32 s56, s5, 160")
            self("  s_add_u32 s6, s6, s56")
            self.srd(40, 16, "s6", 191 * 1280 + 160)
            self("  s_mul_i32 s6, s7, 81920")
            self("  v_mov_b32 v3, s6")
            self("  s_mov_b64 exec, 1")
            self("  buffer_load_dword v60, v3, s[40:43], 0 offen")
            self("  s_mov_b64 exec, -1")
        self("  s_barrier            ; B0")
        self(f"  s_waitcnt vmcnt({11 if self.touch & 2 else 10})")
        self.ln(X, xs, t)
        self.xn_rows(XL, XH, t[0])
        self.stamp(1)
        self("  s_waitcnt vmcnt(0)")
        self.stamp(2)
        for i in range(10):
            for k in range(4):
                c0 = "0" if i == 0 else f"v{ACC[2 * k]}"
                c1 = "0" if i == 0 else f"v{ACC[2 * k + 1]}"
                self(f"  v_dot2_f32_bf16 v{ACC[2 * k]}, v{W + 4 * i + k}, v{XL[i]}, {c0}")
                self(f"  v_dot2_f32_bf16 v{ACC[2 * k + 1]}, v{W + 4 * i + k}, v{XH[i]}, {c1}")
        self.treduce8(ACC[:8], t[1])
        self(f"  v_min_u32 v{t[1]}, -2, v{t[1]}")
        self(f"  s_mul_i32 s6, s4, {GBOX}")
        self("  s_lshl_b32 s56, s7, 8")
        self("  s_add_u32 s6, s6, s56")
        self(f"  v_add_u32 v14, s6, v1")
        self(f"  s_mul_i32 s56, s5, {BOX}")
        self("  v_add_u32 v15, s56, v14")
        self(f"  v_mov_b32 v12, 0")
        if self.early_pub:
            self.lds_spin("clr", 12, L_CLR, 13, target=None, sdst="s58")
            self(f"  buffer_store_dword v{t[1]}, v15, s[44:47], 0 offen sc1")
            self.lds_spin("mode", 12, L_MODE, 13, target=None, sdst="s59")
        else:
            self.lds_spin("mode", 12, L_MODE, 13, target=None, sdst="s59")
            self.mode_store([f"buffer_store_dword v{t[1]}, v15, s[44:47], 0 offen"])
        self.stamp(3)
        G8 = list(range(64, 73))
        self.gather_h1(1, G8, 14)
        self.stamp(4)
        self(f"  v_add_f32 v{G8[0]}, v{G8[0]}, v{G8[1]}")
        self(f"  v_add_f32 v{G8[2]}, v{G8[2]}, v{G8[3]}")
        self(f"  v_add_f32 v{G8[4]}, v{G8[4]}, v{G8[5]}")
        self(f"  v_add_f32 v{G8[6]}, v{G8[6]}, v{G8[7]}")
        self(f"  v_add_f32 v{G8[0]}, v{G8[0]}, v{G8[2]}")
        self(f"  v_add_f32 v{G8[4]}, v{G8[4]}, v{G8[6]}")
        self(f"  v_add_f32 v{G8[0]}, v{G8[0]}, v{G8[4]}")
        self(f"  v_cvt_pk_bf16_f32 v{G8[0]}, v{G8[0]}, v{G8[0]}")
        self("  v_and_b32 v16, 7, v0")
        self("  v_lshrrev_b32 v17, 3, v0")
        self("  v_lshl_add_u32 v16, v16, 3, v17")
        self("  s_lshl_b32 s6, s7, 6")
        self("  v_add_u32 v16, s6, v16")
        self("  v_lshlrev_b32 v16, 1, v16")
        self(f"  ds_write_b16 v16, v{G8[0]} offset:{L_Q}")
        self("  v_mov_b32 v13, 1")
        self("  s_waitcnt lgkmcnt(0)")
        self("  s_mov_b64 exec, 1")
        self(f"  ds_add_u32 v12, v13 offset:{L_QF}")
        self("  s_mov_b64 exec, -1")
        self.stamp(5)
        self("  s_cmp_eq_u32 s3, 8")
        self("  s_cbranch_scc1 L_h0")
        self("  s_cmp_eq_u32 s3, 10")
        self("  s_cbranch_scc1 L_h2")
        self("  s_mov_b32 s56, -1")
        for tt in range(5):
            self(f"  s_cmp_eq_u32 s4, {6 * tt + 1}")
            self(f"  s_cselect_b32 s56, {tt}, s56")
        self("  s_cmp_eq_u32 s56, -1")
        self("  s_cbranch_scc1 L_exit_stamped")
        self.final_consumer()

        self("L_h2:")
        if self.bulkprio is not None:
            self(f"  s_setprio {self.bulkprio}")
        self("  s_mul_i32 s6, s4, 245760      ; 192*1280*h")
        self("  s_lshl_b32 s56, s5, 7")
        self("  s_add_u32 s6, s6, s56")
        self.srd(40, 16, "s6", 191 * 1280 + 128)
        self("  v_lshrrev_b32 v2, 3, v0")
        self("  v_and_b32 v3, 3, v2")
        self("  v_lshlrev_b32 v3, 1, v3")
        self("  v_and_b32 v4, 7, v0")
        self("  v_xor_b32 v3, v3, v4")
        self("  v_mul_u32_u24 v2, 1280, v2")
        self("  v_lshl_add_u32 v2, v3, 4, v2")
        self("  s_mov_b32 s6, 0")
        self(f"  s_mov_b32 m0, {L_WO}")
        nt = ' nt' if self.wnt & 1 else ''
        def wo_loop(name, n, srd, thr):
            self(f"{name}:")
            self(f"  buffer_load_dwordx4 v2, {srd}, s6 offen{nt} lds")
            self("  s_add_u32 m0, m0, 1024")
            self("  s_add_u32 s6, s6, 10240")
            if thr:
                self(f"  s_waitcnt vmcnt({thr})")
            self(f"  s_cmp_lt_u32 s6, {10240 * n}")
            self(f"  s_cbranch_scc1 {name}")

        def extra_srd():
            self("  s_cmp_ge_u32 s5, 3")
            self("  s_cselect_b32 s7, 128, 0")
            self("  s_cselect_b32 s56, 3, 0")
            self("  s_sub_u32 s56, s5, s56        ; third")
            self("  s_mul_i32 s56, s56, 81920     ; 64*1280")
            self("  s_add_u32 s7, s7, s56")
            self("  s_mul_i32 s6, s4, 245760")
            self("  s_add_u32 s6, s6, s7")
            self("  s_add_u32 s6, s6, 1024")
            self.srd(52, 16, "s6", 63 * 1280 + 128)
        if not self.wol:
            wo_loop("L_wo_loop", 24, "s[40:43]", self.wo_throttle)
            self("  s_cmp_ge_u32 s5, 6")
            self("  s_cbranch_scc1 L_wo_done")
            extra_srd()
            self("  s_mov_b32 s6, 0")
            wo_loop("L_wo2_loop", 8, "s[52:55]", self.wo_throttle)
        else:
            wl = list(self.wol) + [0, 0, 0, 0, 2, 0][len(self.wol) - 2:]
            X_, N_, T_, _, K0, xe, slp, pr = wl[:8]
            extra_srd()
            if xe:
                self("  s_cmp_ge_u32 s5, 6")
                self("  s_cbranch_scc1 L_wo2_skip")
                self(f"  s_mov_b32 m0, {L_WO2}")
                self("  s_mov_b32 s6, 0")
                wo_loop("L_wo2_loop", 8, "s[52:55]", self.wo_throttle)
                self("L_wo2_skip:")
            self(f"  s_mov_b32 m0, {L_WO}")
            self("  s_mov_b32 s6, 0")
            if K0:
                wo_loop("L_wo0_loop", K0, "s[40:43]", self.wo_throttle)
            Lw = self.lab("wol")
            Lwd = self.lab("wold")
            self("  v_mov_b32 v12, 0")
            self("  s_mov_b32 s57, 0")
            if pr:
                self(f"  s_setprio {pr}")
            self(f"{Lw}:")
            self(f"  ds_read_b32 v13, v12 offset:{L_PROG}")
            self("  s_waitcnt lgkmcnt(0)")
            self("  v_readfirstlane_b32 s58, v13")
            self("  s_add_u32 s57, s57, 1")
            self(f"  s_cmp_gt_u32 s57, {SPIN_MAX * 8}")
            self(f"  s_cbranch_scc1 {Lwd}")
            self(f"  s_cmp_ge_u32 s58, {N_}")
            self(f"  s_cbranch_scc1 {Lwd}")
            if slp:
                self(f"  s_sleep {slp}")
            self(f"  s_branch {Lw}")
            self(f"{Lwd}:")
            self.stamp(7)
            if self.wop:
                assert K0 <= 16
                if not xe:
                    self("  s_cmp_ge_u32 s5, 6")
                    self("  s_cbranch_scc1 L_wo2_skip")
                    self(f"  s_mov_b32 m0, {L_WO2}")
                    self("  s_mov_b32 s6, 0")
                    wo_loop("L_wo2_loop", 8, "s[52:55]", T_)
                    self("L_wo2_skip:")
                    self(f"  s_mov_b32 m0, {L_WO + 1024 * K0}")
                    self(f"  s_mov_b32 s6, {10240 * K0}")
                wo_loop("L_wo_loop", 24, "s[40:43]", T_)
            else:
                wo_loop("L_wo_loop", 24, "s[40:43]", T_)
                if not xe:
                    self("  s_cmp_ge_u32 s5, 6")
                    self("  s_cbranch_scc1 L_wo_done")
                    self("  s_mov_b32 s6, 0")
                    wo_loop("L_wo2_loop", 8, "s[52:55]", T_)
        self("L_wo_done:")
        if self.wol:
            self.stamp(8)
            if not self.nob2:
                self("  s_barrier            ; B2")
        if self.wop:
            self("  v_mov_b32 v13, 1")
            self("  v_mov_b32 v14, 2")
            self("  s_mov_b64 exec, 1")
            self("  s_waitcnt vmcnt(8)")
            self(f"  ds_write_b32 v12, v13 offset:{L_WOK}")
            self("  s_waitcnt vmcnt(0)")
            self(f"  ds_write_b32 v12, v14 offset:{L_WOK}")
            self("  s_mov_b64 exec, -1")
        else:
            self("  s_waitcnt vmcnt(0)")
            if self.wol:
                self("  v_mov_b32 v13, 1")
                self("  s_mov_b64 exec, 1")
                self(f"  ds_write_b32 v12, v13 offset:{L_WOK}")
                self("  s_mov_b64 exec, -1")
        self.stamp(6)
        self("  s_branch L_exit_stamped")

        self("L_h0:")
        self("  v_mov_b32 v12, 0")
        self.lds_spin("cnt", 12, L_CNT, 13, target=8, sdst="s58", sleep=2)
        if self.rank:
            self.ticket(0, self.rankp, 12)
        self("  v_and_b32 v14, 7, v0")
        self("  v_lshlrev_b32 v14, 2, v14")
        self(f"  ds_read_b32 v16, v14 offset:{L_M}")
        self(f"  ds_read_b32 v17, v14 offset:{L_L}")
        self("  s_waitcnt lgkmcnt(0)")
        self("  v_mov_b32 v18, v16")
        for r in (1, 2, 4):
            self(f"  v_max_f32_dpp v18, v18, v18 row_ror:{r} row_mask:0xf bank_mask:0xf")
        self("  v_sub_f32 v19, v16, v18")
        self(f"  v_mul_f32 v19, {LOG2E}, v19")
        self("  v_exp_f32 v19, v19")
        self("  s_nop 0")
        self("  v_mul_f32 v19, v19, v17")
        for r in (1, 2, 4):
            self(f"  v_add_f32_dpp v19, v19, v19 row_ror:{r} row_mask:0xf bank_mask:0xf")
        self("  v_min_u32 v20, -2, v18")
        self("  v_min_u32 v21, -2, v19")
        self("  v_mov_b32 v16, v18                ; M_c")
        self.own_box()
        self(f"  s_add_u32 s6, s6, {O_LSE}")
        self("  v_mov_b32 v15, s6")
        self("  s_mov_b64 exec, 1")
        self.mode_store(["buffer_store_dwordx2 v[20:21], v15, s[44:47], 0 offen"])
        self("  s_mov_b64 exec, -1")
        self("  v_and_b32 v15, 7, v0")
        self(f"  v_mul_u32_u24 v15, {BOX}, v15")
        self(f"  s_mul_i32 s6, s4, {GBOX}")
        self(f"  s_add_u32 s6, s6, {O_LSE}")
        self("  v_add_u32 v15, s6, v15")

        def issue_lse():
            self("  buffer_load_dwordx2 v[22:23], v15, s[44:47], 0 offen sc1")
        self.poll_loop("lse", issue_lse, [22, 23], 24, sleep=1)
        self("  v_mov_b32 v18, v22")
        for r in (1, 2, 4):
            self(f"  v_max_f32_dpp v18, v18, v18 row_ror:{r} row_mask:0xf bank_mask:0xf")
        self("  v_sub_f32 v19, v22, v18")
        self(f"  v_mul_f32 v19, {LOG2E}, v19")
        self("  v_exp_f32 v19, v19")
        self("  s_nop 0")
        self("  v_mul_f32 v19, v19, v23")
        for r in (1, 2, 4):
            self(f"  v_add_f32_dpp v19, v19, v19 row_ror:{r} row_mask:0xf bank_mask:0xf")
        self("  v_rcp_f32 v19, v19")
        self("  v_sub_f32 v16, v16, v18")
        self(f"  v_mul_f32 v16, {LOG2E}, v16")
        self("  v_exp_f32 v16, v16")
        self("  s_nop 0")
        self("  v_mul_f32 v16, v16, v19          ; G = exp(M_c - M_h) / L_h")
        self.stamp(6)
        self("  v_lshlrev_b32 v14, 4, v0")
        self.own_box()
        self(f"  s_add_u32 s6, s6, {O_O2}")
        self("  v_lshlrev_b32 v15, 3, v0")
        self("  v_add_u32 v15, s6, v15")
        self(f"  s_mul_i32 s6, s4, {GBOX}")
        self(f"  s_add_u32 s6, s6, {O_O2}")
        GA, LA = [4, 5, 6], [7, 8, 9]
        for i in range(3):
            self(f"  v_add_u32 v17, {64 * i}, v0")
            self("  v_mul_u32_u24 v18, 171, v17")
            self("  v_lshrrev_b32 v18, 12, v18")
            self("  v_mul_u32_u24 v19, 24, v18")
            self("  v_sub_u32 v19, v17, v19           ; chunk")
            self(f"  v_mul_u32_u24 v20, {BOX}, v18")
            self("  v_lshl_add_u32 v20, v19, 4, v20")
            self(f"  v_add_u32 v{GA[i]}, s6, v20")
            self("  v_mul_u32_u24 v20, 400, v18")
            self(f"  v_lshl_add_u32 v{LA[i]}, v19, 4, v20")
        self("  s_mov_b32 exec_hi, 0xffff         ; 48 lanes")
        if self.nob2:
            self("  v_mov_b32 v12, 0")
            self.lds_spin("parts", 12, L_PARTS, 13, target=8, sdst="s58", sleep=0)
        else:
            self("  s_barrier            ; B2")
        self.stamp(9)
        PR = 24
        for w in range(8):
            self(f"  ds_read_b128 v[{PR + 4 * w}:{PR + 4 * w + 3}], v14 offset:{L_PART + 768 * w}")
        for (a_, b_, cnt) in ((0, 1, 6), (2, 3, 4), (0, 2, None), (4, 5, 2), (6, 7, 0), (4, 6, None), (0, 4, None)):
            if cnt is not None:
                self(f"  s_waitcnt lgkmcnt({cnt if not self.stamps else 0})")
            for k in range(4):
                self(f"  v_add_f32 v{PR + 4 * a_ + k}, v{PR + 4 * a_ + k}, v{PR + 4 * b_ + k}")
        for k in range(4):
            self(f"  v_mul_f32 v{PR + k}, v16, v{PR + k}")
        self(f"  v_cvt_pk_bf16_f32 v20, v{PR}, v{PR + 1}")
        self(f"  v_cvt_pk_bf16_f32 v21, v{PR + 2}, v{PR + 3}")
        self("  v_min_u32 v20, -2, v20")
        self("  v_min_u32 v21, -2, v21")
        self.mode_store(["buffer_store_dwordx2 v[20:21], v15, s[44:47], 0 offen"])
        self("  s_mov_b64 exec, -1")
        self.stamp(7)
        AG = 56

        def issueA():
            for i in range(3):
                self(f"  buffer_load_dwordx4 v[{AG + 4 * i}:{AG + 4 * i + 3}], v{GA[i]}, s[44:47], 0 offen sc1")
        if self.pipeA:
            def issueAk(k):
                for i in range(3):
                    b = AG + 12 * k + 4 * i
                    self(f"  buffer_load_dwordx4 v[{b}:{b + 3}], v{GA[i]}, s[44:47], 0 offen sc1")

            def doneA(k):
                self.stamp(8)
                for i in range(3):
                    b = AG + 12 * k + 4 * i
                    self(f"  ds_write_b128 v{LA[i]}, v[{b}:{b + 3}] offset:{L_A}")
            self.poll_pipe("pollA", self.pipeA, 3, issueAk, lambda k: range(AG + 12 * k, AG + 12 * k + 12), 17, doneA)
        else:
            self.poll_loop("pollA", issueA, range(AG, AG + 12), 17)
            self.stamp(8)
            for i in range(3):
                self(f"  ds_write_b128 v{LA[i]}, v[{AG + 4 * i}:{AG + 4 * i + 3}] offset:{L_A}")
        self("  s_waitcnt lgkmcnt(0)")
        self.stamp(10)
        self("  s_barrier            ; B3")
        self("  s_branch L_exit_stamped")

        self("L_h3:")
        self("  s_lshr_b32 s6, s2, 3")
        self("  s_sub_u32 s64, s6, 2             ; fi")
        self("  s_cselect_b32 s66, 0, 1")
        self("  s_cselect_b32 s64, 0, s64")
        self("  s_mul_i32 s6, s64, 26")
        self("  s_lshr_b32 s6, s6, 8             ; l")
        self("  s_mul_i32 s56, s6, 10")
        self("  s_sub_u32 s64, s64, s56          ; m")
        self("  s_and_b32 s65, s2, 7")
        self("  s_mul_i32 s65, s65, 3")
        self("  s_add_u32 s65, s65, s6           ; j")
        self("  v_mov_b32 v16, 0")
        self("  v_mov_b32 v17, 0")
        self("  v_mov_b32 v18, 0")
        self("  v_mov_b32 v19, 0")
        self("  v_lshlrev_b32 v3, 4, v0")
        self("  v_mov_b32 v8, -1")
        self("  v_mov_b32 v9, -1")
        self("  v_mov_b32 v10, -1")
        self("  v_mov_b32 v11, -1")
        self.own_box()
        self("  v_add_u32 v12, s6, v3")
        self("  buffer_store_dwordx4 v[8:11], v12, s[44:47], 0 offen sc1")
        self("  s_mul_i32 s56, s65, 10")
        self("  s_add_u32 s56, s56, s64")
        self(f"  s_mul_i32 s56, s56, {FSTR}")
        self(f"  s_add_u32 s67, s56, {FB_BASE}")
        self("  s_cmp_lg_u32 s66, 0")
        self(f"  s_cselect_b32 s56, s67, {OOB}")
        self("  s_sub_u32 s56, s56, 256")
        self("  v_add_u32 v13, s56, v3")
        self("  v_add_u32 v12, 1024, v12")
        self("  v_cmp_gt_u32 vcc, 16, v0")
        self("  v_cndmask_b32 v12, v13, v12, vcc")
        self("  s_mov_b32 exec_hi, 0xffff")
        self("  buffer_store_dwordx4 v[8:11], v12, s[44:47], 0 offen sc1")
        self("  s_lshl_b32 s6, s5, 2")
        self(f"  s_mul_i32 s6, s6, {SDSTR}")
        self("  s_lshl_b32 s56, s4, 6")
        self("  s_add_u32 s6, s6, s56")
        self(f"  s_add_u32 s6, s6, {SD_BASE}")
        self("  v_mov_b32 v13, s6                ; main")
        self("  s_cmp_ge_u32 s5, 3")
        self("  s_cselect_b32 s7, 36, 32")
        self("  s_cselect_b32 s56, 3, 0")
        self("  s_sub_u32 s56, s5, s56           ; third")
        self(f"  s_mul_i32 s6, s7, {SDSTR}")
        self("  s_mul_i32 s7, s4, 3")
        self("  s_add_u32 s7, s7, s56")
        self("  s_lshl_b32 s7, s7, 6")
        self("  s_add_u32 s6, s6, s7")
        self(f"  s_add_u32 s6, s6, {SD_BASE}")
        self("  s_cmp_ge_u32 s5, 6")
        self(f"  s_cselect_b32 s6, {OOB}, s6")
        self("  v_mov_b32 v14, s6                ; extra")
        self("  s_lshl_b32 s6, s64, 2")
        self(f"  s_mul_i32 s6, s6, {SDSTR}")
        self("  s_lshl_b32 s56, s65, 6")
        self("  s_add_u32 s6, s6, s56")
        self(f"  s_add_u32 s68, s6, {SD_BASE + O_D3}")
        self("  s_cmp_lg_u32 s66, 0")
        self(f"  s_cselect_b32 s6, s68, {OOB}")
        self("  v_mov_b32 v15, s6                ; down")
        self("  v_cmp_gt_u32 vcc, 16, v0")
        self("  v_cndmask_b32 v14, v14, v13, vcc")
        self("  v_cmp_gt_u32 vcc, 32, v0")
        self("  v_cndmask_b32 v13, v15, v14, vcc")
        self("  v_bfe_u32 v14, v0, 2, 2")
        self(f"  v_mul_u32_u24 v14, {SDSTR}, v14")
        self("  v_add_u32 v13, v13, v14")
        self("  v_and_b32 v14, 3, v0")
        self("  v_lshl_add_u32 v13, v14, 4, v13")
        self("  buffer_store_dwordx4 v[8:11], v13, s[44:47], 0 offen sc1")
        self("  s_mov_b32 exec_hi, 0")
        self("  s_mov_b32 exec_lo, 0xff")
        self(f"  ds_write_b128 v3, v[16:19] offset:{L_MODE}")
        self("  s_mov_b64 exec, -1")
        for i in range(5):
            o = f" offset:{256 * i}" if i else ""
            self(f"  buffer_load_dword v{X[i]}, v1, s[32:35], 0 offen{o}")
        self("  s_waitcnt lgkmcnt(0)")
        self("  s_barrier            ; B0")
        self("  s_getreg_b32 s6, hwreg(HW_REG_XCC_ID, 0, 4)")
        self("  s_mul_i32 s56, s6, s6")
        self("  s_lshl_b32 s56, s56, 16")
        self("  s_lshl_b32 s6, s6, 8")
        self("  s_add_u32 s6, s6, s56")
        self("  s_add_u32 s63, s6, 1")
        self("  s_lshl_b32 s6, s4, 3")
        self("  v_mov_b32 v12, s6")
        self("  v_mov_b32 v13, s63")
        self("  v_mov_b32 v14, 0")
        self("  v_mov_b32 v15, 1")
        self("  s_waitcnt vmcnt(5)")
        self("  s_mov_b64 exec, 1")
        self("  buffer_atomic_add v13, v12, s[48:51], 0 offen sc1")
        self(f"  ds_write_b32 v14, v15 offset:{L_CLR}")
        self("  s_mov_b64 exec, -1")
        self.stamp(6)
        self("  s_waitcnt vmcnt(1)")
        self.ln(X, xs, t)
        self.xn_rows(XL, XH, t[0], n=8, base="s64", mul=64)
        self.stamp(1)
        self("  v_lshlrev_b32 v12, 3, v0")
        self("  v_mov_b32 v14, 0")
        Lp = self.lab("cntpoll")
        Lpd = self.lab("cntpolld")
        self("  s_mov_b32 s57, 0")
        if self.poll_delay:
            self(f"  s_sleep {self.poll_delay}")
        self("  s_mov_b32 exec_hi, 0")
        self(f"{Lp}:")
        self("  buffer_load_dword v60, v12, s[48:51], 0 offen sc1")
        self("  s_add_u32 s57, s57, 1")
        self(f"  s_cmp_gt_u32 s57, {SPIN_MAX}")
        self("  s_waitcnt vmcnt(0)")
        self("  v_readlane_b32 s58, v60, s4")
        self(f"  s_cbranch_scc1 {Lpd}")
        self("  s_and_b32 s6, s58, 0xff")
        self("  s_cmp_eq_u32 s6, 8")
        self(f"  s_cbranch_scc0 {Lp}")
        self(f"{Lpd}:")
        self("  s_lshl_b32 s6, s63, 3")
        self("  s_cmp_eq_u32 s58, s6")
        if self.force_slow:
            self("  s_mov_b32 s59, 1")
        else:
            self("  s_cselect_b32 s59, 2, 1")
        self("  v_mov_b32 v13, s59")
        self("  v_and_b32 v61, 0xff, v60")
        self("  v_cmp_ne_u32 vcc, 8, v61")
        self("  s_mov_b64 exec, 1")
        self(f"  ds_write_b32 v14, v13 offset:{L_MODE}")
        self("  s_mov_b64 exec, -1")
        self("  s_mov_b64 s[54:55], vcc")
        self.stamp(3)

        def all_cleared():
            La = self.lab("allcnt")
            Lad = self.lab("allcntd")
            self("  s_cmp_eq_u64 s[54:55], 0")
            self(f"  s_cbranch_scc1 {Lad}")
            self("  s_mov_b32 s57, 0")
            self("  s_mov_b32 exec_hi, 0")
            self(f"{La}:")
            self("  buffer_load_dword v60, v12, s[48:51], 0 offen sc1")
            self("  s_add_u32 s57, s57, 1")
            self(f"  s_cmp_gt_u32 s57, {SPIN_MAX}")
            self("  s_waitcnt vmcnt(0)")
            self(f"  s_cbranch_scc1 {Lad}")
            self("  v_and_b32 v61, 0xff, v60")
            self("  v_cmp_ne_u32 vcc, 8, v61")
            self(f"  s_cbranch_vccnz {La}")
            self(f"{Lad}:")
            self("  v_mov_b32 v13, 1")
            self("  v_mov_b32 v14, 0")
            self("  s_mov_b64 exec, 1")
            self(f"  ds_write_b32 v14, v13 offset:{L_ALL}")
            self("  s_mov_b64 exec, -1")

        Lact = self.lab("ffn")
        self("  s_cmp_lg_u32 s66, 0")
        self(f"  s_cbranch_scc1 {Lact}")
        all_cleared()
        self("  s_waitcnt lgkmcnt(0)")
        self.later_tickets()
        self("  s_branch L_exit_stamped")
        self(f"{Lact}:")
        if self.bulkprio is not None:
            self(f"  s_setprio {self.bulkprio}")
        self("  s_mul_i32 s6, s64, 196608      ; 64*3072*m")
        self("  s_lshl_b32 s56, s65, 7")
        self("  s_add_u32 s6, s6, s56")
        self.srd(36, 20, "s6", 63 * 3072 + 128)
        self.srd(40, 22, "s6", 63 * 3072 + 128)
        self("  v_lshrrev_b32 v2, 3, v0")
        self("  v_and_b32 v3, 7, v0")
        self("  v_mul_u32_u24 v9, 1280, v2")
        self("  v_lshl_add_u32 v9, v3, 4, v9")
        self("  v_mul_u32_u24 v2, 3072, v2")
        self("  v_lshl_add_u32 v2, v3, 4, v2")
        WG, WU = 64, 96
        ntg = ' nt' if self.wnt & 2 else ''
        for i in range(8):
            self(f"  s_mov_b32 s6, {24576 * i}")
            self(f"  buffer_load_dwordx4 v[{WG + 4 * i}:{WG + 4 * i + 3}], v2, s[36:39], s6 offen{ntg}")
        for i in range(8):
            self(f"  s_mov_b32 s6, {24576 * i}")
            self(f"  buffer_load_dwordx4 v[{WU + 4 * i}:{WU + 4 * i + 3}], v2, s[40:43], s6 offen{ntg}")
        self("  s_mul_i32 s6, s65, 81920       ; 64*1280*j")
        self("  s_lshl_b32 s56, s64, 7")
        self("  s_add_u32 s6, s6, s56")
        self.srd(36, 24, "s6", 63 * 1280 + 128)
        GA = list(range(44, 52))
        UA = list(range(52, 60))
        self("  s_waitcnt vmcnt(8)")
        self.gemv64(WG, XL, XH, GA, 8)
        self("  s_waitcnt vmcnt(0)")
        self.stamp(2)
        self.gemv64(WU, XL, XH, UA, 8)
        WD = 64
        ntd = ' nt' if self.wnt & 4 else ''
        for n in range(8):
            self(f"  s_mov_b32 s6, {10240 * n}")
            self(f"  buffer_load_dwordx4 v[{WD + 4 * n}:{WD + 4 * n + 3}], v9, s[36:39], s6 offen{ntd}")
        self.treduce8(GA, t[1])
        self.treduce8(UA, t[2])
        self(f"  v_min_u32 v{t[1]}, -2, v{t[1]}")
        self(f"  v_min_u32 v{t[2]}, -2, v{t[2]}")
        self("  v_add_u32 v15, s67, v1")
        self(f"  buffer_store_dword v{t[1]}, v15, s[44:47], 0 offen sc1")
        self(f"  buffer_store_dword v{t[2]}, v15, s[44:47], 0 offen offset:256 sc1")
        all_cleared()
        self(f"  s_mul_i32 s6, s65, {10 * FSTR}")
        self(f"  s_add_u32 s6, s6, {FB_BASE}")
        self("  v_lshrrev_b32 v14, 5, v0")
        self(f"  v_mul_u32_u24 v14, {FSTR}, v14")
        self("  v_and_b32 v15, 31, v0")
        self("  v_lshl_add_u32 v14, v15, 4, v14")
        self("  v_add_u32 v14, s6, v14")
        self(f"  v_add_u32 v15, {6 * FSTR}, v14")
        G = 128

        def issueF():
            for u in range(5):
                a, o = (14, 2 * FSTR * u) if u < 3 else (15, 2 * FSTR * (u - 3))
                oo = f" offset:{o}" if o else ""
                self(f"  buffer_load_dwordx4 v[{G + 4 * u}:{G + 4 * u + 3}], v{a}, s[44:47], 0 offen{oo} sc1")
        self.poll_loop("pollF", issueF, range(G, G + 20), G + 20, sleep=4)
        self.stamp(4)
        for e in range(4):
            self(f"  v_add_f32 v{G + e}, v{G + e}, v{G + 4 + e}")
            self(f"  v_add_f32 v{G + 8 + e}, v{G + 8 + e}, v{G + 12 + e}")
        for e in range(4):
            self(f"  v_add_f32 v{G + e}, v{G + e}, v{G + 16 + e}")
        for e in range(4):
            self(f"  v_add_f32 v{G + e}, v{G + e}, v{G + 8 + e}")
        for e in range(4):
            self(f"  v_mov_b32 v{G + 4 + e}, v{G + e}")
        for e in range(4):
            self(f"  v_permlane32_swap_b32 v{G + e}, v{G + 4 + e}")
        for e in range(4):
            self(f"  v_add_f32 v{G + e}, v{G + e}, v{G + 4 + e}")
        for e in range(4):
            self(f"  v_mov_b32 v{G + 4 + e}, v{G + e}")
        for e in range(4):
            self(f"  v_permlane16_swap_b32 v{G + e}, v{G + 4 + e}")
        for e in range(4):
            self(f"  v_cvt_pk_bf16_f32 v{G + e}, v{G + e}, v{G + 4 + e}")
        for e in range(4):
            self(f"  v_lshlrev_b32 v{G + 4 + e}, 16, v{G + e}      ; gate")
            self(f"  v_and_b32 v{G + e}, 0xffff0000, v{G + e}    ; up")
        for e in range(4):
            self(f"  v_max_f32 v{G + 4 + e}, 0, v{G + 4 + e}")
        for e in range(4):
            self(f"  v_mul_f32 v{G + e}, v{G + 4 + e}, v{G + e}")
        for e in range(4):
            self(f"  v_cvt_pk_bf16_f32 v{G + e}, v{G + e}, v{G + e}    ; h")
        self("  v_and_b32 v18, 1, v0")
        self("  v_lshlrev_b32 v18, 5, v18")
        self("  v_bfe_u32 v19, v0, 1, 3")
        self("  v_add_u32 v18, v18, v19")
        self("  v_lshlrev_b32 v18, 1, v18")
        self("  s_mov_b32 exec_lo, 0xffff")
        self("  s_mov_b32 exec_hi, 0")
        for e in range(4):
            self(f"  ds_write_b16 v18, v{G + e} offset:{L_HB + 16 * e}")
        self("  s_mov_b64 exec, -1")
        self("  v_lshrrev_b32 v18, 3, v0")
        self("  v_lshlrev_b32 v18, 1, v18")
        self("  s_waitcnt lgkmcnt(0)")
        for i in range(8):
            self(f"  ds_read_u16 v{XL[i]}, v18 offset:{L_HB + 16 * i}")
        self("  v_bfe_u32 v19, v0, 1, 2")
        self(f"  v_mul_u32_u24 v19, {SDSTR}, v19")
        self("  v_and_b32 v20, 1, v0")
        self("  v_lshl_add_u32 v19, v20, 5, v19")
        self("  v_lshrrev_b32 v20, 3, v0")
        self("  v_lshl_add_u32 v19, v20, 2, v19")
        self("  v_add_u32 v19, s68, v19")
        self("  s_waitcnt lgkmcnt(0)")
        for i in range(8):
            self(f"  v_lshlrev_b32 v{XH[i]}, 16, v{XL[i]}")
        self("  s_waitcnt vmcnt(0)")
        self.gemv64(WD, XL, XH, GA, 8)
        self.treduce8(GA, t[1])
        self(f"  v_min_u32 v{t[1]}, -2, v{t[1]}")
        self(f"  buffer_store_dword v{t[1]}, v19, s[44:47], 0 offen sc1")
        self.stamp(5)
        self.later_tickets()
        self("  s_branch L_exit_stamped")

    def final_consumer(self):
        self("  v_mov_b32 v12, 0")
        self("  s_mov_b32 s55, s56")
        self.lds_spin("allc", 12, L_ALL, 13, target=None, sdst="s58", sleep=4)
        self("  s_mul_i32 s7, s5, 5")
        self("  s_add_u32 s55, s55, s7           ; cg")
        self(f"  s_mul_i32 s6, s55, {SDSTR}")
        self(f"  s_add_u32 s6, s6, {SD_BASE}")
        self("  v_lshlrev_b32 v14, 4, v0")
        self("  v_add_u32 v14, s6, v14")
        self(f"  v_add_u32 v13, {O_D3}, v14")
        self("  v_and_b32 v15, 3, v0")
        self("  v_lshlrev_b32 v15, 2, v15")
        self("  v_lshrrev_b32 v16, 5, v0")
        self("  v_lshl_add_u32 v15, v16, 1, v15")
        self("  v_bfe_u32 v16, v0, 4, 1")
        self("  v_add_u32 v15, v15, v16")
        self("  s_lshl_b32 s6, s55, 4")
        self("  v_add_u32 v15, s6, v15")
        self("  v_lshlrev_b32 v15, 1, v15")
        self("  buffer_load_ushort v17, v15, s[32:35], 0 offen")
        self.srd(40, 26, None, 1280)

        def red(base, first=True):
            for k in range(4 if first else 0):
                self(f"  v_add_f32 v{base + k}, v{base + k}, v{base + 4 + k}")
            self(f"  v_permlane32_swap_b32 v{base}, v{base + 2}")
            self(f"  v_permlane32_swap_b32 v{base + 1}, v{base + 3}")
            self(f"  v_add_f32 v{base}, v{base}, v{base + 2}")
            self(f"  v_add_f32 v{base + 1}, v{base + 1}, v{base + 3}")
            self(f"  v_permlane16_swap_b32 v{base}, v{base + 1}")
            self(f"  v_add_f32 v{base}, v{base}, v{base + 1}")
            self(f"  v_add_f32_dpp v{base}, v{base}, v{base} row_ror:4 row_mask:0xf bank_mask:0xf")
            self(f"  v_add_f32_dpp v{base}, v{base}, v{base} row_ror:8 row_mask:0xf bank_mask:0xf")

        for k in range(4):
            self(f"  v_mov_b32 v{28 + k}, 0")

        def issueD():
            self("  buffer_load_dwordx4 v[24:27], v13, s[44:47], 0 offen sc1")
            self("  s_mov_b32 exec_hi, 0")
            self("  buffer_load_dwordx4 v[28:31], v13, s[44:47], 0 offen offset:1024 sc1")
            self("  s_mov_b32 exec_hi, -1")
        if self.lated:
            self("  s_barrier            ; B2")
            self.poll_loop2("pollD", issueD, range(24, 32), 32, lambda: self("  s_barrier            ; B3"), sleep=4)
        else:
            self.poll_loop("pollD", issueD, range(24, 32), 32, sleep=8)
        red(24)
        self("  v_cvt_pk_bf16_f32 v24, v24, v24")
        self("  v_lshlrev_b32 v24, 16, v24")
        self(f"  v_mul_f32 v25, {f2h(-1.4426950408889634)}, v24")
        self("  v_exp_f32 v25, v25")
        self("  s_nop 0")
        self("  v_add_f32 v25, 1.0, v25")
        self("  v_rcp_f32 v25, v25")
        self("  s_nop 0")
        self("  v_mul_f32 v24, v24, v25")
        self("  v_cvt_pk_bf16_f32 v24, v24, v24")
        self("  v_lshlrev_b32 v18, 16, v24          ; g")
        self("  v_lshlrev_b32 v17, 16, v17          ; x")
        self.stamp(6)
        if not self.lated:
            if not self.nob2:
                self("  s_barrier            ; B2")
            self("  s_barrier            ; B3")

        def finish(first=True):
            red(24, first)
            self("  v_cvt_pk_bf16_f32 v24, v24, v24")
            self("  v_lshlrev_b32 v24, 16, v24          ; s")
            self("  v_mul_f32 v24, v24, v18")
            self("  v_cvt_pk_bf16_f32 v24, v24, v24")
            self("  v_lshlrev_b32 v24, 16, v24")
            self("  v_add_f32 v24, v17, v24")
            self("  v_cvt_pk_bf16_f32 v24, v24, v24")
            self("  s_mov_b32 exec_lo, 0x000f000f")
            self("  s_mov_b32 exec_hi, 0x000f000f")
            self("  buffer_store_short v24, v15, s[40:43], 0 offen")
            self("  s_mov_b64 exec, -1")
            self.stamp(7)
            self("  s_branch L_exit_stamped")

        Lbig = self.lab("big")
        self("  s_cmp_ge_u32 s55, 32")
        self(f"  s_cbranch_scc1 {Lbig}")

        def issueS():
            self("  buffer_load_dwordx4 v[24:27], v14, s[44:47], 0 offen sc1")
            self("  buffer_load_dwordx4 v[28:31], v14, s[44:47], 0 offen offset:1024 sc1")
        if self.pipeS:
            PS = 48

            def issueSk(k):
                b = PS + 8 * k
                self(f"  buffer_load_dwordx4 v[{b}:{b + 3}], v14, s[44:47], 0 offen sc1")
                self(f"  buffer_load_dwordx4 v[{b + 4}:{b + 7}], v14, s[44:47], 0 offen offset:1024 sc1")

            def doneS(k):
                self.stamp(8)
                b = PS + 8 * k
                for j in range(4):
                    self(f"  v_add_f32 v{24 + j}, v{b + j}, v{b + 4 + j}")
            self.poll_pipe("pollS", self.pipeS, 2, issueSk, lambda k: range(PS + 8 * k, PS + 8 * k + 8), 32, doneS)
            finish(False)
        else:
            self.poll_loop("pollS", issueS, range(24, 32), 32)
            self.stamp(8)
            finish()
        self(f"{Lbig}:")
        self("  v_add_u32 v13, 4096, v14")

        def issueS6():
            for k in range(4):
                o = f" offset:{1024 * k}" if k else ""
                self(f"  buffer_load_dwordx4 v[{24 + 4 * k}:{27 + 4 * k}], v14, s[44:47], 0 offen{o} sc1")
            self("  buffer_load_dwordx4 v[40:43], v13, s[44:47], 0 offen sc1")
            self("  buffer_load_dwordx4 v[44:47], v13, s[44:47], 0 offen offset:1024 sc1")
        if self.pipeS:
            PS = 48
            cfg = (self.pipeS[0], self.pipeS[1], max(self.pipeS[2] - 1, 0))

            def issueS6k(k):
                b = PS + 24 * k
                for j in range(4):
                    o = f" offset:{1024 * j}" if j else ""
                    self(f"  buffer_load_dwordx4 v[{b + 4 * j}:{b + 3 + 4 * j}], v14, s[44:47], 0 offen{o} sc1")
                self(f"  buffer_load_dwordx4 v[{b + 16}:{b + 19}], v13, s[44:47], 0 offen sc1")
                self(f"  buffer_load_dwordx4 v[{b + 20}:{b + 23}], v13, s[44:47], 0 offen offset:1024 sc1")

            def doneS6(k):
                self.stamp(8)
                b = PS + 24 * k
                for j in range(8):
                    self(f"  v_add_f32 v{24 + j}, v{b + j}, v{b + 8 + j}")
                for j in range(8):
                    self(f"  v_add_f32 v{24 + j}, v{24 + j}, v{b + 16 + j}")
            self.poll_pipe("pollS6", cfg, 6, issueS6k, lambda k: range(PS + 24 * k, PS + 24 * k + 24), 32, doneS6)
        else:
            self.poll_loop("pollS6", issueS6, range(24, 48), 48)
            self.stamp(8)
            for k in range(8):
                self(f"  v_add_f32 v{24 + k}, v{24 + k}, v{32 + k}")
            for k in range(8):
                self(f"  v_add_f32 v{24 + k}, v{24 + k}, v{40 + k}")
        finish()

    def epilogue(self):
        self("L_exit_stamped:")
        if self.stamps:
            self.srd(44, 30, None, WS_SIZE)
            self.stamps_out()
        self("L_end:")
        self("  s_endpgm")
        self(f""".section .rodata,"a"
.p2align 6
.amdhsa_kernel {KNAME}
  .amdhsa_next_free_vgpr 168
  .amdhsa_next_free_sgpr 102
  .amdhsa_accum_offset 168
  .amdhsa_group_segment_fixed_size 0
  .amdhsa_kernarg_size 96
  .amdhsa_user_sgpr_count 2
  .amdhsa_user_sgpr_kernarg_segment_ptr 1
  .amdhsa_system_sgpr_workgroup_id_x 1
.end_amdhsa_kernel""")

    def build(self):
        self.prologue()
        self.stream()
        self.helper()
        self.epilogue()
        return fix("\n".join(self.lines) + "\n", verbose=True)


if __name__ == "__main__":
    import argparse
    ap = argparse.ArgumentParser()
    ap.add_argument("-o", default="k.s")
    ap.add_argument("--D", type=int, default=5)
    ap.add_argument("--E", type=int, default=5)
    ap.add_argument("--SB", type=int, default=19)
    ap.add_argument("--stamps", action="store_true")
    ap.add_argument("--slow", action="store_true")
    ap.add_argument("--b0post", action="store_true")
    ap.add_argument("--prio", type=int, default=3)
    ap.add_argument("--dbgst", action="store_true")
    ap.add_argument("--fine", action="store_true")
    ap.add_argument("--ds", default="", help="D schedule: slot:D,slot:D")
    ap.add_argument("--qkn", type=int, default=2)
    ap.add_argument("--wot", type=int, default=0)
    ap.add_argument("--npoll", type=int, default=2)
    ap.add_argument("--bp", type=int, default=None)
    ap.add_argument("--ilv", action="store_true")
    ap.add_argument("--prog", default="")
    ap.add_argument("--latepub", action="store_true")
    ap.add_argument("--pdelay", type=int, default=0)
    ap.add_argument("--adapt", default="", help="lo:hi slots with optional tighter throttle")
    ap.add_argument("--nocnt", type=int, default=0, help="diagnosis only: 1 = no atomic, no polls; 2 = atomic but no polls")
    ap.add_argument("--pgap", type=int, default=8)
    ap.add_argument("--hwid", action="store_true")
    ap.add_argument("--map2", action="store_true")
    ap.add_argument("--kvm", default="", help="c_stride:wave_stride:block_stride (bytes) of the key assignment (needs --ilv)")
    ap.add_argument("--b0late", type=int, default=0)
    ap.add_argument("--hrot", type=int, default=0)
    ap.add_argument("--lated", action="store_true", help="down partials read after B2")
    ap.add_argument("--wop", type=int, default=0, help="progressive wo landing flags (1: with sleep, 2: no sleep)")
    ap.add_argument("--wol", default="", help="X:N:T wo cells requested once N stream waves issued slot X (throttle T)")
    ap.add_argument("--rshard", type=int, default=0, help="0: tickets among h&3 (64), 1: among id&7 (32)")
    ap.add_argument("--ck", default="", help="slot=ub:n1:d,...;slot=... later checkpoints")
    ap.add_argument("--rank", default="", help="lo:hi rank-adaptive depth (slots)")
    ap.add_argument("--rankp", default="", help="ub:n1:d,... policy per arrival rank")
    ap.add_argument("--pipeS", default="", help="N:gap:gap2 pipelined S3 poll")
    ap.add_argument("--pipeA", default="", help="N:gap:gap2 pipelined O gather poll")
    ap.add_argument("--adaptbit", type=int, default=0)
    ap.add_argument("--kvnt", type=int, default=3, help="nt hint bits: 1 K, 2 V")
    ap.add_argument("--wnt", type=int, default=7, help="nt hint bits: 1 wo, 2 gate/up, 4 down")
    ap.add_argument("--touch", type=int, default=0, help="1: V, 2: wo, 4: FFN weights early page touch")
    ap.add_argument("--rot", default="", help="a:b:w block rotation = h*a + c*b + wave*w")
    a = ap.parse_args()
    g = G(D=a.D, E=a.E, SB=a.SB, stamps=a.stamps, force_slow=a.slow, b0pre=not a.b0post, prio=a.prio, dbgst=a.dbgst, fine=a.fine,
          dsched=[tuple(int(v) for v in p.split(':')) for p in a.ds.split(',') if p], qk_per_slot=a.qkn, wo_throttle=a.wot, npoll=a.npoll, poll_gap=a.pgap, bulkprio=a.bp, ilv=a.ilv, prog=[int(v) for v in a.prog.split(',') if v], early_pub=not a.latepub, poll_delay=a.pdelay, nocnt=a.nocnt, adapt=tuple(int(v) for v in a.adapt.split(':')) if a.adapt else None, hwid=a.hwid, map2=a.map2, kvm=tuple(int(v) for v in a.kvm.split(':')) if a.kvm else None, b0late=a.b0late, hrot=a.hrot, lated=a.lated, wop=a.wop, wol=tuple(int(v) for v in a.wol.split(':')) if a.wol else None, rshard=a.rshard, ckp=[(int(c.split('=')[0]), [tuple(int(v) for v in p.split(':')) for p in c.split('=')[1].split(',')]) for c in a.ck.split(';') if c], rankp=[tuple(int(v) for v in p.split(':')) for p in a.rankp.split(',') if p], rank=tuple(int(v) for v in a.rank.split(':')) if a.rank else None, pipeS=tuple(int(v) for v in a.pipeS.split(':')) if a.pipeS else None, pipeA=tuple(int(v) for v in a.pipeA.split(':')) if a.pipeA else None, adaptbit=a.adaptbit, kvnt=a.kvnt, wnt=a.wnt, touch=a.touch, rot=tuple(int(v) for v in a.rot.split(':')) if a.rot else None)
    open(a.o, "w").write(g.build())
```

```python
import sys, struct
sys.path.insert(0, "dev")
from hz import fix

KNAME = "recurrent_scan__sliding_block_cached__glu_gated_reglu__decode_kernel"


def f2h(x):
    return "0x%08x" % struct.unpack("<I", struct.pack("<f", x))[0]


LOG2E = f2h(1.4426950408889634)
SCALE = f2h(192 ** -0.5)
INV640 = f2h(1.0 / 640)
EPS = f2h(1e-5)

BOX = 1280
GBOX = 8 * BOX
O_H1 = 0
O_O2 = 768
O_LSE = 1152
FB_BASE = 327680
FSTR = 768
SD_BASE = 524288
SDSTR = 8448
O_D3 = 6144
OOB = 0x70000000
STAMP_BASE = 1 << 20
WS_SIZE = 2 << 20

L_Q = 0
L_MODE = 384
L_CNT = 388
L_QF = 392
L_CLR = 396
L_M = 400
L_L = 432
L_XN = 1280
L_HB = 2560
L_ALL = 464
L_RANK = 468
L_PROG = 472
L_WOK = 476
L_FRDY = 484
L_PROG2 = 488
L_GO = 492
L_PARTS = 480
L_WO = 4096
L_WO2 = L_WO + 192 * 128
L_PART = L_WO2 + 64 * 128
L_A = L_PART + 8 * 768
LDS_BYTES = L_A + 8 * 400

SPIN_MAX = 30000


class G:
    def __init__(self, D=5, E=5, SB=19, stamps=False, force_slow=False, wo_slot=32, b0pre=True, prio=3, dbgst=False, fine=False, dsched=(), qk_per_slot=2, wo_throttle=0, npoll=2, poll_gap=8, bulkprio=None, ilv=False, prog=(), early_pub=True, poll_delay=0, nocnt=0, adapt=None, hwid=False, map2=False, rot=None, touch=0, wnt=7, kvnt=3, b0late=0, kvm=None, hrot=0, adaptbit=0, pipeS=None, pipeA=None, rank=None, rankp=None, ckp=(), rshard=0, lated=False, wol=None, wop=0, fwait=0, gwait=None, fsm=0, dlate=0, dsl=8, lsl=1, asl=0):
        self.kvm = kvm or ((196608, 1536, 12288) if ilv else (196608, 24576, 1536))
        self.b0late = b0late
        self.hrot = hrot
        self.rank = rank
        self.lated = lated
        self.wol = wol
        self.wop = wop
        self.fwait = fwait
        self.gwait = gwait
        self.fsm = fsm
        self.lsl = lsl
        self.asl = asl
        self.dlate = dlate
        self.dsl = dsl
        self.nob2 = bool(wol and len(wol) > 3 and wol[3])
        self.rshard = rshard
        self.ckp = list(ckp)
        self.rankp = rankp
        self.pipeS = pipeS
        self.pipeA = pipeA
        self.adaptbit = adaptbit
        self.kvnt = kvnt
        self.wnt = wnt
        self.touch = touch
        self.map2 = map2
        self.rot = rot
        self.hwid = hwid
        self.adapt = adapt
        self.nocnt = nocnt
        self.early_pub = early_pub
        self.poll_delay = poll_delay
        self.prog = list(prog)
        self.ilv = ilv
        self.bulkprio = bulkprio
        self.wo_throttle = wo_throttle
        self.npoll = npoll
        self.poll_gap = poll_gap
        self.dsched = list(dsched)
        self.qk_per_slot = qk_per_slot
        self.dbgst = dbgst
        self.fine = fine
        self.in_stream = False
        self.prio = prio
        self.b0pre = b0pre
        self.D, self.E, self.SB = D, E, SB
        self.stamps = stamps
        self.force_slow = force_slow
        self.wo_slot = wo_slot
        self.lines = []
        self.uid = 0
        self.vm = []

    def Dof(self, i):
        for (slot, d) in reversed(self.dsched):
            if i >= slot:
                return d
        return self.D

    def __call__(self, s=""):
        for l in s.split("\n"):
            self.lines.append(l)

    def lab(self, base):
        self.uid += 1
        return f"L_{base}_{self.uid}"

    def vm_reset(self):
        self.vm = []

    def vm_issue(self, tag):
        self.vm.append(tag)

    def vm_wait(self, tag):
        idx = [i for i, t in enumerate(self.vm) if t == tag]
        if not idx:
            return
        last = idx[-1]
        n = len(self.vm) - 1 - last
        assert n <= 63
        self(f"  s_waitcnt vmcnt({n})")
        self.vm = self.vm[last + 1:]

    def stamp(self, i):
        if self.prog and self.in_stream and i != 0:
            return
        if self.stamps and not (self.fine and self.in_stream and i in (1, 2, 3, 5, 6, 7)):
            self(f"  s_memrealtime s[{70 + 2 * i}:{71 + 2 * i}]")

    def fstamp(self, i, clk=False):
        if self.stamps and self.fine:
            op = "s_memtime" if clk else "s_memrealtime"
            self(f"  {op} s[{70 + 2 * i}:{71 + 2 * i}]")

    def stamps_out(self):
        if not self.stamps:
            return
        self("  s_waitcnt lgkmcnt(0) vmcnt(0)")
        self("  s_mul_i32 s6, s2, 12")
        self("  s_add_u32 s6, s6, s3")
        self("  s_lshl_b32 s6, s6, 6")
        self(f"  s_add_u32 s6, s6, {STAMP_BASE}")
        self("  v_mov_b32 v2, s6")
        for i in range(12):
            self(f"  v_mov_b32 v{4 + i}, s{70 + 2 * i}")
        self("  s_mov_b64 exec, 1")
        self("  buffer_store_dwordx4 v[4:7], v2, s[44:47], 0 offen")
        self("  buffer_store_dwordx4 v[8:11], v2, s[44:47], 0 offen offset:16")
        self("  buffer_store_dwordx4 v[12:15], v2, s[44:47], 0 offen offset:32")
        if self.dbgst:
            self("  s_load_dwordx2 s[6:7], s[0:1], 80")
            self("  s_waitcnt lgkmcnt(0)")
            self.srd(48, 6, None, 256)
            for (wg, wv, lst) in ((0, 0, ((0, 1), (2, 3), (4, 5))), (8, 9, ((0, 7), (6, 9), (7, 11))), (255, 0, ((0, 13), (4, 15)))):
                Ls = self.lab("dbgskip")
                self(f"  s_cmp_eq_u32 s2, {wg}")
                self(f"  s_cbranch_scc0 {Ls}")
                self(f"  s_cmp_eq_u32 s3, {wv}")
                self(f"  s_cbranch_scc0 {Ls}")
                for (st, dw) in lst:
                    self(f"  v_mov_b32 v2, {4 * dw}")
                    self(f"  buffer_store_dword v{4 + st}, v2, s[48:51], 0 offen")
                self(f"{Ls}:")
        self("  s_mov_b64 exec, -1")

    def srd(self, s, base_lo, off, nrec):
        if off is None:
            self(f"  s_mov_b32 s{s}, s{base_lo}")
            self(f"  s_mov_b32 s{s + 1}, s{base_lo + 1}")
        else:
            self(f"  s_add_u32 s{s}, s{base_lo}, {off}")
            self(f"  s_addc_u32 s{s + 1}, s{base_lo + 1}, 0")
        self(f"  s_mov_b32 s{s + 2}, {nrec}")
        self(f"  s_mov_b32 s{s + 3}, 0x20000")

    def allreduce(self, op, v, t):
        for r in (1, 2, 4, 8):
            self(f"  {op}_dpp v{v}, v{v}, v{v} row_ror:{r} row_mask:0xf bank_mask:0xf")
        self(f"  v_mov_b32 v{t}, v{v}")
        self(f"  v_permlane16_swap_b32 v{v}, v{t}")
        self(f"  {op} v{v}, v{v}, v{t}")
        self(f"  v_mov_b32 v{t}, v{v}")
        self(f"  v_permlane32_swap_b32 v{v}, v{t}")
        self(f"  {op} v{v}, v{v}, v{t}")

    def cross_rows(self, op, v, t):
        self(f"  v_mov_b32 v{t}, v{v}")
        self(f"  v_permlane16_swap_b32 v{v}, v{t}")
        self(f"  {op} v{v}, v{v}, v{t}")
        self(f"  v_mov_b32 v{t}, v{v}")
        self(f"  v_permlane32_swap_b32 v{v}, v{t}")
        self(f"  {op} v{v}, v{v}, v{t}")

    def treduce8(self, A, T):
        for a in range(4):
            self(f"  v_permlane32_swap_b32 v{A[a]}, v{A[a + 4]}")
        for a in range(4):
            self(f"  v_add_f32 v{A[a]}, v{A[a]}, v{A[a + 4]}")
        for a in range(2):
            self(f"  v_permlane16_swap_b32 v{A[a]}, v{A[a + 2]}")
        for a in range(2):
            self(f"  v_add_f32 v{A[a]}, v{A[a]}, v{A[a + 2]}")
        self(f"  v_add_f32_dpp v{T}, v{A[0]}, v{A[0]} row_ror:8 row_mask:0xf bank_mask:0x3")
        self(f"  v_add_f32_dpp v{T}, v{A[1]}, v{A[1]} row_ror:8 row_mask:0xf bank_mask:0xc")

    def treduce4rows(self, A, out_pairs=None):
        n = len(A) // 4
        for k in range(n):
            a = A[4 * k:4 * k + 4]
            self(f"  v_permlane32_swap_b32 v{a[0]}, v{a[2]}")
            self(f"  v_permlane32_swap_b32 v{a[1]}, v{a[3]}")
        for k in range(n):
            a = A[4 * k:4 * k + 4]
            self(f"  v_add_f32 v{a[0]}, v{a[0]}, v{a[2]}")
            self(f"  v_add_f32 v{a[1]}, v{a[1]}, v{a[3]}")
        for k in range(n):
            a = A[4 * k:4 * k + 4]
            self(f"  v_permlane16_swap_b32 v{a[0]}, v{a[1]}")
        for k in range(n):
            a = A[4 * k:4 * k + 4]
            self(f"  v_add_f32 v{a[0]}, v{a[0]}, v{a[1]}")
        return [A[4 * k] for k in range(n)]

    def sentinel_check(self, regs, t):
        regs = list(regs)
        if len(regs) == 1:
            self(f"  v_cmp_eq_u32 vcc, -1, v{regs[0]}")
            return
        if len(regs) == 2:
            self(f"  v_max_u32 v{t}, v{regs[0]}, v{regs[1]}")
            regs = []
        else:
            self(f"  v_max3_u32 v{t}, v{regs[0]}, v{regs[1]}, v{regs[2]}")
            regs = regs[3:]
        while regs:
            if len(regs) >= 2:
                self(f"  v_max3_u32 v{t}, v{t}, v{regs[0]}, v{regs[1]}")
                regs = regs[2:]
            else:
                self(f"  v_max_u32 v{t}, v{t}, v{regs[0]}")
                regs = regs[1:]
        self(f"  v_cmp_eq_u32 vcc, -1, v{t}")

    def poll_loop(self, name, issue, regs, t, sleep=0):
        L = self.lab(name)
        Ld = self.lab(name + "d")
        self("  s_mov_b32 s57, 0")
        self(f"{L}:")
        issue()
        self("  s_waitcnt vmcnt(0)")
        self.sentinel_check(regs, t)
        self("  s_add_u32 s57, s57, 1")
        self(f"  s_cmp_gt_u32 s57, {SPIN_MAX}")
        self(f"  s_cbranch_scc1 {Ld}")
        if sleep:
            self(f"  s_cbranch_vccz {Ld}")
            self(f"  s_sleep {sleep}")
            self(f"  s_branch {L}")
        else:
            self(f"  s_cbranch_vccnz {L}")
        self(f"{Ld}:")

    def poll_loop2(self, name, issue, regs, t, between, sleep=0):
        L = self.lab(name)
        Ld = self.lab(name + "d")
        self("  s_mov_b32 s57, 0")
        issue()
        between()
        self(f"{L}:")
        self("  s_waitcnt vmcnt(0)")
        self.sentinel_check(regs, t)
        self("  s_add_u32 s57, s57, 1")
        self(f"  s_cmp_gt_u32 s57, {SPIN_MAX}")
        self(f"  s_cbranch_scc1 {Ld}")
        self(f"  s_cbranch_vccz {Ld}")
        if sleep:
            self(f"  s_sleep {sleep}")
        issue()
        self(f"  s_branch {L}")
        self(f"{Ld}:")

    def poll_pipe(self, name, cfg, nl, issue, regs, t, done):
        N, gap, gap2 = cfg
        L = self.lab(name)
        Lj = self.lab(name + "j")
        Ls = [self.lab(name + f"d{k}") for k in range(N)]
        self("  s_mov_b32 s57, 0")
        for k in range(N):
            issue(k)
            if gap and k < N - 1:
                self(f"  s_sleep {gap}")
        self(f"{L}:")
        for k in range(N):
            self(f"  s_waitcnt vmcnt({(N - 1) * nl})")
            self.sentinel_check(regs(k), t)
            self(f"  s_cbranch_vccz {Ls[k]}")
            issue(k)
            if gap2:
                self(f"  s_sleep {gap2}")
        self("  s_add_u32 s57, s57, 1")
        self(f"  s_cmp_gt_u32 s57, {SPIN_MAX // N}")
        self(f"  s_cbranch_scc0 {L}")
        for k in range(N):
            self(f"{Ls[k]}:")
            done(k)
            if k < N - 1:
                self(f"  s_branch {Lj}")
        self(f"{Lj}:")

    def lds_spin(self, name, addr_v, off, t, target=None, sdst="s58", sleep=1):
        L = self.lab(name)
        Ld = self.lab(name + "d")
        self("  s_mov_b32 s57, 0")
        self(f"{L}:")
        self(f"  ds_read_b32 v{t}, v{addr_v} offset:{off}")
        self("  s_waitcnt lgkmcnt(0)")
        self(f"  v_readfirstlane_b32 {sdst}, v{t}")
        self("  s_add_u32 s57, s57, 1")
        self(f"  s_cmp_gt_u32 s57, {SPIN_MAX * 8}")
        self(f"  s_cbranch_scc1 {Ld}")
        if target is None:
            self(f"  s_cmp_lg_u32 {sdst}, 0")
        else:
            self(f"  s_cmp_eq_u32 {sdst}, {target}")
        self(f"  s_cbranch_scc1 {Ld}")
        if sleep:
            self(f"  s_sleep {sleep}")
        self(f"  s_branch {L}")
        self(f"{Ld}:")

    def mode_store(self, instr):
        Lf = self.lab("fast")
        Lj = self.lab("join")
        self("  s_cmp_eq_u32 s59, 2")
        self(f"  s_cbranch_scc1 {Lf}")
        for i in instr:
            self(f"  {i} sc1")
        self(f"  s_branch {Lj}")
        self(f"{Lf}:")
        for i in instr:
            self(f"  {i}")
        self(f"{Lj}:")

    def prologue(self):
        self(f"""; Fused decode step: LN -> q -> sliding-window attention (split over 8 WGs per head) -> wo,
; @launch grid=(256,1,1) block=(768,1,1) lds={LDS_BYTES}
.amdgcn_target "amdgcn-amd-amdhsa--gfx950"
.text
.globl {KNAME}
.p2align 8
.type {KNAME},@function
{KNAME}:
  s_cmp_ge_u32 s2, 256
  s_cbranch_scc1 L_end""")
        self.stamp(0)
        if self.hwid:
            self("  s_getreg_b32 s88, hwreg(HW_REG_HW_ID)")
            self("  s_getreg_b32 s90, hwreg(HW_REG_XCC_ID)")
        self(f"""  s_load_dwordx16 s[8:23], s[0:1], 0
  s_load_dwordx8 s[24:31], s[0:1], 64
  v_readfirstlane_b32 s3, v0
  v_and_b32 v0, 63, v0
  s_lshr_b32 s3, s3, 6
  s_add_u32 s4, s2, {self.hrot}
  s_and_b32 s4, s4, 7
  s_lshl_b32 s4, s4, 2""" if self.hrot else f"""  s_load_dwordx16 s[8:23], s[0:1], 0
  s_load_dwordx8 s[24:31], s[0:1], 64
  v_readfirstlane_b32 s3, v0
  v_and_b32 v0, 63, v0
  s_lshr_b32 s3, s3, 6
  s_and_b32 s4, s2, 7
  s_lshl_b32 s4, s4, 2""")
        if self.map2:
            self("""  s_lshr_b32 s5, s2, 6
  s_add_u32 s4, s4, s5          ; h
  s_lshr_b32 s5, s2, 3
  s_and_b32 s5, s5, 7           ; c""")
        else:
            self("""  s_lshr_b32 s5, s2, 3
  s_and_b32 s5, s5, 3
  s_add_u32 s4, s4, s5          ; h
  s_lshr_b32 s5, s2, 5          ; c""")
        self("""  s_cmp_ge_u32 s3, 8
  s_cbranch_scc1 L_helper""")

    def stream(self):
        self.in_stream = True
        D, E, SB = self.D, self.E, self.SB
        Q = list(range(4, 10))
        A = list(range(10, 22))
        P = list(range(22, 26))
        T = [26, 27]
        U = list(range(28, 32))
        PL = list(range(32, 36))
        PH = list(range(36, 40))
        t0, t1 = 40, 41
        RING = 42
        nbuf = 16 + E

        def kbuf(b):
            return RING + 6 * b

        def vbuf(j):
            return RING + 6 * (16 + j) if j < E else RING + 6 * (j - E)

        self(f"""  ; ---------------- stream waves ----------------
  s_mul_i32 s6, s4, 12582912
  s_mul_i32 s7, s5, {self.kvm[0]}
  s_add_u32 s6, s6, s7
  s_add_u32 s6, s6, {28672 * 384}
  s_mul_i32 s7, s3, {self.kvm[1]}
  v_lshrrev_b32 v3, 4, v0
  v_and_b32 v2, 15, v0
  v_mul_u32_u24 v3, 384, v3
  v_add_u32 v3, s7, v3
  v_lshl_add_u32 v1, v2, 4, v3      ; x4 offset
  v_lshl_add_u32 v2, v2, 3, v3
  v_add_u32 v2, 256, v2             ; x2 offset""")
        for k in range(1, 6):
            self(f"  s_mov_b32 s{59 + k}, {4608 * k}")
        if self.rot:
            self(f"  s_mul_i32 s66, s4, {self.rot[0]}")
            self(f"  s_mul_i32 s7, s5, {self.rot[1]}")
            self("  s_add_u32 s66, s66, s7")
            self(f"  s_mul_i32 s7, s3, {self.rot[2]}")
            self("  s_add_u32 s66, s66, s7")
        if self.adapt:
            self(f"  s_lshr_b32 s65, s2, {self.adaptbit}")
            self("  s_and_b32 s65, s65, 1")
        if self.rank:
            self("  s_mov_b32 s67, 0")
            self("  s_mov_b32 s66, 0")
        self("  s_waitcnt lgkmcnt(0)")
        nrec = 1572864 - 7 * self.kvm[0]
        self.srd(32, 10, "s6", nrec)
        self.srd(36, 12, "s6", nrec)
        self.vm_reset()

        def issue(i):
            t, b = (0, i) if i < 16 else (1, i - 16)
            srd = "s[32:35]" if t == 0 else "s[36:39]"
            r = kbuf(b) if t == 0 else vbuf(b)
            so = "0" if b < 3 else f"s{59 + b // 3}"
            imm = 1536 * (b % 3)
            if self.ilv:
                imm = 0
                so = "0" if b == 0 else "s60"
                if self.rot:
                    so = "s60"
                    self(f"  s_add_u32 s60, s66, {b}")
                    self("  s_and_b32 s60, s60, 15")
                    self(f"  s_mul_i32 s60, s60, {self.kvm[2]}")
                elif b:
                    self(f"  s_mov_b32 s60, {self.kvm[2] * b}")
            o = f" offset:{imm}" if imm else ""
            nt = " nt" if self.kvnt & (1 << t) else ""
            self(f"  buffer_load_dwordx4 v[{r}:{r + 3}], v1, {srd}, {so} offen{o}{nt}")
            self(f"  buffer_load_dwordx2 v[{r + 4}:{r + 5}], v2, {srd}, {so} offen{o}{nt}")
            self.vm_issue(("L", i))
            self.vm_issue(("L", i))

        def qk_group(g):
            bs = [kbuf(4 * g + k) for k in range(4)]
            for i in range(6):
                for k in range(4):
                    c = "0" if i == 0 else f"v{P[k]}"
                    self(f"  v_dot2_f32_bf16 v{P[k]}, v{bs[k] + i}, v{Q[i]}, {c}")
            self(f"  v_add_f32_dpp v{T[0]}, v{P[0]}, v{P[0]} row_ror:8 row_mask:0xf bank_mask:0x3")
            self(f"  v_add_f32_dpp v{T[1]}, v{P[1]}, v{P[1]} row_ror:8 row_mask:0xf bank_mask:0x3")
            self(f"  v_add_f32_dpp v{T[0]}, v{P[2]}, v{P[2]} row_ror:8 row_mask:0xf bank_mask:0xc")
            self(f"  v_add_f32_dpp v{T[1]}, v{P[3]}, v{P[3]} row_ror:8 row_mask:0xf bank_mask:0xc")
            self(f"  v_add_f32_dpp v{U[g]}, v{T[0]}, v{T[0]} row_shl:4 row_mask:0xf bank_mask:0x5")
            self(f"  v_add_f32_dpp v{U[g]}, v{T[1]}, v{T[1]} row_shr:4 row_mask:0xf bank_mask:0xa")
            self(f"  v_add_f32_dpp v{U[g]}, v{U[g]}, v{U[g]} quad_perm:[1,0,3,2] row_mask:0xf bank_mask:0xf")
            self(f"  v_add_f32_dpp v{U[g]}, v{U[g]}, v{U[g]} quad_perm:[2,3,0,1] row_mask:0xf bank_mask:0xf")

        def softmax():
            self(f"  v_cvt_pk_bf16_f32 v{P[0]}, v{U[0]}, v{U[1]}")
            self(f"  v_cvt_pk_bf16_f32 v{P[1]}, v{U[2]}, v{U[3]}")
            self(f"  v_lshlrev_b32 v{U[0]}, 16, v{P[0]}")
            self(f"  v_and_b32 v{U[1]}, 0xffff0000, v{P[0]}")
            self(f"  v_lshlrev_b32 v{U[2]}, 16, v{P[1]}")
            self(f"  v_and_b32 v{U[3]}, 0xffff0000, v{P[1]}")
            for g in range(4):
                self(f"  v_mul_f32 v{U[g]}, {SCALE}, v{U[g]}")
            self(f"  v_cvt_pk_bf16_f32 v{P[0]}, v{U[0]}, v{U[1]}")
            self(f"  v_cvt_pk_bf16_f32 v{P[1]}, v{U[2]}, v{U[3]}")
            self(f"  v_lshlrev_b32 v{U[0]}, 16, v{P[0]}")
            self(f"  v_and_b32 v{U[1]}, 0xffff0000, v{P[0]}")
            self(f"  v_lshlrev_b32 v{U[2]}, 16, v{P[1]}")
            self(f"  v_and_b32 v{U[3]}, 0xffff0000, v{P[1]}")
            self(f"  v_max3_f32 v{t0}, v{U[0]}, v{U[1]}, v{U[2]}")
            self(f"  v_max_f32 v{t0}, v{t0}, v{U[3]}")
            self(f"  v_max_f32_dpp v{t0}, v{t0}, v{t0} row_ror:4 row_mask:0xf bank_mask:0xf")
            self(f"  v_max_f32_dpp v{t0}, v{t0}, v{t0} row_ror:8 row_mask:0xf bank_mask:0xf")
            self.cross_rows("v_max_f32", t0, t1)
            for g in range(4):
                self(f"  v_sub_f32 v{U[g]}, v{U[g]}, v{t0}")
            for g in range(4):
                self(f"  v_mul_f32 v{U[g]}, {LOG2E}, v{U[g]}")
            for g in range(4):
                self(f"  v_exp_f32 v{U[g]}, v{U[g]}")
            self("  s_nop 0")
            for g in range(4):
                self(f"  v_cvt_pk_bf16_f32 v{PL[g]}, v{U[g]}, 0")
                self(f"  v_cvt_pk_bf16_f32 v{PH[g]}, 0, v{U[g]}")
            self(f"  v_add_f32 v{T[0]}, v{U[0]}, v{U[1]}")
            self(f"  v_add_f32 v{T[1]}, v{U[2]}, v{U[3]}")
            self(f"  v_add_f32 v{T[0]}, v{T[0]}, v{T[1]}")
            self(f"  v_add_f32_dpp v{T[0]}, v{T[0]}, v{T[0]} row_ror:4 row_mask:0xf bank_mask:0xf")
            self(f"  v_add_f32_dpp v{T[0]}, v{T[0]}, v{T[0]} row_ror:8 row_mask:0xf bank_mask:0xf")
            self.cross_rows("v_add_f32", T[0], t1)
            self(f"  s_lshl_b32 s6, s3, 2")
            self(f"  v_mov_b32 v{t1}, s6")
            self(f"  v_mov_b32 v{T[1]}, 1")
            self(f"  v_mov_b32 v{P[0]}, 0")
            self("  s_mov_b64 exec, 1")
            self(f"  ds_write_b32 v{t1}, v{t0} offset:{L_M}")
            self(f"  ds_write_b32 v{t1}, v{T[0]} offset:{L_L}")
            self("  s_waitcnt lgkmcnt(0)")
            self(f"  ds_add_u32 v{P[0]}, v{T[1]} offset:{L_CNT}")
            self("  s_mov_b64 exec, -1")
            for a in A:
                self(f"  v_mov_b32 v{a}, 0")

        def pv(j):
            g, k = j // 4, j % 4
            r = vbuf(j)
            for i in range(6):
                self(f"  v_dot2c_f32_bf16_dpp v{A[2 * i]}, v{PL[g]}, v{r + i} row_newbcast:{4 * k} row_mask:0xf bank_mask:0xf")
                self(f"  v_dot2c_f32_bf16_dpp v{A[2 * i + 1]}, v{PH[g]}, v{r + i} row_newbcast:{4 * k} row_mask:0xf bank_mask:0xf")

        qk_next = 0
        sm_done = False
        pv_next = 0
        landed = -1
        MO, FF, PA0, PA1 = 4, 5, 6, 7

        if self.touch & 9:
            self(f"  s_mul_i32 s7, s3, 196608")
            self(f"  v_mov_b32 v{t1}, s7")
            self("  s_mov_b64 exec, 1")
            if self.touch & 1:
                self(f"  buffer_load_dword v{t0}, v{t1}, s[36:39], 0 offen")
                self.vm_issue(("T", 0))
            if self.touch & 8:
                self(f"  buffer_load_dword v{T[0]}, v{t1}, s[32:35], 0 offen")
                self.vm_issue(("T", 1))
            self("  s_mov_b64 exec, -1")
        if not self.b0late:
            self("  s_barrier            ; B0")
        for i in range(32):
            Di = self.Dof(i)
            rk = self.rank and self.rank[0] <= i < self.rank[1]
            if rk:
                self("  v_mov_b32 v3, 0")
                self(f"  ds_read_b32 v3, v3 offset:{L_RANK}")
            if i - Di > landed:
                self.vm_wait(("L", i - Di))
                landed = i - Di
            if rk:
                def cnt_for(blk):
                    idx = [k for k, tg in enumerate(self.vm) if tg == ("L", blk)]
                    return len(self.vm) - 1 - idx[-1]
                Ls = self.lab("rk")
                Lh = self.lab("rkh")
                Le = self.lab("rke")
                self("  s_waitcnt lgkmcnt(0)")
                self("  v_readfirstlane_b32 s65, v3")
                self("  s_cmp_eq_u32 s65, s67")
                self(f"  s_cbranch_scc1 {Lh}")
                self("  s_mov_b32 s67, s65")
                self("  s_and_b32 s66, s65, 0xff")
                self(f"{Lh}:")
                self("  s_bitcmp1_b32 s67, 8")
                self(f"  s_cbranch_scc1 {Ls}")
                self(f"  s_waitcnt vmcnt({cnt_for(i - Di + 1)})")
                self("  s_cmp_eq_u32 s66, 0")
                self(f"  s_cbranch_scc1 {Le}")
                self("  s_sub_u32 s66, s66, 1")
                self(f"  s_waitcnt vmcnt({cnt_for(i - Di + 3)})")
                self(f"{Le}:")
                self("  s_bitcmp1_b32 s67, 10")
                self(f"  s_cbranch_scc0 {Ls}")
                self(f"  s_waitcnt vmcnt({cnt_for(i - Di + 2)})")
                self(f"{Ls}:")
            if self.adapt and self.adapt[0] <= i < self.adapt[1]:
                tag = ("L", i - (Di - 1))
                idx = [k for k, tg in enumerate(self.vm) if tg == tag]
                if idx:
                    n = len(self.vm) - 1 - idx[-1]
                    Ls = self.lab("deep")
                    self("  s_cmp_lg_u32 s65, 0")
                    self(f"  s_cbranch_scc1 {Ls}")
                    self(f"  s_waitcnt vmcnt({n})")
                    self(f"{Ls}:")
            if i >= 16 and (i - 16) >= E:
                need_g = (i - 16 - E) // 4
                assert qk_next > need_g, f"schedule: V{i - 16} needs QK group {need_g} (slot {i})"
            if self.gwait and i == self.gwait[1]:
                self(f"  v_mov_b32 v{t1}, 0")
                self.lds_spin("go", t1, L_GO, t0, target=None, sdst="s58", sleep=1)
            if self.fwait and i == self.fwait:
                assert sm_done
                self("  v_mov_b32 v8, 0")
                self.lds_spin("frdy", 8, L_FRDY, 9, target=None, sdst="s58", sleep=1)
            if self.prog and self.stamps and i in self.prog:
                k = 1 + self.prog.index(i)
                self(f"  s_memrealtime s[{70 + 2 * k}:{71 + 2 * k}]")
            issue(i)
            if any(i == c[0] for c in self.ckp) or (self.wol and i == self.wol[0]):
                assert sm_done
                self("  v_mov_b32 v8, 0")
                self("  v_mov_b32 v9, 1")
                self("  s_mov_b64 exec, 1")
                self(f"  ds_add_u32 v8, v9 offset:{L_PROG}")
                self("  s_mov_b64 exec, -1")
            if (self.gwait and i == self.gwait[0]) or (self.dlate and i == self.dlate):
                assert not (self.gwait and self.dlate)
                self(f"  v_mov_b32 v{t1}, 0")
                self(f"  v_mov_b32 v{t0}, 1")
                self("  s_mov_b64 exec, 1")
                self(f"  ds_add_u32 v{t1}, v{t0} offset:{L_PROG2}")
                self("  s_mov_b64 exec, -1")
            if self.b0late and i == self.b0late - 1:
                self("  s_barrier            ; B0")
            if i == SB:
                self.stamp(1)
                self(f"  v_mov_b32 v{t1}, 0")
                self.lds_spin("qf", t1, L_QF, t0, target=3, sdst="s58", sleep=1)
                self.stamp(2)
                self(f"  v_and_b32 v{t0}, 15, v0")
                self(f"  v_lshlrev_b32 v{t1}, 4, v{t0}")
                self(f"  v_lshlrev_b32 v{t0}, 3, v{t0}")
                self(f"  ds_read_b128 v[{Q[0]}:{Q[3]}], v{t1} offset:{L_Q}")
                self(f"  ds_read_b64 v[{Q[4]}:{Q[5]}], v{t0} offset:{L_Q + 256}")
                self("  s_waitcnt lgkmcnt(0)")
            if i >= SB:
                n = 0
                while qk_next < 4 and 4 * qk_next + 3 <= landed and n < self.qk_per_slot:
                    qk_group(qk_next)
                    qk_next += 1
                    n += 1
                if qk_next == 4 and not sm_done:
                    softmax()
                    self(f"  v_mov_b32 v{MO}, v{t0}")
                    sm_done = True
                    self.stamp(3)
                elif sm_done:
                    n = 0
                    while pv_next < 16 and 16 + pv_next <= landed and n < 3:
                        pv(pv_next)
                        pv_next += 1
                        n += 1
        assert sm_done
        self(f"  v_mov_b32 v{t1}, 0")
        self.lds_spin("cnt8", t1, L_CNT, t0, target=8, sdst="s58", sleep=1)
        self(f"  v_and_b32 v{t1}, 7, v0")
        self(f"  v_lshlrev_b32 v{t1}, 2, v{t1}")
        self(f"  ds_read_b32 v{t0}, v{t1} offset:{L_M}")
        self(f"  v_and_b32 v{P[0]}, 15, v0")
        self(f"  v_lshrrev_b32 v{P[1]}, 4, v0")
        self(f"  v_lshlrev_b32 v{P[1]}, 2, v{P[1]}")
        self("  s_mul_i32 s6, s3, 768")
        self(f"  v_add_u32 v{P[1]}, s6, v{P[1]}")
        self(f"  v_lshl_add_u32 v{PA0}, v{P[0]}, 5, v{P[1]}")
        self(f"  v_lshl_add_u32 v{PA1}, v{P[0]}, 4, v{P[1]}")
        self("  s_waitcnt lgkmcnt(0)")
        for r in (1, 2, 4):
            self(f"  v_max_f32_dpp v{t0}, v{t0}, v{t0} row_ror:{r} row_mask:0xf bank_mask:0xf")
        self(f"  v_sub_f32 v{FF}, v{MO}, v{t0}")
        self(f"  v_mul_f32 v{FF}, {LOG2E}, v{FF}")
        self(f"  v_exp_f32 v{FF}, v{FF}")
        for j in range(pv_next, 16):
            self.vm_wait(("L", 16 + j))
            if j == 15:
                self.stamp(4)
                if self.prog and self.stamps:
                    self(f"  s_memrealtime s[92:93]")
            pv(j)
        R = self.treduce4rows(A)
        for r in R:
            self(f"  v_mul_f32 v{r}, v{FF}, v{r}")
        self(f"  ds_write_b32 v{PA0}, v{R[0]} offset:{L_PART}")
        self(f"  ds_write_b32 v{PA0}, v{R[1]} offset:{L_PART + 16}")
        self(f"  ds_write_b32 v{PA1}, v{R[2]} offset:{L_PART + 512}")
        if self.nob2:
            self("  s_mov_b64 exec, 1")
            self(f"  ds_add_u32 v8, v9 offset:{L_PARTS}")
            self("  s_mov_b64 exec, -1")
        Bf = RING
        Af = RING + 24
        Dd = RING + 48
        aB, aA, aS = RING + 52, RING + 53, RING + 54
        self(f"  v_lshrrev_b32 v{P[0]}, 4, v0          ; g")
        self(f"  v_bfe_u32 v{P[2]}, v0, 2, 2           ; r4")
        self(f"  v_and_b32 v{P[3]}, 3, v0              ; cq")
        self(f"  v_lshl_add_u32 v{aB}, v{P[0]}, 3, v{P[2]}   ; 8g + r4")
        self(f"  v_lshlrev_b32 v{aB}, 7, v{aB}")
        self("  s_and_b32 s6, s3, 3           ; tile")
        self("  s_lshl_b32 s7, s6, 1")
        self(f"  v_lshrrev_b32 v{aA}, 1, v{P[3]}")
        self(f"  v_add_u32 v{aA}, s7, v{aA}")
        self(f"  v_lshlrev_b32 v{aS}, 1, v{P[2]}")
        self(f"  v_xor_b32 v{aA}, v{aA}, v{aS}")
        self(f"  v_lshl_add_u32 v{aB}, v{aA}, 4, v{aB}")
        self(f"  v_and_b32 v{aA}, 1, v{P[3]}")
        self(f"  v_lshl_add_u32 v{aB}, v{aA}, 3, v{aB}")
        self(f"  v_and_b32 v{aA}, 7, v0")
        self(f"  v_mul_u32_u24 v{aA}, 400, v{aA}")
        self(f"  v_lshl_add_u32 v{aA}, v{P[0]}, 4, v{aA}")
        self(f"  v_lshlrev_b32 v{aS}, 2, v0")
        for d in range(4):
            self(f"  v_mov_b32 v{Dd + d}, 0")
        self.srd(44, 30, None, WS_SIZE)
        self("  s_waitcnt lgkmcnt(0)")
        self.stamp(5)
        self("  s_cmp_ge_u32 s3, 4")
        self("  s_cbranch_scc1 L_tail_extra")

        def tail_part(nk, wo_off):
            if not self.nob2:
                self("  s_barrier")
            if self.wol:
                self(f"  v_mov_b32 v{t1}, 0")
                self.lds_spin("wok", t1, L_WOK, t0, target=None, sdst="s58", sleep=(1 if self.nob2 else 0) if self.wop != 2 else 0)
            for k in range(nk):
                if self.wop and k == 4:
                    self.lds_spin("wok2", t1, L_WOK, t0, target=2, sdst="s58", sleep=0)
                self(f"  ds_read_b64_tr_b16 v[{Bf + 4 * k}:{Bf + 4 * k + 1}], v{aB} offset:{wo_off + 4096 * k}")
                self(f"  ds_read_b64_tr_b16 v[{Bf + 4 * k + 2}:{Bf + 4 * k + 3}], v{aB} offset:{wo_off + 4096 * k + 512}")
            self(f"  v_add_u32 v{aS}, s6, v{aS}")
            self("  s_waitcnt lgkmcnt(0)")
            self("  s_barrier")
            for k in range(nk):
                self(f"  ds_read_b128 v[{Af + 4 * k}:{Af + 4 * k + 3}], v{aA} offset:{L_A + 64 * k}")
            self.stamp(6)
            for k in range(nk):
                if self.stamps:
                    if k == 0:
                        self("  s_waitcnt lgkmcnt(0)")
                else:
                    self(f"  s_waitcnt lgkmcnt({nk - 1 - k})")
                self(f"  v_mfma_f32_16x16x32_bf16 v[{Dd}:{Dd + 3}], v[{Af + 4 * k}:{Af + 4 * k + 3}], v[{Bf + 4 * k}:{Bf + 4 * k + 3}], v[{Dd}:{Dd + 3}]")
            self(f"  v_add_f32 v{Dd}, v{Dd}, v{Dd + 1}")
            self(f"  v_add_f32 v{Dd + 2}, v{Dd + 2}, v{Dd + 3}")
            self(f"  v_add_f32 v{Dd}, v{Dd}, v{Dd + 2}")
            self(f"  v_mov_b32 v{t0}, v{Dd}")
            self(f"  v_permlane16_swap_b32 v{Dd}, v{t0}")
            self(f"  v_add_f32 v{Dd}, v{Dd}, v{t0}")
            self(f"  v_min_u32 v{Dd}, -2, v{Dd}")
            self("  s_mov_b32 exec_lo, 0xffff")
            self("  s_mov_b32 exec_hi, 0")
            self(f"  buffer_store_dword v{Dd}, v{aS}, s[44:47], 0 offen sc1")
            self("  s_mov_b64 exec, -1")
            self.stamp(7)
            self("  s_branch L_exit_stamped")

        self("  s_lshl_b32 s7, s5, 2")
        self("  s_add_u32 s6, s6, s7")
        self(f"  s_mul_i32 s6, s6, {SDSTR}")
        self("  s_lshl_b32 s7, s4, 6")
        self("  s_add_u32 s6, s6, s7")
        self(f"  s_add_u32 s6, s6, {SD_BASE}")
        tail_part(6, L_WO)
        self("L_tail_extra:")
        self("  s_cmp_ge_u32 s5, 6")
        self("  s_cbranch_scc1 L_exit_stamped")
        self("  s_cmp_ge_u32 s5, 3")
        self("  s_cselect_b32 s7, 4, 0        ; 4e")
        self("  s_cselect_b32 s56, 3, 0")
        self("  s_sub_u32 s56, s5, s56        ; third")
        self("  s_add_u32 s6, s6, s7")
        self("  s_add_u32 s6, s6, 32")
        self(f"  s_mul_i32 s6, s6, {SDSTR}")
        self("  s_mul_i32 s7, s4, 3")
        self("  s_add_u32 s7, s7, s56")
        self("  s_lshl_b32 s7, s7, 6")
        self("  s_add_u32 s6, s6, s7")
        self(f"  s_add_u32 s6, s6, {SD_BASE}")
        self("  s_lshl_b32 s7, s56, 7")
        self(f"  v_add_u32 v{aA}, s7, v{aA}")
        tail_part(2, L_WO2)

    def ln(self, X, xs, t):
        for i in range(5):
            self(f"  v_lshlrev_b32 v{xs[2 * i]}, 16, v{X[i]}")
            self(f"  v_and_b32 v{xs[2 * i + 1]}, 0xffff0000, v{X[i]}")
        s, u, m = t[0], t[1], t[2]
        self(f"  v_add_f32 v{s}, v{xs[0]}, v{xs[1]}")
        for i in range(2, 10):
            self(f"  v_add_f32 v{s}, v{s}, v{xs[i]}")
        self.allreduce("v_add_f32", s, u)
        self(f"  v_mul_f32 v{m}, {INV640}, v{s}")
        self(f"  v_sub_f32 v{u}, v{xs[0]}, v{m}")
        self(f"  v_mul_f32 v{s}, v{u}, v{u}")
        for i in range(1, 10):
            self(f"  v_sub_f32 v{u}, v{xs[i]}, v{m}")
            self(f"  v_fmac_f32 v{s}, v{u}, v{u}")
        self.allreduce("v_add_f32", s, u)
        self(f"  v_mul_f32 v{s}, {INV640}, v{s}          ; var")
        self(f"  v_cvt_pk_bf16_f32 v{u}, v{s}, v{m}")
        self(f"  v_lshlrev_b32 v{s}, 16, v{u}            ; bf16(var)")
        self(f"  v_and_b32 v{m}, 0xffff0000, v{u}        ; bf16(mean)")
        self(f"  v_add_f32 v{s}, {EPS}, v{s}")
        self(f"  v_cvt_pk_bf16_f32 v{s}, v{s}, v{s}")
        self(f"  v_lshlrev_b32 v{s}, 16, v{s}")
        self(f"  v_sqrt_f32 v{s}, v{s}")
        self("  s_nop 0")
        self(f"  v_cvt_pk_bf16_f32 v{s}, v{s}, v{s}")
        self(f"  v_lshlrev_b32 v{s}, 16, v{s}")
        self(f"  v_rcp_f32 v{s}, v{s}")
        for i in range(10):
            self(f"  v_sub_f32 v{xs[i]}, v{xs[i]}, v{m}")
        for i in range(5):
            self(f"  v_cvt_pk_bf16_f32 v{X[i]}, v{xs[2 * i]}, v{xs[2 * i + 1]}")
        for i in range(5):
            self(f"  v_lshlrev_b32 v{xs[2 * i]}, 16, v{X[i]}")
            self(f"  v_and_b32 v{xs[2 * i + 1]}, 0xffff0000, v{X[i]}")
        for i in range(10):
            self(f"  v_mul_f32 v{xs[i]}, v{xs[i]}, v{s}")
        for i in range(5):
            self(f"  v_cvt_pk_bf16_f32 v{X[i]}, v{xs[2 * i]}, v{xs[2 * i + 1]}")
        self(f"  v_lshlrev_b32 v{u}, 2, v0")
        for i in range(5):
            self(f"  ds_write_b32 v{u}, v{X[i]} offset:{L_XN + 256 * i}")

    def xn_rows(self, XL, XH, t, n=10, base="s5", mul=80):
        self(f"  v_lshrrev_b32 v{t}, 3, v0")
        self(f"  s_mul_i32 s6, {base}, {mul}")
        self(f"  v_add_u32 v{t}, s6, v{t}")
        self(f"  v_lshlrev_b32 v{t}, 1, v{t}")
        self("  s_waitcnt lgkmcnt(0)")
        for i in range(n):
            self(f"  ds_read_u16 v{XL[i]}, v{t} offset:{L_XN + 16 * i}")
        self("  s_waitcnt lgkmcnt(0)")
        for i in range(n):
            self(f"  v_lshlrev_b32 v{XH[i]}, 16, v{XL[i]}")

    def gemv64(self, W, XL, XH, ACC, n):
        for i in range(n):
            for k in range(4):
                c0 = "0" if i == 0 else f"v{ACC[2 * k]}"
                c1 = "0" if i == 0 else f"v{ACC[2 * k + 1]}"
                self(f"  v_dot2_f32_bf16 v{ACC[2 * k]}, v{W + 4 * i + k}, v{XL[i]}, {c0}")
                self(f"  v_dot2_f32_bf16 v{ACC[2 * k + 1]}, v{W + 4 * i + k}, v{XH[i]}, {c1}")

    def gather_h1(self, nparts, dst, addr):
        def issue():
            for p in range(nparts):
                for c in range(8):
                    so = ["0", "s60", "s61", "s62"][c // 2]
                    imm = BOX * (c % 2) + 256 * p
                    o = f" offset:{imm}" if imm else ""
                    self(f"  buffer_load_dword v{dst[p * 8 + c]}, v{addr}, s[44:47], {so} offen{o} sc1")
        self.poll_loop("h1", issue, dst[:nparts * 8], dst[nparts * 8], sleep=2)

    def ticket(self, k, pol, vz):
        if self.rshard == 0:
            self("  s_and_b32 s6, s4, 3")
            self("  s_lshl_b32 s6, s6, 6")
        else:
            self("  s_lshr_b32 s6, s4, 2")
            self("  s_lshl_b32 s6, s6, 5")
        self(f"  s_add_u32 s6, s6, {4 + 8 * k}")
        self("  v_mov_b32 v15, s6")
        self("  v_mov_b32 v16, 1")
        self("  s_mov_b64 exec, 1")
        self("  buffer_atomic_add v16, v15, s[48:51], 0 offen sc0 sc1")
        self("  s_waitcnt vmcnt(0)")
        self("  v_readfirstlane_b32 s6, v16")
        word = lambda n1, d: 512 | (k << 12) | n1 | (256 if d == 4 else 0) | (1024 if d == 2 else 0)
        self(f"  s_mov_b32 s56, {word(*pol[-1][1:])}")
        for (ub, n1, d) in reversed(pol[:-1]):
            self(f"  s_cmp_lt_u32 s6, {ub}")
            self(f"  s_cselect_b32 s56, {word(n1, d)}, s56")
        self("  v_mov_b32 v16, s56")
        self(f"  ds_write_b32 v{vz}, v16 offset:{L_RANK}")
        self("  s_mov_b64 exec, -1")

    def later_tickets(self):
        for k, (slot, pol) in enumerate(self.ckp):
            L = self.lab("ck")
            Ld = self.lab("ckd")
            self("  v_mov_b32 v12, 0")
            self("  s_mov_b32 s57, 0")
            self(f"{L}:")
            self(f"  ds_read_b32 v13, v12 offset:{L_PROG}")
            self("  s_waitcnt lgkmcnt(0)")
            self("  v_readfirstlane_b32 s58, v13")
            self("  s_add_u32 s57, s57, 1")
            self(f"  s_cmp_gt_u32 s57, {SPIN_MAX * 8}")
            self(f"  s_cbranch_scc1 {Ld}")
            self(f"  s_cmp_ge_u32 s58, {8 * (k + 1)}")
            self(f"  s_cbranch_scc1 {Ld}")
            self("  s_sleep 2")
            self(f"  s_branch {L}")
            self(f"{Ld}:")
            self.ticket(k + 1, pol, 12)

    def own_box(self, dst="s6", tmp="s56"):
        self(f"  s_mul_i32 {dst}, s4, {GBOX}")
        self(f"  s_mul_i32 {tmp}, s5, {BOX}")
        self(f"  s_add_u32 {dst}, {dst}, {tmp}")

    def helper(self):
        self.in_stream = False
        X = list(range(4, 9))
        xs = list(range(10, 20))
        t = [20, 21, 22, 23]
        XL = list(range(24, 34))
        XH = list(range(34, 44))
        ACC = list(range(44, 60))
        W = 64
        self("L_helper:")
        if self.prio:
            self(f"  s_setprio {self.prio}")
        self("  s_sub_u32 s7, s3, 8")
        self("  v_lshlrev_b32 v1, 2, v0       ; 4*lane")
        self(f"  s_mov_b32 s60, {2 * BOX}")
        self(f"  s_mov_b32 s61, {4 * BOX}")
        self(f"  s_mov_b32 s62, {6 * BOX}")
        self("  s_waitcnt lgkmcnt(0)")
        self.srd(32, 8, None, 1280)
        self.srd(44, 30, None, WS_SIZE)
        self.srd(48, 28, None, 256)
        self("  s_cmp_eq_u32 s3, 11")
        self("  s_cbranch_scc1 L_h3")
        self("  s_mul_i32 s6, s5, 983040      ; 80*12288*c")
        self("  s_mul_i32 s56, s4, 384")
        self("  s_add_u32 s6, s6, s56")
        self.srd(36, 14, "s6", 79 * 12288 + 384)
        self(f"  v_lshrrev_b32 v2, 3, v0")
        self(f"  v_mul_u32_u24 v2, 12288, v2")
        self(f"  v_and_b32 v3, 7, v0")
        self(f"  v_lshl_add_u32 v2, v3, 4, v2")
        self("  s_lshl_b32 s6, s7, 7")
        self(f"  v_add_u32 v2, s6, v2")
        for i in range(5):
            o = f" offset:{256 * i}" if i else ""
            self(f"  buffer_load_dword v{X[i]}, v1, s[32:35], 0 offen{o}")
        for i in range(10):
            self(f"  s_mov_b32 s6, {98304 * i}")
            self(f"  buffer_load_dwordx4 v[{W + 4 * i}:{W + 4 * i + 3}], v2, s[36:39], s6 offen nt")
        if self.touch & 2:
            self("  s_mul_i32 s6, s4, 245760      ; 192*1280*h")
            self("  s_mul_i32 s56, s5, 160")
            self("  s_add_u32 s6, s6, s56")
            self.srd(40, 16, "s6", 191 * 1280 + 160)
            self("  s_mul_i32 s6, s7, 81920")
            self("  v_mov_b32 v3, s6")
            self("  s_mov_b64 exec, 1")
            self("  buffer_load_dword v60, v3, s[40:43], 0 offen")
            self("  s_mov_b64 exec, -1")
        self("  s_barrier            ; B0")
        self(f"  s_waitcnt vmcnt({11 if self.touch & 2 else 10})")
        self.ln(X, xs, t)
        self.xn_rows(XL, XH, t[0])
        self.stamp(1)
        self("  s_waitcnt vmcnt(0)")
        self.stamp(2)
        for i in range(10):
            for k in range(4):
                c0 = "0" if i == 0 else f"v{ACC[2 * k]}"
                c1 = "0" if i == 0 else f"v{ACC[2 * k + 1]}"
                self(f"  v_dot2_f32_bf16 v{ACC[2 * k]}, v{W + 4 * i + k}, v{XL[i]}, {c0}")
                self(f"  v_dot2_f32_bf16 v{ACC[2 * k + 1]}, v{W + 4 * i + k}, v{XH[i]}, {c1}")
        self.treduce8(ACC[:8], t[1])
        self(f"  v_min_u32 v{t[1]}, -2, v{t[1]}")
        self(f"  s_mul_i32 s6, s4, {GBOX}")
        self("  s_lshl_b32 s56, s7, 8")
        self("  s_add_u32 s6, s6, s56")
        self(f"  v_add_u32 v14, s6, v1")
        self(f"  s_mul_i32 s56, s5, {BOX}")
        self("  v_add_u32 v15, s56, v14")
        self(f"  v_mov_b32 v12, 0")
        if self.early_pub:
            self.lds_spin("clr", 12, L_CLR, 13, target=None, sdst="s58")
            self(f"  buffer_store_dword v{t[1]}, v15, s[44:47], 0 offen sc1")
            self.lds_spin("mode", 12, L_MODE, 13, target=None, sdst="s59")
        else:
            self.lds_spin("mode", 12, L_MODE, 13, target=None, sdst="s59")
            self.mode_store([f"buffer_store_dword v{t[1]}, v15, s[44:47], 0 offen"])
        self.stamp(3)
        G8 = list(range(64, 73))
        self.gather_h1(1, G8, 14)
        self.stamp(4)
        self(f"  v_add_f32 v{G8[0]}, v{G8[0]}, v{G8[1]}")
        self(f"  v_add_f32 v{G8[2]}, v{G8[2]}, v{G8[3]}")
        self(f"  v_add_f32 v{G8[4]}, v{G8[4]}, v{G8[5]}")
        self(f"  v_add_f32 v{G8[6]}, v{G8[6]}, v{G8[7]}")
        self(f"  v_add_f32 v{G8[0]}, v{G8[0]}, v{G8[2]}")
        self(f"  v_add_f32 v{G8[4]}, v{G8[4]}, v{G8[6]}")
        self(f"  v_add_f32 v{G8[0]}, v{G8[0]}, v{G8[4]}")
        self(f"  v_cvt_pk_bf16_f32 v{G8[0]}, v{G8[0]}, v{G8[0]}")
        self("  v_and_b32 v16, 7, v0")
        self("  v_lshrrev_b32 v17, 3, v0")
        self("  v_lshl_add_u32 v16, v16, 3, v17")
        self("  s_lshl_b32 s6, s7, 6")
        self("  v_add_u32 v16, s6, v16")
        self("  v_lshlrev_b32 v16, 1, v16")
        self(f"  ds_write_b16 v16, v{G8[0]} offset:{L_Q}")
        self("  v_mov_b32 v13, 1")
        self("  s_waitcnt lgkmcnt(0)")
        self("  s_mov_b64 exec, 1")
        self(f"  ds_add_u32 v12, v13 offset:{L_QF}")
        self("  s_mov_b64 exec, -1")
        self.stamp(5)
        self("  s_cmp_eq_u32 s3, 8")
        self("  s_cbranch_scc1 L_h0")
        self("  s_cmp_eq_u32 s3, 10")
        self("  s_cbranch_scc1 L_h2")
        self("  s_mov_b32 s56, -1")
        for tt in range(5):
            self(f"  s_cmp_eq_u32 s4, {6 * tt + 1}")
            self(f"  s_cselect_b32 s56, {tt}, s56")
        self("  s_cmp_eq_u32 s56, -1")
        self("  s_cbranch_scc1 L_exit_stamped")
        self.final_consumer()

        self("L_h2:")
        if self.bulkprio is not None:
            self(f"  s_setprio {self.bulkprio}")
        self("  s_mul_i32 s6, s4, 245760      ; 192*1280*h")
        self("  s_lshl_b32 s56, s5, 7")
        self("  s_add_u32 s6, s6, s56")
        self.srd(40, 16, "s6", 191 * 1280 + 128)
        self("  v_lshrrev_b32 v2, 3, v0")
        self("  v_and_b32 v3, 3, v2")
        self("  v_lshlrev_b32 v3, 1, v3")
        self("  v_and_b32 v4, 7, v0")
        self("  v_xor_b32 v3, v3, v4")
        self("  v_mul_u32_u24 v2, 1280, v2")
        self("  v_lshl_add_u32 v2, v3, 4, v2")
        self("  s_mov_b32 s6, 0")
        self(f"  s_mov_b32 m0, {L_WO}")
        nt = ' nt' if self.wnt & 1 else ''
        def wo_loop(name, n, srd, thr):
            self(f"{name}:")
            self(f"  buffer_load_dwordx4 v2, {srd}, s6 offen{nt} lds")
            self("  s_add_u32 m0, m0, 1024")
            self("  s_add_u32 s6, s6, 10240")
            if thr:
                self(f"  s_waitcnt vmcnt({thr})")
            self(f"  s_cmp_lt_u32 s6, {10240 * n}")
            self(f"  s_cbranch_scc1 {name}")

        def extra_srd():
            self("  s_cmp_ge_u32 s5, 3")
            self("  s_cselect_b32 s7, 128, 0")
            self("  s_cselect_b32 s56, 3, 0")
            self("  s_sub_u32 s56, s5, s56        ; third")
            self("  s_mul_i32 s56, s56, 81920     ; 64*1280")
            self("  s_add_u32 s7, s7, s56")
            self("  s_mul_i32 s6, s4, 245760")
            self("  s_add_u32 s6, s6, s7")
            self("  s_add_u32 s6, s6, 1024")
            self.srd(52, 16, "s6", 63 * 1280 + 128)
        if not self.wol:
            wo_loop("L_wo_loop", 24, "s[40:43]", self.wo_throttle)
            self("  s_cmp_ge_u32 s5, 6")
            self("  s_cbranch_scc1 L_wo_done")
            extra_srd()
            self("  s_mov_b32 s6, 0")
            wo_loop("L_wo2_loop", 8, "s[52:55]", self.wo_throttle)
        else:
            wl = list(self.wol) + [0, 0, 0, 0, 2, 0][len(self.wol) - 2:]
            X_, N_, T_, _, K0, xe, slp, pr = wl[:8]
            extra_srd()
            if xe:
                self("  s_cmp_ge_u32 s5, 6")
                self("  s_cbranch_scc1 L_wo2_skip")
                self(f"  s_mov_b32 m0, {L_WO2}")
                self("  s_mov_b32 s6, 0")
                wo_loop("L_wo2_loop", 8, "s[52:55]", self.wo_throttle)
                self("L_wo2_skip:")
            self(f"  s_mov_b32 m0, {L_WO}")
            self("  s_mov_b32 s6, 0")
            if K0:
                wo_loop("L_wo0_loop", K0, "s[40:43]", self.wo_throttle)
            if self.gwait:
                self("  v_mov_b32 v12, 0")
                self.lds_spin("arr", 12, L_PROG2, 13, target=8, sdst="s58", sleep=2)
                self("  s_lshl_b32 s56, s4, 3")
                self("  s_add_u32 s56, s56, 4")
                self("  v_mov_b32 v14, s56")
                self("  v_mov_b32 v15, 1")
                self("  s_mov_b64 exec, 1")
                self("  buffer_atomic_add v15, v14, s[48:51], 0 offen sc1")
                self("  s_mov_b64 exec, -1")
                self("  v_lshlrev_b32 v14, 3, v0")
                self("  v_add_u32 v14, 4, v14")
                Lg = self.lab("gw")
                Lgd = self.lab("gwd")
                self("  s_mov_b32 s57, 0")
                self("  s_mov_b32 exec_hi, 0")
                self(f"{Lg}:")
                self("  buffer_load_dword v16, v14, s[48:51], 0 offen sc1")
                self("  s_add_u32 s57, s57, 1")
                self(f"  s_cmp_gt_u32 s57, {SPIN_MAX}")
                self("  s_waitcnt vmcnt(0)")
                self(f"  s_cbranch_scc1 {Lgd}")
                self("  v_cmp_eq_u32 vcc, 8, v16")
                self("  s_bcnt1_i32_b64 s58, vcc")
                self(f"  s_cmp_ge_u32 s58, {self.gwait[2]}")
                self(f"  s_cbranch_scc1 {Lgd}")
                if len(self.gwait) > 3 and self.gwait[3]:
                    self(f"  s_sleep {self.gwait[3]}")
                self(f"  s_branch {Lg}")
                self(f"{Lgd}:")
                self("  s_mov_b64 exec, 1")
                self("  v_mov_b32 v13, 1")
                self(f"  ds_write_b32 v12, v13 offset:{L_GO}")
                self("  s_mov_b64 exec, -1")
            Lw = self.lab("wol")
            Lwd = self.lab("wold")
            self("  v_mov_b32 v12, 0")
            self("  s_mov_b32 s57, 0")
            if pr:
                self(f"  s_setprio {pr}")
            self(f"{Lw}:")
            self(f"  ds_read_b32 v13, v12 offset:{L_PROG}")
            self("  s_waitcnt lgkmcnt(0)")
            self("  v_readfirstlane_b32 s58, v13")
            self("  s_add_u32 s57, s57, 1")
            self(f"  s_cmp_gt_u32 s57, {SPIN_MAX * 8}")
            self(f"  s_cbranch_scc1 {Lwd}")
            self(f"  s_cmp_ge_u32 s58, {N_}")
            self(f"  s_cbranch_scc1 {Lwd}")
            if slp:
                self(f"  s_sleep {slp}")
            self(f"  s_branch {Lw}")
            self(f"{Lwd}:")
            self.stamp(7)
            if self.wop:
                assert K0 <= 16
                if not xe:
                    self("  s_cmp_ge_u32 s5, 6")
                    self("  s_cbranch_scc1 L_wo2_skip")
                    self(f"  s_mov_b32 m0, {L_WO2}")
                    self("  s_mov_b32 s6, 0")
                    wo_loop("L_wo2_loop", 8, "s[52:55]", T_)
                    self("L_wo2_skip:")
                    self(f"  s_mov_b32 m0, {L_WO + 1024 * K0}")
                    self(f"  s_mov_b32 s6, {10240 * K0}")
                wo_loop("L_wo_loop", 24, "s[40:43]", T_)
            else:
                wo_loop("L_wo_loop", 24, "s[40:43]", T_)
                if not xe:
                    self("  s_cmp_ge_u32 s5, 6")
                    self("  s_cbranch_scc1 L_wo_done")
                    self("  s_mov_b32 s6, 0")
                    wo_loop("L_wo2_loop", 8, "s[52:55]", T_)
        self("L_wo_done:")
        if self.wol:
            self.stamp(8)
            if not self.nob2:
                self("  s_barrier            ; B2")
        if self.wop:
            self("  v_mov_b32 v13, 1")
            self("  v_mov_b32 v14, 2")
            self("  s_mov_b64 exec, 1")
            self("  s_waitcnt vmcnt(8)")
            self(f"  ds_write_b32 v12, v13 offset:{L_WOK}")
            self("  s_waitcnt vmcnt(0)")
            self(f"  ds_write_b32 v12, v14 offset:{L_WOK}")
            self("  s_mov_b64 exec, -1")
        else:
            self("  s_waitcnt vmcnt(0)")
            if self.wol:
                self("  v_mov_b32 v13, 1")
                self("  s_mov_b64 exec, 1")
                self(f"  ds_write_b32 v12, v13 offset:{L_WOK}")
                self("  s_mov_b64 exec, -1")
        self.stamp(6)
        self("  s_branch L_exit_stamped")

        self("L_h0:")
        self("  v_mov_b32 v12, 0")
        self.lds_spin("cnt", 12, L_CNT, 13, target=8, sdst="s58", sleep=2)
        if self.rank:
            self.ticket(0, self.rankp, 12)
        self("  v_and_b32 v14, 7, v0")
        self("  v_lshlrev_b32 v14, 2, v14")
        self(f"  ds_read_b32 v16, v14 offset:{L_M}")
        self(f"  ds_read_b32 v17, v14 offset:{L_L}")
        self("  s_waitcnt lgkmcnt(0)")
        self("  v_mov_b32 v18, v16")
        for r in (1, 2, 4):
            self(f"  v_max_f32_dpp v18, v18, v18 row_ror:{r} row_mask:0xf bank_mask:0xf")
        self("  v_sub_f32 v19, v16, v18")
        self(f"  v_mul_f32 v19, {LOG2E}, v19")
        self("  v_exp_f32 v19, v19")
        self("  s_nop 0")
        self("  v_mul_f32 v19, v19, v17")
        for r in (1, 2, 4):
            self(f"  v_add_f32_dpp v19, v19, v19 row_ror:{r} row_mask:0xf bank_mask:0xf")
        self("  v_min_u32 v20, -2, v18")
        self("  v_min_u32 v21, -2, v19")
        self("  v_mov_b32 v16, v18                ; M_c")
        self.own_box()
        self(f"  s_add_u32 s6, s6, {O_LSE}")
        self("  v_mov_b32 v15, s6")
        self("  s_mov_b64 exec, 1")
        self.mode_store(["buffer_store_dwordx2 v[20:21], v15, s[44:47], 0 offen"])
        self("  s_mov_b64 exec, -1")
        self("  v_and_b32 v15, 7, v0")
        self(f"  v_mul_u32_u24 v15, {BOX}, v15")
        self(f"  s_mul_i32 s6, s4, {GBOX}")
        self(f"  s_add_u32 s6, s6, {O_LSE}")
        self("  v_add_u32 v15, s6, v15")

        def issue_lse():
            self("  buffer_load_dwordx2 v[22:23], v15, s[44:47], 0 offen sc1")
        self.poll_loop("lse", issue_lse, [22, 23], 24, sleep=self.lsl)
        self("  v_mov_b32 v18, v22")
        for r in (1, 2, 4):
            self(f"  v_max_f32_dpp v18, v18, v18 row_ror:{r} row_mask:0xf bank_mask:0xf")
        self("  v_sub_f32 v19, v22, v18")
        self(f"  v_mul_f32 v19, {LOG2E}, v19")
        self("  v_exp_f32 v19, v19")
        self("  s_nop 0")
        self("  v_mul_f32 v19, v19, v23")
        for r in (1, 2, 4):
            self(f"  v_add_f32_dpp v19, v19, v19 row_ror:{r} row_mask:0xf bank_mask:0xf")
        self("  v_rcp_f32 v19, v19")
        self("  v_sub_f32 v16, v16, v18")
        self(f"  v_mul_f32 v16, {LOG2E}, v16")
        self("  v_exp_f32 v16, v16")
        self("  s_nop 0")
        self("  v_mul_f32 v16, v16, v19          ; G = exp(M_c - M_h) / L_h")
        if self.fwait:
            self("  v_mov_b32 v12, 0")
            self("  v_mov_b32 v13, 1")
            self(f"  ds_write_b32 v12, v13 offset:{L_FRDY}")
        self.stamp(6)
        self("  v_lshlrev_b32 v14, 4, v0")
        self.own_box()
        self(f"  s_add_u32 s6, s6, {O_O2}")
        self("  v_lshlrev_b32 v15, 3, v0")
        self("  v_add_u32 v15, s6, v15")
        self(f"  s_mul_i32 s6, s4, {GBOX}")
        self(f"  s_add_u32 s6, s6, {O_O2}")
        GA, LA = [4, 5, 6], [7, 8, 9]
        for i in range(3):
            self(f"  v_add_u32 v17, {64 * i}, v0")
            self("  v_mul_u32_u24 v18, 171, v17")
            self("  v_lshrrev_b32 v18, 12, v18")
            self("  v_mul_u32_u24 v19, 24, v18")
            self("  v_sub_u32 v19, v17, v19           ; chunk")
            self(f"  v_mul_u32_u24 v20, {BOX}, v18")
            self("  v_lshl_add_u32 v20, v19, 4, v20")
            self(f"  v_add_u32 v{GA[i]}, s6, v20")
            self("  v_mul_u32_u24 v20, 400, v18")
            self(f"  v_lshl_add_u32 v{LA[i]}, v19, 4, v20")
        self("  s_mov_b32 exec_hi, 0xffff         ; 48 lanes")
        if self.nob2:
            self("  v_mov_b32 v12, 0")
            self.lds_spin("parts", 12, L_PARTS, 13, target=8, sdst="s58", sleep=0)
        else:
            self("  s_barrier            ; B2")
        self.stamp(9)
        PR = 24
        for w in range(8):
            self(f"  ds_read_b128 v[{PR + 4 * w}:{PR + 4 * w + 3}], v14 offset:{L_PART + 768 * w}")
        for (a_, b_, cnt) in ((0, 1, 6), (2, 3, 4), (0, 2, None), (4, 5, 2), (6, 7, 0), (4, 6, None), (0, 4, None)):
            if cnt is not None:
                self(f"  s_waitcnt lgkmcnt({cnt if not self.stamps else 0})")
            for k in range(4):
                self(f"  v_add_f32 v{PR + 4 * a_ + k}, v{PR + 4 * a_ + k}, v{PR + 4 * b_ + k}")
        for k in range(4):
            self(f"  v_mul_f32 v{PR + k}, v16, v{PR + k}")
        self(f"  v_cvt_pk_bf16_f32 v20, v{PR}, v{PR + 1}")
        self(f"  v_cvt_pk_bf16_f32 v21, v{PR + 2}, v{PR + 3}")
        self("  v_min_u32 v20, -2, v20")
        self("  v_min_u32 v21, -2, v21")
        self.mode_store(["buffer_store_dwordx2 v[20:21], v15, s[44:47], 0 offen"])
        self("  s_mov_b64 exec, -1")
        self.stamp(7)
        AG = 56

        def issueA():
            for i in range(3):
                self(f"  buffer_load_dwordx4 v[{AG + 4 * i}:{AG + 4 * i + 3}], v{GA[i]}, s[44:47], 0 offen sc1")
        if self.pipeA:
            def issueAk(k):
                for i in range(3):
                    b = AG + 12 * k + 4 * i
                    self(f"  buffer_load_dwordx4 v[{b}:{b + 3}], v{GA[i]}, s[44:47], 0 offen sc1")

            def doneA(k):
                self.stamp(8)
                for i in range(3):
                    b = AG + 12 * k + 4 * i
                    self(f"  ds_write_b128 v{LA[i]}, v[{b}:{b + 3}] offset:{L_A}")
            self.poll_pipe("pollA", self.pipeA, 3, issueAk, lambda k: range(AG + 12 * k, AG + 12 * k + 12), 17, doneA)
        else:
            self.poll_loop("pollA", issueA, range(AG, AG + 12), 17)
            self.stamp(8)
            for i in range(3):
                self(f"  ds_write_b128 v{LA[i]}, v[{AG + 4 * i}:{AG + 4 * i + 3}] offset:{L_A}")
        self("  s_waitcnt lgkmcnt(0)")
        self.stamp(10)
        self("  s_barrier            ; B3")
        self("  s_branch L_exit_stamped")

        self("L_h3:")
        self("  s_lshr_b32 s6, s2, 3")
        self("  s_sub_u32 s64, s6, 2             ; fi")
        self("  s_cselect_b32 s66, 0, 1")
        self("  s_cselect_b32 s64, 0, s64")
        self("  s_mul_i32 s6, s64, 26")
        self("  s_lshr_b32 s6, s6, 8             ; l")
        self("  s_mul_i32 s56, s6, 10")
        self("  s_sub_u32 s64, s64, s56          ; m")
        self("  s_and_b32 s65, s2, 7")
        self("  s_mul_i32 s65, s65, 3")
        self("  s_add_u32 s65, s65, s6           ; j")
        self("  v_mov_b32 v16, 0")
        self("  v_mov_b32 v17, 0")
        self("  v_mov_b32 v18, 0")
        self("  v_mov_b32 v19, 0")
        self("  v_lshlrev_b32 v3, 4, v0")
        self("  v_mov_b32 v8, -1")
        self("  v_mov_b32 v9, -1")
        self("  v_mov_b32 v10, -1")
        self("  v_mov_b32 v11, -1")
        self.own_box()
        self("  v_add_u32 v12, s6, v3")
        self("  buffer_store_dwordx4 v[8:11], v12, s[44:47], 0 offen sc1")
        self("  s_mul_i32 s56, s65, 10")
        self("  s_add_u32 s56, s56, s64")
        self(f"  s_mul_i32 s56, s56, {FSTR}")
        self(f"  s_add_u32 s67, s56, {FB_BASE}")
        self("  s_cmp_lg_u32 s66, 0")
        self(f"  s_cselect_b32 s56, s67, {OOB}")
        self("  s_sub_u32 s56, s56, 256")
        self("  v_add_u32 v13, s56, v3")
        self("  v_add_u32 v12, 1024, v12")
        self("  v_cmp_gt_u32 vcc, 16, v0")
        self("  v_cndmask_b32 v12, v13, v12, vcc")
        self("  s_mov_b32 exec_hi, 0xffff")
        self("  buffer_store_dwordx4 v[8:11], v12, s[44:47], 0 offen sc1")
        self("  s_lshl_b32 s6, s5, 2")
        self(f"  s_mul_i32 s6, s6, {SDSTR}")
        self("  s_lshl_b32 s56, s4, 6")
        self("  s_add_u32 s6, s6, s56")
        self(f"  s_add_u32 s6, s6, {SD_BASE}")
        self("  v_mov_b32 v13, s6                ; main")
        self("  s_cmp_ge_u32 s5, 3")
        self("  s_cselect_b32 s7, 36, 32")
        self("  s_cselect_b32 s56, 3, 0")
        self("  s_sub_u32 s56, s5, s56           ; third")
        self(f"  s_mul_i32 s6, s7, {SDSTR}")
        self("  s_mul_i32 s7, s4, 3")
        self("  s_add_u32 s7, s7, s56")
        self("  s_lshl_b32 s7, s7, 6")
        self("  s_add_u32 s6, s6, s7")
        self(f"  s_add_u32 s6, s6, {SD_BASE}")
        self("  s_cmp_ge_u32 s5, 6")
        self(f"  s_cselect_b32 s6, {OOB}, s6")
        self("  v_mov_b32 v14, s6                ; extra")
        self("  s_lshl_b32 s6, s64, 2")
        self(f"  s_mul_i32 s6, s6, {SDSTR}")
        self("  s_lshl_b32 s56, s65, 6")
        self("  s_add_u32 s6, s6, s56")
        self(f"  s_add_u32 s68, s6, {SD_BASE + O_D3}")
        self("  s_cmp_lg_u32 s66, 0")
        self(f"  s_cselect_b32 s6, s68, {OOB}")
        self("  v_mov_b32 v15, s6                ; down")
        self("  v_cmp_gt_u32 vcc, 16, v0")
        self("  v_cndmask_b32 v14, v14, v13, vcc")
        self("  v_cmp_gt_u32 vcc, 32, v0")
        self("  v_cndmask_b32 v13, v15, v14, vcc")
        self("  v_bfe_u32 v14, v0, 2, 2")
        self(f"  v_mul_u32_u24 v14, {SDSTR}, v14")
        self("  v_add_u32 v13, v13, v14")
        self("  v_and_b32 v14, 3, v0")
        self("  v_lshl_add_u32 v13, v14, 4, v13")
        self("  buffer_store_dwordx4 v[8:11], v13, s[44:47], 0 offen sc1")
        self("  s_mov_b32 exec_hi, 0")
        self("  s_mov_b32 exec_lo, 0xff")
        self(f"  ds_write_b128 v3, v[16:19] offset:{L_MODE}")
        self("  s_mov_b64 exec, -1")
        for i in range(5):
            o = f" offset:{256 * i}" if i else ""
            self(f"  buffer_load_dword v{X[i]}, v1, s[32:35], 0 offen{o}")
        self("  s_waitcnt lgkmcnt(0)")
        self("  s_barrier            ; B0")
        self("  s_getreg_b32 s6, hwreg(HW_REG_XCC_ID, 0, 4)")
        self("  s_mul_i32 s56, s6, s6")
        self("  s_lshl_b32 s56, s56, 16")
        self("  s_lshl_b32 s6, s6, 8")
        self("  s_add_u32 s6, s6, s56")
        self("  s_add_u32 s63, s6, 1")
        self("  s_lshl_b32 s6, s4, 3")
        self("  v_mov_b32 v12, s6")
        self("  v_mov_b32 v13, s63")
        self("  v_mov_b32 v14, 0")
        self("  v_mov_b32 v15, 1")
        self("  s_waitcnt vmcnt(5)")
        self("  s_mov_b64 exec, 1")
        self("  buffer_atomic_add v13, v12, s[48:51], 0 offen sc1")
        self(f"  ds_write_b32 v14, v15 offset:{L_CLR}")
        self("  s_mov_b64 exec, -1")
        self.stamp(6)
        self("  s_waitcnt vmcnt(1)")
        self.ln(X, xs, t)
        self.xn_rows(XL, XH, t[0], n=8, base="s64", mul=64)
        self.stamp(1)
        self("  v_lshlrev_b32 v12, 3, v0")
        self("  v_mov_b32 v14, 0")
        Lp = self.lab("cntpoll")
        Lpd = self.lab("cntpolld")
        self("  s_mov_b32 s57, 0")
        if self.poll_delay:
            self(f"  s_sleep {self.poll_delay}")
        self("  s_mov_b32 exec_hi, 0")
        self(f"{Lp}:")
        self("  buffer_load_dword v60, v12, s[48:51], 0 offen sc1")
        self("  s_add_u32 s57, s57, 1")
        self(f"  s_cmp_gt_u32 s57, {SPIN_MAX}")
        self("  s_waitcnt vmcnt(0)")
        self("  v_readlane_b32 s58, v60, s4")
        self(f"  s_cbranch_scc1 {Lpd}")
        self("  s_and_b32 s6, s58, 0xff")
        self("  s_cmp_eq_u32 s6, 8")
        self(f"  s_cbranch_scc0 {Lp}")
        self(f"{Lpd}:")
        self("  s_lshl_b32 s6, s63, 3")
        self("  s_cmp_eq_u32 s58, s6")
        if self.force_slow:
            self("  s_mov_b32 s59, 1")
        else:
            self("  s_cselect_b32 s59, 2, 1")
        self("  v_mov_b32 v13, s59")
        self("  v_and_b32 v61, 0xff, v60")
        self("  v_cmp_ne_u32 vcc, 8, v61")
        self("  s_mov_b64 exec, 1")
        self(f"  ds_write_b32 v14, v13 offset:{L_MODE}")
        self("  s_mov_b64 exec, -1")
        self("  s_mov_b64 s[54:55], vcc")
        self.stamp(3)

        def all_cleared():
            La = self.lab("allcnt")
            Lad = self.lab("allcntd")
            self("  s_cmp_eq_u64 s[54:55], 0")
            self(f"  s_cbranch_scc1 {Lad}")
            self("  s_mov_b32 s57, 0")
            self("  s_mov_b32 exec_hi, 0")
            self(f"{La}:")
            self("  buffer_load_dword v60, v12, s[48:51], 0 offen sc1")
            self("  s_add_u32 s57, s57, 1")
            self(f"  s_cmp_gt_u32 s57, {SPIN_MAX}")
            self("  s_waitcnt vmcnt(0)")
            self(f"  s_cbranch_scc1 {Lad}")
            self("  v_and_b32 v61, 0xff, v60")
            self("  v_cmp_ne_u32 vcc, 8, v61")
            if self.asl:
                self(f"  s_cbranch_vccz {Lad}")
                self(f"  s_sleep {self.asl}")
                self(f"  s_branch {La}")
            else:
                self(f"  s_cbranch_vccnz {La}")
            self(f"{Lad}:")
            self("  v_mov_b32 v13, 1")
            self("  v_mov_b32 v14, 0")
            self("  s_mov_b64 exec, 1")
            self(f"  ds_write_b32 v14, v13 offset:{L_ALL}")
            self("  s_mov_b64 exec, -1")

        Lact = self.lab("ffn")
        self("  s_cmp_lg_u32 s66, 0")
        self(f"  s_cbranch_scc1 {Lact}")
        all_cleared()
        self("  s_waitcnt lgkmcnt(0)")
        self.later_tickets()
        self("  s_branch L_exit_stamped")
        self(f"{Lact}:")
        if self.bulkprio is not None:
            self(f"  s_setprio {self.bulkprio}")
        self("  s_mul_i32 s6, s64, 196608      ; 64*3072*m")
        self("  s_lshl_b32 s56, s65, 7")
        self("  s_add_u32 s6, s6, s56")
        self.srd(36, 20, "s6", 63 * 3072 + 128)
        self.srd(40, 22, "s6", 63 * 3072 + 128)
        self("  v_lshrrev_b32 v2, 3, v0")
        self("  v_and_b32 v3, 7, v0")
        self("  v_mul_u32_u24 v9, 1280, v2")
        self("  v_lshl_add_u32 v9, v3, 4, v9")
        self("  v_mul_u32_u24 v2, 3072, v2")
        self("  v_lshl_add_u32 v2, v3, 4, v2")
        WG, WU = 64, 96
        ntg = ' nt' if self.wnt & 2 else ''
        for i in range(8):
            self(f"  s_mov_b32 s6, {24576 * i}")
            self(f"  buffer_load_dwordx4 v[{WG + 4 * i}:{WG + 4 * i + 3}], v2, s[36:39], s6 offen{ntg}")
        for i in range(8):
            self(f"  s_mov_b32 s6, {24576 * i}")
            self(f"  buffer_load_dwordx4 v[{WU + 4 * i}:{WU + 4 * i + 3}], v2, s[40:43], s6 offen{ntg}")
        self("  s_mul_i32 s6, s65, 81920       ; 64*1280*j")
        self("  s_lshl_b32 s56, s64, 7")
        self("  s_add_u32 s6, s6, s56")
        self.srd(36, 24, "s6", 63 * 1280 + 128)
        GA = list(range(44, 52))
        UA = list(range(52, 60))
        self("  s_waitcnt vmcnt(8)")
        self.gemv64(WG, XL, XH, GA, 8)
        self("  s_waitcnt vmcnt(0)")
        self.stamp(2)
        self.gemv64(WU, XL, XH, UA, 8)
        WD = 64
        ntd = ' nt' if self.wnt & 4 else ''
        for n in range(8):
            self(f"  s_mov_b32 s6, {10240 * n}")
            self(f"  buffer_load_dwordx4 v[{WD + 4 * n}:{WD + 4 * n + 3}], v9, s[36:39], s6 offen{ntd}")
        self.treduce8(GA, t[1])
        self.treduce8(UA, t[2])
        self(f"  v_min_u32 v{t[1]}, -2, v{t[1]}")
        self(f"  v_min_u32 v{t[2]}, -2, v{t[2]}")
        self("  v_add_u32 v15, s67, v1")
        self(f"  buffer_store_dword v{t[1]}, v15, s[44:47], 0 offen sc1")
        self(f"  buffer_store_dword v{t[2]}, v15, s[44:47], 0 offen offset:256 sc1")
        all_cleared()
        self(f"  s_mul_i32 s6, s65, {10 * FSTR}")
        self(f"  s_add_u32 s6, s6, {FB_BASE}")
        self("  v_lshrrev_b32 v14, 5, v0")
        self(f"  v_mul_u32_u24 v14, {FSTR}, v14")
        self("  v_and_b32 v15, 31, v0")
        self("  v_lshl_add_u32 v14, v15, 4, v14")
        self("  v_add_u32 v14, s6, v14")
        self(f"  v_add_u32 v15, {6 * FSTR}, v14")
        G = 128

        def issueF():
            for u in range(5):
                a, o = (14, 2 * FSTR * u) if u < 3 else (15, 2 * FSTR * (u - 3))
                oo = f" offset:{o}" if o else ""
                self(f"  buffer_load_dwordx4 v[{G + 4 * u}:{G + 4 * u + 3}], v{a}, s[44:47], 0 offen{oo} sc1")
        if self.fsm:
            self(f"  v_mul_u32_u24 v16, {FSTR}, v0")
            self(f"  v_add_u32 v16, s6, v16")
            self("  s_mov_b64 exec, 0x3ff")
            self.poll_loop("preF", lambda: self(f"  buffer_load_dword v{G}, v16, s[44:47], 0 offen offset:508 sc1"), [G], G + 20, sleep=self.fsm)
            self("  s_mov_b64 exec, -1")
        self.poll_loop("pollF", issueF, range(G, G + 20), G + 20, sleep=4)
        self.stamp(4)
        for e in range(4):
            self(f"  v_add_f32 v{G + e}, v{G + e}, v{G + 4 + e}")
            self(f"  v_add_f32 v{G + 8 + e}, v{G + 8 + e}, v{G + 12 + e}")
        for e in range(4):
            self(f"  v_add_f32 v{G + e}, v{G + e}, v{G + 16 + e}")
        for e in range(4):
            self(f"  v_add_f32 v{G + e}, v{G + e}, v{G + 8 + e}")
        for e in range(4):
            self(f"  v_mov_b32 v{G + 4 + e}, v{G + e}")
        for e in range(4):
            self(f"  v_permlane32_swap_b32 v{G + e}, v{G + 4 + e}")
        for e in range(4):
            self(f"  v_add_f32 v{G + e}, v{G + e}, v{G + 4 + e}")
        for e in range(4):
            self(f"  v_mov_b32 v{G + 4 + e}, v{G + e}")
        for e in range(4):
            self(f"  v_permlane16_swap_b32 v{G + e}, v{G + 4 + e}")
        for e in range(4):
            self(f"  v_cvt_pk_bf16_f32 v{G + e}, v{G + e}, v{G + 4 + e}")
        for e in range(4):
            self(f"  v_lshlrev_b32 v{G + 4 + e}, 16, v{G + e}      ; gate")
            self(f"  v_and_b32 v{G + e}, 0xffff0000, v{G + e}    ; up")
        for e in range(4):
            self(f"  v_max_f32 v{G + 4 + e}, 0, v{G + 4 + e}")
        for e in range(4):
            self(f"  v_mul_f32 v{G + e}, v{G + 4 + e}, v{G + e}")
        for e in range(4):
            self(f"  v_cvt_pk_bf16_f32 v{G + e}, v{G + e}, v{G + e}    ; h")
        self("  v_and_b32 v18, 1, v0")
        self("  v_lshlrev_b32 v18, 5, v18")
        self("  v_bfe_u32 v19, v0, 1, 3")
        self("  v_add_u32 v18, v18, v19")
        self("  v_lshlrev_b32 v18, 1, v18")
        self("  s_mov_b32 exec_lo, 0xffff")
        self("  s_mov_b32 exec_hi, 0")
        for e in range(4):
            self(f"  ds_write_b16 v18, v{G + e} offset:{L_HB + 16 * e}")
        self("  s_mov_b64 exec, -1")
        self("  v_lshrrev_b32 v18, 3, v0")
        self("  v_lshlrev_b32 v18, 1, v18")
        self("  s_waitcnt lgkmcnt(0)")
        for i in range(8):
            self(f"  ds_read_u16 v{XL[i]}, v18 offset:{L_HB + 16 * i}")
        self("  v_bfe_u32 v19, v0, 1, 2")
        self(f"  v_mul_u32_u24 v19, {SDSTR}, v19")
        self("  v_and_b32 v20, 1, v0")
        self("  v_lshl_add_u32 v19, v20, 5, v19")
        self("  v_lshrrev_b32 v20, 3, v0")
        self("  v_lshl_add_u32 v19, v20, 2, v19")
        self("  v_add_u32 v19, s68, v19")
        self("  s_waitcnt lgkmcnt(0)")
        for i in range(8):
            self(f"  v_lshlrev_b32 v{XH[i]}, 16, v{XL[i]}")
        self("  s_waitcnt vmcnt(0)")
        self.gemv64(WD, XL, XH, GA, 8)
        self.treduce8(GA, t[1])
        self(f"  v_min_u32 v{t[1]}, -2, v{t[1]}")
        self(f"  buffer_store_dword v{t[1]}, v19, s[44:47], 0 offen sc1")
        self.stamp(5)
        self.later_tickets()
        self("  s_branch L_exit_stamped")

    def final_consumer(self):
        self("  v_mov_b32 v12, 0")
        self("  s_mov_b32 s55, s56")
        self.lds_spin("allc", 12, L_ALL, 13, target=None, sdst="s58", sleep=4)
        self("  s_mul_i32 s7, s5, 5")
        self("  s_add_u32 s55, s55, s7           ; cg")
        self(f"  s_mul_i32 s6, s55, {SDSTR}")
        self(f"  s_add_u32 s6, s6, {SD_BASE}")
        self("  v_lshlrev_b32 v14, 4, v0")
        self("  v_add_u32 v14, s6, v14")
        self(f"  v_add_u32 v13, {O_D3}, v14")
        self("  v_and_b32 v15, 3, v0")
        self("  v_lshlrev_b32 v15, 2, v15")
        self("  v_lshrrev_b32 v16, 5, v0")
        self("  v_lshl_add_u32 v15, v16, 1, v15")
        self("  v_bfe_u32 v16, v0, 4, 1")
        self("  v_add_u32 v15, v15, v16")
        self("  s_lshl_b32 s6, s55, 4")
        self("  v_add_u32 v15, s6, v15")
        self("  v_lshlrev_b32 v15, 1, v15")
        self("  buffer_load_ushort v17, v15, s[32:35], 0 offen")
        self.srd(40, 26, None, 1280)

        def red(base, first=True):
            for k in range(4 if first else 0):
                self(f"  v_add_f32 v{base + k}, v{base + k}, v{base + 4 + k}")
            self(f"  v_permlane32_swap_b32 v{base}, v{base + 2}")
            self(f"  v_permlane32_swap_b32 v{base + 1}, v{base + 3}")
            self(f"  v_add_f32 v{base}, v{base}, v{base + 2}")
            self(f"  v_add_f32 v{base + 1}, v{base + 1}, v{base + 3}")
            self(f"  v_permlane16_swap_b32 v{base}, v{base + 1}")
            self(f"  v_add_f32 v{base}, v{base}, v{base + 1}")
            self(f"  v_add_f32_dpp v{base}, v{base}, v{base} row_ror:4 row_mask:0xf bank_mask:0xf")
            self(f"  v_add_f32_dpp v{base}, v{base}, v{base} row_ror:8 row_mask:0xf bank_mask:0xf")

        for k in range(4):
            self(f"  v_mov_b32 v{28 + k}, 0")

        def issueD():
            self("  buffer_load_dwordx4 v[24:27], v13, s[44:47], 0 offen sc1")
            self("  s_mov_b32 exec_hi, 0")
            self("  buffer_load_dwordx4 v[28:31], v13, s[44:47], 0 offen offset:1024 sc1")
            self("  s_mov_b32 exec_hi, -1")
        if self.lated:
            self("  s_barrier            ; B2")
            self.poll_loop2("pollD", issueD, range(24, 32), 32, lambda: self("  s_barrier            ; B3"), sleep=4)
        else:
            if self.dlate:
                self.lds_spin("dl", 12, L_PROG2, 16, target=None, sdst="s58", sleep=8)
            self.poll_loop("pollD", issueD, range(24, 32), 32, sleep=self.dsl)
        red(24)
        self("  v_cvt_pk_bf16_f32 v24, v24, v24")
        self("  v_lshlrev_b32 v24, 16, v24")
        self(f"  v_mul_f32 v25, {f2h(-1.4426950408889634)}, v24")
        self("  v_exp_f32 v25, v25")
        self("  s_nop 0")
        self("  v_add_f32 v25, 1.0, v25")
        self("  v_rcp_f32 v25, v25")
        self("  s_nop 0")
        self("  v_mul_f32 v24, v24, v25")
        self("  v_cvt_pk_bf16_f32 v24, v24, v24")
        self("  v_lshlrev_b32 v18, 16, v24          ; g")
        self("  v_lshlrev_b32 v17, 16, v17          ; x")
        self.stamp(6)
        if not self.lated:
            if not self.nob2:
                self("  s_barrier            ; B2")
            self("  s_barrier            ; B3")

        def finish(first=True):
            red(24, first)
            self("  v_cvt_pk_bf16_f32 v24, v24, v24")
            self("  v_lshlrev_b32 v24, 16, v24          ; s")
            self("  v_mul_f32 v24, v24, v18")
            self("  v_cvt_pk_bf16_f32 v24, v24, v24")
            self("  v_lshlrev_b32 v24, 16, v24")
            self("  v_add_f32 v24, v17, v24")
            self("  v_cvt_pk_bf16_f32 v24, v24, v24")
            self("  s_mov_b32 exec_lo, 0x000f000f")
            self("  s_mov_b32 exec_hi, 0x000f000f")
            self("  buffer_store_short v24, v15, s[40:43], 0 offen")
            self("  s_mov_b64 exec, -1")
            self.stamp(7)
            self("  s_branch L_exit_stamped")

        Lbig = self.lab("big")
        self("  s_cmp_ge_u32 s55, 32")
        self(f"  s_cbranch_scc1 {Lbig}")

        def issueS():
            self("  buffer_load_dwordx4 v[24:27], v14, s[44:47], 0 offen sc1")
            self("  buffer_load_dwordx4 v[28:31], v14, s[44:47], 0 offen offset:1024 sc1")
        if self.pipeS:
            PS = 48

            def issueSk(k):
                b = PS + 8 * k
                self(f"  buffer_load_dwordx4 v[{b}:{b + 3}], v14, s[44:47], 0 offen sc1")
                self(f"  buffer_load_dwordx4 v[{b + 4}:{b + 7}], v14, s[44:47], 0 offen offset:1024 sc1")

            def doneS(k):
                self.stamp(8)
                b = PS + 8 * k
                for j in range(4):
                    self(f"  v_add_f32 v{24 + j}, v{b + j}, v{b + 4 + j}")
            self.poll_pipe("pollS", self.pipeS, 2, issueSk, lambda k: range(PS + 8 * k, PS + 8 * k + 8), 32, doneS)
            finish(False)
        else:
            self.poll_loop("pollS", issueS, range(24, 32), 32)
            self.stamp(8)
            finish()
        self(f"{Lbig}:")
        self("  v_add_u32 v13, 4096, v14")

        def issueS6():
            for k in range(4):
                o = f" offset:{1024 * k}" if k else ""
                self(f"  buffer_load_dwordx4 v[{24 + 4 * k}:{27 + 4 * k}], v14, s[44:47], 0 offen{o} sc1")
            self("  buffer_load_dwordx4 v[40:43], v13, s[44:47], 0 offen sc1")
            self("  buffer_load_dwordx4 v[44:47], v13, s[44:47], 0 offen offset:1024 sc1")
        if self.pipeS:
            PS = 48
            cfg = (self.pipeS[0], self.pipeS[1], max(self.pipeS[2] - 1, 0))

            def issueS6k(k):
                b = PS + 24 * k
                for j in range(4):
                    o = f" offset:{1024 * j}" if j else ""
                    self(f"  buffer_load_dwordx4 v[{b + 4 * j}:{b + 3 + 4 * j}], v14, s[44:47], 0 offen{o} sc1")
                self(f"  buffer_load_dwordx4 v[{b + 16}:{b + 19}], v13, s[44:47], 0 offen sc1")
                self(f"  buffer_load_dwordx4 v[{b + 20}:{b + 23}], v13, s[44:47], 0 offen offset:1024 sc1")

            def doneS6(k):
                self.stamp(8)
                b = PS + 24 * k
                for j in range(8):
                    self(f"  v_add_f32 v{24 + j}, v{b + j}, v{b + 8 + j}")
                for j in range(8):
                    self(f"  v_add_f32 v{24 + j}, v{24 + j}, v{b + 16 + j}")
            self.poll_pipe("pollS6", cfg, 6, issueS6k, lambda k: range(PS + 24 * k, PS + 24 * k + 24), 32, doneS6)
        else:
            self.poll_loop("pollS6", issueS6, range(24, 48), 48)
            self.stamp(8)
            for k in range(8):
                self(f"  v_add_f32 v{24 + k}, v{24 + k}, v{32 + k}")
            for k in range(8):
                self(f"  v_add_f32 v{24 + k}, v{24 + k}, v{40 + k}")
        finish()

    def epilogue(self):
        self("L_exit_stamped:")
        if self.stamps:
            if not self.prog:
                self("  s_waitcnt vmcnt(0) lgkmcnt(0)")
                self("  s_memrealtime s[92:93]")
            self.srd(44, 30, None, WS_SIZE)
            self.stamps_out()
        self("L_end:")
        self("  s_endpgm")
        self(f""".section .rodata,"a"
.p2align 6
.amdhsa_kernel {KNAME}
  .amdhsa_next_free_vgpr 168
  .amdhsa_next_free_sgpr 102
  .amdhsa_accum_offset 168
  .amdhsa_group_segment_fixed_size 0
  .amdhsa_kernarg_size 96
  .amdhsa_user_sgpr_count 2
  .amdhsa_user_sgpr_kernarg_segment_ptr 1
  .amdhsa_system_sgpr_workgroup_id_x 1
.end_amdhsa_kernel""")

    def build(self):
        self.prologue()
        self.stream()
        self.helper()
        self.epilogue()
        return fix("\n".join(self.lines) + "\n", verbose=True)


if __name__ == "__main__":
    import argparse
    ap = argparse.ArgumentParser()
    ap.add_argument("-o", default="k.s")
    ap.add_argument("--D", type=int, default=5)
    ap.add_argument("--E", type=int, default=5)
    ap.add_argument("--SB", type=int, default=19)
    ap.add_argument("--stamps", action="store_true")
    ap.add_argument("--slow", action="store_true")
    ap.add_argument("--b0post", action="store_true")
    ap.add_argument("--prio", type=int, default=3)
    ap.add_argument("--dbgst", action="store_true")
    ap.add_argument("--fine", action="store_true")
    ap.add_argument("--ds", default="", help="D schedule: slot:D,slot:D")
    ap.add_argument("--qkn", type=int, default=2)
    ap.add_argument("--wot", type=int, default=0)
    ap.add_argument("--npoll", type=int, default=2)
    ap.add_argument("--bp", type=int, default=None)
    ap.add_argument("--ilv", action="store_true")
    ap.add_argument("--prog", default="")
    ap.add_argument("--latepub", action="store_true")
    ap.add_argument("--pdelay", type=int, default=0)
    ap.add_argument("--adapt", default="", help="lo:hi slots with optional tighter throttle")
    ap.add_argument("--nocnt", type=int, default=0, help="diagnosis only: 1 = no atomic, no polls; 2 = atomic but no polls")
    ap.add_argument("--pgap", type=int, default=8)
    ap.add_argument("--hwid", action="store_true")
    ap.add_argument("--map2", action="store_true")
    ap.add_argument("--kvm", default="", help="c_stride:wave_stride:block_stride (bytes) of the key assignment (needs --ilv)")
    ap.add_argument("--b0late", type=int, default=0)
    ap.add_argument("--hrot", type=int, default=0)
    ap.add_argument("--lated", action="store_true", help="down partials read after B2")
    ap.add_argument("--gwait", default="", help="Y:X:Mh[:sleep] slot X waits until Mh heads have issued slot Y")
    ap.add_argument("--fsm", type=int, default=0, help="small pre-poll of the FFN boxes (sleep value)")
    ap.add_argument("--dlate", type=int, default=0, help="down partials polled once the first stream wave issued this slot")
    ap.add_argument("--dsl", type=int, default=8)
    ap.add_argument("--lsl", type=int, default=1)
    ap.add_argument("--asl", type=int, default=0)
    ap.add_argument("--fwait", type=int, default=0, help="stream waves wait for the head's LSE exchange before this slot")
    ap.add_argument("--wop", type=int, default=0, help="progressive wo landing flags (1: with sleep, 2: no sleep)")
    ap.add_argument("--wol", default="", help="X:N:T wo cells requested once N stream waves issued slot X (throttle T)")
    ap.add_argument("--rshard", type=int, default=0, help="0: tickets among h&3 (64), 1: among id&7 (32)")
    ap.add_argument("--ck", default="", help="slot=ub:n1:d,...;slot=... later checkpoints")
    ap.add_argument("--rank", default="", help="lo:hi rank-adaptive depth (slots)")
    ap.add_argument("--rankp", default="", help="ub:n1:d,... policy per arrival rank")
    ap.add_argument("--pipeS", default="", help="N:gap:gap2 pipelined S3 poll")
    ap.add_argument("--pipeA", default="", help="N:gap:gap2 pipelined O gather poll")
    ap.add_argument("--adaptbit", type=int, default=0)
    ap.add_argument("--kvnt", type=int, default=3, help="nt hint bits: 1 K, 2 V")
    ap.add_argument("--wnt", type=int, default=7, help="nt hint bits: 1 wo, 2 gate/up, 4 down")
    ap.add_argument("--touch", type=int, default=0, help="1: V, 2: wo, 4: FFN weights early page touch")
    ap.add_argument("--rot", default="", help="a:b:w block rotation = h*a + c*b + wave*w")
    a = ap.parse_args()
    g = G(D=a.D, E=a.E, SB=a.SB, stamps=a.stamps, force_slow=a.slow, b0pre=not a.b0post, prio=a.prio, dbgst=a.dbgst, fine=a.fine,
          dsched=[tuple(int(v) for v in p.split(':')) for p in a.ds.split(',') if p], qk_per_slot=a.qkn, wo_throttle=a.wot, npoll=a.npoll, poll_gap=a.pgap, bulkprio=a.bp, ilv=a.ilv, prog=[int(v) for v in a.prog.split(',') if v], early_pub=not a.latepub, poll_delay=a.pdelay, nocnt=a.nocnt, adapt=tuple(int(v) for v in a.adapt.split(':')) if a.adapt else None, hwid=a.hwid, map2=a.map2, kvm=tuple(int(v) for v in a.kvm.split(':')) if a.kvm else None, b0late=a.b0late, hrot=a.hrot, lated=a.lated, wop=a.wop, fwait=a.fwait, fsm=a.fsm, dlate=a.dlate, dsl=a.dsl, lsl=a.lsl, asl=a.asl, gwait=tuple(int(v) for v in a.gwait.split(':')) if a.gwait else None, wol=tuple(int(v) for v in a.wol.split(':')) if a.wol else None, rshard=a.rshard, ckp=[(int(c.split('=')[0]), [tuple(int(v) for v in p.split(':')) for p in c.split('=')[1].split(',')]) for c in a.ck.split(';') if c], rankp=[tuple(int(v) for v in p.split(':')) for p in a.rankp.split(',') if p], rank=tuple(int(v) for v in a.rank.split(':')) if a.rank else None, pipeS=tuple(int(v) for v in a.pipeS.split(':')) if a.pipeS else None, pipeA=tuple(int(v) for v in a.pipeA.split(':')) if a.pipeA else None, adaptbit=a.adaptbit, kvnt=a.kvnt, wnt=a.wnt, touch=a.touch, rot=tuple(int(v) for v in a.rot.split(':')) if a.rot else None)
    open(a.o, "w").write(g.build())
```

```python
import sys, struct
sys.path.insert(0, "dev")
from hz import fix

KNAME = "recurrent_scan__sliding_block_cached__glu_gated_reglu__decode_kernel"


def f2h(x):
    return "0x%08x" % struct.unpack("<I", struct.pack("<f", x))[0]


LOG2E = f2h(1.4426950408889634)
SCALE = f2h(192 ** -0.5)
INV640 = f2h(1.0 / 640)
EPS = f2h(1e-5)

BOX = 1280
GBOX = 8 * BOX
O_H1 = 0
O_O2 = 768
O_LSE = 1152
FB_BASE = 327680
FSTR = 768
SD_BASE = 524288
SDSTR = 8448
O_D3 = 6144
OOB = 0x70000000
STAMP_BASE = 1 << 20
WS_SIZE = 2 << 20

L_Q = 0
L_MODE = 384
L_CNT = 388
L_QF = 392
L_CLR = 396
L_M = 400
L_L = 432
L_XN = 1280
L_HB = 2560
L_ALL = 464
L_RANK = 468
L_PROG = 472
L_WOK = 476
L_FRDY = 484
L_PROG2 = 488
L_GO = 492
L_PROG3 = 496
L_XGO = 500
XC_BASE = 1040384
L_PARTS = 480
L_WO = 4096
L_WO2 = L_WO + 192 * 128
L_PART = L_WO2 + 64 * 128
L_A = L_PART + 8 * 768
LDS_BYTES = L_A + 8 * 400

SPIN_MAX = 30000


class G:
    def __init__(self, D=5, E=5, SB=19, stamps=False, force_slow=False, wo_slot=32, b0pre=True, prio=3, dbgst=False, fine=False, dsched=(), qk_per_slot=2, wo_throttle=0, npoll=2, poll_gap=8, bulkprio=None, ilv=False, prog=(), early_pub=True, poll_delay=0, nocnt=0, adapt=None, hwid=False, map2=False, rot=None, touch=0, wnt=7, kvnt=3, b0late=0, kvm=None, hrot=0, adaptbit=0, pipeS=None, pipeA=None, rank=None, rankp=None, ckp=(), rshard=0, lated=False, wol=None, wop=0, fwait=0, gwait=None, fsm=0, dlate=0, dsl=8, lsl=1, asl=0, dupS=1, xw=None, lmode=None, own1=None, h3early=0, pclr=None):
        self.pclr = pclr
        self.h3early = h3early
        self.own1 = own1
        self.lmode = lmode
        self.xw = xw
        self.dupS = dupS
        self.kvm = kvm or ((196608, 1536, 12288) if ilv else (196608, 24576, 1536))
        self.b0late = b0late
        self.hrot = hrot
        self.rank = rank
        self.lated = lated
        self.wol = wol
        self.wop = wop
        self.fwait = fwait
        self.gwait = gwait
        self.fsm = fsm
        self.lsl = lsl
        self.asl = asl
        self.dlate = dlate
        self.dsl = dsl
        self.nob2 = bool(wol and len(wol) > 3 and wol[3])
        self.rshard = rshard
        self.ckp = list(ckp)
        self.rankp = rankp
        self.pipeS = pipeS
        self.pipeA = pipeA
        self.adaptbit = adaptbit
        self.kvnt = kvnt
        self.wnt = wnt
        self.touch = touch
        self.map2 = map2
        self.rot = rot
        self.hwid = hwid
        self.adapt = adapt
        self.nocnt = nocnt
        self.early_pub = early_pub
        self.poll_delay = poll_delay
        self.prog = list(prog)
        self.ilv = ilv
        self.bulkprio = bulkprio
        self.wo_throttle = wo_throttle
        self.npoll = npoll
        self.poll_gap = poll_gap
        self.dsched = list(dsched)
        self.qk_per_slot = qk_per_slot
        self.dbgst = dbgst
        self.fine = fine
        self.in_stream = False
        self.prio = prio
        self.b0pre = b0pre
        self.D, self.E, self.SB = D, E, SB
        self.stamps = stamps
        self.force_slow = force_slow
        self.wo_slot = wo_slot
        self.lines = []
        self.uid = 0
        self.vm = []

    def Dof(self, i):
        for (slot, d) in reversed(self.dsched):
            if i >= slot:
                return d
        return self.D

    def __call__(self, s=""):
        for l in s.split("\n"):
            self.lines.append(l)

    def lab(self, base):
        self.uid += 1
        return f"L_{base}_{self.uid}"

    def vm_reset(self):
        self.vm = []

    def vm_issue(self, tag):
        self.vm.append(tag)

    def vm_wait(self, tag):
        idx = [i for i, t in enumerate(self.vm) if t == tag]
        if not idx:
            return
        last = idx[-1]
        n = len(self.vm) - 1 - last
        assert n <= 63
        self(f"  s_waitcnt vmcnt({n})")
        self.vm = self.vm[last + 1:]

    def stamp(self, i):
        if self.prog and self.in_stream and i != 0:
            return
        if self.stamps and not (self.fine and self.in_stream and i in (1, 2, 3, 5, 6, 7)):
            self(f"  s_memrealtime s[{70 + 2 * i}:{71 + 2 * i}]")

    def fstamp(self, i, clk=False):
        if self.stamps and self.fine:
            op = "s_memtime" if clk else "s_memrealtime"
            self(f"  {op} s[{70 + 2 * i}:{71 + 2 * i}]")

    def stamps_out(self):
        if not self.stamps:
            return
        self("  s_waitcnt lgkmcnt(0) vmcnt(0)")
        self("  s_mul_i32 s6, s2, 12")
        self("  s_add_u32 s6, s6, s3")
        self("  s_lshl_b32 s6, s6, 6")
        self(f"  s_add_u32 s6, s6, {STAMP_BASE}")
        self("  v_mov_b32 v2, s6")
        for i in range(12):
            self(f"  v_mov_b32 v{4 + i}, s{70 + 2 * i}")
        self("  s_mov_b64 exec, 1")
        self("  buffer_store_dwordx4 v[4:7], v2, s[44:47], 0 offen")
        self("  buffer_store_dwordx4 v[8:11], v2, s[44:47], 0 offen offset:16")
        self("  buffer_store_dwordx4 v[12:15], v2, s[44:47], 0 offen offset:32")
        if self.dbgst:
            self("  s_load_dwordx2 s[6:7], s[0:1], 80")
            self("  s_waitcnt lgkmcnt(0)")
            self.srd(48, 6, None, 256)
            for (wg, wv, lst) in ((0, 0, ((0, 1), (2, 3), (4, 5))), (8, 9, ((0, 7), (6, 9), (7, 11))), (255, 0, ((0, 13), (4, 15)))):
                Ls = self.lab("dbgskip")
                self(f"  s_cmp_eq_u32 s2, {wg}")
                self(f"  s_cbranch_scc0 {Ls}")
                self(f"  s_cmp_eq_u32 s3, {wv}")
                self(f"  s_cbranch_scc0 {Ls}")
                for (st, dw) in lst:
                    self(f"  v_mov_b32 v2, {4 * dw}")
                    self(f"  buffer_store_dword v{4 + st}, v2, s[48:51], 0 offen")
                self(f"{Ls}:")
        self("  s_mov_b64 exec, -1")

    def srd(self, s, base_lo, off, nrec):
        if off is None:
            self(f"  s_mov_b32 s{s}, s{base_lo}")
            self(f"  s_mov_b32 s{s + 1}, s{base_lo + 1}")
        else:
            self(f"  s_add_u32 s{s}, s{base_lo}, {off}")
            self(f"  s_addc_u32 s{s + 1}, s{base_lo + 1}, 0")
        self(f"  s_mov_b32 s{s + 2}, {nrec}")
        self(f"  s_mov_b32 s{s + 3}, 0x20000")

    def allreduce(self, op, v, t):
        for r in (1, 2, 4, 8):
            self(f"  {op}_dpp v{v}, v{v}, v{v} row_ror:{r} row_mask:0xf bank_mask:0xf")
        self(f"  v_mov_b32 v{t}, v{v}")
        self(f"  v_permlane16_swap_b32 v{v}, v{t}")
        self(f"  {op} v{v}, v{v}, v{t}")
        self(f"  v_mov_b32 v{t}, v{v}")
        self(f"  v_permlane32_swap_b32 v{v}, v{t}")
        self(f"  {op} v{v}, v{v}, v{t}")

    def cross_rows(self, op, v, t):
        self(f"  v_mov_b32 v{t}, v{v}")
        self(f"  v_permlane16_swap_b32 v{v}, v{t}")
        self(f"  {op} v{v}, v{v}, v{t}")
        self(f"  v_mov_b32 v{t}, v{v}")
        self(f"  v_permlane32_swap_b32 v{v}, v{t}")
        self(f"  {op} v{v}, v{v}, v{t}")

    def treduce8(self, A, T):
        for a in range(4):
            self(f"  v_permlane32_swap_b32 v{A[a]}, v{A[a + 4]}")
        for a in range(4):
            self(f"  v_add_f32 v{A[a]}, v{A[a]}, v{A[a + 4]}")
        for a in range(2):
            self(f"  v_permlane16_swap_b32 v{A[a]}, v{A[a + 2]}")
        for a in range(2):
            self(f"  v_add_f32 v{A[a]}, v{A[a]}, v{A[a + 2]}")
        self(f"  v_add_f32_dpp v{T}, v{A[0]}, v{A[0]} row_ror:8 row_mask:0xf bank_mask:0x3")
        self(f"  v_add_f32_dpp v{T}, v{A[1]}, v{A[1]} row_ror:8 row_mask:0xf bank_mask:0xc")

    def treduce4rows(self, A, out_pairs=None):
        n = len(A) // 4
        for k in range(n):
            a = A[4 * k:4 * k + 4]
            self(f"  v_permlane32_swap_b32 v{a[0]}, v{a[2]}")
            self(f"  v_permlane32_swap_b32 v{a[1]}, v{a[3]}")
        for k in range(n):
            a = A[4 * k:4 * k + 4]
            self(f"  v_add_f32 v{a[0]}, v{a[0]}, v{a[2]}")
            self(f"  v_add_f32 v{a[1]}, v{a[1]}, v{a[3]}")
        for k in range(n):
            a = A[4 * k:4 * k + 4]
            self(f"  v_permlane16_swap_b32 v{a[0]}, v{a[1]}")
        for k in range(n):
            a = A[4 * k:4 * k + 4]
            self(f"  v_add_f32 v{a[0]}, v{a[0]}, v{a[1]}")
        return [A[4 * k] for k in range(n)]

    def sentinel_check(self, regs, t):
        regs = list(regs)
        if len(regs) == 1:
            self(f"  v_cmp_eq_u32 vcc, -1, v{regs[0]}")
            return
        if len(regs) == 2:
            self(f"  v_max_u32 v{t}, v{regs[0]}, v{regs[1]}")
            regs = []
        else:
            self(f"  v_max3_u32 v{t}, v{regs[0]}, v{regs[1]}, v{regs[2]}")
            regs = regs[3:]
        while regs:
            if len(regs) >= 2:
                self(f"  v_max3_u32 v{t}, v{t}, v{regs[0]}, v{regs[1]}")
                regs = regs[2:]
            else:
                self(f"  v_max_u32 v{t}, v{t}, v{regs[0]}")
                regs = regs[1:]
        self(f"  v_cmp_eq_u32 vcc, -1, v{t}")

    def poll_loop(self, name, issue, regs, t, sleep=0):
        L = self.lab(name)
        Ld = self.lab(name + "d")
        self("  s_mov_b32 s57, 0")
        self(f"{L}:")
        issue()
        self("  s_waitcnt vmcnt(0)")
        self.sentinel_check(regs, t)
        self("  s_add_u32 s57, s57, 1")
        self(f"  s_cmp_gt_u32 s57, {SPIN_MAX}")
        self(f"  s_cbranch_scc1 {Ld}")
        if sleep:
            self(f"  s_cbranch_vccz {Ld}")
            self(f"  s_sleep {sleep}")
            self(f"  s_branch {L}")
        else:
            self(f"  s_cbranch_vccnz {L}")
        self(f"{Ld}:")

    def poll_loop2(self, name, issue, regs, t, between, sleep=0):
        L = self.lab(name)
        Ld = self.lab(name + "d")
        self("  s_mov_b32 s57, 0")
        issue()
        between()
        self(f"{L}:")
        self("  s_waitcnt vmcnt(0)")
        self.sentinel_check(regs, t)
        self("  s_add_u32 s57, s57, 1")
        self(f"  s_cmp_gt_u32 s57, {SPIN_MAX}")
        self(f"  s_cbranch_scc1 {Ld}")
        self(f"  s_cbranch_vccz {Ld}")
        if sleep:
            self(f"  s_sleep {sleep}")
        issue()
        self(f"  s_branch {L}")
        self(f"{Ld}:")

    def poll_pipe(self, name, cfg, nl, issue, regs, t, done):
        N, gap, gap2 = cfg
        L = self.lab(name)
        Lj = self.lab(name + "j")
        Ls = [self.lab(name + f"d{k}") for k in range(N)]
        self("  s_mov_b32 s57, 0")
        for k in range(N):
            issue(k)
            if gap and k < N - 1:
                self(f"  s_sleep {gap}")
        self(f"{L}:")
        for k in range(N):
            self(f"  s_waitcnt vmcnt({(N - 1) * nl})")
            self.sentinel_check(regs(k), t)
            self(f"  s_cbranch_vccz {Ls[k]}")
            issue(k)
            if gap2:
                self(f"  s_sleep {gap2}")
        self("  s_add_u32 s57, s57, 1")
        self(f"  s_cmp_gt_u32 s57, {SPIN_MAX // N}")
        self(f"  s_cbranch_scc0 {L}")
        for k in range(N):
            self(f"{Ls[k]}:")
            done(k)
            if k < N - 1:
                self(f"  s_branch {Lj}")
        self(f"{Lj}:")

    def lds_spin(self, name, addr_v, off, t, target=None, sdst="s58", sleep=1):
        L = self.lab(name)
        Ld = self.lab(name + "d")
        self("  s_mov_b32 s57, 0")
        self(f"{L}:")
        self(f"  ds_read_b32 v{t}, v{addr_v} offset:{off}")
        self("  s_waitcnt lgkmcnt(0)")
        self(f"  v_readfirstlane_b32 {sdst}, v{t}")
        self("  s_add_u32 s57, s57, 1")
        self(f"  s_cmp_gt_u32 s57, {SPIN_MAX * 8}")
        self(f"  s_cbranch_scc1 {Ld}")
        if target is None:
            self(f"  s_cmp_lg_u32 {sdst}, 0")
        else:
            self(f"  s_cmp_eq_u32 {sdst}, {target}")
        self(f"  s_cbranch_scc1 {Ld}")
        if sleep:
            self(f"  s_sleep {sleep}")
        self(f"  s_branch {L}")
        self(f"{Ld}:")

    def mode_store(self, instr):
        Lf = self.lab("fast")
        Lj = self.lab("join")
        self("  s_cmp_eq_u32 s59, 2")
        self(f"  s_cbranch_scc1 {Lf}")
        for i in instr:
            self(f"  {i} sc1")
        self(f"  s_branch {Lj}")
        self(f"{Lf}:")
        for i in instr:
            self(f"  {i}")
        self(f"{Lj}:")

    def prologue(self):
        self(f"""; Fused decode step: LN -> q -> sliding-window attention (split over 8 WGs per head) -> wo,
; @launch grid=(256,1,1) block=(768,1,1) lds={LDS_BYTES}
.amdgcn_target "amdgcn-amd-amdhsa--gfx950"
.text
.globl {KNAME}
.p2align 8
.type {KNAME},@function
{KNAME}:
  s_cmp_ge_u32 s2, 256
  s_cbranch_scc1 L_end""")
        self.stamp(0)
        if self.hwid:
            self("  s_getreg_b32 s88, hwreg(HW_REG_HW_ID)")
            self("  s_getreg_b32 s90, hwreg(HW_REG_XCC_ID)")
        self(f"""  s_load_dwordx16 s[8:23], s[0:1], 0
  s_load_dwordx8 s[24:31], s[0:1], 64
  v_readfirstlane_b32 s3, v0
  v_and_b32 v0, 63, v0
  s_lshr_b32 s3, s3, 6
  s_add_u32 s4, s2, {self.hrot}
  s_and_b32 s4, s4, 7
  s_lshl_b32 s4, s4, 2""" if self.hrot else f"""  s_load_dwordx16 s[8:23], s[0:1], 0
  s_load_dwordx8 s[24:31], s[0:1], 64
  v_readfirstlane_b32 s3, v0
  v_and_b32 v0, 63, v0
  s_lshr_b32 s3, s3, 6
  s_and_b32 s4, s2, 7
  s_lshl_b32 s4, s4, 2""")
        if self.map2:
            self("""  s_lshr_b32 s5, s2, 6
  s_add_u32 s4, s4, s5          ; h
  s_lshr_b32 s5, s2, 3
  s_and_b32 s5, s5, 7           ; c""")
        else:
            self("""  s_lshr_b32 s5, s2, 3
  s_and_b32 s5, s5, 3
  s_add_u32 s4, s4, s5          ; h
  s_lshr_b32 s5, s2, 5          ; c""")
        self("""  s_cmp_ge_u32 s3, 8
  s_cbranch_scc1 L_helper""")

    def stream(self):
        self.in_stream = True
        D, E, SB = self.D, self.E, self.SB
        Q = list(range(4, 10))
        A = list(range(10, 22))
        P = list(range(22, 26))
        T = [26, 27]
        U = list(range(28, 32))
        PL = list(range(32, 36))
        PH = list(range(36, 40))
        t0, t1 = 40, 41
        RING = 42
        nbuf = 16 + E

        def kbuf(b):
            return RING + 6 * b

        def vbuf(j):
            return RING + 6 * (16 + j) if j < E else RING + 6 * (j - E)

        self(f"""  ; ---------------- stream waves ----------------
  s_mul_i32 s6, s4, 12582912
  s_mul_i32 s7, s5, {self.kvm[0]}
  s_add_u32 s6, s6, s7
  s_add_u32 s6, s6, {28672 * 384}
  s_mul_i32 s7, s3, {self.kvm[1]}
  v_lshrrev_b32 v3, 4, v0
  v_and_b32 v2, 15, v0
  v_mul_u32_u24 v3, 384, v3
  v_add_u32 v3, s7, v3
  v_lshl_add_u32 v1, v2, 4, v3      ; x4 offset
  v_lshl_add_u32 v2, v2, 3, v3
  v_add_u32 v2, 256, v2             ; x2 offset""")
        for k in range(1, 6):
            self(f"  s_mov_b32 s{59 + k}, {4608 * k}")
        if self.rot:
            self(f"  s_mul_i32 s66, s4, {self.rot[0]}")
            self(f"  s_mul_i32 s7, s5, {self.rot[1]}")
            self("  s_add_u32 s66, s66, s7")
            self(f"  s_mul_i32 s7, s3, {self.rot[2]}")
            self("  s_add_u32 s66, s66, s7")
        if self.adapt:
            self(f"  s_lshr_b32 s65, s2, {self.adaptbit}")
            self("  s_and_b32 s65, s65, 1")
        if self.rank:
            self("  s_mov_b32 s67, 0")
            self("  s_mov_b32 s66, 0")
        self("  s_waitcnt lgkmcnt(0)")
        nrec = 1572864 - 7 * self.kvm[0]
        self.srd(32, 10, "s6", nrec)
        self.srd(36, 12, "s6", nrec)
        if self.h3early == 2:
            self("  s_barrier")
        self.vm_reset()

        def issue(i):
            t, b = (0, i) if i < 16 else (1, i - 16)
            srd = "s[32:35]" if t == 0 else "s[36:39]"
            r = kbuf(b) if t == 0 else vbuf(b)
            so = "0" if b < 3 else f"s{59 + b // 3}"
            imm = 1536 * (b % 3)
            if self.ilv:
                imm = 0
                so = "0" if b == 0 else "s60"
                if self.rot:
                    so = "s60"
                    self(f"  s_add_u32 s60, s66, {b}")
                    self("  s_and_b32 s60, s60, 15")
                    self(f"  s_mul_i32 s60, s60, {self.kvm[2]}")
                elif b:
                    self(f"  s_mov_b32 s60, {self.kvm[2] * b}")
            o = f" offset:{imm}" if imm else ""
            nt = " nt" if self.kvnt & (1 << t) else ""
            self(f"  buffer_load_dwordx4 v[{r}:{r + 3}], v1, {srd}, {so} offen{o}{nt}")
            self(f"  buffer_load_dwordx2 v[{r + 4}:{r + 5}], v2, {srd}, {so} offen{o}{nt}")
            self.vm_issue(("L", i))
            self.vm_issue(("L", i))

        def qk_group(g):
            bs = [kbuf(4 * g + k) for k in range(4)]
            for i in range(6):
                for k in range(4):
                    c = "0" if i == 0 else f"v{P[k]}"
                    self(f"  v_dot2_f32_bf16 v{P[k]}, v{bs[k] + i}, v{Q[i]}, {c}")
            self(f"  v_add_f32_dpp v{T[0]}, v{P[0]}, v{P[0]} row_ror:8 row_mask:0xf bank_mask:0x3")
            self(f"  v_add_f32_dpp v{T[1]}, v{P[1]}, v{P[1]} row_ror:8 row_mask:0xf bank_mask:0x3")
            self(f"  v_add_f32_dpp v{T[0]}, v{P[2]}, v{P[2]} row_ror:8 row_mask:0xf bank_mask:0xc")
            self(f"  v_add_f32_dpp v{T[1]}, v{P[3]}, v{P[3]} row_ror:8 row_mask:0xf bank_mask:0xc")
            self(f"  v_add_f32_dpp v{U[g]}, v{T[0]}, v{T[0]} row_shl:4 row_mask:0xf bank_mask:0x5")
            self(f"  v_add_f32_dpp v{U[g]}, v{T[1]}, v{T[1]} row_shr:4 row_mask:0xf bank_mask:0xa")
            self(f"  v_add_f32_dpp v{U[g]}, v{U[g]}, v{U[g]} quad_perm:[1,0,3,2] row_mask:0xf bank_mask:0xf")
            self(f"  v_add_f32_dpp v{U[g]}, v{U[g]}, v{U[g]} quad_perm:[2,3,0,1] row_mask:0xf bank_mask:0xf")

        def softmax():
            self(f"  v_cvt_pk_bf16_f32 v{P[0]}, v{U[0]}, v{U[1]}")
            self(f"  v_cvt_pk_bf16_f32 v{P[1]}, v{U[2]}, v{U[3]}")
            self(f"  v_lshlrev_b32 v{U[0]}, 16, v{P[0]}")
            self(f"  v_and_b32 v{U[1]}, 0xffff0000, v{P[0]}")
            self(f"  v_lshlrev_b32 v{U[2]}, 16, v{P[1]}")
            self(f"  v_and_b32 v{U[3]}, 0xffff0000, v{P[1]}")
            for g in range(4):
                self(f"  v_mul_f32 v{U[g]}, {SCALE}, v{U[g]}")
            self(f"  v_cvt_pk_bf16_f32 v{P[0]}, v{U[0]}, v{U[1]}")
            self(f"  v_cvt_pk_bf16_f32 v{P[1]}, v{U[2]}, v{U[3]}")
            self(f"  v_lshlrev_b32 v{U[0]}, 16, v{P[0]}")
            self(f"  v_and_b32 v{U[1]}, 0xffff0000, v{P[0]}")
            self(f"  v_lshlrev_b32 v{U[2]}, 16, v{P[1]}")
            self(f"  v_and_b32 v{U[3]}, 0xffff0000, v{P[1]}")
            self(f"  v_max3_f32 v{t0}, v{U[0]}, v{U[1]}, v{U[2]}")
            self(f"  v_max_f32 v{t0}, v{t0}, v{U[3]}")
            self(f"  v_max_f32_dpp v{t0}, v{t0}, v{t0} row_ror:4 row_mask:0xf bank_mask:0xf")
            self(f"  v_max_f32_dpp v{t0}, v{t0}, v{t0} row_ror:8 row_mask:0xf bank_mask:0xf")
            self.cross_rows("v_max_f32", t0, t1)
            for g in range(4):
                self(f"  v_sub_f32 v{U[g]}, v{U[g]}, v{t0}")
            for g in range(4):
                self(f"  v_mul_f32 v{U[g]}, {LOG2E}, v{U[g]}")
            for g in range(4):
                self(f"  v_exp_f32 v{U[g]}, v{U[g]}")
            self("  s_nop 0")
            for g in range(4):
                self(f"  v_cvt_pk_bf16_f32 v{PL[g]}, v{U[g]}, 0")
                self(f"  v_cvt_pk_bf16_f32 v{PH[g]}, 0, v{U[g]}")
            self(f"  v_add_f32 v{T[0]}, v{U[0]}, v{U[1]}")
            self(f"  v_add_f32 v{T[1]}, v{U[2]}, v{U[3]}")
            self(f"  v_add_f32 v{T[0]}, v{T[0]}, v{T[1]}")
            self(f"  v_add_f32_dpp v{T[0]}, v{T[0]}, v{T[0]} row_ror:4 row_mask:0xf bank_mask:0xf")
            self(f"  v_add_f32_dpp v{T[0]}, v{T[0]}, v{T[0]} row_ror:8 row_mask:0xf bank_mask:0xf")
            self.cross_rows("v_add_f32", T[0], t1)
            self(f"  s_lshl_b32 s6, s3, 2")
            self(f"  v_mov_b32 v{t1}, s6")
            self(f"  v_mov_b32 v{T[1]}, 1")
            self(f"  v_mov_b32 v{P[0]}, 0")
            self("  s_mov_b64 exec, 1")
            self(f"  ds_write_b32 v{t1}, v{t0} offset:{L_M}")
            self(f"  ds_write_b32 v{t1}, v{T[0]} offset:{L_L}")
            self("  s_waitcnt lgkmcnt(0)")
            self(f"  ds_add_u32 v{P[0]}, v{T[1]} offset:{L_CNT}")
            self("  s_mov_b64 exec, -1")
            for a in A:
                self(f"  v_mov_b32 v{a}, 0")

        def pv(j):
            g, k = j // 4, j % 4
            r = vbuf(j)
            for i in range(6):
                self(f"  v_dot2c_f32_bf16_dpp v{A[2 * i]}, v{PL[g]}, v{r + i} row_newbcast:{4 * k} row_mask:0xf bank_mask:0xf")
                self(f"  v_dot2c_f32_bf16_dpp v{A[2 * i + 1]}, v{PH[g]}, v{r + i} row_newbcast:{4 * k} row_mask:0xf bank_mask:0xf")

        qk_next = 0
        sm_done = False
        pv_next = 0
        landed = -1
        MO, FF, PA0, PA1 = 4, 5, 6, 7

        if self.touch & 9:
            self(f"  s_mul_i32 s7, s3, 196608")
            self(f"  v_mov_b32 v{t1}, s7")
            self("  s_mov_b64 exec, 1")
            if self.touch & 1:
                self(f"  buffer_load_dword v{t0}, v{t1}, s[36:39], 0 offen")
                self.vm_issue(("T", 0))
            if self.touch & 8:
                self(f"  buffer_load_dword v{T[0]}, v{t1}, s[32:35], 0 offen")
                self.vm_issue(("T", 1))
            self("  s_mov_b64 exec, -1")
        if not self.b0late:
            self("  s_barrier            ; B0")
        for i in range(32):
            Di = self.Dof(i)
            rk = self.rank and self.rank[0] <= i < self.rank[1]
            if rk:
                self("  v_mov_b32 v3, 0")
                self(f"  ds_read_b32 v3, v3 offset:{L_RANK}")
            if i - Di > landed:
                self.vm_wait(("L", i - Di))
                landed = i - Di
            if rk:
                def cnt_for(blk):
                    idx = [k for k, tg in enumerate(self.vm) if tg == ("L", blk)]
                    return len(self.vm) - 1 - idx[-1]
                Ls = self.lab("rk")
                Lh = self.lab("rkh")
                Le = self.lab("rke")
                self("  s_waitcnt lgkmcnt(0)")
                self("  v_readfirstlane_b32 s65, v3")
                self("  s_cmp_eq_u32 s65, s67")
                self(f"  s_cbranch_scc1 {Lh}")
                self("  s_mov_b32 s67, s65")
                self("  s_and_b32 s66, s65, 0xff")
                self(f"{Lh}:")
                self("  s_bitcmp1_b32 s67, 8")
                self(f"  s_cbranch_scc1 {Ls}")
                self(f"  s_waitcnt vmcnt({cnt_for(i - Di + 1)})")
                self("  s_cmp_eq_u32 s66, 0")
                self(f"  s_cbranch_scc1 {Le}")
                self("  s_sub_u32 s66, s66, 1")
                self(f"  s_waitcnt vmcnt({cnt_for(i - Di + 3)})")
                self(f"{Le}:")
                self("  s_bitcmp1_b32 s67, 10")
                self(f"  s_cbranch_scc0 {Ls}")
                self(f"  s_waitcnt vmcnt({cnt_for(i - Di + 2)})")
                self(f"{Ls}:")
            if self.adapt and self.adapt[0] <= i < self.adapt[1]:
                tag = ("L", i - (Di - 1))
                idx = [k for k, tg in enumerate(self.vm) if tg == tag]
                if idx:
                    n = len(self.vm) - 1 - idx[-1]
                    Ls = self.lab("deep")
                    self("  s_cmp_lg_u32 s65, 0")
                    self(f"  s_cbranch_scc1 {Ls}")
                    self(f"  s_waitcnt vmcnt({n})")
                    self(f"{Ls}:")
            if i >= 16 and (i - 16) >= E:
                need_g = (i - 16 - E) // 4
                assert qk_next > need_g, f"schedule: V{i - 16} needs QK group {need_g} (slot {i})"
            if self.gwait and i == self.gwait[1]:
                self(f"  v_mov_b32 v{t1}, 0")
                self.lds_spin("go", t1, L_GO, t0, target=None, sdst="s58", sleep=1)
            if self.xw and i == self.xw[1]:
                assert sm_done
                self("  v_mov_b32 v8, 0")
                self.lds_spin("xgo", 8, L_XGO, 9, target=None, sdst="s58", sleep=1)
            if self.fwait and i == self.fwait:
                assert sm_done
                self("  v_mov_b32 v8, 0")
                self.lds_spin("frdy", 8, L_FRDY, 9, target=None, sdst="s58", sleep=1)
            if self.prog and self.stamps and i in self.prog:
                k = 1 + self.prog.index(i)
                self(f"  s_memrealtime s[{70 + 2 * k}:{71 + 2 * k}]")
            issue(i)
            if any(i == c[0] for c in self.ckp) or (self.wol and i == self.wol[0]):
                assert sm_done
                self("  v_mov_b32 v8, 0")
                self("  v_mov_b32 v9, 1")
                self("  s_mov_b64 exec, 1")
                self(f"  ds_add_u32 v8, v9 offset:{L_PROG}")
                self("  s_mov_b64 exec, -1")
            if (self.gwait and i == self.gwait[0]) or (self.dlate and i == self.dlate):
                assert not (self.gwait and self.dlate)
                self(f"  v_mov_b32 v{t1}, 0")
                self(f"  v_mov_b32 v{t0}, 1")
                self("  s_mov_b64 exec, 1")
                self(f"  ds_add_u32 v{t1}, v{t0} offset:{L_PROG2}")
                self("  s_mov_b64 exec, -1")
            if self.xw and i == self.xw[0]:
                assert sm_done
                self("  v_mov_b32 v8, 0")
                self("  v_mov_b32 v9, 1")
                self("  s_mov_b64 exec, 1")
                self(f"  ds_add_u32 v8, v9 offset:{L_PROG3}")
                self("  s_mov_b64 exec, -1")
            if self.b0late and i == self.b0late - 1:
                self("  s_barrier            ; B0")
            if i == SB:
                self.stamp(1)
                self(f"  v_mov_b32 v{t1}, 0")
                self.lds_spin("qf", t1, L_QF, t0, target=3, sdst="s58", sleep=1)
                self.stamp(2)
                self(f"  v_and_b32 v{t0}, 15, v0")
                self(f"  v_lshlrev_b32 v{t1}, 4, v{t0}")
                self(f"  v_lshlrev_b32 v{t0}, 3, v{t0}")
                self(f"  ds_read_b128 v[{Q[0]}:{Q[3]}], v{t1} offset:{L_Q}")
                self(f"  ds_read_b64 v[{Q[4]}:{Q[5]}], v{t0} offset:{L_Q + 256}")
                self("  s_waitcnt lgkmcnt(0)")
            if i >= SB:
                n = 0
                while qk_next < 4 and 4 * qk_next + 3 <= landed and n < self.qk_per_slot:
                    qk_group(qk_next)
                    qk_next += 1
                    n += 1
                if qk_next == 4 and not sm_done:
                    softmax()
                    self(f"  v_mov_b32 v{MO}, v{t0}")
                    sm_done = True
                    self.stamp(3)
                elif sm_done:
                    n = 0
                    while pv_next < 16 and 16 + pv_next <= landed and n < 3:
                        pv(pv_next)
                        pv_next += 1
                        n += 1
        assert sm_done
        self(f"  v_mov_b32 v{t1}, 0")
        self.lds_spin("cnt8", t1, L_CNT, t0, target=8, sdst="s58", sleep=1)
        self(f"  v_and_b32 v{t1}, 7, v0")
        self(f"  v_lshlrev_b32 v{t1}, 2, v{t1}")
        self(f"  ds_read_b32 v{t0}, v{t1} offset:{L_M}")
        self(f"  v_and_b32 v{P[0]}, 15, v0")
        self(f"  v_lshrrev_b32 v{P[1]}, 4, v0")
        self(f"  v_lshlrev_b32 v{P[1]}, 2, v{P[1]}")
        self("  s_mul_i32 s6, s3, 768")
        self(f"  v_add_u32 v{P[1]}, s6, v{P[1]}")
        self(f"  v_lshl_add_u32 v{PA0}, v{P[0]}, 5, v{P[1]}")
        self(f"  v_lshl_add_u32 v{PA1}, v{P[0]}, 4, v{P[1]}")
        self("  s_waitcnt lgkmcnt(0)")
        for r in (1, 2, 4):
            self(f"  v_max_f32_dpp v{t0}, v{t0}, v{t0} row_ror:{r} row_mask:0xf bank_mask:0xf")
        self(f"  v_sub_f32 v{FF}, v{MO}, v{t0}")
        self(f"  v_mul_f32 v{FF}, {LOG2E}, v{FF}")
        self(f"  v_exp_f32 v{FF}, v{FF}")
        for j in range(pv_next, 16):
            self.vm_wait(("L", 16 + j))
            if j == 15:
                self.stamp(4)
                if self.prog and self.stamps:
                    self(f"  s_memrealtime s[92:93]")
            pv(j)
        R = self.treduce4rows(A)
        for r in R:
            self(f"  v_mul_f32 v{r}, v{FF}, v{r}")
        self(f"  ds_write_b32 v{PA0}, v{R[0]} offset:{L_PART}")
        self(f"  ds_write_b32 v{PA0}, v{R[1]} offset:{L_PART + 16}")
        self(f"  ds_write_b32 v{PA1}, v{R[2]} offset:{L_PART + 512}")
        if self.nob2:
            self("  s_mov_b64 exec, 1")
            self(f"  ds_add_u32 v8, v9 offset:{L_PARTS}")
            self("  s_mov_b64 exec, -1")
        Bf = RING
        Af = RING + 24
        Dd = RING + 48
        aB, aA, aS = RING + 52, RING + 53, RING + 54
        self(f"  v_lshrrev_b32 v{P[0]}, 4, v0          ; g")
        self(f"  v_bfe_u32 v{P[2]}, v0, 2, 2           ; r4")
        self(f"  v_and_b32 v{P[3]}, 3, v0              ; cq")
        self(f"  v_lshl_add_u32 v{aB}, v{P[0]}, 3, v{P[2]}   ; 8g + r4")
        self(f"  v_lshlrev_b32 v{aB}, 7, v{aB}")
        self("  s_and_b32 s6, s3, 3           ; tile")
        self("  s_lshl_b32 s7, s6, 1")
        self(f"  v_lshrrev_b32 v{aA}, 1, v{P[3]}")
        self(f"  v_add_u32 v{aA}, s7, v{aA}")
        self(f"  v_lshlrev_b32 v{aS}, 1, v{P[2]}")
        self(f"  v_xor_b32 v{aA}, v{aA}, v{aS}")
        self(f"  v_lshl_add_u32 v{aB}, v{aA}, 4, v{aB}")
        self(f"  v_and_b32 v{aA}, 1, v{P[3]}")
        self(f"  v_lshl_add_u32 v{aB}, v{aA}, 3, v{aB}")
        self(f"  v_and_b32 v{aA}, 7, v0")
        self(f"  v_mul_u32_u24 v{aA}, 400, v{aA}")
        self(f"  v_lshl_add_u32 v{aA}, v{P[0]}, 4, v{aA}")
        self(f"  v_lshlrev_b32 v{aS}, 2, v0")
        for d in range(4):
            self(f"  v_mov_b32 v{Dd + d}, 0")
        self.srd(44, 30, None, WS_SIZE)
        self("  s_waitcnt lgkmcnt(0)")
        self.stamp(5)
        self("  s_cmp_ge_u32 s3, 4")
        self("  s_cbranch_scc1 L_tail_extra")

        def tail_part(nk, wo_off, dup_str):
            if not self.nob2:
                self("  s_barrier")
            if self.wol:
                self(f"  v_mov_b32 v{t1}, 0")
                self.lds_spin("wok", t1, L_WOK, t0, target=None, sdst="s58", sleep=(1 if self.nob2 else 0) if self.wop != 2 else 0)
            for k in range(nk):
                if self.wop and k == 4:
                    self.lds_spin("wok2", t1, L_WOK, t0, target=2, sdst="s58", sleep=0)
                self(f"  ds_read_b64_tr_b16 v[{Bf + 4 * k}:{Bf + 4 * k + 1}], v{aB} offset:{wo_off + 4096 * k}")
                self(f"  ds_read_b64_tr_b16 v[{Bf + 4 * k + 2}:{Bf + 4 * k + 3}], v{aB} offset:{wo_off + 4096 * k + 512}")
            self(f"  v_add_u32 v{aS}, s6, v{aS}")
            self("  s_waitcnt lgkmcnt(0)")
            self("  s_barrier")
            for k in range(nk):
                self(f"  ds_read_b128 v[{Af + 4 * k}:{Af + 4 * k + 3}], v{aA} offset:{L_A + 64 * k}")
            self.stamp(6)
            for k in range(nk):
                if self.stamps:
                    if k == 0:
                        self("  s_waitcnt lgkmcnt(0)")
                else:
                    self(f"  s_waitcnt lgkmcnt({nk - 1 - k})")
                self(f"  v_mfma_f32_16x16x32_bf16 v[{Dd}:{Dd + 3}], v[{Af + 4 * k}:{Af + 4 * k + 3}], v[{Bf + 4 * k}:{Bf + 4 * k + 3}], v[{Dd}:{Dd + 3}]")
            self(f"  v_add_f32 v{Dd}, v{Dd}, v{Dd + 1}")
            self(f"  v_add_f32 v{Dd + 2}, v{Dd + 2}, v{Dd + 3}")
            self(f"  v_add_f32 v{Dd}, v{Dd}, v{Dd + 2}")
            self(f"  v_mov_b32 v{t0}, v{Dd}")
            self(f"  v_permlane16_swap_b32 v{Dd}, v{t0}")
            self(f"  v_add_f32 v{Dd}, v{Dd}, v{t0}")
            self(f"  v_min_u32 v{Dd}, -2, v{Dd}")
            self("  s_mov_b32 exec_lo, 0xffff")
            self("  s_mov_b32 exec_hi, 0")
            self(f"  buffer_store_dword v{Dd}, v{aS}, s[44:47], 0 offen sc1")
            for k in range(1, self.dupS):
                self(f"  s_mov_b32 s{59 + k}, {k * dup_str}")
                self(f"  buffer_store_dword v{Dd}, v{aS}, s[44:47], s{59 + k} offen sc1")
            self("  s_mov_b64 exec, -1")
            self.stamp(7)
            self("  s_branch L_exit_stamped")

        self("  s_lshl_b32 s7, s5, 2")
        self("  s_add_u32 s6, s6, s7")
        self(f"  s_mul_i32 s6, s6, {SDSTR}")
        self("  s_lshl_b32 s7, s4, 6")
        self("  s_add_u32 s6, s6, s7")
        self(f"  s_add_u32 s6, s6, {SD_BASE}")
        tail_part(6, L_WO, 2048)
        self("L_tail_extra:")
        self("  s_cmp_ge_u32 s5, 6")
        self("  s_cbranch_scc1 L_exit_stamped")
        self("  s_cmp_ge_u32 s5, 3")
        self("  s_cselect_b32 s7, 4, 0        ; 4e")
        self("  s_cselect_b32 s56, 3, 0")
        self("  s_sub_u32 s56, s5, s56        ; third")
        self("  s_add_u32 s6, s6, s7")
        self("  s_add_u32 s6, s6, 32")
        self(f"  s_mul_i32 s6, s6, {SDSTR}")
        self("  s_mul_i32 s7, s4, 3")
        self("  s_add_u32 s7, s7, s56")
        self("  s_lshl_b32 s7, s7, 6")
        self("  s_add_u32 s6, s6, s7")
        self(f"  s_add_u32 s6, s6, {SD_BASE}")
        self("  s_lshl_b32 s7, s56, 7")
        self(f"  v_add_u32 v{aA}, s7, v{aA}")
        tail_part(2, L_WO2, 8 * SDSTR)

    def ln(self, X, xs, t):
        for i in range(5):
            self(f"  v_lshlrev_b32 v{xs[2 * i]}, 16, v{X[i]}")
            self(f"  v_and_b32 v{xs[2 * i + 1]}, 0xffff0000, v{X[i]}")
        s, u, m = t[0], t[1], t[2]
        self(f"  v_add_f32 v{s}, v{xs[0]}, v{xs[1]}")
        for i in range(2, 10):
            self(f"  v_add_f32 v{s}, v{s}, v{xs[i]}")
        self.allreduce("v_add_f32", s, u)
        self(f"  v_mul_f32 v{m}, {INV640}, v{s}")
        self(f"  v_sub_f32 v{u}, v{xs[0]}, v{m}")
        self(f"  v_mul_f32 v{s}, v{u}, v{u}")
        for i in range(1, 10):
            self(f"  v_sub_f32 v{u}, v{xs[i]}, v{m}")
            self(f"  v_fmac_f32 v{s}, v{u}, v{u}")
        self.allreduce("v_add_f32", s, u)
        self(f"  v_mul_f32 v{s}, {INV640}, v{s}          ; var")
        self(f"  v_cvt_pk_bf16_f32 v{u}, v{s}, v{m}")
        self(f"  v_lshlrev_b32 v{s}, 16, v{u}            ; bf16(var)")
        self(f"  v_and_b32 v{m}, 0xffff0000, v{u}        ; bf16(mean)")
        self(f"  v_add_f32 v{s}, {EPS}, v{s}")
        self(f"  v_cvt_pk_bf16_f32 v{s}, v{s}, v{s}")
        self(f"  v_lshlrev_b32 v{s}, 16, v{s}")
        self(f"  v_sqrt_f32 v{s}, v{s}")
        self("  s_nop 0")
        self(f"  v_cvt_pk_bf16_f32 v{s}, v{s}, v{s}")
        self(f"  v_lshlrev_b32 v{s}, 16, v{s}")
        self(f"  v_rcp_f32 v{s}, v{s}")
        for i in range(10):
            self(f"  v_sub_f32 v{xs[i]}, v{xs[i]}, v{m}")
        for i in range(5):
            self(f"  v_cvt_pk_bf16_f32 v{X[i]}, v{xs[2 * i]}, v{xs[2 * i + 1]}")
        for i in range(5):
            self(f"  v_lshlrev_b32 v{xs[2 * i]}, 16, v{X[i]}")
            self(f"  v_and_b32 v{xs[2 * i + 1]}, 0xffff0000, v{X[i]}")
        for i in range(10):
            self(f"  v_mul_f32 v{xs[i]}, v{xs[i]}, v{s}")
        for i in range(5):
            self(f"  v_cvt_pk_bf16_f32 v{X[i]}, v{xs[2 * i]}, v{xs[2 * i + 1]}")
        self(f"  v_lshlrev_b32 v{u}, 2, v0")
        for i in range(5):
            self(f"  ds_write_b32 v{u}, v{X[i]} offset:{L_XN + 256 * i}")

    def xn_rows(self, XL, XH, t, n=10, base="s5", mul=80):
        self(f"  v_lshrrev_b32 v{t}, 3, v0")
        self(f"  s_mul_i32 s6, {base}, {mul}")
        self(f"  v_add_u32 v{t}, s6, v{t}")
        self(f"  v_lshlrev_b32 v{t}, 1, v{t}")
        self("  s_waitcnt lgkmcnt(0)")
        for i in range(n):
            self(f"  ds_read_u16 v{XL[i]}, v{t} offset:{L_XN + 16 * i}")
        self("  s_waitcnt lgkmcnt(0)")
        for i in range(n):
            self(f"  v_lshlrev_b32 v{XH[i]}, 16, v{XL[i]}")

    def gemv64(self, W, XL, XH, ACC, n):
        for i in range(n):
            for k in range(4):
                c0 = "0" if i == 0 else f"v{ACC[2 * k]}"
                c1 = "0" if i == 0 else f"v{ACC[2 * k + 1]}"
                self(f"  v_dot2_f32_bf16 v{ACC[2 * k]}, v{W + 4 * i + k}, v{XL[i]}, {c0}")
                self(f"  v_dot2_f32_bf16 v{ACC[2 * k + 1]}, v{W + 4 * i + k}, v{XH[i]}, {c1}")

    def gather_h1(self, nparts, dst, addr):
        def issue():
            for p in range(nparts):
                for c in range(8):
                    so = ["0", "s60", "s61", "s62"][c // 2]
                    imm = BOX * (c % 2) + 256 * p
                    o = f" offset:{imm}" if imm else ""
                    self(f"  buffer_load_dword v{dst[p * 8 + c]}, v{addr}, s[44:47], {so} offen{o} sc1")
        self.poll_loop("h1", issue, dst[:nparts * 8], dst[nparts * 8], sleep=2)

    def ticket(self, k, pol, vz):
        if self.rshard == 0:
            self("  s_and_b32 s6, s4, 3")
            self("  s_lshl_b32 s6, s6, 6")
        else:
            self("  s_lshr_b32 s6, s4, 2")
            self("  s_lshl_b32 s6, s6, 5")
        self(f"  s_add_u32 s6, s6, {4 + 8 * k}")
        self("  v_mov_b32 v15, s6")
        self("  v_mov_b32 v16, 1")
        self("  s_mov_b64 exec, 1")
        self("  buffer_atomic_add v16, v15, s[48:51], 0 offen sc0 sc1")
        self("  s_waitcnt vmcnt(0)")
        self("  v_readfirstlane_b32 s6, v16")
        word = lambda n1, d: 512 | (k << 12) | n1 | (256 if d == 4 else 0) | (1024 if d == 2 else 0)
        self(f"  s_mov_b32 s56, {word(*pol[-1][1:])}")
        for (ub, n1, d) in reversed(pol[:-1]):
            self(f"  s_cmp_lt_u32 s6, {ub}")
            self(f"  s_cselect_b32 s56, {word(n1, d)}, s56")
        self("  v_mov_b32 v16, s56")
        self(f"  ds_write_b32 v{vz}, v16 offset:{L_RANK}")
        self("  s_mov_b64 exec, -1")

    def later_tickets(self):
        for k, (slot, pol) in enumerate(self.ckp):
            L = self.lab("ck")
            Ld = self.lab("ckd")
            self("  v_mov_b32 v12, 0")
            self("  s_mov_b32 s57, 0")
            self(f"{L}:")
            self(f"  ds_read_b32 v13, v12 offset:{L_PROG}")
            self("  s_waitcnt lgkmcnt(0)")
            self("  v_readfirstlane_b32 s58, v13")
            self("  s_add_u32 s57, s57, 1")
            self(f"  s_cmp_gt_u32 s57, {SPIN_MAX * 8}")
            self(f"  s_cbranch_scc1 {Ld}")
            self(f"  s_cmp_ge_u32 s58, {8 * (k + 1)}")
            self(f"  s_cbranch_scc1 {Ld}")
            self("  s_sleep 2")
            self(f"  s_branch {L}")
            self(f"{Ld}:")
            self.ticket(k + 1, pol, 12)

    def xcd_pace(self):
        if not self.xw:
            return
        Y, X, M, N = self.xw[:4]
        slp = self.xw[4] if len(self.xw) > 4 else 2
        tmo = self.xw[5] if len(self.xw) > 5 else 600
        self("  s_getreg_b32 s69, hwreg(HW_REG_XCC_ID, 0, 4)")
        self("  s_lshl_b32 s69, s69, 8")
        self(f"  s_add_u32 s69, s69, {XC_BASE}")
        self("  v_mov_b32 v12, 0")
        self.lds_spin("xall", 12, L_ALL, 13, target=None, sdst="s58", sleep=4)
        self("  v_mov_b32 v14, s69")
        self("  v_mov_b32 v15, 1")
        self("  s_mov_b64 exec, 1")
        Lg = self.lab("xgw")
        Lna = self.lab("xna")
        Lgd = self.lab("xgwd")
        self("  s_mov_b32 s57, 0")
        self("  s_mov_b32 s56, 0")
        self(f"{Lg}:")
        self("  s_load_dword s58, s[30:31], s69 glc")
        self(f"  ds_read_b32 v13, v12 offset:{L_PROG3}")
        self("  s_add_u32 s57, s57, 1")
        self("  s_waitcnt lgkmcnt(0)")
        self("  v_readfirstlane_b32 s6, v13")
        self("  s_cmp_lg_u32 s56, 0")
        self(f"  s_cbranch_scc1 {Lna}")
        self(f"  s_cmp_ge_u32 s6, {N}")
        self(f"  s_cbranch_scc0 {Lna}")
        self("  buffer_atomic_add v15, v14, s[44:47], 0 offen")
        self("  s_mov_b32 s56, 1")
        self(f"{Lna}:")
        self(f"  s_cmp_gt_u32 s57, {tmo}")
        self(f"  s_cbranch_scc1 {Lgd}")
        self(f"  s_cmp_ge_u32 s58, {M}")
        self(f"  s_cbranch_scc1 {Lgd}")
        if slp:
            self(f"  s_sleep {slp}")
        self(f"  s_branch {Lg}")
        self(f"{Lgd}:")
        self("  v_mov_b32 v13, 1")
        self(f"  ds_write_b32 v12, v13 offset:{L_XGO}")
        self("  s_waitcnt lgkmcnt(0)")
        self.stamp(9)
        La = self.lab("xarr")
        Lad = self.lab("xarrd")
        self("  s_cmp_lg_u32 s56, 0")
        self(f"  s_cbranch_scc1 {Lad}")
        self("  s_mov_b32 s57, 0")
        self(f"{La}:")
        self(f"  ds_read_b32 v13, v12 offset:{L_PROG3}")
        self("  s_waitcnt lgkmcnt(0)")
        self("  v_readfirstlane_b32 s58, v13")
        self("  s_add_u32 s57, s57, 1")
        self(f"  s_cmp_gt_u32 s57, {SPIN_MAX * 8}")
        self(f"  s_cbranch_scc1 {Lad}")
        self("  s_sleep 2")
        self(f"  s_cmp_ge_u32 s58, {N}")
        self(f"  s_cbranch_scc0 {La}")
        self("  buffer_atomic_add v15, v14, s[44:47], 0 offen")
        self(f"{Lad}:")
        self("  s_mov_b64 exec, -1")

    def own_box(self, dst="s6", tmp="s56"):
        self(f"  s_mul_i32 {dst}, s4, {GBOX}")
        self(f"  s_mul_i32 {tmp}, s5, {BOX}")
        self(f"  s_add_u32 {dst}, {dst}, {tmp}")

    def helper(self):
        self.in_stream = False
        X = list(range(4, 9))
        xs = list(range(10, 20))
        t = [20, 21, 22, 23]
        XL = list(range(24, 34))
        XH = list(range(34, 44))
        ACC = list(range(44, 60))
        W = 64
        self("L_helper:")
        if self.prio:
            self(f"  s_setprio {self.prio}")
        self("  s_sub_u32 s7, s3, 8")
        self("  v_lshlrev_b32 v1, 2, v0       ; 4*lane")
        self(f"  s_mov_b32 s60, {2 * BOX}")
        self(f"  s_mov_b32 s61, {4 * BOX}")
        self(f"  s_mov_b32 s62, {6 * BOX}")
        if self.h3early:
            self("  s_cmp_eq_u32 s3, 11")
            self("  s_cbranch_scc1 L_h3")
        self("  s_waitcnt lgkmcnt(0)")
        self.srd(32, 8, None, 1280)
        self.srd(44, 30, None, WS_SIZE)
        self.srd(48, 28, None, 256)
        if not self.h3early:
            self("  s_cmp_eq_u32 s3, 11")
            self("  s_cbranch_scc1 L_h3")
        B00_HERE = self.h3early == 2
        self("  s_mul_i32 s6, s5, 983040      ; 80*12288*c")
        self("  s_mul_i32 s56, s4, 384")
        self("  s_add_u32 s6, s6, s56")
        self.srd(36, 14, "s6", 79 * 12288 + 384)
        self(f"  v_lshrrev_b32 v2, 3, v0")
        self(f"  v_mul_u32_u24 v2, 12288, v2")
        self(f"  v_and_b32 v3, 7, v0")
        self(f"  v_lshl_add_u32 v2, v3, 4, v2")
        self("  s_lshl_b32 s6, s7, 7")
        self(f"  v_add_u32 v2, s6, v2")
        if B00_HERE:
            self("  s_barrier            ; B00")
        for i in range(5):
            o = f" offset:{256 * i}" if i else ""
            self(f"  buffer_load_dword v{X[i]}, v1, s[32:35], 0 offen{o}")
        for i in range(10):
            self(f"  s_mov_b32 s6, {98304 * i}")
            self(f"  buffer_load_dwordx4 v[{W + 4 * i}:{W + 4 * i + 3}], v2, s[36:39], s6 offen nt")
        if self.touch & 2:
            self("  s_mul_i32 s6, s4, 245760      ; 192*1280*h")
            self("  s_mul_i32 s56, s5, 160")
            self("  s_add_u32 s6, s6, s56")
            self.srd(40, 16, "s6", 191 * 1280 + 160)
            self("  s_mul_i32 s6, s7, 81920")
            self("  v_mov_b32 v3, s6")
            self("  s_mov_b64 exec, 1")
            self("  buffer_load_dword v60, v3, s[40:43], 0 offen")
            self("  s_mov_b64 exec, -1")
        self("  s_barrier            ; B0")
        self(f"  s_waitcnt vmcnt({11 if self.touch & 2 else 10})")
        self.ln(X, xs, t)
        self.xn_rows(XL, XH, t[0])
        self.stamp(1)
        self("  s_waitcnt vmcnt(0)")
        self.stamp(2)
        for i in range(10):
            for k in range(4):
                c0 = "0" if i == 0 else f"v{ACC[2 * k]}"
                c1 = "0" if i == 0 else f"v{ACC[2 * k + 1]}"
                self(f"  v_dot2_f32_bf16 v{ACC[2 * k]}, v{W + 4 * i + k}, v{XL[i]}, {c0}")
                self(f"  v_dot2_f32_bf16 v{ACC[2 * k + 1]}, v{W + 4 * i + k}, v{XH[i]}, {c1}")
        self.treduce8(ACC[:8], t[1])
        self(f"  v_min_u32 v{t[1]}, -2, v{t[1]}")
        self(f"  s_mul_i32 s6, s4, {GBOX}")
        self("  s_lshl_b32 s56, s7, 8")
        self("  s_add_u32 s6, s6, s56")
        self(f"  v_add_u32 v14, s6, v1")
        self(f"  s_mul_i32 s56, s5, {BOX}")
        self("  v_add_u32 v15, s56, v14")
        self(f"  v_mov_b32 v12, 0")
        if self.early_pub:
            self.lds_spin("clr", 12, L_CLR, 13, target=None, sdst="s58")
            self(f"  buffer_store_dword v{t[1]}, v15, s[44:47], 0 offen sc1")
            self.lds_spin("mode", 12, L_MODE, 13, target=None, sdst="s59")
        else:
            self.lds_spin("mode", 12, L_MODE, 13, target=None, sdst="s59")
            self.mode_store([f"buffer_store_dword v{t[1]}, v15, s[44:47], 0 offen"])
        self.stamp(3)
        G8 = list(range(64, 73))
        self.gather_h1(1, G8, 14)
        self.stamp(4)
        self(f"  v_add_f32 v{G8[0]}, v{G8[0]}, v{G8[1]}")
        self(f"  v_add_f32 v{G8[2]}, v{G8[2]}, v{G8[3]}")
        self(f"  v_add_f32 v{G8[4]}, v{G8[4]}, v{G8[5]}")
        self(f"  v_add_f32 v{G8[6]}, v{G8[6]}, v{G8[7]}")
        self(f"  v_add_f32 v{G8[0]}, v{G8[0]}, v{G8[2]}")
        self(f"  v_add_f32 v{G8[4]}, v{G8[4]}, v{G8[6]}")
        self(f"  v_add_f32 v{G8[0]}, v{G8[0]}, v{G8[4]}")
        self(f"  v_cvt_pk_bf16_f32 v{G8[0]}, v{G8[0]}, v{G8[0]}")
        self("  v_and_b32 v16, 7, v0")
        self("  v_lshrrev_b32 v17, 3, v0")
        self("  v_lshl_add_u32 v16, v16, 3, v17")
        self("  s_lshl_b32 s6, s7, 6")
        self("  v_add_u32 v16, s6, v16")
        self("  v_lshlrev_b32 v16, 1, v16")
        self(f"  ds_write_b16 v16, v{G8[0]} offset:{L_Q}")
        self("  v_mov_b32 v13, 1")
        self("  s_waitcnt lgkmcnt(0)")
        self("  s_mov_b64 exec, 1")
        self(f"  ds_add_u32 v12, v13 offset:{L_QF}")
        self("  s_mov_b64 exec, -1")
        self.stamp(5)
        self("  s_cmp_eq_u32 s3, 8")
        self("  s_cbranch_scc1 L_h0")
        self("  s_cmp_eq_u32 s3, 10")
        self("  s_cbranch_scc1 L_h2")
        self("  s_mov_b32 s56, -1")
        for tt in range(5):
            self(f"  s_cmp_eq_u32 s4, {6 * tt + 1}")
            self(f"  s_cselect_b32 s56, {tt}, s56")
        self("  s_cmp_eq_u32 s56, -1")
        self("  s_cbranch_scc1 L_exit_stamped")
        self.final_consumer()

        self("L_h2:")
        if self.bulkprio is not None:
            self(f"  s_setprio {self.bulkprio}")
        self("  s_mul_i32 s6, s4, 245760      ; 192*1280*h")
        self("  s_lshl_b32 s56, s5, 7")
        self("  s_add_u32 s6, s6, s56")
        self.srd(40, 16, "s6", 191 * 1280 + 128)
        self("  v_lshrrev_b32 v2, 3, v0")
        self("  v_and_b32 v3, 3, v2")
        self("  v_lshlrev_b32 v3, 1, v3")
        self("  v_and_b32 v4, 7, v0")
        self("  v_xor_b32 v3, v3, v4")
        self("  v_mul_u32_u24 v2, 1280, v2")
        self("  v_lshl_add_u32 v2, v3, 4, v2")
        self("  s_mov_b32 s6, 0")
        self(f"  s_mov_b32 m0, {L_WO}")
        nt = ' nt' if self.wnt & 1 else ''
        def wo_loop(name, n, srd, thr):
            self(f"{name}:")
            self(f"  buffer_load_dwordx4 v2, {srd}, s6 offen{nt} lds")
            self("  s_add_u32 m0, m0, 1024")
            self("  s_add_u32 s6, s6, 10240")
            if thr:
                self(f"  s_waitcnt vmcnt({thr})")
            self(f"  s_cmp_lt_u32 s6, {10240 * n}")
            self(f"  s_cbranch_scc1 {name}")

        def extra_srd():
            self("  s_cmp_ge_u32 s5, 3")
            self("  s_cselect_b32 s7, 128, 0")
            self("  s_cselect_b32 s56, 3, 0")
            self("  s_sub_u32 s56, s5, s56        ; third")
            self("  s_mul_i32 s56, s56, 81920     ; 64*1280")
            self("  s_add_u32 s7, s7, s56")
            self("  s_mul_i32 s6, s4, 245760")
            self("  s_add_u32 s6, s6, s7")
            self("  s_add_u32 s6, s6, 1024")
            self.srd(52, 16, "s6", 63 * 1280 + 128)
        if not self.wol:
            wo_loop("L_wo_loop", 24, "s[40:43]", self.wo_throttle)
            self("  s_cmp_ge_u32 s5, 6")
            self("  s_cbranch_scc1 L_wo_done")
            extra_srd()
            self("  s_mov_b32 s6, 0")
            wo_loop("L_wo2_loop", 8, "s[52:55]", self.wo_throttle)
        else:
            wl = list(self.wol) + [0, 0, 0, 0, 2, 0][len(self.wol) - 2:]
            X_, N_, T_, _, K0, xe, slp, pr = wl[:8]
            extra_srd()
            if xe:
                self("  s_cmp_ge_u32 s5, 6")
                self("  s_cbranch_scc1 L_wo2_skip")
                self(f"  s_mov_b32 m0, {L_WO2}")
                self("  s_mov_b32 s6, 0")
                wo_loop("L_wo2_loop", 8, "s[52:55]", self.wo_throttle)
                self("L_wo2_skip:")
            self(f"  s_mov_b32 m0, {L_WO}")
            self("  s_mov_b32 s6, 0")
            if K0:
                wo_loop("L_wo0_loop", K0, "s[40:43]", self.wo_throttle)
            if self.gwait:
                self("  v_mov_b32 v12, 0")
                self.lds_spin("arr", 12, L_PROG2, 13, target=8, sdst="s58", sleep=2)
                self("  s_lshl_b32 s56, s4, 3")
                self("  s_add_u32 s56, s56, 4")
                self("  v_mov_b32 v14, s56")
                self("  v_mov_b32 v15, 1")
                self("  s_mov_b64 exec, 1")
                self("  buffer_atomic_add v15, v14, s[48:51], 0 offen sc1")
                self("  s_mov_b64 exec, -1")
                self("  v_lshlrev_b32 v14, 3, v0")
                self("  v_add_u32 v14, 4, v14")
                Lg = self.lab("gw")
                Lgd = self.lab("gwd")
                self("  s_mov_b32 s57, 0")
                self("  s_mov_b32 exec_hi, 0")
                self(f"{Lg}:")
                self("  buffer_load_dword v16, v14, s[48:51], 0 offen sc1")
                self("  s_add_u32 s57, s57, 1")
                self(f"  s_cmp_gt_u32 s57, {SPIN_MAX}")
                self("  s_waitcnt vmcnt(0)")
                self(f"  s_cbranch_scc1 {Lgd}")
                self("  v_cmp_eq_u32 vcc, 8, v16")
                self("  s_bcnt1_i32_b64 s58, vcc")
                self(f"  s_cmp_ge_u32 s58, {self.gwait[2]}")
                self(f"  s_cbranch_scc1 {Lgd}")
                if len(self.gwait) > 3 and self.gwait[3]:
                    self(f"  s_sleep {self.gwait[3]}")
                self(f"  s_branch {Lg}")
                self(f"{Lgd}:")
                self("  s_mov_b64 exec, 1")
                self("  v_mov_b32 v13, 1")
                self(f"  ds_write_b32 v12, v13 offset:{L_GO}")
                self("  s_mov_b64 exec, -1")
            self.xcd_pace()
            Lw = self.lab("wol")
            Lwd = self.lab("wold")
            self("  v_mov_b32 v12, 0")
            self("  s_mov_b32 s57, 0")
            if pr:
                self(f"  s_setprio {pr}")
            self(f"{Lw}:")
            self(f"  ds_read_b32 v13, v12 offset:{L_PROG}")
            self("  s_waitcnt lgkmcnt(0)")
            self("  v_readfirstlane_b32 s58, v13")
            self("  s_add_u32 s57, s57, 1")
            self(f"  s_cmp_gt_u32 s57, {SPIN_MAX * 8}")
            self(f"  s_cbranch_scc1 {Lwd}")
            self(f"  s_cmp_ge_u32 s58, {N_}")
            self(f"  s_cbranch_scc1 {Lwd}")
            if slp:
                self(f"  s_sleep {slp}")
            self(f"  s_branch {Lw}")
            self(f"{Lwd}:")
            self.stamp(7)
            if self.wop:
                assert K0 <= 16
                if not xe:
                    self("  s_cmp_ge_u32 s5, 6")
                    self("  s_cbranch_scc1 L_wo2_skip")
                    self(f"  s_mov_b32 m0, {L_WO2}")
                    self("  s_mov_b32 s6, 0")
                    wo_loop("L_wo2_loop", 8, "s[52:55]", T_)
                    self("L_wo2_skip:")
                    self(f"  s_mov_b32 m0, {L_WO + 1024 * K0}")
                    self(f"  s_mov_b32 s6, {10240 * K0}")
                wo_loop("L_wo_loop", 24, "s[40:43]", T_)
            else:
                wo_loop("L_wo_loop", 24, "s[40:43]", T_)
                if not xe:
                    self("  s_cmp_ge_u32 s5, 6")
                    self("  s_cbranch_scc1 L_wo_done")
                    self("  s_mov_b32 s6, 0")
                    wo_loop("L_wo2_loop", 8, "s[52:55]", T_)
        self("L_wo_done:")
        if self.wol:
            self.stamp(8)
            if not self.nob2:
                self("  s_barrier            ; B2")
        if self.wop:
            self("  v_mov_b32 v13, 1")
            self("  v_mov_b32 v14, 2")
            self("  s_mov_b64 exec, 1")
            self("  s_waitcnt vmcnt(8)")
            self(f"  ds_write_b32 v12, v13 offset:{L_WOK}")
            self("  s_waitcnt vmcnt(0)")
            self(f"  ds_write_b32 v12, v14 offset:{L_WOK}")
            self("  s_mov_b64 exec, -1")
        else:
            self("  s_waitcnt vmcnt(0)")
            if self.wol:
                self("  v_mov_b32 v13, 1")
                self("  s_mov_b64 exec, 1")
                self(f"  ds_write_b32 v12, v13 offset:{L_WOK}")
                self("  s_mov_b64 exec, -1")
        self.stamp(6)
        self("  s_branch L_exit_stamped")

        self("L_h0:")
        self("  v_mov_b32 v12, 0")
        self.lds_spin("cnt", 12, L_CNT, 13, target=8, sdst="s58", sleep=2)
        if self.rank:
            self.ticket(0, self.rankp, 12)
        self("  v_and_b32 v14, 7, v0")
        self("  v_lshlrev_b32 v14, 2, v14")
        self(f"  ds_read_b32 v16, v14 offset:{L_M}")
        self(f"  ds_read_b32 v17, v14 offset:{L_L}")
        self("  s_waitcnt lgkmcnt(0)")
        self("  v_mov_b32 v18, v16")
        for r in (1, 2, 4):
            self(f"  v_max_f32_dpp v18, v18, v18 row_ror:{r} row_mask:0xf bank_mask:0xf")
        self("  v_sub_f32 v19, v16, v18")
        self(f"  v_mul_f32 v19, {LOG2E}, v19")
        self("  v_exp_f32 v19, v19")
        self("  s_nop 0")
        self("  v_mul_f32 v19, v19, v17")
        for r in (1, 2, 4):
            self(f"  v_add_f32_dpp v19, v19, v19 row_ror:{r} row_mask:0xf bank_mask:0xf")
        self("  v_min_u32 v20, -2, v18")
        self("  v_min_u32 v21, -2, v19")
        self("  v_mov_b32 v16, v18                ; M_c")
        self.own_box()
        self(f"  s_add_u32 s6, s6, {O_LSE}")
        self("  v_mov_b32 v15, s6")
        self("  s_mov_b64 exec, 1")
        self.mode_store(["buffer_store_dwordx2 v[20:21], v15, s[44:47], 0 offen"])
        self("  s_mov_b64 exec, -1")
        self("  v_and_b32 v15, 7, v0")
        self(f"  v_mul_u32_u24 v15, {BOX}, v15")
        self(f"  s_mul_i32 s6, s4, {GBOX}")
        self(f"  s_add_u32 s6, s6, {O_LSE}")
        self("  v_add_u32 v15, s6, v15")

        def issue_lse():
            self("  buffer_load_dwordx2 v[22:23], v15, s[44:47], 0 offen sc1")
        self.poll_loop("lse", issue_lse, [22, 23], 24, sleep=self.lsl)
        self("  v_mov_b32 v18, v22")
        for r in (1, 2, 4):
            self(f"  v_max_f32_dpp v18, v18, v18 row_ror:{r} row_mask:0xf bank_mask:0xf")
        self("  v_sub_f32 v19, v22, v18")
        self(f"  v_mul_f32 v19, {LOG2E}, v19")
        self("  v_exp_f32 v19, v19")
        self("  s_nop 0")
        self("  v_mul_f32 v19, v19, v23")
        for r in (1, 2, 4):
            self(f"  v_add_f32_dpp v19, v19, v19 row_ror:{r} row_mask:0xf bank_mask:0xf")
        self("  v_rcp_f32 v19, v19")
        self("  v_sub_f32 v16, v16, v18")
        self(f"  v_mul_f32 v16, {LOG2E}, v16")
        self("  v_exp_f32 v16, v16")
        self("  s_nop 0")
        self("  v_mul_f32 v16, v16, v19          ; G = exp(M_c - M_h) / L_h")
        if self.fwait:
            self("  v_mov_b32 v12, 0")
            self("  v_mov_b32 v13, 1")
            self(f"  ds_write_b32 v12, v13 offset:{L_FRDY}")
        self.stamp(6)
        self("  v_lshlrev_b32 v14, 4, v0")
        self.own_box()
        self(f"  s_add_u32 s6, s6, {O_O2}")
        self("  v_lshlrev_b32 v15, 3, v0")
        self("  v_add_u32 v15, s6, v15")
        self(f"  s_mul_i32 s6, s4, {GBOX}")
        self(f"  s_add_u32 s6, s6, {O_O2}")
        GA, LA = [4, 5, 6], [7, 8, 9]
        for i in range(3):
            self(f"  v_add_u32 v17, {64 * i}, v0")
            self("  v_mul_u32_u24 v18, 171, v17")
            self("  v_lshrrev_b32 v18, 12, v18")
            self("  v_mul_u32_u24 v19, 24, v18")
            self("  v_sub_u32 v19, v17, v19           ; chunk")
            self(f"  v_mul_u32_u24 v20, {BOX}, v18")
            self("  v_lshl_add_u32 v20, v19, 4, v20")
            self(f"  v_add_u32 v{GA[i]}, s6, v20")
            self("  v_mul_u32_u24 v20, 400, v18")
            self(f"  v_lshl_add_u32 v{LA[i]}, v19, 4, v20")
        self("  s_mov_b32 exec_hi, 0xffff         ; 48 lanes")
        if self.nob2:
            self("  v_mov_b32 v12, 0")
            self.lds_spin("parts", 12, L_PARTS, 13, target=8, sdst="s58", sleep=0)
        else:
            self("  s_barrier            ; B2")
        self.stamp(9)
        PR = 24
        for w in range(8):
            self(f"  ds_read_b128 v[{PR + 4 * w}:{PR + 4 * w + 3}], v14 offset:{L_PART + 768 * w}")
        for (a_, b_, cnt) in ((0, 1, 6), (2, 3, 4), (0, 2, None), (4, 5, 2), (6, 7, 0), (4, 6, None), (0, 4, None)):
            if cnt is not None:
                self(f"  s_waitcnt lgkmcnt({cnt if not self.stamps else 0})")
            for k in range(4):
                self(f"  v_add_f32 v{PR + 4 * a_ + k}, v{PR + 4 * a_ + k}, v{PR + 4 * b_ + k}")
        for k in range(4):
            self(f"  v_mul_f32 v{PR + k}, v16, v{PR + k}")
        self(f"  v_cvt_pk_bf16_f32 v20, v{PR}, v{PR + 1}")
        self(f"  v_cvt_pk_bf16_f32 v21, v{PR + 2}, v{PR + 3}")
        self("  v_min_u32 v20, -2, v20")
        self("  v_min_u32 v21, -2, v21")
        self.mode_store(["buffer_store_dwordx2 v[20:21], v15, s[44:47], 0 offen"])
        self("  s_mov_b64 exec, -1")
        self.stamp(7)
        AG = 56

        def issueA():
            for i in range(3):
                self(f"  buffer_load_dwordx4 v[{AG + 4 * i}:{AG + 4 * i + 3}], v{GA[i]}, s[44:47], 0 offen sc1")
        if self.pipeA:
            def issueAk(k):
                for i in range(3):
                    b = AG + 12 * k + 4 * i
                    self(f"  buffer_load_dwordx4 v[{b}:{b + 3}], v{GA[i]}, s[44:47], 0 offen sc1")

            def doneA(k):
                self.stamp(8)
                for i in range(3):
                    b = AG + 12 * k + 4 * i
                    self(f"  ds_write_b128 v{LA[i]}, v[{b}:{b + 3}] offset:{L_A}")
            self.poll_pipe("pollA", self.pipeA, 3, issueAk, lambda k: range(AG + 12 * k, AG + 12 * k + 12), 17, doneA)
        else:
            self.poll_loop("pollA", issueA, range(AG, AG + 12), 17)
            self.stamp(8)
            for i in range(3):
                self(f"  ds_write_b128 v{LA[i]}, v[{AG + 4 * i}:{AG + 4 * i + 3}] offset:{L_A}")
        self("  s_waitcnt lgkmcnt(0)")
        self.stamp(10)
        self("  s_barrier            ; B3")
        self("  s_branch L_exit_stamped")

        self("L_h3:")
        self("  s_lshr_b32 s6, s2, 3")
        self("  s_sub_u32 s64, s6, 2             ; fi")
        self("  s_cselect_b32 s66, 0, 1")
        self("  s_cselect_b32 s64, 0, s64")
        self("  s_mul_i32 s6, s64, 26")
        self("  s_lshr_b32 s6, s6, 8             ; l")
        self("  s_mul_i32 s56, s6, 10")
        self("  s_sub_u32 s64, s64, s56          ; m")
        self("  s_and_b32 s65, s2, 7")
        self("  s_mul_i32 s65, s65, 3")
        self("  s_add_u32 s65, s65, s6           ; j")
        self("  v_mov_b32 v16, 0")
        self("  v_mov_b32 v17, 0")
        self("  v_mov_b32 v18, 0")
        self("  v_mov_b32 v19, 0")
        self("  v_lshlrev_b32 v3, 4, v0")
        self("  v_mov_b32 v8, -1")
        self("  v_mov_b32 v9, -1")
        self("  v_mov_b32 v10, -1")
        self("  v_mov_b32 v11, -1")
        self.own_box()
        self("  v_add_u32 v12, s6, v3")
        if self.h3early:
            assert self.dupS == 1 and not self.xw
            self("  v_mov_b32 v24, v12")
        else:
            self("  buffer_store_dwordx4 v[8:11], v12, s[44:47], 0 offen sc1")
        self("  s_mul_i32 s56, s65, 10")
        self("  s_add_u32 s56, s56, s64")
        self(f"  s_mul_i32 s56, s56, {FSTR}")
        self(f"  s_add_u32 s67, s56, {FB_BASE}")
        self("  s_cmp_lg_u32 s66, 0")
        self(f"  s_cselect_b32 s56, s67, {OOB}")
        self("  s_sub_u32 s56, s56, 256")
        self("  v_add_u32 v13, s56, v3")
        self("  v_add_u32 v12, 1024, v12")
        self("  v_cmp_gt_u32 vcc, 16, v0")
        self("  v_cndmask_b32 v12, v13, v12, vcc")
        self("  s_mov_b32 exec_hi, 0xffff")
        if not self.h3early:
            self("  buffer_store_dwordx4 v[8:11], v12, s[44:47], 0 offen sc1")
        self("  s_lshl_b32 s6, s5, 2")
        self(f"  s_mul_i32 s6, s6, {SDSTR}")
        self("  s_lshl_b32 s56, s4, 6")
        self("  s_add_u32 s6, s6, s56")
        self(f"  s_add_u32 s6, s6, {SD_BASE}")
        self("  v_mov_b32 v13, s6                ; main")
        self("  s_cmp_ge_u32 s5, 3")
        self("  s_cselect_b32 s7, 36, 32")
        self("  s_cselect_b32 s56, 3, 0")
        self("  s_sub_u32 s56, s5, s56           ; third")
        self(f"  s_mul_i32 s6, s7, {SDSTR}")
        self("  s_mul_i32 s7, s4, 3")
        self("  s_add_u32 s7, s7, s56")
        self("  s_lshl_b32 s7, s7, 6")
        self("  s_add_u32 s6, s6, s7")
        self(f"  s_add_u32 s6, s6, {SD_BASE}")
        self("  s_cmp_ge_u32 s5, 6")
        self(f"  s_cselect_b32 s6, {OOB}, s6")
        self("  v_mov_b32 v14, s6                ; extra")
        self("  s_lshl_b32 s6, s64, 2")
        self(f"  s_mul_i32 s6, s6, {SDSTR}")
        self("  s_lshl_b32 s56, s65, 6")
        self("  s_add_u32 s6, s6, s56")
        self(f"  s_add_u32 s68, s6, {SD_BASE + O_D3}")
        self("  s_cmp_lg_u32 s66, 0")
        self(f"  s_cselect_b32 s6, s68, {OOB}")
        self("  v_mov_b32 v15, s6                ; down")
        self("  v_cmp_gt_u32 vcc, 16, v0")
        self("  v_cndmask_b32 v14, v14, v13, vcc")
        self("  v_cmp_gt_u32 vcc, 32, v0")
        self("  v_cndmask_b32 v13, v15, v14, vcc")
        self("  v_bfe_u32 v14, v0, 2, 2")
        self(f"  v_mul_u32_u24 v14, {SDSTR}, v14")
        self("  v_add_u32 v13, v13, v14")
        self("  v_and_b32 v14, 3, v0")
        self("  v_lshl_add_u32 v13, v14, 4, v13")
        if self.h3early:
            self("  s_mov_b32 exec_hi, 0")
            self("  s_mov_b32 exec_lo, 0xff")
            self(f"  ds_write_b128 v3, v[16:19] offset:{L_MODE}")
            self("  s_mov_b64 exec, -1")
            self("  s_waitcnt lgkmcnt(0)")
            self.srd(44, 30, None, WS_SIZE)
            if self.pclr is not None:
                self("  buffer_store_dwordx4 v[8:11], v24, s[44:47], 0 offen")
                self("  s_mov_b64 exec, 0xffff")
                self("  buffer_store_dwordx4 v[8:11], v12, s[44:47], 0 offen")
                self("  s_mov_b64 exec, -1")
            self("  buffer_store_dwordx4 v[8:11], v24, s[44:47], 0 offen sc1")
            self("  s_mov_b32 exec_hi, 0xffff")
            self("  buffer_store_dwordx4 v[8:11], v12, s[44:47], 0 offen sc1")
        self("  buffer_store_dwordx4 v[8:11], v13, s[44:47], 0 offen sc1")
        if self.h3early == 2:
            self("  s_barrier            ; B00")
        if self.h3early:
            self.srd(32, 8, None, 1280)
            self.srd(48, 28, None, 256)
        if self.dupS > 1:
            self("  v_mov_b32 v14, 0")
            self(f"  v_mov_b32 v12, {8 * SDSTR}")
            self("  v_cmp_gt_u32 vcc, 32, v0")
            self("  v_cndmask_b32 v14, v14, v12, vcc")
            self("  v_mov_b32 v12, 2048")
            self("  v_cmp_gt_u32 vcc, 16, v0")
            self("  v_cndmask_b32 v14, v14, v12, vcc")
            for k in range(1, self.dupS):
                self("  v_add_u32 v13, v13, v14")
                self("  buffer_store_dwordx4 v[8:11], v13, s[44:47], 0 offen sc1")
        if self.xw:
            self("  s_getreg_b32 s69, hwreg(HW_REG_XCC_ID, 0, 4)")
            self("  s_lshl_b32 s69, s69, 8")
            self(f"  s_add_u32 s69, s69, {XC_BASE}")
            self("  v_mov_b32 v12, s69")
            self("  s_mov_b64 exec, 1")
            self("  buffer_store_dword v16, v12, s[44:47], 0 offen")
        if not self.h3early:
            self("  s_mov_b32 exec_hi, 0")
            self("  s_mov_b32 exec_lo, 0xff")
            self(f"  ds_write_b128 v3, v[16:19] offset:{L_MODE}")
        self("  s_mov_b64 exec, -1")
        for i in range(5):
            o = f" offset:{256 * i}" if i else ""
            self(f"  buffer_load_dword v{X[i]}, v1, s[32:35], 0 offen{o}")
        self("  s_waitcnt lgkmcnt(0)")
        self("  s_barrier            ; B0")
        self("  s_getreg_b32 s6, hwreg(HW_REG_XCC_ID, 0, 4)")
        self("  s_mul_i32 s56, s6, s6")
        self("  s_lshl_b32 s56, s56, 16")
        self("  s_lshl_b32 s6, s6, 8")
        self("  s_add_u32 s6, s6, s56")
        self("  s_add_u32 s63, s6, 1")
        lm = self.lmode
        cs = 2 if lm else 3
        self(f"  s_lshl_b32 s6, s4, {cs}")
        self("  v_mov_b32 v12, s6")
        self("  v_mov_b32 v13, s63")
        self("  v_mov_b32 v14, 0")
        self("  v_mov_b32 v15, 1")
        if lm:
            K_, S_, kind = lm[:3]
            self("  s_add_u32 s69, s6, 128")
            self("  s_and_b32 s6, s28, 127")
            self("  s_cmp_eq_u32 s6, 0")
            self(f"  s_cselect_b32 s62, {0 if self.force_slow else K_}, 0")
            self("  s_mov_b32 s59, 0")
        if self.pclr is None:
            self("  s_waitcnt vmcnt(5)")
            self("  s_mov_b64 exec, 1")
            if lm:
                Lnl = self.lab("noloc")
                self("  s_cmp_eq_u32 s62, 0")
                self(f"  s_cbranch_scc1 {Lnl}")
                self("  buffer_atomic_add v15, v12, s[48:51], 0 offen offset:128")
                self(f"{Lnl}:")
            late_glob = lm and kind == 1 and not (len(lm) > 3 and lm[3])
            if not late_glob:
                self("  buffer_atomic_add v13, v12, s[48:51], 0 offen sc1")
            self(f"  ds_write_b32 v14, v15 offset:{L_CLR}")
            self("  s_mov_b64 exec, -1")
            self.stamp(6)

            def local_poll():
                Ll = self.lab("lpoll")
                Lld = self.lab("lpolld")
                Lok = self.lab("lpollok")
                self("  s_mov_b32 s57, 0")
                self("  v_mov_b32 v62, s69")
                self("  s_mov_b64 exec, 1")
                self(f"{Ll}:")
                self("  s_cmp_ge_u32 s57, s62")
                self(f"  s_cbranch_scc1 {Lld}")
                if kind == 0:
                    self("  s_load_dword s58, s[28:29], s69 glc")
                    self("  s_add_u32 s57, s57, 1")
                    self("  s_waitcnt lgkmcnt(0)")
                else:
                    self("  buffer_load_dword v60, v62, s[48:51], 0 offen sc1")
                    self("  s_add_u32 s57, s57, 1")
                    self("  s_waitcnt vmcnt(0)")
                    self("  v_readfirstlane_b32 s58, v60")
                self("  s_cmp_eq_u32 s58, 8")
                self(f"  s_cbranch_scc1 {Lok}")
                if S_:
                    self(f"  s_sleep {S_}")
                self(f"  s_branch {Ll}")
                self(f"{Lok}:")
                self("  s_mov_b32 s59, 2")
                self("  v_mov_b32 v61, 2")
                self(f"  ds_write_b32 v14, v61 offset:{L_MODE}")
                self(f"{Lld}:")
                if late_glob:
                    self("  buffer_atomic_add v13, v12, s[48:51], 0 offen sc1")
                self("  s_mov_b64 exec, -1")
            if lm and not (len(lm) > 3 and lm[3]):
                local_poll()
                self.stamp(8)
            self("  s_waitcnt vmcnt(1)")
            self.ln(X, xs, t)
            self.xn_rows(XL, XH, t[0], n=8, base="s64", mul=64)
            self.stamp(1)
            if lm and len(lm) > 3 and lm[3]:
                self("  v_mov_b32 v14, 0")
                local_poll()
                self.stamp(8)
            self(f"  v_lshlrev_b32 v12, {cs}, v0")
            self("  v_mov_b32 v14, 0")
            Lp = self.lab("cntpoll")
            Lpd = self.lab("cntpolld")
            Lmj = self.lab("modej") if lm else None
            if lm:
                self("  s_mov_b64 s[54:55], -1")
                self("  s_cmp_eq_u32 s59, 2")
                self(f"  s_cbranch_scc1 {Lmj}")
            self("  s_mov_b32 s57, 0")
            if self.poll_delay:
                self(f"  s_sleep {self.poll_delay}")
            if self.own1 is not None:
                self(f"  s_lshl_b32 s6, s4, {cs}")
                self("  v_mov_b32 v62, s6")
                self("  s_mov_b64 exec, 1")
                self(f"{Lp}:")
                self("  buffer_load_dword v60, v62, s[48:51], 0 offen sc1")
                self("  s_add_u32 s57, s57, 1")
                self(f"  s_cmp_gt_u32 s57, {SPIN_MAX}")
                self("  s_waitcnt vmcnt(0)")
                self("  v_readfirstlane_b32 s58, v60")
                self(f"  s_cbranch_scc1 {Lpd}")
                self("  s_and_b32 s6, s58, 0xff")
                self("  s_cmp_eq_u32 s6, 8")
                if self.own1:
                    self(f"  s_cbranch_scc1 {Lpd}")
                    self(f"  s_sleep {self.own1}")
                    self(f"  s_branch {Lp}")
                else:
                    self(f"  s_cbranch_scc0 {Lp}")
            else:
                self("  s_mov_b32 exec_hi, 0")
                self(f"{Lp}:")
                self("  buffer_load_dword v60, v12, s[48:51], 0 offen sc1")
                self("  s_add_u32 s57, s57, 1")
                self(f"  s_cmp_gt_u32 s57, {SPIN_MAX}")
                self("  s_waitcnt vmcnt(0)")
                self("  v_readlane_b32 s58, v60, s4")
                self(f"  s_cbranch_scc1 {Lpd}")
                self("  s_and_b32 s6, s58, 0xff")
                self("  s_cmp_eq_u32 s6, 8")
                self(f"  s_cbranch_scc0 {Lp}")
            self(f"{Lpd}:")
            self("  s_lshl_b32 s6, s63, 3")
            self("  s_cmp_eq_u32 s58, s6")
            if self.force_slow:
                self("  s_mov_b32 s59, 1")
            else:
                self("  s_cselect_b32 s59, 2, 1")
            self("  v_mov_b32 v13, s59")
            if self.own1 is None:
                self("  v_and_b32 v61, 0xff, v60")
                self("  v_cmp_ne_u32 vcc, 8, v61")
            else:
                self("  s_mov_b64 vcc, -1")
            self("  s_mov_b64 exec, 1")
            self(f"  ds_write_b32 v14, v13 offset:{L_MODE}")
            self("  s_mov_b64 exec, -1")
            self("  s_mov_b64 s[54:55], vcc")
            if lm:
                self(f"{Lmj}:")
        else:
            assert self.h3early and not lm
            P_ = self.pclr[0]
            lnfirst = len(self.pclr) > 1 and self.pclr[1]
            self("  s_waitcnt vmcnt(8)")
            self("  s_mov_b64 exec, 1")
            self("  buffer_atomic_add v13, v12, s[48:51], 0 offen sc1")
            self("  s_mov_b64 exec, -1")
            self.stamp(8)
            self("  s_waitcnt vmcnt(6)")
            self("  s_mov_b64 exec, 1")
            self(f"  ds_write_b32 v14, v15 offset:{L_CLR}")
            self("  s_mov_b64 exec, -1")
            self.stamp(6)
            if lnfirst:
                self("  s_waitcnt vmcnt(1)")
                self.ln(X, xs, t)
                self.xn_rows(XL, XH, t[0], n=8, base="s64", mul=64)
                self.stamp(1)
                self(f"  s_lshl_b32 s6, s4, {cs}")
                self("  v_mov_b32 v12, s6")
                self("  v_mov_b32 v14, 0")
            Lp = self.lab("cntpoll")
            Lpd = self.lab("cntpolld")
            Lq = self.lab("cntpollb")
            Lqd = self.lab("cntpollbd")
            self("  s_mov_b32 s57, 0")
            if P_:
                self(f"  s_sleep {P_}")
            self("  s_mov_b64 exec, 1")
            self(f"{Lp}:")
            self("  buffer_load_dword v60, v12, s[48:51], 0 offen sc1")
            self("  s_add_u32 s57, s57, 1")
            self(f"  s_cmp_gt_u32 s57, {SPIN_MAX}")
            self("  s_waitcnt vmcnt(0)")
            self("  v_readfirstlane_b32 s58, v60")
            self(f"  s_cbranch_scc1 {Lpd}")
            self("  s_and_b32 s6, s58, 0xff")
            self("  s_cmp_eq_u32 s6, 8")
            self(f"  s_cbranch_scc0 {Lp}")
            self(f"{Lpd}:")
            self("  v_mov_b32 v61, 0x10000000")
            self("  buffer_atomic_add v61, v12, s[48:51], 0 offen sc1")
            self("  s_mov_b32 s59, 2")
            if not self.force_slow:
                self("  s_and_b32 s58, s58, 0x0fffffff")
                self("  s_lshl_b32 s6, s63, 3")
                self("  s_cmp_eq_u32 s58, s6")
                self(f"  s_cbranch_scc1 {Lqd}")
            self("  s_mov_b32 s59, 1")
            self("  s_mov_b32 s57, 0")
            self(f"{Lq}:")
            self("  buffer_load_dword v60, v12, s[48:51], 0 offen sc1")
            self("  s_add_u32 s57, s57, 1")
            self(f"  s_cmp_gt_u32 s57, {SPIN_MAX}")
            self("  s_waitcnt vmcnt(0)")
            self("  v_readfirstlane_b32 s58, v60")
            self(f"  s_cbranch_scc1 {Lqd}")
            self("  s_lshr_b32 s6, s58, 28")
            self("  s_cmp_eq_u32 s6, 8")
            self(f"  s_cbranch_scc0 {Lq}")
            self(f"{Lqd}:")
            self("  v_mov_b32 v13, s59")
            self(f"  ds_write_b32 v14, v13 offset:{L_MODE}")
            self("  s_mov_b64 exec, -1")
            self("  s_mov_b64 s[54:55], -1")
            self.stamp(3)
            if not lnfirst:
                self.ln(X, xs, t)
                self.xn_rows(XL, XH, t[0], n=8, base="s64", mul=64)
                self.stamp(1)
            self(f"  v_lshlrev_b32 v12, {cs}, v0")
        if self.pclr is None:
            self.stamp(3)

        def all_cleared():
            La = self.lab("allcnt")
            Lad = self.lab("allcntd")
            self("  s_cmp_eq_u64 s[54:55], 0")
            self(f"  s_cbranch_scc1 {Lad}")
            self("  s_mov_b32 s57, 0")
            self("  s_mov_b32 exec_hi, 0")
            self(f"{La}:")
            self("  buffer_load_dword v60, v12, s[48:51], 0 offen sc1")
            self("  s_add_u32 s57, s57, 1")
            self(f"  s_cmp_gt_u32 s57, {SPIN_MAX}")
            self("  s_waitcnt vmcnt(0)")
            self(f"  s_cbranch_scc1 {Lad}")
            if self.pclr is None:
                self("  v_and_b32 v61, 0xff, v60")
            else:
                self("  v_lshrrev_b32 v61, 28, v60")
            self("  v_cmp_ne_u32 vcc, 8, v61")
            if self.asl:
                self(f"  s_cbranch_vccz {Lad}")
                self(f"  s_sleep {self.asl}")
                self(f"  s_branch {La}")
            else:
                self(f"  s_cbranch_vccnz {La}")
            self(f"{Lad}:")
            self("  v_mov_b32 v13, 1")
            self("  v_mov_b32 v14, 0")
            self("  s_mov_b64 exec, 1")
            self(f"  ds_write_b32 v14, v13 offset:{L_ALL}")
            self("  s_mov_b64 exec, -1")

        Lact = self.lab("ffn")
        self("  s_cmp_lg_u32 s66, 0")
        self(f"  s_cbranch_scc1 {Lact}")
        all_cleared()
        self("  s_waitcnt lgkmcnt(0)")
        self.later_tickets()
        self("  s_branch L_exit_stamped")
        self(f"{Lact}:")
        if self.bulkprio is not None:
            self(f"  s_setprio {self.bulkprio}")
        self("  s_mul_i32 s6, s64, 196608      ; 64*3072*m")
        self("  s_lshl_b32 s56, s65, 7")
        self("  s_add_u32 s6, s6, s56")
        self.srd(36, 20, "s6", 63 * 3072 + 128)
        self.srd(40, 22, "s6", 63 * 3072 + 128)
        self("  v_lshrrev_b32 v2, 3, v0")
        self("  v_and_b32 v3, 7, v0")
        self("  v_mul_u32_u24 v9, 1280, v2")
        self("  v_lshl_add_u32 v9, v3, 4, v9")
        self("  v_mul_u32_u24 v2, 3072, v2")
        self("  v_lshl_add_u32 v2, v3, 4, v2")
        WG, WU = 64, 96
        ntg = ' nt' if self.wnt & 2 else ''
        for i in range(8):
            self(f"  s_mov_b32 s6, {24576 * i}")
            self(f"  buffer_load_dwordx4 v[{WG + 4 * i}:{WG + 4 * i + 3}], v2, s[36:39], s6 offen{ntg}")
        for i in range(8):
            self(f"  s_mov_b32 s6, {24576 * i}")
            self(f"  buffer_load_dwordx4 v[{WU + 4 * i}:{WU + 4 * i + 3}], v2, s[40:43], s6 offen{ntg}")
        self("  s_mul_i32 s6, s65, 81920       ; 64*1280*j")
        self("  s_lshl_b32 s56, s64, 7")
        self("  s_add_u32 s6, s6, s56")
        self.srd(36, 24, "s6", 63 * 1280 + 128)
        GA = list(range(44, 52))
        UA = list(range(52, 60))
        self("  s_waitcnt vmcnt(8)")
        self.gemv64(WG, XL, XH, GA, 8)
        self("  s_waitcnt vmcnt(0)")
        self.stamp(2)
        self.gemv64(WU, XL, XH, UA, 8)
        WD = 64
        ntd = ' nt' if self.wnt & 4 else ''
        for n in range(8):
            self(f"  s_mov_b32 s6, {10240 * n}")
            self(f"  buffer_load_dwordx4 v[{WD + 4 * n}:{WD + 4 * n + 3}], v9, s[36:39], s6 offen{ntd}")
        self.treduce8(GA, t[1])
        self.treduce8(UA, t[2])
        self(f"  v_min_u32 v{t[1]}, -2, v{t[1]}")
        self(f"  v_min_u32 v{t[2]}, -2, v{t[2]}")
        self("  v_add_u32 v15, s67, v1")
        self(f"  buffer_store_dword v{t[1]}, v15, s[44:47], 0 offen sc1")
        self(f"  buffer_store_dword v{t[2]}, v15, s[44:47], 0 offen offset:256 sc1")
        all_cleared()
        self(f"  s_mul_i32 s6, s65, {10 * FSTR}")
        self(f"  s_add_u32 s6, s6, {FB_BASE}")
        self("  v_lshrrev_b32 v14, 5, v0")
        self(f"  v_mul_u32_u24 v14, {FSTR}, v14")
        self("  v_and_b32 v15, 31, v0")
        self("  v_lshl_add_u32 v14, v15, 4, v14")
        self("  v_add_u32 v14, s6, v14")
        self(f"  v_add_u32 v15, {6 * FSTR}, v14")
        G = 128

        def issueF():
            for u in range(5):
                a, o = (14, 2 * FSTR * u) if u < 3 else (15, 2 * FSTR * (u - 3))
                oo = f" offset:{o}" if o else ""
                self(f"  buffer_load_dwordx4 v[{G + 4 * u}:{G + 4 * u + 3}], v{a}, s[44:47], 0 offen{oo} sc1")
        if self.fsm:
            self(f"  v_mul_u32_u24 v16, {FSTR}, v0")
            self(f"  v_add_u32 v16, s6, v16")
            self("  s_mov_b64 exec, 0x3ff")
            self.poll_loop("preF", lambda: self(f"  buffer_load_dword v{G}, v16, s[44:47], 0 offen offset:508 sc1"), [G], G + 20, sleep=self.fsm)
            self("  s_mov_b64 exec, -1")
        self.poll_loop("pollF", issueF, range(G, G + 20), G + 20, sleep=4)
        self.stamp(4)
        for e in range(4):
            self(f"  v_add_f32 v{G + e}, v{G + e}, v{G + 4 + e}")
            self(f"  v_add_f32 v{G + 8 + e}, v{G + 8 + e}, v{G + 12 + e}")
        for e in range(4):
            self(f"  v_add_f32 v{G + e}, v{G + e}, v{G + 16 + e}")
        for e in range(4):
            self(f"  v_add_f32 v{G + e}, v{G + e}, v{G + 8 + e}")
        for e in range(4):
            self(f"  v_mov_b32 v{G + 4 + e}, v{G + e}")
        for e in range(4):
            self(f"  v_permlane32_swap_b32 v{G + e}, v{G + 4 + e}")
        for e in range(4):
            self(f"  v_add_f32 v{G + e}, v{G + e}, v{G + 4 + e}")
        for e in range(4):
            self(f"  v_mov_b32 v{G + 4 + e}, v{G + e}")
        for e in range(4):
            self(f"  v_permlane16_swap_b32 v{G + e}, v{G + 4 + e}")
        for e in range(4):
            self(f"  v_cvt_pk_bf16_f32 v{G + e}, v{G + e}, v{G + 4 + e}")
        for e in range(4):
            self(f"  v_lshlrev_b32 v{G + 4 + e}, 16, v{G + e}      ; gate")
            self(f"  v_and_b32 v{G + e}, 0xffff0000, v{G + e}    ; up")
        for e in range(4):
            self(f"  v_max_f32 v{G + 4 + e}, 0, v{G + 4 + e}")
        for e in range(4):
            self(f"  v_mul_f32 v{G + e}, v{G + 4 + e}, v{G + e}")
        for e in range(4):
            self(f"  v_cvt_pk_bf16_f32 v{G + e}, v{G + e}, v{G + e}    ; h")
        self("  v_and_b32 v18, 1, v0")
        self("  v_lshlrev_b32 v18, 5, v18")
        self("  v_bfe_u32 v19, v0, 1, 3")
        self("  v_add_u32 v18, v18, v19")
        self("  v_lshlrev_b32 v18, 1, v18")
        self("  s_mov_b32 exec_lo, 0xffff")
        self("  s_mov_b32 exec_hi, 0")
        for e in range(4):
            self(f"  ds_write_b16 v18, v{G + e} offset:{L_HB + 16 * e}")
        self("  s_mov_b64 exec, -1")
        self("  v_lshrrev_b32 v18, 3, v0")
        self("  v_lshlrev_b32 v18, 1, v18")
        self("  s_waitcnt lgkmcnt(0)")
        for i in range(8):
            self(f"  ds_read_u16 v{XL[i]}, v18 offset:{L_HB + 16 * i}")
        self("  v_bfe_u32 v19, v0, 1, 2")
        self(f"  v_mul_u32_u24 v19, {SDSTR}, v19")
        self("  v_and_b32 v20, 1, v0")
        self("  v_lshl_add_u32 v19, v20, 5, v19")
        self("  v_lshrrev_b32 v20, 3, v0")
        self("  v_lshl_add_u32 v19, v20, 2, v19")
        self("  v_add_u32 v19, s68, v19")
        self("  s_waitcnt lgkmcnt(0)")
        for i in range(8):
            self(f"  v_lshlrev_b32 v{XH[i]}, 16, v{XL[i]}")
        self("  s_waitcnt vmcnt(0)")
        self.gemv64(WD, XL, XH, GA, 8)
        self.treduce8(GA, t[1])
        self(f"  v_min_u32 v{t[1]}, -2, v{t[1]}")
        self(f"  buffer_store_dword v{t[1]}, v19, s[44:47], 0 offen sc1")
        self.stamp(5)
        self.later_tickets()
        self("  s_branch L_exit_stamped")

    def final_consumer(self):
        self("  v_mov_b32 v12, 0")
        self("  s_mov_b32 s55, s56")
        self.lds_spin("allc", 12, L_ALL, 13, target=None, sdst="s58", sleep=4)
        self("  s_mul_i32 s7, s5, 5")
        self("  s_add_u32 s55, s55, s7           ; cg")
        self(f"  s_mul_i32 s6, s55, {SDSTR}")
        self(f"  s_add_u32 s6, s6, {SD_BASE}")
        self("  v_lshlrev_b32 v14, 4, v0")
        self("  v_add_u32 v14, s6, v14")
        self(f"  v_add_u32 v13, {O_D3}, v14")
        self("  v_and_b32 v15, 3, v0")
        self("  v_lshlrev_b32 v15, 2, v15")
        self("  v_lshrrev_b32 v16, 5, v0")
        self("  v_lshl_add_u32 v15, v16, 1, v15")
        self("  v_bfe_u32 v16, v0, 4, 1")
        self("  v_add_u32 v15, v15, v16")
        self("  s_lshl_b32 s6, s55, 4")
        self("  v_add_u32 v15, s6, v15")
        self("  v_lshlrev_b32 v15, 1, v15")
        self("  buffer_load_ushort v17, v15, s[32:35], 0 offen")
        self.srd(40, 26, None, 1280)

        def red(base, first=True):
            for k in range(4 if first else 0):
                self(f"  v_add_f32 v{base + k}, v{base + k}, v{base + 4 + k}")
            self(f"  v_permlane32_swap_b32 v{base}, v{base + 2}")
            self(f"  v_permlane32_swap_b32 v{base + 1}, v{base + 3}")
            self(f"  v_add_f32 v{base}, v{base}, v{base + 2}")
            self(f"  v_add_f32 v{base + 1}, v{base + 1}, v{base + 3}")
            self(f"  v_permlane16_swap_b32 v{base}, v{base + 1}")
            self(f"  v_add_f32 v{base}, v{base}, v{base + 1}")
            self(f"  v_add_f32_dpp v{base}, v{base}, v{base} row_ror:4 row_mask:0xf bank_mask:0xf")
            self(f"  v_add_f32_dpp v{base}, v{base}, v{base} row_ror:8 row_mask:0xf bank_mask:0xf")

        for k in range(4):
            self(f"  v_mov_b32 v{28 + k}, 0")

        def issueD():
            self("  buffer_load_dwordx4 v[24:27], v13, s[44:47], 0 offen sc1")
            self("  s_mov_b32 exec_hi, 0")
            self("  buffer_load_dwordx4 v[28:31], v13, s[44:47], 0 offen offset:1024 sc1")
            self("  s_mov_b32 exec_hi, -1")
        if self.lated:
            self("  s_barrier            ; B2")
            self.poll_loop2("pollD", issueD, range(24, 32), 32, lambda: self("  s_barrier            ; B3"), sleep=4)
        else:
            if self.dlate:
                self.lds_spin("dl", 12, L_PROG2, 16, target=None, sdst="s58", sleep=8)
            self.poll_loop("pollD", issueD, range(24, 32), 32, sleep=self.dsl)
        red(24)
        self("  v_cvt_pk_bf16_f32 v24, v24, v24")
        self("  v_lshlrev_b32 v24, 16, v24")
        self(f"  v_mul_f32 v25, {f2h(-1.4426950408889634)}, v24")
        self("  v_exp_f32 v25, v25")
        self("  s_nop 0")
        self("  v_add_f32 v25, 1.0, v25")
        self("  v_rcp_f32 v25, v25")
        self("  s_nop 0")
        self("  v_mul_f32 v24, v24, v25")
        self("  v_cvt_pk_bf16_f32 v24, v24, v24")
        self("  v_lshlrev_b32 v18, 16, v24          ; g")
        self("  v_lshlrev_b32 v17, 16, v17          ; x")
        self.stamp(6)
        if not self.lated:
            if not self.nob2:
                self("  s_barrier            ; B2")
            self("  s_barrier            ; B3")

        def finish(first=True):
            red(24, first)
            self("  v_cvt_pk_bf16_f32 v24, v24, v24")
            self("  v_lshlrev_b32 v24, 16, v24          ; s")
            self("  v_mul_f32 v24, v24, v18")
            self("  v_cvt_pk_bf16_f32 v24, v24, v24")
            self("  v_lshlrev_b32 v24, 16, v24")
            self("  v_add_f32 v24, v17, v24")
            self("  v_cvt_pk_bf16_f32 v24, v24, v24")
            self("  s_mov_b32 exec_lo, 0x000f000f")
            self("  s_mov_b32 exec_hi, 0x000f000f")
            self("  buffer_store_short v24, v15, s[40:43], 0 offen")
            self("  s_mov_b64 exec, -1")
            self.stamp(7)
            self("  s_branch L_exit_stamped")

        Lbig = self.lab("big")
        self("  s_cmp_ge_u32 s55, 32")
        self(f"  s_cbranch_scc1 {Lbig}")

        def issueS():
            self("  buffer_load_dwordx4 v[24:27], v14, s[44:47], 0 offen sc1")
            self("  buffer_load_dwordx4 v[28:31], v14, s[44:47], 0 offen offset:1024 sc1")
        if self.pipeS:
            PS = 48

            for k in range(self.dupS):
                self(f"  s_mov_b32 s{60 + k}, {2048 * k}")

            def issueSk(k):
                b = PS + 8 * k
                so = f"s{60 + k % self.dupS}" if self.dupS > 1 else "0"
                self(f"  buffer_load_dwordx4 v[{b}:{b + 3}], v14, s[44:47], {so} offen sc1")
                self(f"  buffer_load_dwordx4 v[{b + 4}:{b + 7}], v14, s[44:47], {so} offen offset:1024 sc1")

            def doneS(k):
                self.stamp(8)
                b = PS + 8 * k
                for j in range(4):
                    self(f"  v_add_f32 v{24 + j}, v{b + j}, v{b + 4 + j}")
            self.poll_pipe("pollS", self.pipeS, 2, issueSk, lambda k: range(PS + 8 * k, PS + 8 * k + 8), 32, doneS)
            finish(False)
        else:
            self.poll_loop("pollS", issueS, range(24, 32), 32)
            self.stamp(8)
            finish()
        self(f"{Lbig}:")
        self("  v_add_u32 v13, 4096, v14")

        def issueS6():
            for k in range(4):
                o = f" offset:{1024 * k}" if k else ""
                self(f"  buffer_load_dwordx4 v[{24 + 4 * k}:{27 + 4 * k}], v14, s[44:47], 0 offen{o} sc1")
            self("  buffer_load_dwordx4 v[40:43], v13, s[44:47], 0 offen sc1")
            self("  buffer_load_dwordx4 v[44:47], v13, s[44:47], 0 offen offset:1024 sc1")
        if self.pipeS:
            PS = 48
            cfg = (self.pipeS[0], self.pipeS[1], max(self.pipeS[2] - 1, 0))

            for k in range(self.dupS):
                self(f"  s_mov_b32 s{60 + k}, {8 * SDSTR * k}")

            def issueS6k(k):
                b = PS + 24 * k
                so = f"s{60 + k % self.dupS}" if self.dupS > 1 else "0"
                for j in range(4):
                    o = f" offset:{1024 * j}" if j else ""
                    self(f"  buffer_load_dwordx4 v[{b + 4 * j}:{b + 3 + 4 * j}], v14, s[44:47], {so} offen{o} sc1")
                self(f"  buffer_load_dwordx4 v[{b + 16}:{b + 19}], v13, s[44:47], {so} offen sc1")
                self(f"  buffer_load_dwordx4 v[{b + 20}:{b + 23}], v13, s[44:47], {so} offen offset:1024 sc1")

            def doneS6(k):
                self.stamp(8)
                b = PS + 24 * k
                for j in range(8):
                    self(f"  v_add_f32 v{24 + j}, v{b + j}, v{b + 8 + j}")
                for j in range(8):
                    self(f"  v_add_f32 v{24 + j}, v{24 + j}, v{b + 16 + j}")
            self.poll_pipe("pollS6", cfg, 6, issueS6k, lambda k: range(PS + 24 * k, PS + 24 * k + 24), 32, doneS6)
        else:
            self.poll_loop("pollS6", issueS6, range(24, 48), 48)
            self.stamp(8)
            for k in range(8):
                self(f"  v_add_f32 v{24 + k}, v{24 + k}, v{32 + k}")
            for k in range(8):
                self(f"  v_add_f32 v{24 + k}, v{24 + k}, v{40 + k}")
        finish()

    def epilogue(self):
        self("L_exit_stamped:")
        if self.stamps:
            if not self.prog:
                self("  s_waitcnt vmcnt(0) lgkmcnt(0)")
                self("  s_memrealtime s[92:93]")
            self.srd(44, 30, None, WS_SIZE)
            self.stamps_out()
        self("L_end:")
        self("  s_endpgm")
        self(f""".section .rodata,"a"
.p2align 6
.amdhsa_kernel {KNAME}
  .amdhsa_next_free_vgpr 168
  .amdhsa_next_free_sgpr 102
  .amdhsa_accum_offset 168
  .amdhsa_group_segment_fixed_size 0
  .amdhsa_kernarg_size 96
  .amdhsa_user_sgpr_count 2
  .amdhsa_user_sgpr_kernarg_segment_ptr 1
  .amdhsa_system_sgpr_workgroup_id_x 1
.end_amdhsa_kernel""")

    def build(self):
        self.prologue()
        self.stream()
        self.helper()
        self.epilogue()
        return fix("\n".join(self.lines) + "\n", verbose=True)


if __name__ == "__main__":
    import argparse
    ap = argparse.ArgumentParser()
    ap.add_argument("-o", default="k.s")
    ap.add_argument("--D", type=int, default=5)
    ap.add_argument("--E", type=int, default=5)
    ap.add_argument("--SB", type=int, default=19)
    ap.add_argument("--stamps", action="store_true")
    ap.add_argument("--slow", action="store_true")
    ap.add_argument("--b0post", action="store_true")
    ap.add_argument("--prio", type=int, default=3)
    ap.add_argument("--dbgst", action="store_true")
    ap.add_argument("--fine", action="store_true")
    ap.add_argument("--ds", default="", help="D schedule: slot:D,slot:D")
    ap.add_argument("--qkn", type=int, default=2)
    ap.add_argument("--wot", type=int, default=0)
    ap.add_argument("--npoll", type=int, default=2)
    ap.add_argument("--bp", type=int, default=None)
    ap.add_argument("--ilv", action="store_true")
    ap.add_argument("--prog", default="")
    ap.add_argument("--latepub", action="store_true")
    ap.add_argument("--pdelay", type=int, default=0)
    ap.add_argument("--adapt", default="", help="lo:hi slots with optional tighter throttle")
    ap.add_argument("--nocnt", type=int, default=0, help="diagnosis only: 1 = no atomic, no polls; 2 = atomic but no polls")
    ap.add_argument("--pgap", type=int, default=8)
    ap.add_argument("--hwid", action="store_true")
    ap.add_argument("--map2", action="store_true")
    ap.add_argument("--kvm", default="", help="c_stride:wave_stride:block_stride (bytes) of the key assignment (needs --ilv)")
    ap.add_argument("--b0late", type=int, default=0)
    ap.add_argument("--hrot", type=int, default=0)
    ap.add_argument("--lated", action="store_true", help="down partials read after B2")
    ap.add_argument("--gwait", default="", help="Y:X:Mh[:sleep] slot X waits until Mh heads have issued slot Y")
    ap.add_argument("--fsm", type=int, default=0, help="small pre-poll of the FFN boxes (sleep value)")
    ap.add_argument("--dlate", type=int, default=0, help="down partials polled once the first stream wave issued this slot")
    ap.add_argument("--dsl", type=int, default=8)
    ap.add_argument("--lsl", type=int, default=1)
    ap.add_argument("--asl", type=int, default=0)
    ap.add_argument("--fwait", type=int, default=0, help="stream waves wait for the head's LSE exchange before this slot")
    ap.add_argument("--wop", type=int, default=0, help="progressive wo landing flags (1: with sleep, 2: no sleep)")
    ap.add_argument("--wol", default="", help="X:N:T wo cells requested once N stream waves issued slot X (throttle T)")
    ap.add_argument("--rshard", type=int, default=0, help="0: tickets among h&3 (64), 1: among id&7 (32)")
    ap.add_argument("--ck", default="", help="slot=ub:n1:d,...;slot=... later checkpoints")
    ap.add_argument("--rank", default="", help="lo:hi rank-adaptive depth (slots)")
    ap.add_argument("--rankp", default="", help="ub:n1:d,... policy per arrival rank")
    ap.add_argument("--pipeS", default="", help="N:gap:gap2 pipelined S3 poll")
    ap.add_argument("--pipeA", default="", help="N:gap:gap2 pipelined O gather poll")
    ap.add_argument("--adaptbit", type=int, default=0)
    ap.add_argument("--xw", default="", help="Y:X:M:N[:sleep[:tmo]] slot X waits until M workgroups of the die have N waves past slot Y")
    ap.add_argument("--lmode", default="", help="K:S:kind[:pos] die-local group counter: K rounds, sleep S, kind 0 scalar / 1 vector, pos 1 = after LN")
    ap.add_argument("--own1", type=int, default=None, help="first counter poll reads the own group only (sleep between rounds)")
    ap.add_argument("--h3early", type=int, default=0, help="clearing stores issued right after the kernel arguments arrive")
    ap.add_argument("--pclr", default="", help="P[:lnfirst] two-stage clear announcement, sleep P before the first poll")
    ap.add_argument("--dupS", type=int, default=1, help="copies of the wo partial slots (one per pipelined poll set)")
    ap.add_argument("--kvnt", type=int, default=3, help="nt hint bits: 1 K, 2 V")
    ap.add_argument("--wnt", type=int, default=7, help="nt hint bits: 1 wo, 2 gate/up, 4 down")
    ap.add_argument("--touch", type=int, default=0, help="1: V, 2: wo, 4: FFN weights early page touch")
    ap.add_argument("--rot", default="", help="a:b:w block rotation = h*a + c*b + wave*w")
    a = ap.parse_args()
    g = G(D=a.D, E=a.E, SB=a.SB, stamps=a.stamps, force_slow=a.slow, b0pre=not a.b0post, prio=a.prio, dbgst=a.dbgst, fine=a.fine,
          dsched=[tuple(int(v) for v in p.split(':')) for p in a.ds.split(',') if p], qk_per_slot=a.qkn, wo_throttle=a.wot, npoll=a.npoll, poll_gap=a.pgap, bulkprio=a.bp, ilv=a.ilv, prog=[int(v) for v in a.prog.split(',') if v], early_pub=not a.latepub, poll_delay=a.pdelay, nocnt=a.nocnt, adapt=tuple(int(v) for v in a.adapt.split(':')) if a.adapt else None, hwid=a.hwid, map2=a.map2, kvm=tuple(int(v) for v in a.kvm.split(':')) if a.kvm else None, b0late=a.b0late, hrot=a.hrot, lated=a.lated, wop=a.wop, fwait=a.fwait, fsm=a.fsm, dlate=a.dlate, dsl=a.dsl, lsl=a.lsl, asl=a.asl, lmode=tuple(int(v) for v in a.lmode.split(':')) if a.lmode else None, own1=a.own1, h3early=a.h3early, pclr=tuple(int(v) for v in a.pclr.split(':')) if a.pclr else None, dupS=a.dupS, xw=tuple(int(v) for v in a.xw.split(':')) if a.xw else None, gwait=tuple(int(v) for v in a.gwait.split(':')) if a.gwait else None, wol=tuple(int(v) for v in a.wol.split(':')) if a.wol else None, rshard=a.rshard, ckp=[(int(c.split('=')[0]), [tuple(int(v) for v in p.split(':')) for p in c.split('=')[1].split(',')]) for c in a.ck.split(';') if c], rankp=[tuple(int(v) for v in p.split(':')) for p in a.rankp.split(',') if p], rank=tuple(int(v) for v in a.rank.split(':')) if a.rank else None, pipeS=tuple(int(v) for v in a.pipeS.split(':')) if a.pipeS else None, pipeA=tuple(int(v) for v in a.pipeA.split(':')) if a.pipeA else None, adaptbit=a.adaptbit, kvnt=a.kvnt, wnt=a.wnt, touch=a.touch, rot=tuple(int(v) for v in a.rot.split(':')) if a.rot else None)
    open(a.o, "w").write(g.build())
```

```python
import sys, struct
sys.path.insert(0, "dev")
from hz import fix

KNAME = "recurrent_scan__sliding_block_cached__glu_gated_reglu__decode_kernel"


def f2h(x):
    return "0x%08x" % struct.unpack("<I", struct.pack("<f", x))[0]


LOG2E = f2h(1.4426950408889634)
SCALE = f2h(192 ** -0.5)
INV640 = f2h(1.0 / 640)
EPS = f2h(1e-5)

BOX = 1280
GBOX = 8 * BOX
O_H1 = 0
O_O2 = 768
O_LSE = 1152
FB_BASE = 327680
FSTR = 768
SD_BASE = 524288
SDSTR = 8448
O_D3 = 6144
OOB = 0x70000000
STAMP_BASE = 1 << 20
WS_SIZE = 2 << 20

L_Q = 0
L_MODE = 384
L_CNT = 388
L_QF = 392
L_CLR = 396
L_M = 400
L_L = 432
L_XN = 1280
L_HB = 2560
L_ALL = 464
L_RANK = 468
L_PROG = 472
L_WOK = 476
L_FRDY = 484
L_PROG2 = 488
L_GO = 492
L_PROG3 = 496
L_XGO = 500
PF_BASE = 917504
L_PF = 504
XC_BASE = 1040384
L_PARTS = 480
L_WO = 4096
L_WO2 = L_WO + 192 * 128
L_PART = L_WO2 + 64 * 128
L_A = L_PART + 8 * 768
LDS_BYTES = L_A + 8 * 400

SPIN_MAX = 30000


class G:
    def __init__(self, D=5, E=5, SB=19, stamps=False, force_slow=False, wo_slot=32, b0pre=True, prio=3, dbgst=False, fine=False, dsched=(), qk_per_slot=2, wo_throttle=0, npoll=2, poll_gap=8, bulkprio=None, ilv=False, prog=(), early_pub=True, poll_delay=0, nocnt=0, adapt=None, hwid=False, map2=False, rot=None, touch=0, wnt=7, kvnt=3, b0late=0, kvm=None, hrot=0, adaptbit=0, pipeS=None, pipeA=None, rank=None, rankp=None, ckp=(), rshard=0, lated=False, wol=None, wop=0, fwait=0, gwait=None, fsm=0, dlate=0, dsl=8, lsl=1, asl=0, dupS=1, xw=None, lmode=None, own1=None, h3early=0, pclr=None, pf=None, pfoff=(1, 2, 3, 10), pfstr=128, pcdbg=False, cpf=0):
        self.cpf = cpf
        self.pcdbg = pcdbg
        self.pf = pf
        self.pfoff = pfoff
        self.pfstr = pfstr
        self.pclr = pclr
        self.h3early = h3early
        self.own1 = own1
        self.lmode = lmode
        self.xw = xw
        self.dupS = dupS
        self.kvm = kvm or ((196608, 1536, 12288) if ilv else (196608, 24576, 1536))
        self.b0late = b0late
        self.hrot = hrot
        self.rank = rank
        self.lated = lated
        self.wol = wol
        self.wop = wop
        self.fwait = fwait
        self.gwait = gwait
        self.fsm = fsm
        self.lsl = lsl
        self.asl = asl
        self.dlate = dlate
        self.dsl = dsl
        self.nob2 = bool(wol and len(wol) > 3 and wol[3])
        self.rshard = rshard
        self.ckp = list(ckp)
        self.rankp = rankp
        self.pipeS = pipeS
        self.pipeA = pipeA
        self.adaptbit = adaptbit
        self.kvnt = kvnt
        self.wnt = wnt
        self.touch = touch
        self.map2 = map2
        self.rot = rot
        self.hwid = hwid
        self.adapt = adapt
        self.nocnt = nocnt
        self.early_pub = early_pub
        self.poll_delay = poll_delay
        self.prog = list(prog)
        self.ilv = ilv
        self.bulkprio = bulkprio
        self.wo_throttle = wo_throttle
        self.npoll = npoll
        self.poll_gap = poll_gap
        self.dsched = list(dsched)
        self.qk_per_slot = qk_per_slot
        self.dbgst = dbgst
        self.fine = fine
        self.in_stream = False
        self.prio = prio
        self.b0pre = b0pre
        self.D, self.E, self.SB = D, E, SB
        self.stamps = stamps
        self.force_slow = force_slow
        self.wo_slot = wo_slot
        self.lines = []
        self.uid = 0
        self.vm = []

    def Dof(self, i):
        for (slot, d) in reversed(self.dsched):
            if i >= slot:
                return d
        return self.D

    def __call__(self, s=""):
        for l in s.split("\n"):
            self.lines.append(l)

    def lab(self, base):
        self.uid += 1
        return f"L_{base}_{self.uid}"

    def vm_reset(self):
        self.vm = []

    def vm_issue(self, tag):
        self.vm.append(tag)

    def vm_wait(self, tag):
        idx = [i for i, t in enumerate(self.vm) if t == tag]
        if not idx:
            return
        last = idx[-1]
        n = len(self.vm) - 1 - last
        assert n <= 63
        self(f"  s_waitcnt vmcnt({n})")
        self.vm = self.vm[last + 1:]

    def stamp(self, i):
        if self.prog and self.in_stream and i != 0:
            return
        if self.stamps and not (self.fine and self.in_stream and i in (1, 2, 3, 5, 6, 7)):
            self(f"  s_memrealtime s[{70 + 2 * i}:{71 + 2 * i}]")

    def fstamp(self, i, clk=False):
        if self.stamps and self.fine:
            op = "s_memtime" if clk else "s_memrealtime"
            self(f"  {op} s[{70 + 2 * i}:{71 + 2 * i}]")

    def stamps_out(self):
        if not self.stamps:
            return
        self("  s_waitcnt lgkmcnt(0) vmcnt(0)")
        self("  s_mul_i32 s6, s2, 12")
        self("  s_add_u32 s6, s6, s3")
        self("  s_lshl_b32 s6, s6, 6")
        self(f"  s_add_u32 s6, s6, {STAMP_BASE}")
        self("  v_mov_b32 v2, s6")
        for i in range(12):
            self(f"  v_mov_b32 v{4 + i}, s{70 + 2 * i}")
        self("  s_mov_b64 exec, 1")
        self("  buffer_store_dwordx4 v[4:7], v2, s[44:47], 0 offen")
        self("  buffer_store_dwordx4 v[8:11], v2, s[44:47], 0 offen offset:16")
        self("  buffer_store_dwordx4 v[12:15], v2, s[44:47], 0 offen offset:32")
        if self.dbgst:
            self("  s_load_dwordx2 s[6:7], s[0:1], 80")
            self("  s_waitcnt lgkmcnt(0)")
            self.srd(48, 6, None, 256)
            for (wg, wv, lst) in ((0, 0, ((0, 1), (2, 3), (4, 5))), (8, 9, ((0, 7), (6, 9), (7, 11))), (255, 0, ((0, 13), (4, 15)))):
                Ls = self.lab("dbgskip")
                self(f"  s_cmp_eq_u32 s2, {wg}")
                self(f"  s_cbranch_scc0 {Ls}")
                self(f"  s_cmp_eq_u32 s3, {wv}")
                self(f"  s_cbranch_scc0 {Ls}")
                for (st, dw) in lst:
                    self(f"  v_mov_b32 v2, {4 * dw}")
                    self(f"  buffer_store_dword v{4 + st}, v2, s[48:51], 0 offen")
                self(f"{Ls}:")
        self("  s_mov_b64 exec, -1")

    def srd(self, s, base_lo, off, nrec):
        if off is None:
            self(f"  s_mov_b32 s{s}, s{base_lo}")
            self(f"  s_mov_b32 s{s + 1}, s{base_lo + 1}")
        else:
            self(f"  s_add_u32 s{s}, s{base_lo}, {off}")
            self(f"  s_addc_u32 s{s + 1}, s{base_lo + 1}, 0")
        self(f"  s_mov_b32 s{s + 2}, {nrec}")
        self(f"  s_mov_b32 s{s + 3}, 0x20000")

    def allreduce(self, op, v, t):
        for r in (1, 2, 4, 8):
            self(f"  {op}_dpp v{v}, v{v}, v{v} row_ror:{r} row_mask:0xf bank_mask:0xf")
        self(f"  v_mov_b32 v{t}, v{v}")
        self(f"  v_permlane16_swap_b32 v{v}, v{t}")
        self(f"  {op} v{v}, v{v}, v{t}")
        self(f"  v_mov_b32 v{t}, v{v}")
        self(f"  v_permlane32_swap_b32 v{v}, v{t}")
        self(f"  {op} v{v}, v{v}, v{t}")

    def cross_rows(self, op, v, t):
        self(f"  v_mov_b32 v{t}, v{v}")
        self(f"  v_permlane16_swap_b32 v{v}, v{t}")
        self(f"  {op} v{v}, v{v}, v{t}")
        self(f"  v_mov_b32 v{t}, v{v}")
        self(f"  v_permlane32_swap_b32 v{v}, v{t}")
        self(f"  {op} v{v}, v{v}, v{t}")

    def treduce8(self, A, T):
        for a in range(4):
            self(f"  v_permlane32_swap_b32 v{A[a]}, v{A[a + 4]}")
        for a in range(4):
            self(f"  v_add_f32 v{A[a]}, v{A[a]}, v{A[a + 4]}")
        for a in range(2):
            self(f"  v_permlane16_swap_b32 v{A[a]}, v{A[a + 2]}")
        for a in range(2):
            self(f"  v_add_f32 v{A[a]}, v{A[a]}, v{A[a + 2]}")
        self(f"  v_add_f32_dpp v{T}, v{A[0]}, v{A[0]} row_ror:8 row_mask:0xf bank_mask:0x3")
        self(f"  v_add_f32_dpp v{T}, v{A[1]}, v{A[1]} row_ror:8 row_mask:0xf bank_mask:0xc")

    def treduce4rows(self, A, out_pairs=None):
        n = len(A) // 4
        for k in range(n):
            a = A[4 * k:4 * k + 4]
            self(f"  v_permlane32_swap_b32 v{a[0]}, v{a[2]}")
            self(f"  v_permlane32_swap_b32 v{a[1]}, v{a[3]}")
        for k in range(n):
            a = A[4 * k:4 * k + 4]
            self(f"  v_add_f32 v{a[0]}, v{a[0]}, v{a[2]}")
            self(f"  v_add_f32 v{a[1]}, v{a[1]}, v{a[3]}")
        for k in range(n):
            a = A[4 * k:4 * k + 4]
            self(f"  v_permlane16_swap_b32 v{a[0]}, v{a[1]}")
        for k in range(n):
            a = A[4 * k:4 * k + 4]
            self(f"  v_add_f32 v{a[0]}, v{a[0]}, v{a[1]}")
        return [A[4 * k] for k in range(n)]

    def sentinel_check(self, regs, t):
        regs = list(regs)
        if len(regs) == 1:
            self(f"  v_cmp_eq_u32 vcc, -1, v{regs[0]}")
            return
        if len(regs) == 2:
            self(f"  v_max_u32 v{t}, v{regs[0]}, v{regs[1]}")
            regs = []
        else:
            self(f"  v_max3_u32 v{t}, v{regs[0]}, v{regs[1]}, v{regs[2]}")
            regs = regs[3:]
        while regs:
            if len(regs) >= 2:
                self(f"  v_max3_u32 v{t}, v{t}, v{regs[0]}, v{regs[1]}")
                regs = regs[2:]
            else:
                self(f"  v_max_u32 v{t}, v{t}, v{regs[0]}")
                regs = regs[1:]
        self(f"  v_cmp_eq_u32 vcc, -1, v{t}")

    def poll_loop(self, name, issue, regs, t, sleep=0):
        L = self.lab(name)
        Ld = self.lab(name + "d")
        self("  s_mov_b32 s57, 0")
        self(f"{L}:")
        issue()
        self("  s_waitcnt vmcnt(0)")
        self.sentinel_check(regs, t)
        self("  s_add_u32 s57, s57, 1")
        self(f"  s_cmp_gt_u32 s57, {SPIN_MAX}")
        self(f"  s_cbranch_scc1 {Ld}")
        if sleep:
            self(f"  s_cbranch_vccz {Ld}")
            self(f"  s_sleep {sleep}")
            self(f"  s_branch {L}")
        else:
            self(f"  s_cbranch_vccnz {L}")
        self(f"{Ld}:")

    def poll_loop2(self, name, issue, regs, t, between, sleep=0):
        L = self.lab(name)
        Ld = self.lab(name + "d")
        self("  s_mov_b32 s57, 0")
        issue()
        between()
        self(f"{L}:")
        self("  s_waitcnt vmcnt(0)")
        self.sentinel_check(regs, t)
        self("  s_add_u32 s57, s57, 1")
        self(f"  s_cmp_gt_u32 s57, {SPIN_MAX}")
        self(f"  s_cbranch_scc1 {Ld}")
        self(f"  s_cbranch_vccz {Ld}")
        if sleep:
            self(f"  s_sleep {sleep}")
        issue()
        self(f"  s_branch {L}")
        self(f"{Ld}:")

    def poll_pipe(self, name, cfg, nl, issue, regs, t, done):
        N, gap, gap2 = cfg
        L = self.lab(name)
        Lj = self.lab(name + "j")
        Ls = [self.lab(name + f"d{k}") for k in range(N)]
        self("  s_mov_b32 s57, 0")
        for k in range(N):
            issue(k)
            if gap and k < N - 1:
                self(f"  s_sleep {gap}")
        self(f"{L}:")
        for k in range(N):
            self(f"  s_waitcnt vmcnt({(N - 1) * nl})")
            self.sentinel_check(regs(k), t)
            self(f"  s_cbranch_vccz {Ls[k]}")
            issue(k)
            if gap2:
                self(f"  s_sleep {gap2}")
        self("  s_add_u32 s57, s57, 1")
        self(f"  s_cmp_gt_u32 s57, {SPIN_MAX // N}")
        self(f"  s_cbranch_scc0 {L}")
        for k in range(N):
            self(f"{Ls[k]}:")
            done(k)
            if k < N - 1:
                self(f"  s_branch {Lj}")
        self(f"{Lj}:")

    def lds_spin(self, name, addr_v, off, t, target=None, sdst="s58", sleep=1):
        L = self.lab(name)
        Ld = self.lab(name + "d")
        self("  s_mov_b32 s57, 0")
        self(f"{L}:")
        self(f"  ds_read_b32 v{t}, v{addr_v} offset:{off}")
        self("  s_waitcnt lgkmcnt(0)")
        self(f"  v_readfirstlane_b32 {sdst}, v{t}")
        self("  s_add_u32 s57, s57, 1")
        self(f"  s_cmp_gt_u32 s57, {SPIN_MAX * 8}")
        self(f"  s_cbranch_scc1 {Ld}")
        if target is None:
            self(f"  s_cmp_lg_u32 {sdst}, 0")
        else:
            self(f"  s_cmp_eq_u32 {sdst}, {target}")
        self(f"  s_cbranch_scc1 {Ld}")
        if sleep:
            self(f"  s_sleep {sleep}")
        self(f"  s_branch {L}")
        self(f"{Ld}:")

    def mode_store(self, instr):
        Lf = self.lab("fast")
        Lj = self.lab("join")
        self("  s_cmp_eq_u32 s59, 2")
        self(f"  s_cbranch_scc1 {Lf}")
        for i in instr:
            self(f"  {i} sc1")
        self(f"  s_branch {Lj}")
        self(f"{Lf}:")
        for i in instr:
            self(f"  {i}")
        self(f"{Lj}:")

    def prologue(self):
        self(f"""; Fused decode step: LN -> q -> sliding-window attention (split over 8 WGs per head) -> wo,
; @launch grid=(256,1,1) block=(768,1,1) lds={LDS_BYTES}
.amdgcn_target "amdgcn-amd-amdhsa--gfx950"
.text
.globl {KNAME}
.p2align 8
.type {KNAME},@function
{KNAME}:
  s_cmp_ge_u32 s2, 256
  s_cbranch_scc1 L_end""")
        self.stamp(0)
        if self.hwid:
            self("  s_getreg_b32 s88, hwreg(HW_REG_HW_ID)")
            self("  s_getreg_b32 s90, hwreg(HW_REG_XCC_ID)")
        self(f"""  s_load_dwordx16 s[8:23], s[0:1], 0
  s_load_dwordx8 s[24:31], s[0:1], 64
  v_readfirstlane_b32 s3, v0
  v_and_b32 v0, 63, v0
  s_lshr_b32 s3, s3, 6
  s_add_u32 s4, s2, {self.hrot}
  s_and_b32 s4, s4, 7
  s_lshl_b32 s4, s4, 2""" if self.hrot else f"""  s_load_dwordx16 s[8:23], s[0:1], 0
  s_load_dwordx8 s[24:31], s[0:1], 64
  v_readfirstlane_b32 s3, v0
  v_and_b32 v0, 63, v0
  s_lshr_b32 s3, s3, 6
  s_and_b32 s4, s2, 7
  s_lshl_b32 s4, s4, 2""")
        if self.map2:
            self("""  s_lshr_b32 s5, s2, 6
  s_add_u32 s4, s4, s5          ; h
  s_lshr_b32 s5, s2, 3
  s_and_b32 s5, s5, 7           ; c""")
        else:
            self("""  s_lshr_b32 s5, s2, 3
  s_and_b32 s5, s5, 3
  s_add_u32 s4, s4, s5          ; h
  s_lshr_b32 s5, s2, 5          ; c""")
        self("""  s_cmp_ge_u32 s3, 8
  s_cbranch_scc1 L_helper""")

    def stream(self):
        self.in_stream = True
        D, E, SB = self.D, self.E, self.SB
        Q = list(range(4, 10))
        A = list(range(10, 22))
        P = list(range(22, 26))
        T = [26, 27]
        U = list(range(28, 32))
        PL = list(range(32, 36))
        PH = list(range(36, 40))
        t0, t1 = 40, 41
        RING = 42
        nbuf = 16 + E

        def kbuf(b):
            return RING + 6 * b

        def vbuf(j):
            return RING + 6 * (16 + j) if j < E else RING + 6 * (j - E)

        self(f"""  ; ---------------- stream waves ----------------
  s_mul_i32 s6, s4, 12582912
  s_mul_i32 s7, s5, {self.kvm[0]}
  s_add_u32 s6, s6, s7
  s_add_u32 s6, s6, {28672 * 384}
  s_mul_i32 s7, s3, {self.kvm[1]}
  v_lshrrev_b32 v3, 4, v0
  v_and_b32 v2, 15, v0
  v_mul_u32_u24 v3, 384, v3
  v_add_u32 v3, s7, v3
  v_lshl_add_u32 v1, v2, 4, v3      ; x4 offset
  v_lshl_add_u32 v2, v2, 3, v3
  v_add_u32 v2, 256, v2             ; x2 offset""")
        for k in range(1, 6):
            self(f"  s_mov_b32 s{59 + k}, {4608 * k}")
        if self.rot:
            self(f"  s_mul_i32 s66, s4, {self.rot[0]}")
            self(f"  s_mul_i32 s7, s5, {self.rot[1]}")
            self("  s_add_u32 s66, s66, s7")
            self(f"  s_mul_i32 s7, s3, {self.rot[2]}")
            self("  s_add_u32 s66, s66, s7")
        if self.adapt:
            self(f"  s_lshr_b32 s65, s2, {self.adaptbit}")
            self("  s_and_b32 s65, s65, 1")
        if self.rank:
            self("  s_mov_b32 s67, 0")
            self("  s_mov_b32 s66, 0")
        self("  s_waitcnt lgkmcnt(0)")
        nrec = 1572864 - 7 * self.kvm[0]
        self.srd(32, 10, "s6", nrec)
        self.srd(36, 12, "s6", nrec)
        if self.h3early == 2:
            self("  s_barrier")
        self.vm_reset()

        def issue(i):
            t, b = (0, i) if i < 16 else (1, i - 16)
            srd = "s[32:35]" if t == 0 else "s[36:39]"
            r = kbuf(b) if t == 0 else vbuf(b)
            so = "0" if b < 3 else f"s{59 + b // 3}"
            imm = 1536 * (b % 3)
            if self.ilv:
                imm = 0
                so = "0" if b == 0 else "s60"
                if self.rot:
                    so = "s60"
                    self(f"  s_add_u32 s60, s66, {b}")
                    self("  s_and_b32 s60, s60, 15")
                    self(f"  s_mul_i32 s60, s60, {self.kvm[2]}")
                elif b:
                    self(f"  s_mov_b32 s60, {self.kvm[2] * b}")
            o = f" offset:{imm}" if imm else ""
            nt = " nt" if self.kvnt & (1 << t) else ""
            self(f"  buffer_load_dwordx4 v[{r}:{r + 3}], v1, {srd}, {so} offen{o}{nt}")
            self(f"  buffer_load_dwordx2 v[{r + 4}:{r + 5}], v2, {srd}, {so} offen{o}{nt}")
            self.vm_issue(("L", i))
            self.vm_issue(("L", i))

        def qk_group(g):
            bs = [kbuf(4 * g + k) for k in range(4)]
            for i in range(6):
                for k in range(4):
                    c = "0" if i == 0 else f"v{P[k]}"
                    self(f"  v_dot2_f32_bf16 v{P[k]}, v{bs[k] + i}, v{Q[i]}, {c}")
            self(f"  v_add_f32_dpp v{T[0]}, v{P[0]}, v{P[0]} row_ror:8 row_mask:0xf bank_mask:0x3")
            self(f"  v_add_f32_dpp v{T[1]}, v{P[1]}, v{P[1]} row_ror:8 row_mask:0xf bank_mask:0x3")
            self(f"  v_add_f32_dpp v{T[0]}, v{P[2]}, v{P[2]} row_ror:8 row_mask:0xf bank_mask:0xc")
            self(f"  v_add_f32_dpp v{T[1]}, v{P[3]}, v{P[3]} row_ror:8 row_mask:0xf bank_mask:0xc")
            self(f"  v_add_f32_dpp v{U[g]}, v{T[0]}, v{T[0]} row_shl:4 row_mask:0xf bank_mask:0x5")
            self(f"  v_add_f32_dpp v{U[g]}, v{T[1]}, v{T[1]} row_shr:4 row_mask:0xf bank_mask:0xa")
            self(f"  v_add_f32_dpp v{U[g]}, v{U[g]}, v{U[g]} quad_perm:[1,0,3,2] row_mask:0xf bank_mask:0xf")
            self(f"  v_add_f32_dpp v{U[g]}, v{U[g]}, v{U[g]} quad_perm:[2,3,0,1] row_mask:0xf bank_mask:0xf")

        def softmax():
            self(f"  v_cvt_pk_bf16_f32 v{P[0]}, v{U[0]}, v{U[1]}")
            self(f"  v_cvt_pk_bf16_f32 v{P[1]}, v{U[2]}, v{U[3]}")
            self(f"  v_lshlrev_b32 v{U[0]}, 16, v{P[0]}")
            self(f"  v_and_b32 v{U[1]}, 0xffff0000, v{P[0]}")
            self(f"  v_lshlrev_b32 v{U[2]}, 16, v{P[1]}")
            self(f"  v_and_b32 v{U[3]}, 0xffff0000, v{P[1]}")
            for g in range(4):
                self(f"  v_mul_f32 v{U[g]}, {SCALE}, v{U[g]}")
            self(f"  v_cvt_pk_bf16_f32 v{P[0]}, v{U[0]}, v{U[1]}")
            self(f"  v_cvt_pk_bf16_f32 v{P[1]}, v{U[2]}, v{U[3]}")
            self(f"  v_lshlrev_b32 v{U[0]}, 16, v{P[0]}")
            self(f"  v_and_b32 v{U[1]}, 0xffff0000, v{P[0]}")
            self(f"  v_lshlrev_b32 v{U[2]}, 16, v{P[1]}")
            self(f"  v_and_b32 v{U[3]}, 0xffff0000, v{P[1]}")
            self(f"  v_max3_f32 v{t0}, v{U[0]}, v{U[1]}, v{U[2]}")
            self(f"  v_max_f32 v{t0}, v{t0}, v{U[3]}")
            self(f"  v_max_f32_dpp v{t0}, v{t0}, v{t0} row_ror:4 row_mask:0xf bank_mask:0xf")
            self(f"  v_max_f32_dpp v{t0}, v{t0}, v{t0} row_ror:8 row_mask:0xf bank_mask:0xf")
            self.cross_rows("v_max_f32", t0, t1)
            for g in range(4):
                self(f"  v_sub_f32 v{U[g]}, v{U[g]}, v{t0}")
            for g in range(4):
                self(f"  v_mul_f32 v{U[g]}, {LOG2E}, v{U[g]}")
            for g in range(4):
                self(f"  v_exp_f32 v{U[g]}, v{U[g]}")
            self("  s_nop 0")
            for g in range(4):
                self(f"  v_cvt_pk_bf16_f32 v{PL[g]}, v{U[g]}, 0")
                self(f"  v_cvt_pk_bf16_f32 v{PH[g]}, 0, v{U[g]}")
            self(f"  v_add_f32 v{T[0]}, v{U[0]}, v{U[1]}")
            self(f"  v_add_f32 v{T[1]}, v{U[2]}, v{U[3]}")
            self(f"  v_add_f32 v{T[0]}, v{T[0]}, v{T[1]}")
            self(f"  v_add_f32_dpp v{T[0]}, v{T[0]}, v{T[0]} row_ror:4 row_mask:0xf bank_mask:0xf")
            self(f"  v_add_f32_dpp v{T[0]}, v{T[0]}, v{T[0]} row_ror:8 row_mask:0xf bank_mask:0xf")
            self.cross_rows("v_add_f32", T[0], t1)
            self(f"  s_lshl_b32 s6, s3, 2")
            self(f"  v_mov_b32 v{t1}, s6")
            self(f"  v_mov_b32 v{T[1]}, 1")
            self(f"  v_mov_b32 v{P[0]}, 0")
            self("  s_mov_b64 exec, 1")
            self(f"  ds_write_b32 v{t1}, v{t0} offset:{L_M}")
            self(f"  ds_write_b32 v{t1}, v{T[0]} offset:{L_L}")
            self("  s_waitcnt lgkmcnt(0)")
            self(f"  ds_add_u32 v{P[0]}, v{T[1]} offset:{L_CNT}")
            self("  s_mov_b64 exec, -1")
            for a in A:
                self(f"  v_mov_b32 v{a}, 0")

        def pv(j):
            g, k = j // 4, j % 4
            r = vbuf(j)
            for i in range(6):
                self(f"  v_dot2c_f32_bf16_dpp v{A[2 * i]}, v{PL[g]}, v{r + i} row_newbcast:{4 * k} row_mask:0xf bank_mask:0xf")
                self(f"  v_dot2c_f32_bf16_dpp v{A[2 * i + 1]}, v{PH[g]}, v{r + i} row_newbcast:{4 * k} row_mask:0xf bank_mask:0xf")

        qk_next = 0
        sm_done = False
        pv_next = 0
        landed = -1
        MO, FF, PA0, PA1 = 4, 5, 6, 7

        if self.touch & 9:
            self(f"  s_mul_i32 s7, s3, 196608")
            self(f"  v_mov_b32 v{t1}, s7")
            self("  s_mov_b64 exec, 1")
            if self.touch & 1:
                self(f"  buffer_load_dword v{t0}, v{t1}, s[36:39], 0 offen")
                self.vm_issue(("T", 0))
            if self.touch & 8:
                self(f"  buffer_load_dword v{T[0]}, v{t1}, s[32:35], 0 offen")
                self.vm_issue(("T", 1))
            self("  s_mov_b64 exec, -1")
        if not self.b0late:
            self("  s_barrier            ; B0")
        for i in range(32):
            Di = self.Dof(i)
            rk = self.rank and self.rank[0] <= i < self.rank[1]
            if rk:
                self("  v_mov_b32 v3, 0")
                self(f"  ds_read_b32 v3, v3 offset:{L_RANK}")
            if i - Di > landed:
                self.vm_wait(("L", i - Di))
                landed = i - Di
            if rk:
                def cnt_for(blk):
                    idx = [k for k, tg in enumerate(self.vm) if tg == ("L", blk)]
                    return len(self.vm) - 1 - idx[-1]
                Ls = self.lab("rk")
                Lh = self.lab("rkh")
                Le = self.lab("rke")
                self("  s_waitcnt lgkmcnt(0)")
                self("  v_readfirstlane_b32 s65, v3")
                self("  s_cmp_eq_u32 s65, s67")
                self(f"  s_cbranch_scc1 {Lh}")
                self("  s_mov_b32 s67, s65")
                self("  s_and_b32 s66, s65, 0xff")
                self(f"{Lh}:")
                self("  s_bitcmp1_b32 s67, 8")
                self(f"  s_cbranch_scc1 {Ls}")
                self(f"  s_waitcnt vmcnt({cnt_for(i - Di + 1)})")
                self("  s_cmp_eq_u32 s66, 0")
                self(f"  s_cbranch_scc1 {Le}")
                self("  s_sub_u32 s66, s66, 1")
                self(f"  s_waitcnt vmcnt({cnt_for(i - Di + 3)})")
                self(f"{Le}:")
                self("  s_bitcmp1_b32 s67, 10")
                self(f"  s_cbranch_scc0 {Ls}")
                self(f"  s_waitcnt vmcnt({cnt_for(i - Di + 2)})")
                self(f"{Ls}:")
            if self.adapt and self.adapt[0] <= i < self.adapt[1]:
                tag = ("L", i - (Di - 1))
                idx = [k for k, tg in enumerate(self.vm) if tg == tag]
                if idx:
                    n = len(self.vm) - 1 - idx[-1]
                    Ls = self.lab("deep")
                    self("  s_cmp_lg_u32 s65, 0")
                    self(f"  s_cbranch_scc1 {Ls}")
                    self(f"  s_waitcnt vmcnt({n})")
                    self(f"{Ls}:")
            if i >= 16 and (i - 16) >= E:
                need_g = (i - 16 - E) // 4
                assert qk_next > need_g, f"schedule: V{i - 16} needs QK group {need_g} (slot {i})"
            if self.gwait and i == self.gwait[1]:
                self(f"  v_mov_b32 v{t1}, 0")
                self.lds_spin("go", t1, L_GO, t0, target=None, sdst="s58", sleep=1)
            if self.xw and i == self.xw[1]:
                assert sm_done
                self("  v_mov_b32 v8, 0")
                self.lds_spin("xgo", 8, L_XGO, 9, target=None, sdst="s58", sleep=1)
            if self.fwait and i == self.fwait:
                assert sm_done
                self("  v_mov_b32 v8, 0")
                self.lds_spin("frdy", 8, L_FRDY, 9, target=None, sdst="s58", sleep=1)
            if self.prog and self.stamps and i in self.prog:
                k = 1 + self.prog.index(i)
                self(f"  s_memrealtime s[{70 + 2 * k}:{71 + 2 * k}]")
            issue(i)
            if any(i == c[0] for c in self.ckp) or (self.wol and i == self.wol[0]):
                assert sm_done
                self("  v_mov_b32 v8, 0")
                self("  v_mov_b32 v9, 1")
                self("  s_mov_b64 exec, 1")
                self(f"  ds_add_u32 v8, v9 offset:{L_PROG}")
                self("  s_mov_b64 exec, -1")
            if (self.gwait and i == self.gwait[0]) or (self.dlate and i == self.dlate):
                assert not (self.gwait and self.dlate)
                self(f"  v_mov_b32 v{t1}, 0")
                self(f"  v_mov_b32 v{t0}, 1")
                self("  s_mov_b64 exec, 1")
                self(f"  ds_add_u32 v{t1}, v{t0} offset:{L_PROG2}")
                self("  s_mov_b64 exec, -1")
            if self.pf and self.pf[0] and i == self.pf[0]:
                assert sm_done
                self("  v_mov_b32 v8, 0")
                self("  v_mov_b32 v9, 1")
                self("  s_mov_b64 exec, 1")
                self(f"  ds_add_u32 v8, v9 offset:{L_PF}")
                self("  s_mov_b64 exec, -1")
            if self.xw and i == self.xw[0]:
                assert sm_done
                self("  v_mov_b32 v8, 0")
                self("  v_mov_b32 v9, 1")
                self("  s_mov_b64 exec, 1")
                self(f"  ds_add_u32 v8, v9 offset:{L_PROG3}")
                self("  s_mov_b64 exec, -1")
            if self.b0late and i == self.b0late - 1:
                self("  s_barrier            ; B0")
            if i == SB:
                self.stamp(1)
                self(f"  v_mov_b32 v{t1}, 0")
                self.lds_spin("qf", t1, L_QF, t0, target=3, sdst="s58", sleep=1)
                self.stamp(2)
                self(f"  v_and_b32 v{t0}, 15, v0")
                self(f"  v_lshlrev_b32 v{t1}, 4, v{t0}")
                self(f"  v_lshlrev_b32 v{t0}, 3, v{t0}")
                self(f"  ds_read_b128 v[{Q[0]}:{Q[3]}], v{t1} offset:{L_Q}")
                self(f"  ds_read_b64 v[{Q[4]}:{Q[5]}], v{t0} offset:{L_Q + 256}")
                self("  s_waitcnt lgkmcnt(0)")
            if i >= SB:
                n = 0
                while qk_next < 4 and 4 * qk_next + 3 <= landed and n < self.qk_per_slot:
                    qk_group(qk_next)
                    qk_next += 1
                    n += 1
                if qk_next == 4 and not sm_done:
                    softmax()
                    self(f"  v_mov_b32 v{MO}, v{t0}")
                    sm_done = True
                    self.stamp(3)
                elif sm_done:
                    n = 0
                    while pv_next < 16 and 16 + pv_next <= landed and n < 3:
                        pv(pv_next)
                        pv_next += 1
                        n += 1
        assert sm_done
        self(f"  v_mov_b32 v{t1}, 0")
        self.lds_spin("cnt8", t1, L_CNT, t0, target=8, sdst="s58", sleep=1)
        self(f"  v_and_b32 v{t1}, 7, v0")
        self(f"  v_lshlrev_b32 v{t1}, 2, v{t1}")
        self(f"  ds_read_b32 v{t0}, v{t1} offset:{L_M}")
        self(f"  v_and_b32 v{P[0]}, 15, v0")
        self(f"  v_lshrrev_b32 v{P[1]}, 4, v0")
        self(f"  v_lshlrev_b32 v{P[1]}, 2, v{P[1]}")
        self("  s_mul_i32 s6, s3, 768")
        self(f"  v_add_u32 v{P[1]}, s6, v{P[1]}")
        self(f"  v_lshl_add_u32 v{PA0}, v{P[0]}, 5, v{P[1]}")
        self(f"  v_lshl_add_u32 v{PA1}, v{P[0]}, 4, v{P[1]}")
        self("  s_waitcnt lgkmcnt(0)")
        for r in (1, 2, 4):
            self(f"  v_max_f32_dpp v{t0}, v{t0}, v{t0} row_ror:{r} row_mask:0xf bank_mask:0xf")
        self(f"  v_sub_f32 v{FF}, v{MO}, v{t0}")
        self(f"  v_mul_f32 v{FF}, {LOG2E}, v{FF}")
        self(f"  v_exp_f32 v{FF}, v{FF}")
        for j in range(pv_next, 16):
            self.vm_wait(("L", 16 + j))
            if j == 15:
                self.stamp(4)
                if self.prog and self.stamps:
                    self(f"  s_memrealtime s[92:93]")
            pv(j)
        R = self.treduce4rows(A)
        for r in R:
            self(f"  v_mul_f32 v{r}, v{FF}, v{r}")
        self(f"  ds_write_b32 v{PA0}, v{R[0]} offset:{L_PART}")
        self(f"  ds_write_b32 v{PA0}, v{R[1]} offset:{L_PART + 16}")
        self(f"  ds_write_b32 v{PA1}, v{R[2]} offset:{L_PART + 512}")
        if self.nob2:
            self("  s_mov_b64 exec, 1")
            self(f"  ds_add_u32 v8, v9 offset:{L_PARTS}")
            self("  s_mov_b64 exec, -1")
        Bf = RING
        Af = RING + 24
        Dd = RING + 48
        aB, aA, aS = RING + 52, RING + 53, RING + 54
        self(f"  v_lshrrev_b32 v{P[0]}, 4, v0          ; g")
        self(f"  v_bfe_u32 v{P[2]}, v0, 2, 2           ; r4")
        self(f"  v_and_b32 v{P[3]}, 3, v0              ; cq")
        self(f"  v_lshl_add_u32 v{aB}, v{P[0]}, 3, v{P[2]}   ; 8g + r4")
        self(f"  v_lshlrev_b32 v{aB}, 7, v{aB}")
        self("  s_and_b32 s6, s3, 3           ; tile")
        self("  s_lshl_b32 s7, s6, 1")
        self(f"  v_lshrrev_b32 v{aA}, 1, v{P[3]}")
        self(f"  v_add_u32 v{aA}, s7, v{aA}")
        self(f"  v_lshlrev_b32 v{aS}, 1, v{P[2]}")
        self(f"  v_xor_b32 v{aA}, v{aA}, v{aS}")
        self(f"  v_lshl_add_u32 v{aB}, v{aA}, 4, v{aB}")
        self(f"  v_and_b32 v{aA}, 1, v{P[3]}")
        self(f"  v_lshl_add_u32 v{aB}, v{aA}, 3, v{aB}")
        self(f"  v_and_b32 v{aA}, 7, v0")
        self(f"  v_mul_u32_u24 v{aA}, 400, v{aA}")
        self(f"  v_lshl_add_u32 v{aA}, v{P[0]}, 4, v{aA}")
        self(f"  v_lshlrev_b32 v{aS}, 2, v0")
        for d in range(4):
            self(f"  v_mov_b32 v{Dd + d}, 0")
        self.srd(44, 30, None, WS_SIZE)
        self("  s_waitcnt lgkmcnt(0)")
        self.stamp(5)
        self("  s_cmp_ge_u32 s3, 4")
        self("  s_cbranch_scc1 L_tail_extra")

        def tail_part(nk, wo_off, dup_str):
            if not self.nob2:
                self("  s_barrier")
            if self.wol:
                self(f"  v_mov_b32 v{t1}, 0")
                self.lds_spin("wok", t1, L_WOK, t0, target=None, sdst="s58", sleep=(1 if self.nob2 else 0) if self.wop != 2 else 0)
            for k in range(nk):
                if self.wop and k == 4:
                    self.lds_spin("wok2", t1, L_WOK, t0, target=2, sdst="s58", sleep=0)
                self(f"  ds_read_b64_tr_b16 v[{Bf + 4 * k}:{Bf + 4 * k + 1}], v{aB} offset:{wo_off + 4096 * k}")
                self(f"  ds_read_b64_tr_b16 v[{Bf + 4 * k + 2}:{Bf + 4 * k + 3}], v{aB} offset:{wo_off + 4096 * k + 512}")
            self(f"  v_add_u32 v{aS}, s6, v{aS}")
            self("  s_waitcnt lgkmcnt(0)")
            self("  s_barrier")
            for k in range(nk):
                self(f"  ds_read_b128 v[{Af + 4 * k}:{Af + 4 * k + 3}], v{aA} offset:{L_A + 64 * k}")
            self.stamp(6)
            for k in range(nk):
                if self.stamps:
                    if k == 0:
                        self("  s_waitcnt lgkmcnt(0)")
                else:
                    self(f"  s_waitcnt lgkmcnt({nk - 1 - k})")
                self(f"  v_mfma_f32_16x16x32_bf16 v[{Dd}:{Dd + 3}], v[{Af + 4 * k}:{Af + 4 * k + 3}], v[{Bf + 4 * k}:{Bf + 4 * k + 3}], v[{Dd}:{Dd + 3}]")
            self(f"  v_add_f32 v{Dd}, v{Dd}, v{Dd + 1}")
            self(f"  v_add_f32 v{Dd + 2}, v{Dd + 2}, v{Dd + 3}")
            self(f"  v_add_f32 v{Dd}, v{Dd}, v{Dd + 2}")
            self(f"  v_mov_b32 v{t0}, v{Dd}")
            self(f"  v_permlane16_swap_b32 v{Dd}, v{t0}")
            self(f"  v_add_f32 v{Dd}, v{Dd}, v{t0}")
            self(f"  v_min_u32 v{Dd}, -2, v{Dd}")
            self("  s_mov_b32 exec_lo, 0xffff")
            self("  s_mov_b32 exec_hi, 0")
            self(f"  buffer_store_dword v{Dd}, v{aS}, s[44:47], 0 offen sc1")
            for k in range(1, self.dupS):
                self(f"  s_mov_b32 s{59 + k}, {k * dup_str}")
                self(f"  buffer_store_dword v{Dd}, v{aS}, s[44:47], s{59 + k} offen sc1")
            self("  s_mov_b64 exec, -1")
            self.stamp(7)
            self("  s_branch L_exit_stamped")

        self("  s_lshl_b32 s7, s5, 2")
        self("  s_add_u32 s6, s6, s7")
        self(f"  s_mul_i32 s6, s6, {SDSTR}")
        self("  s_lshl_b32 s7, s4, 6")
        self("  s_add_u32 s6, s6, s7")
        self(f"  s_add_u32 s6, s6, {SD_BASE}")
        tail_part(6, L_WO, 2048)
        self("L_tail_extra:")
        self("  s_cmp_ge_u32 s5, 6")
        self("  s_cbranch_scc1 L_exit_stamped")
        self("  s_cmp_ge_u32 s5, 3")
        self("  s_cselect_b32 s7, 4, 0        ; 4e")
        self("  s_cselect_b32 s56, 3, 0")
        self("  s_sub_u32 s56, s5, s56        ; third")
        self("  s_add_u32 s6, s6, s7")
        self("  s_add_u32 s6, s6, 32")
        self(f"  s_mul_i32 s6, s6, {SDSTR}")
        self("  s_mul_i32 s7, s4, 3")
        self("  s_add_u32 s7, s7, s56")
        self("  s_lshl_b32 s7, s7, 6")
        self("  s_add_u32 s6, s6, s7")
        self(f"  s_add_u32 s6, s6, {SD_BASE}")
        self("  s_lshl_b32 s7, s56, 7")
        self(f"  v_add_u32 v{aA}, s7, v{aA}")
        tail_part(2, L_WO2, 8 * SDSTR)

    def ln(self, X, xs, t):
        for i in range(5):
            self(f"  v_lshlrev_b32 v{xs[2 * i]}, 16, v{X[i]}")
            self(f"  v_and_b32 v{xs[2 * i + 1]}, 0xffff0000, v{X[i]}")
        s, u, m = t[0], t[1], t[2]
        self(f"  v_add_f32 v{s}, v{xs[0]}, v{xs[1]}")
        for i in range(2, 10):
            self(f"  v_add_f32 v{s}, v{s}, v{xs[i]}")
        self.allreduce("v_add_f32", s, u)
        self(f"  v_mul_f32 v{m}, {INV640}, v{s}")
        self(f"  v_sub_f32 v{u}, v{xs[0]}, v{m}")
        self(f"  v_mul_f32 v{s}, v{u}, v{u}")
        for i in range(1, 10):
            self(f"  v_sub_f32 v{u}, v{xs[i]}, v{m}")
            self(f"  v_fmac_f32 v{s}, v{u}, v{u}")
        self.allreduce("v_add_f32", s, u)
        self(f"  v_mul_f32 v{s}, {INV640}, v{s}          ; var")
        self(f"  v_cvt_pk_bf16_f32 v{u}, v{s}, v{m}")
        self(f"  v_lshlrev_b32 v{s}, 16, v{u}            ; bf16(var)")
        self(f"  v_and_b32 v{m}, 0xffff0000, v{u}        ; bf16(mean)")
        self(f"  v_add_f32 v{s}, {EPS}, v{s}")
        self(f"  v_cvt_pk_bf16_f32 v{s}, v{s}, v{s}")
        self(f"  v_lshlrev_b32 v{s}, 16, v{s}")
        self(f"  v_sqrt_f32 v{s}, v{s}")
        self("  s_nop 0")
        self(f"  v_cvt_pk_bf16_f32 v{s}, v{s}, v{s}")
        self(f"  v_lshlrev_b32 v{s}, 16, v{s}")
        self(f"  v_rcp_f32 v{s}, v{s}")
        for i in range(10):
            self(f"  v_sub_f32 v{xs[i]}, v{xs[i]}, v{m}")
        for i in range(5):
            self(f"  v_cvt_pk_bf16_f32 v{X[i]}, v{xs[2 * i]}, v{xs[2 * i + 1]}")
        for i in range(5):
            self(f"  v_lshlrev_b32 v{xs[2 * i]}, 16, v{X[i]}")
            self(f"  v_and_b32 v{xs[2 * i + 1]}, 0xffff0000, v{X[i]}")
        for i in range(10):
            self(f"  v_mul_f32 v{xs[i]}, v{xs[i]}, v{s}")
        for i in range(5):
            self(f"  v_cvt_pk_bf16_f32 v{X[i]}, v{xs[2 * i]}, v{xs[2 * i + 1]}")
        self(f"  v_lshlrev_b32 v{u}, 2, v0")
        for i in range(5):
            self(f"  ds_write_b32 v{u}, v{X[i]} offset:{L_XN + 256 * i}")

    def xn_rows(self, XL, XH, t, n=10, base="s5", mul=80):
        self(f"  v_lshrrev_b32 v{t}, 3, v0")
        self(f"  s_mul_i32 s6, {base}, {mul}")
        self(f"  v_add_u32 v{t}, s6, v{t}")
        self(f"  v_lshlrev_b32 v{t}, 1, v{t}")
        self("  s_waitcnt lgkmcnt(0)")
        for i in range(n):
            self(f"  ds_read_u16 v{XL[i]}, v{t} offset:{L_XN + 16 * i}")
        self("  s_waitcnt lgkmcnt(0)")
        for i in range(n):
            self(f"  v_lshlrev_b32 v{XH[i]}, 16, v{XL[i]}")

    def gemv64(self, W, XL, XH, ACC, n):
        for i in range(n):
            for k in range(4):
                c0 = "0" if i == 0 else f"v{ACC[2 * k]}"
                c1 = "0" if i == 0 else f"v{ACC[2 * k + 1]}"
                self(f"  v_dot2_f32_bf16 v{ACC[2 * k]}, v{W + 4 * i + k}, v{XL[i]}, {c0}")
                self(f"  v_dot2_f32_bf16 v{ACC[2 * k + 1]}, v{W + 4 * i + k}, v{XH[i]}, {c1}")

    def gather_h1(self, nparts, dst, addr):
        def issue():
            for p in range(nparts):
                for c in range(8):
                    so = ["0", "s60", "s61", "s62"][c // 2]
                    imm = BOX * (c % 2) + 256 * p
                    o = f" offset:{imm}" if imm else ""
                    self(f"  buffer_load_dword v{dst[p * 8 + c]}, v{addr}, s[44:47], {so} offen{o} sc1")
        self.poll_loop("h1", issue, dst[:nparts * 8], dst[nparts * 8], sleep=2)

    def ticket(self, k, pol, vz):
        if self.rshard == 0:
            self("  s_and_b32 s6, s4, 3")
            self("  s_lshl_b32 s6, s6, 6")
        else:
            self("  s_lshr_b32 s6, s4, 2")
            self("  s_lshl_b32 s6, s6, 5")
        self(f"  s_add_u32 s6, s6, {4 + 8 * k}")
        self("  v_mov_b32 v15, s6")
        self("  v_mov_b32 v16, 1")
        self("  s_mov_b64 exec, 1")
        self("  buffer_atomic_add v16, v15, s[48:51], 0 offen sc0 sc1")
        self("  s_waitcnt vmcnt(0)")
        self("  v_readfirstlane_b32 s6, v16")
        word = lambda n1, d: 512 | (k << 12) | n1 | (256 if d == 4 else 0) | (1024 if d == 2 else 0)
        self(f"  s_mov_b32 s56, {word(*pol[-1][1:])}")
        for (ub, n1, d) in reversed(pol[:-1]):
            self(f"  s_cmp_lt_u32 s6, {ub}")
            self(f"  s_cselect_b32 s56, {word(n1, d)}, s56")
        self("  v_mov_b32 v16, s56")
        self(f"  ds_write_b32 v{vz}, v16 offset:{L_RANK}")
        self("  s_mov_b64 exec, -1")

    def later_tickets(self):
        for k, (slot, pol) in enumerate(self.ckp):
            L = self.lab("ck")
            Ld = self.lab("ckd")
            self("  v_mov_b32 v12, 0")
            self("  s_mov_b32 s57, 0")
            self(f"{L}:")
            self(f"  ds_read_b32 v13, v12 offset:{L_PROG}")
            self("  s_waitcnt lgkmcnt(0)")
            self("  v_readfirstlane_b32 s58, v13")
            self("  s_add_u32 s57, s57, 1")
            self(f"  s_cmp_gt_u32 s57, {SPIN_MAX * 8}")
            self(f"  s_cbranch_scc1 {Ld}")
            self(f"  s_cmp_ge_u32 s58, {8 * (k + 1)}")
            self(f"  s_cbranch_scc1 {Ld}")
            self("  s_sleep 2")
            self(f"  s_branch {L}")
            self(f"{Ld}:")
            self.ticket(k + 1, pol, 12)

    def xcd_pace(self):
        if not self.xw:
            return
        Y, X, M, N = self.xw[:4]
        slp = self.xw[4] if len(self.xw) > 4 else 2
        tmo = self.xw[5] if len(self.xw) > 5 else 600
        self("  s_getreg_b32 s69, hwreg(HW_REG_XCC_ID, 0, 4)")
        self("  s_lshl_b32 s69, s69, 8")
        self(f"  s_add_u32 s69, s69, {XC_BASE}")
        self("  v_mov_b32 v12, 0")
        self.lds_spin("xall", 12, L_ALL, 13, target=None, sdst="s58", sleep=4)
        self("  v_mov_b32 v14, s69")
        self("  v_mov_b32 v15, 1")
        self("  s_mov_b64 exec, 1")
        Lg = self.lab("xgw")
        Lna = self.lab("xna")
        Lgd = self.lab("xgwd")
        self("  s_mov_b32 s57, 0")
        self("  s_mov_b32 s56, 0")
        self(f"{Lg}:")
        self("  s_load_dword s58, s[30:31], s69 glc")
        self(f"  ds_read_b32 v13, v12 offset:{L_PROG3}")
        self("  s_add_u32 s57, s57, 1")
        self("  s_waitcnt lgkmcnt(0)")
        self("  v_readfirstlane_b32 s6, v13")
        self("  s_cmp_lg_u32 s56, 0")
        self(f"  s_cbranch_scc1 {Lna}")
        self(f"  s_cmp_ge_u32 s6, {N}")
        self(f"  s_cbranch_scc0 {Lna}")
        self("  buffer_atomic_add v15, v14, s[44:47], 0 offen")
        self("  s_mov_b32 s56, 1")
        self(f"{Lna}:")
        self(f"  s_cmp_gt_u32 s57, {tmo}")
        self(f"  s_cbranch_scc1 {Lgd}")
        self(f"  s_cmp_ge_u32 s58, {M}")
        self(f"  s_cbranch_scc1 {Lgd}")
        if slp:
            self(f"  s_sleep {slp}")
        self(f"  s_branch {Lg}")
        self(f"{Lgd}:")
        self("  v_mov_b32 v13, 1")
        self(f"  ds_write_b32 v12, v13 offset:{L_XGO}")
        self("  s_waitcnt lgkmcnt(0)")
        self.stamp(9)
        La = self.lab("xarr")
        Lad = self.lab("xarrd")
        self("  s_cmp_lg_u32 s56, 0")
        self(f"  s_cbranch_scc1 {Lad}")
        self("  s_mov_b32 s57, 0")
        self(f"{La}:")
        self(f"  ds_read_b32 v13, v12 offset:{L_PROG3}")
        self("  s_waitcnt lgkmcnt(0)")
        self("  v_readfirstlane_b32 s58, v13")
        self("  s_add_u32 s57, s57, 1")
        self(f"  s_cmp_gt_u32 s57, {SPIN_MAX * 8}")
        self(f"  s_cbranch_scc1 {Lad}")
        self("  s_sleep 2")
        self(f"  s_cmp_ge_u32 s58, {N}")
        self(f"  s_cbranch_scc0 {La}")
        self("  buffer_atomic_add v15, v14, s[44:47], 0 offen")
        self(f"{Lad}:")
        self("  s_mov_b64 exec, -1")

    def own_box(self, dst="s6", tmp="s56"):
        self(f"  s_mul_i32 {dst}, s4, {GBOX}")
        self(f"  s_mul_i32 {tmp}, s5, {BOX}")
        self(f"  s_add_u32 {dst}, {dst}, {tmp}")

    def helper(self):
        self.in_stream = False
        X = list(range(4, 9))
        xs = list(range(10, 20))
        t = [20, 21, 22, 23]
        XL = list(range(24, 34))
        XH = list(range(34, 44))
        ACC = list(range(44, 60))
        W = 64
        self("L_helper:")
        if self.prio:
            self(f"  s_setprio {self.prio}")
        self("  s_sub_u32 s7, s3, 8")
        self("  v_lshlrev_b32 v1, 2, v0       ; 4*lane")
        self(f"  s_mov_b32 s60, {2 * BOX}")
        self(f"  s_mov_b32 s61, {4 * BOX}")
        self(f"  s_mov_b32 s62, {6 * BOX}")
        if self.h3early:
            self("  s_cmp_eq_u32 s3, 11")
            self("  s_cbranch_scc1 L_h3")
        self("  s_waitcnt lgkmcnt(0)")
        self.srd(32, 8, None, 1280)
        self.srd(44, 30, None, WS_SIZE)
        self.srd(48, 28, None, 256)
        if not self.h3early:
            self("  s_cmp_eq_u32 s3, 11")
            self("  s_cbranch_scc1 L_h3")
        B00_HERE = self.h3early == 2
        self("  s_mul_i32 s6, s5, 983040      ; 80*12288*c")
        self("  s_mul_i32 s56, s4, 384")
        self("  s_add_u32 s6, s6, s56")
        self.srd(36, 14, "s6", 79 * 12288 + 384)
        self(f"  v_lshrrev_b32 v2, 3, v0")
        self(f"  v_mul_u32_u24 v2, 12288, v2")
        self(f"  v_and_b32 v3, 7, v0")
        self(f"  v_lshl_add_u32 v2, v3, 4, v2")
        self("  s_lshl_b32 s6, s7, 7")
        self(f"  v_add_u32 v2, s6, v2")
        if B00_HERE:
            self("  s_barrier            ; B00")
        for i in range(5):
            o = f" offset:{256 * i}" if i else ""
            self(f"  buffer_load_dword v{X[i]}, v1, s[32:35], 0 offen{o}")
        for i in range(10):
            self(f"  s_mov_b32 s6, {98304 * i}")
            self(f"  buffer_load_dwordx4 v[{W + 4 * i}:{W + 4 * i + 3}], v2, s[36:39], s6 offen nt")
        if self.touch & 2:
            self("  s_mul_i32 s6, s4, 245760      ; 192*1280*h")
            self("  s_mul_i32 s56, s5, 160")
            self("  s_add_u32 s6, s6, s56")
            self.srd(40, 16, "s6", 191 * 1280 + 160)
            self("  s_mul_i32 s6, s7, 81920")
            self("  v_mov_b32 v3, s6")
            self("  s_mov_b64 exec, 1")
            self("  buffer_load_dword v60, v3, s[40:43], 0 offen")
            self("  s_mov_b64 exec, -1")
        self("  s_barrier            ; B0")
        self(f"  s_waitcnt vmcnt({11 if self.touch & 2 else 10})")
        self.ln(X, xs, t)
        self.xn_rows(XL, XH, t[0])
        self.stamp(1)
        self("  s_waitcnt vmcnt(0)")
        self.stamp(2)
        for i in range(10):
            for k in range(4):
                c0 = "0" if i == 0 else f"v{ACC[2 * k]}"
                c1 = "0" if i == 0 else f"v{ACC[2 * k + 1]}"
                self(f"  v_dot2_f32_bf16 v{ACC[2 * k]}, v{W + 4 * i + k}, v{XL[i]}, {c0}")
                self(f"  v_dot2_f32_bf16 v{ACC[2 * k + 1]}, v{W + 4 * i + k}, v{XH[i]}, {c1}")
        self.treduce8(ACC[:8], t[1])
        self(f"  v_min_u32 v{t[1]}, -2, v{t[1]}")
        self(f"  s_mul_i32 s6, s4, {GBOX}")
        self("  s_lshl_b32 s56, s7, 8")
        self("  s_add_u32 s6, s6, s56")
        self(f"  v_add_u32 v14, s6, v1")
        self(f"  s_mul_i32 s56, s5, {BOX}")
        self("  v_add_u32 v15, s56, v14")
        self(f"  v_mov_b32 v12, 0")
        if self.early_pub:
            self.lds_spin("clr", 12, L_CLR, 13, target=None, sdst="s58")
            self(f"  buffer_store_dword v{t[1]}, v15, s[44:47], 0 offen sc1")
            self.lds_spin("mode", 12, L_MODE, 13, target=None, sdst="s59")
        else:
            self.lds_spin("mode", 12, L_MODE, 13, target=None, sdst="s59")
            self.mode_store([f"buffer_store_dword v{t[1]}, v15, s[44:47], 0 offen"])
        self.stamp(3)
        G8 = list(range(64, 73))
        self.gather_h1(1, G8, 14)
        self.stamp(4)
        self(f"  v_add_f32 v{G8[0]}, v{G8[0]}, v{G8[1]}")
        self(f"  v_add_f32 v{G8[2]}, v{G8[2]}, v{G8[3]}")
        self(f"  v_add_f32 v{G8[4]}, v{G8[4]}, v{G8[5]}")
        self(f"  v_add_f32 v{G8[6]}, v{G8[6]}, v{G8[7]}")
        self(f"  v_add_f32 v{G8[0]}, v{G8[0]}, v{G8[2]}")
        self(f"  v_add_f32 v{G8[4]}, v{G8[4]}, v{G8[6]}")
        self(f"  v_add_f32 v{G8[0]}, v{G8[0]}, v{G8[4]}")
        self(f"  v_cvt_pk_bf16_f32 v{G8[0]}, v{G8[0]}, v{G8[0]}")
        self("  v_and_b32 v16, 7, v0")
        self("  v_lshrrev_b32 v17, 3, v0")
        self("  v_lshl_add_u32 v16, v16, 3, v17")
        self("  s_lshl_b32 s6, s7, 6")
        self("  v_add_u32 v16, s6, v16")
        self("  v_lshlrev_b32 v16, 1, v16")
        self(f"  ds_write_b16 v16, v{G8[0]} offset:{L_Q}")
        self("  v_mov_b32 v13, 1")
        self("  s_waitcnt lgkmcnt(0)")
        self("  s_mov_b64 exec, 1")
        self(f"  ds_add_u32 v12, v13 offset:{L_QF}")
        self("  s_mov_b64 exec, -1")
        self.stamp(5)
        self("  s_cmp_eq_u32 s3, 8")
        self("  s_cbranch_scc1 L_h0")
        self("  s_cmp_eq_u32 s3, 10")
        self("  s_cbranch_scc1 L_h2")
        self("  s_mov_b32 s56, -1")
        for tt in range(5):
            self(f"  s_cmp_eq_u32 s4, {6 * tt + 1}")
            self(f"  s_cselect_b32 s56, {tt}, s56")
        self("  s_cmp_eq_u32 s56, -1")
        self("  s_cbranch_scc1 L_exit_stamped")
        self.final_consumer()

        self("L_h2:")
        if self.cpf:
            self("  s_getpc_b64 s[64:65]")
            self("L_cpf_pc:")
            self("  s_sub_u32 s64, s64, L_cpf_pc-recurrent_scan__sliding_block_cached__glu_gated_reglu__decode_kernel")
            self("  s_subb_u32 s65, s65, 0")
            self("  s_mov_b32 s66, 15800")
            self("  s_mov_b32 s67, 0x20000")
            self("  v_lshlrev_b32 v22, 7, v0")
            for k in range(3):
                self(f"  s_mov_b32 s63, {8192 * k}")
                self("  buffer_load_dword v27, v22, s[64:67], s63 offen")
        if self.bulkprio is not None:
            self(f"  s_setprio {self.bulkprio}")
        self("  s_mul_i32 s6, s4, 245760      ; 192*1280*h")
        self("  s_lshl_b32 s56, s5, 7")
        self("  s_add_u32 s6, s6, s56")
        self.srd(40, 16, "s6", 191 * 1280 + 128)
        self("  v_lshrrev_b32 v2, 3, v0")
        self("  v_and_b32 v3, 3, v2")
        self("  v_lshlrev_b32 v3, 1, v3")
        self("  v_and_b32 v4, 7, v0")
        self("  v_xor_b32 v3, v3, v4")
        self("  v_mul_u32_u24 v2, 1280, v2")
        self("  v_lshl_add_u32 v2, v3, 4, v2")
        self("  s_mov_b32 s6, 0")
        self(f"  s_mov_b32 m0, {L_WO}")
        nt = ' nt' if self.wnt & 1 else ''
        def wo_loop(name, n, srd, thr):
            self(f"{name}:")
            self(f"  buffer_load_dwordx4 v2, {srd}, s6 offen{nt} lds")
            self("  s_add_u32 m0, m0, 1024")
            self("  s_add_u32 s6, s6, 10240")
            if thr:
                self(f"  s_waitcnt vmcnt({thr})")
            self(f"  s_cmp_lt_u32 s6, {10240 * n}")
            self(f"  s_cbranch_scc1 {name}")

        def extra_srd():
            self("  s_cmp_ge_u32 s5, 3")
            self("  s_cselect_b32 s7, 128, 0")
            self("  s_cselect_b32 s56, 3, 0")
            self("  s_sub_u32 s56, s5, s56        ; third")
            self("  s_mul_i32 s56, s56, 81920     ; 64*1280")
            self("  s_add_u32 s7, s7, s56")
            self("  s_mul_i32 s6, s4, 245760")
            self("  s_add_u32 s6, s6, s7")
            self("  s_add_u32 s6, s6, 1024")
            self.srd(52, 16, "s6", 63 * 1280 + 128)
        if not self.wol:
            wo_loop("L_wo_loop", 24, "s[40:43]", self.wo_throttle)
            self("  s_cmp_ge_u32 s5, 6")
            self("  s_cbranch_scc1 L_wo_done")
            extra_srd()
            self("  s_mov_b32 s6, 0")
            wo_loop("L_wo2_loop", 8, "s[52:55]", self.wo_throttle)
        else:
            wl = list(self.wol) + [0, 0, 0, 0, 2, 0][len(self.wol) - 2:]
            X_, N_, T_, _, K0, xe, slp, pr = wl[:8]
            extra_srd()
            if xe:
                self("  s_cmp_ge_u32 s5, 6")
                self("  s_cbranch_scc1 L_wo2_skip")
                self(f"  s_mov_b32 m0, {L_WO2}")
                self("  s_mov_b32 s6, 0")
                wo_loop("L_wo2_loop", 8, "s[52:55]", self.wo_throttle)
                self("L_wo2_skip:")
            self(f"  s_mov_b32 m0, {L_WO}")
            self("  s_mov_b32 s6, 0")
            if K0:
                wo_loop("L_wo0_loop", K0, "s[40:43]", self.wo_throttle)
            if self.gwait:
                self("  v_mov_b32 v12, 0")
                self.lds_spin("arr", 12, L_PROG2, 13, target=8, sdst="s58", sleep=2)
                self("  s_lshl_b32 s56, s4, 3")
                self("  s_add_u32 s56, s56, 4")
                self("  v_mov_b32 v14, s56")
                self("  v_mov_b32 v15, 1")
                self("  s_mov_b64 exec, 1")
                self("  buffer_atomic_add v15, v14, s[48:51], 0 offen sc1")
                self("  s_mov_b64 exec, -1")
                self("  v_lshlrev_b32 v14, 3, v0")
                self("  v_add_u32 v14, 4, v14")
                Lg = self.lab("gw")
                Lgd = self.lab("gwd")
                self("  s_mov_b32 s57, 0")
                self("  s_mov_b32 exec_hi, 0")
                self(f"{Lg}:")
                self("  buffer_load_dword v16, v14, s[48:51], 0 offen sc1")
                self("  s_add_u32 s57, s57, 1")
                self(f"  s_cmp_gt_u32 s57, {SPIN_MAX}")
                self("  s_waitcnt vmcnt(0)")
                self(f"  s_cbranch_scc1 {Lgd}")
                self("  v_cmp_eq_u32 vcc, 8, v16")
                self("  s_bcnt1_i32_b64 s58, vcc")
                self(f"  s_cmp_ge_u32 s58, {self.gwait[2]}")
                self(f"  s_cbranch_scc1 {Lgd}")
                if len(self.gwait) > 3 and self.gwait[3]:
                    self(f"  s_sleep {self.gwait[3]}")
                self(f"  s_branch {Lg}")
                self(f"{Lgd}:")
                self("  s_mov_b64 exec, 1")
                self("  v_mov_b32 v13, 1")
                self(f"  ds_write_b32 v12, v13 offset:{L_GO}")
                self("  s_mov_b64 exec, -1")
            self.xcd_pace()
            if self.pf:
                assert not K0 and not xe and not self.wop and self.nob2 and not self.hrot and not self.map2
                Sa, Na, pol = self.pf[:3]
                nt_ = len(self.pfoff)
                assert nt_ <= 4
                self("  s_lshr_b32 s60, s2, 3")
                self("  s_and_b32 s61, s2, 7")
                for k, off in enumerate(self.pfoff):
                    self(f"  s_add_u32 s62, s60, {off}")
                    self("  s_and_b32 s62, s62, 31")
                    self("  s_lshl_b32 s63, s62, 10")
                    self("  s_lshl_b32 s56, s61, 7")
                    self("  s_add_u32 s63, s63, s56")
                    self(f"  s_add_u32 s63, s63, {PF_BASE}")
                    self(f"  v_writelane_b32 v20, s63, {k}")
                    self("  s_and_b32 s63, s62, 3")
                    self("  s_lshl_b32 s56, s61, 2")
                    self("  s_add_u32 s63, s63, s56")
                    self("  s_mul_i32 s63, s63, 12582912")
                    self("  s_lshr_b32 s62, s62, 2")
                    self(f"  s_mul_i32 s62, s62, {self.kvm[0]}")
                    self("  s_add_u32 s63, s63, s62")
                    self(f"  s_add_u32 s{94 + k}, s63, {28672 * 384 + 14 * self.kvm[2]}")
                self("  s_lshl_b32 s56, s2, 7")
                self(f"  s_add_u32 s56, s56, {PF_BASE}")
                self("  v_mov_b32 v21, s56")
                self(f"  v_mul_u32_u24 v22, {self.pfstr}, v0")
                self("  v_mov_b32 v25, 0")
                self("  v_mov_b32 v26, 1")
                self.srd(64, 12, None, 32 * 12582912)
                if Sa:
                    Lp = self.lab("pfa")
                    Lpd = self.lab("pfad")
                    self("  v_mov_b32 v12, 0")
                    self("  s_mov_b32 s57, 0")
                    self(f"{Lp}:")
                    self(f"  ds_read_b32 v13, v12 offset:{L_PF}")
                    self("  s_waitcnt lgkmcnt(0)")
                    self("  v_readfirstlane_b32 s58, v13")
                    self("  s_add_u32 s57, s57, 1")
                    self(f"  s_cmp_gt_u32 s57, {SPIN_MAX * 8}")
                    self(f"  s_cbranch_scc1 {Lpd}")
                    self(f"  s_cmp_ge_u32 s58, {Na}")
                    self(f"  s_cbranch_scc1 {Lpd}")
                    self(f"  s_sleep {slp}")
                    self(f"  s_branch {Lp}")
                    self(f"{Lpd}:")
                    self("  s_mov_b64 exec, 1")
                    self("  buffer_store_dword v25, v21, s[44:47], 0 offen")
                    self("  s_mov_b64 exec, -1")
                self("  v_mov_b32 v12, 0")
                self.lds_spin("pfall", 12, L_ALL, 13, target=None, sdst="s58", sleep=2)
            Lw = self.lab("wol")
            Lwd = self.lab("wold")
            self("  v_mov_b32 v12, 0")
            self("  s_mov_b32 s57, 0")
            if pr:
                self(f"  s_setprio {pr}")
            self(f"{Lw}:")
            self(f"  ds_read_b32 v13, v12 offset:{L_PROG}")
            self("  s_waitcnt lgkmcnt(0)")
            self("  v_readfirstlane_b32 s58, v13")
            self("  s_add_u32 s57, s57, 1")
            self(f"  s_cmp_gt_u32 s57, {SPIN_MAX * 8}")
            self(f"  s_cbranch_scc1 {Lwd}")
            self(f"  s_cmp_ge_u32 s58, {N_}")
            self(f"  s_cbranch_scc1 {Lwd}")
            if slp:
                self(f"  s_sleep {slp}")
            self(f"  s_branch {Lw}")
            self(f"{Lwd}:")
            self.stamp(7)
            if self.pf:
                self("  s_mov_b64 exec, 1")
                self("  buffer_store_dword v26, v21, s[44:47], 0 offen")
                self(f"  s_mov_b64 exec, {(1 << len(self.pfoff)) - 1}")
                self("  buffer_load_dword v24, v20, s[44:47], 0 offen")
                self("  s_mov_b64 exec, -1")
            if self.wop:
                assert K0 <= 16
                if not xe:
                    self("  s_cmp_ge_u32 s5, 6")
                    self("  s_cbranch_scc1 L_wo2_skip")
                    self(f"  s_mov_b32 m0, {L_WO2}")
                    self("  s_mov_b32 s6, 0")
                    wo_loop("L_wo2_loop", 8, "s[52:55]", T_)
                    self("L_wo2_skip:")
                    self(f"  s_mov_b32 m0, {L_WO + 1024 * K0}")
                    self(f"  s_mov_b32 s6, {10240 * K0}")
                wo_loop("L_wo_loop", 24, "s[40:43]", T_)
            else:
                wo_loop("L_wo_loop", 24, "s[40:43]", T_)
                if not xe:
                    self("  s_cmp_ge_u32 s5, 6")
                    self("  s_cbranch_scc1 L_wo_done")
                    self("  s_mov_b32 s6, 0")
                    wo_loop("L_wo2_loop", 8, "s[52:55]", T_)
                    if self.pf:
                        self("  s_waitcnt vmcnt(32)")
                        self("  s_branch L_pf_go")
        self("L_wo_done:")
        if self.pf:
            self("  s_waitcnt vmcnt(24)")
            self("L_pf_go:")
            Sa, Na, pol = self.pf[:3]
            NV = 32 * 12582912
            per = self.kvm[0] // self.pfstr
            nins = 0
            for k in range(len(self.pfoff)):
                self(f"  v_readlane_b32 s58, v24, {k}")
                self("  s_add_u32 s58, s58, 1")
                for j in (14, 15):
                    if j == 14 and pol in (1, 3):
                        continue
                    lim = 1 if (j == 14 or pol >= 2) else 2
                    self(f"  s_cmp_lt_u32 s58, {lim}")
                    self(f"  s_cselect_b32 s66, {NV}, 0")
                    self(f"  s_add_u32 s63, s{94 + k}, {(j - 14) * self.kvm[2]}")
                    done = 0
                    while done < per:
                        n = min(64, per - done)
                        assert n in (32, 64)
                        if n < 64:
                            self("  s_mov_b32 exec_hi, 0")
                        self(f"  buffer_load_dword v27, v22, s[64:67], s63 offen")
                        if n < 64:
                            self("  s_mov_b32 exec_hi, -1")
                        nins += 1
                        done += n
                        if done < per:
                            self(f"  s_add_u32 s63, s63, {64 * self.pfstr}")
            self.pf_n = nins
        if self.wol:
            self.stamp(8)
            if not self.nob2:
                self("  s_barrier            ; B2")
        if self.wop:
            self("  v_mov_b32 v13, 1")
            self("  v_mov_b32 v14, 2")
            self("  s_mov_b64 exec, 1")
            self("  s_waitcnt vmcnt(8)")
            self(f"  ds_write_b32 v12, v13 offset:{L_WOK}")
            self("  s_waitcnt vmcnt(0)")
            self(f"  ds_write_b32 v12, v14 offset:{L_WOK}")
            self("  s_mov_b64 exec, -1")
        else:
            self(f"  s_waitcnt vmcnt({self.pf_n if self.pf else 0})")
            if self.wol:
                self("  v_mov_b32 v13, 1")
                self("  s_mov_b64 exec, 1")
                self(f"  ds_write_b32 v12, v13 offset:{L_WOK}")
                self("  s_mov_b64 exec, -1")
            if self.pf:
                self("  s_waitcnt vmcnt(0)")
        self.stamp(6)
        self("  s_branch L_exit_stamped")

        self("L_h0:")
        self("  v_mov_b32 v12, 0")
        self.lds_spin("cnt", 12, L_CNT, 13, target=8, sdst="s58", sleep=2)
        if self.rank:
            self.ticket(0, self.rankp, 12)
        self("  v_and_b32 v14, 7, v0")
        self("  v_lshlrev_b32 v14, 2, v14")
        self(f"  ds_read_b32 v16, v14 offset:{L_M}")
        self(f"  ds_read_b32 v17, v14 offset:{L_L}")
        self("  s_waitcnt lgkmcnt(0)")
        self("  v_mov_b32 v18, v16")
        for r in (1, 2, 4):
            self(f"  v_max_f32_dpp v18, v18, v18 row_ror:{r} row_mask:0xf bank_mask:0xf")
        self("  v_sub_f32 v19, v16, v18")
        self(f"  v_mul_f32 v19, {LOG2E}, v19")
        self("  v_exp_f32 v19, v19")
        self("  s_nop 0")
        self("  v_mul_f32 v19, v19, v17")
        for r in (1, 2, 4):
            self(f"  v_add_f32_dpp v19, v19, v19 row_ror:{r} row_mask:0xf bank_mask:0xf")
        self("  v_min_u32 v20, -2, v18")
        self("  v_min_u32 v21, -2, v19")
        self("  v_mov_b32 v16, v18                ; M_c")
        self.own_box()
        self(f"  s_add_u32 s6, s6, {O_LSE}")
        self("  v_mov_b32 v15, s6")
        self("  s_mov_b64 exec, 1")
        self.mode_store(["buffer_store_dwordx2 v[20:21], v15, s[44:47], 0 offen"])
        self("  s_mov_b64 exec, -1")
        self("  v_and_b32 v15, 7, v0")
        self(f"  v_mul_u32_u24 v15, {BOX}, v15")
        self(f"  s_mul_i32 s6, s4, {GBOX}")
        self(f"  s_add_u32 s6, s6, {O_LSE}")
        self("  v_add_u32 v15, s6, v15")

        def issue_lse():
            self("  buffer_load_dwordx2 v[22:23], v15, s[44:47], 0 offen sc1")
        self.poll_loop("lse", issue_lse, [22, 23], 24, sleep=self.lsl)
        self("  v_mov_b32 v18, v22")
        for r in (1, 2, 4):
            self(f"  v_max_f32_dpp v18, v18, v18 row_ror:{r} row_mask:0xf bank_mask:0xf")
        self("  v_sub_f32 v19, v22, v18")
        self(f"  v_mul_f32 v19, {LOG2E}, v19")
        self("  v_exp_f32 v19, v19")
        self("  s_nop 0")
        self("  v_mul_f32 v19, v19, v23")
        for r in (1, 2, 4):
            self(f"  v_add_f32_dpp v19, v19, v19 row_ror:{r} row_mask:0xf bank_mask:0xf")
        self("  v_rcp_f32 v19, v19")
        self("  v_sub_f32 v16, v16, v18")
        self(f"  v_mul_f32 v16, {LOG2E}, v16")
        self("  v_exp_f32 v16, v16")
        self("  s_nop 0")
        self("  v_mul_f32 v16, v16, v19          ; G = exp(M_c - M_h) / L_h")
        if self.fwait:
            self("  v_mov_b32 v12, 0")
            self("  v_mov_b32 v13, 1")
            self(f"  ds_write_b32 v12, v13 offset:{L_FRDY}")
        self.stamp(6)
        self("  v_lshlrev_b32 v14, 4, v0")
        self.own_box()
        self(f"  s_add_u32 s6, s6, {O_O2}")
        self("  v_lshlrev_b32 v15, 3, v0")
        self("  v_add_u32 v15, s6, v15")
        self(f"  s_mul_i32 s6, s4, {GBOX}")
        self(f"  s_add_u32 s6, s6, {O_O2}")
        GA, LA = [4, 5, 6], [7, 8, 9]
        for i in range(3):
            self(f"  v_add_u32 v17, {64 * i}, v0")
            self("  v_mul_u32_u24 v18, 171, v17")
            self("  v_lshrrev_b32 v18, 12, v18")
            self("  v_mul_u32_u24 v19, 24, v18")
            self("  v_sub_u32 v19, v17, v19           ; chunk")
            self(f"  v_mul_u32_u24 v20, {BOX}, v18")
            self("  v_lshl_add_u32 v20, v19, 4, v20")
            self(f"  v_add_u32 v{GA[i]}, s6, v20")
            self("  v_mul_u32_u24 v20, 400, v18")
            self(f"  v_lshl_add_u32 v{LA[i]}, v19, 4, v20")
        self("  s_mov_b32 exec_hi, 0xffff         ; 48 lanes")
        if self.nob2:
            self("  v_mov_b32 v12, 0")
            self.lds_spin("parts", 12, L_PARTS, 13, target=8, sdst="s58", sleep=0)
        else:
            self("  s_barrier            ; B2")
        self.stamp(9)
        PR = 24
        for w in range(8):
            self(f"  ds_read_b128 v[{PR + 4 * w}:{PR + 4 * w + 3}], v14 offset:{L_PART + 768 * w}")
        for (a_, b_, cnt) in ((0, 1, 6), (2, 3, 4), (0, 2, None), (4, 5, 2), (6, 7, 0), (4, 6, None), (0, 4, None)):
            if cnt is not None:
                self(f"  s_waitcnt lgkmcnt({cnt if not self.stamps else 0})")
            for k in range(4):
                self(f"  v_add_f32 v{PR + 4 * a_ + k}, v{PR + 4 * a_ + k}, v{PR + 4 * b_ + k}")
        for k in range(4):
            self(f"  v_mul_f32 v{PR + k}, v16, v{PR + k}")
        self(f"  v_cvt_pk_bf16_f32 v20, v{PR}, v{PR + 1}")
        self(f"  v_cvt_pk_bf16_f32 v21, v{PR + 2}, v{PR + 3}")
        self("  v_min_u32 v20, -2, v20")
        self("  v_min_u32 v21, -2, v21")
        self.mode_store(["buffer_store_dwordx2 v[20:21], v15, s[44:47], 0 offen"])
        self("  s_mov_b64 exec, -1")
        self.stamp(7)
        AG = 56

        def issueA():
            for i in range(3):
                self(f"  buffer_load_dwordx4 v[{AG + 4 * i}:{AG + 4 * i + 3}], v{GA[i]}, s[44:47], 0 offen sc1")
        if self.pipeA:
            def issueAk(k):
                for i in range(3):
                    b = AG + 12 * k + 4 * i
                    self(f"  buffer_load_dwordx4 v[{b}:{b + 3}], v{GA[i]}, s[44:47], 0 offen sc1")

            def doneA(k):
                self.stamp(8)
                for i in range(3):
                    b = AG + 12 * k + 4 * i
                    self(f"  ds_write_b128 v{LA[i]}, v[{b}:{b + 3}] offset:{L_A}")
            self.poll_pipe("pollA", self.pipeA, 3, issueAk, lambda k: range(AG + 12 * k, AG + 12 * k + 12), 17, doneA)
        else:
            self.poll_loop("pollA", issueA, range(AG, AG + 12), 17)
            self.stamp(8)
            for i in range(3):
                self(f"  ds_write_b128 v{LA[i]}, v[{AG + 4 * i}:{AG + 4 * i + 3}] offset:{L_A}")
        self("  s_waitcnt lgkmcnt(0)")
        self.stamp(10)
        self("  s_barrier            ; B3")
        self("  s_branch L_exit_stamped")

        self("L_h3:")
        self("  s_lshr_b32 s6, s2, 3")
        self("  s_sub_u32 s64, s6, 2             ; fi")
        self("  s_cselect_b32 s66, 0, 1")
        self("  s_cselect_b32 s64, 0, s64")
        self("  s_mul_i32 s6, s64, 26")
        self("  s_lshr_b32 s6, s6, 8             ; l")
        self("  s_mul_i32 s56, s6, 10")
        self("  s_sub_u32 s64, s64, s56          ; m")
        self("  s_and_b32 s65, s2, 7")
        self("  s_mul_i32 s65, s65, 3")
        self("  s_add_u32 s65, s65, s6           ; j")
        self("  v_mov_b32 v16, 0")
        self("  v_mov_b32 v17, 0")
        self("  v_mov_b32 v18, 0")
        self("  v_mov_b32 v19, 0")
        self("  v_lshlrev_b32 v3, 4, v0")
        self("  v_mov_b32 v8, -1")
        self("  v_mov_b32 v9, -1")
        self("  v_mov_b32 v10, -1")
        self("  v_mov_b32 v11, -1")
        self.own_box()
        self("  v_add_u32 v12, s6, v3")
        if self.h3early:
            assert self.dupS == 1 and not self.xw
            self("  v_mov_b32 v24, v12")
        else:
            self("  buffer_store_dwordx4 v[8:11], v12, s[44:47], 0 offen sc1")
        self("  s_mul_i32 s56, s65, 10")
        self("  s_add_u32 s56, s56, s64")
        self(f"  s_mul_i32 s56, s56, {FSTR}")
        self(f"  s_add_u32 s67, s56, {FB_BASE}")
        self("  s_cmp_lg_u32 s66, 0")
        self(f"  s_cselect_b32 s56, s67, {OOB}")
        self("  s_sub_u32 s56, s56, 256")
        self("  v_add_u32 v13, s56, v3")
        self("  v_add_u32 v12, 1024, v12")
        self("  v_cmp_gt_u32 vcc, 16, v0")
        self("  v_cndmask_b32 v12, v13, v12, vcc")
        if self.pf:
            assert self.h3early == 1 and self.pclr is None
            self("  s_lshl_b32 s56, s2, 7")
            self(f"  s_add_u32 s56, s56, {PF_BASE}")
            self("  v_mov_b32 v13, s56")
            self("  v_cmp_eq_u32 vcc, 48, v0")
            self("  v_cndmask_b32 v12, v12, v13, vcc")
        self("  s_mov_b32 exec_hi, 0xffff")
        if not self.h3early:
            self("  buffer_store_dwordx4 v[8:11], v12, s[44:47], 0 offen sc1")
        self("  s_lshl_b32 s6, s5, 2")
        self(f"  s_mul_i32 s6, s6, {SDSTR}")
        self("  s_lshl_b32 s56, s4, 6")
        self("  s_add_u32 s6, s6, s56")
        self(f"  s_add_u32 s6, s6, {SD_BASE}")
        self("  v_mov_b32 v13, s6                ; main")
        self("  s_cmp_ge_u32 s5, 3")
        self("  s_cselect_b32 s7, 36, 32")
        self("  s_cselect_b32 s56, 3, 0")
        self("  s_sub_u32 s56, s5, s56           ; third")
        self(f"  s_mul_i32 s6, s7, {SDSTR}")
        self("  s_mul_i32 s7, s4, 3")
        self("  s_add_u32 s7, s7, s56")
        self("  s_lshl_b32 s7, s7, 6")
        self("  s_add_u32 s6, s6, s7")
        self(f"  s_add_u32 s6, s6, {SD_BASE}")
        self("  s_cmp_ge_u32 s5, 6")
        self(f"  s_cselect_b32 s6, {OOB}, s6")
        self("  v_mov_b32 v14, s6                ; extra")
        self("  s_lshl_b32 s6, s64, 2")
        self(f"  s_mul_i32 s6, s6, {SDSTR}")
        self("  s_lshl_b32 s56, s65, 6")
        self("  s_add_u32 s6, s6, s56")
        self(f"  s_add_u32 s68, s6, {SD_BASE + O_D3}")
        self("  s_cmp_lg_u32 s66, 0")
        self(f"  s_cselect_b32 s6, s68, {OOB}")
        self("  v_mov_b32 v15, s6                ; down")
        self("  v_cmp_gt_u32 vcc, 16, v0")
        self("  v_cndmask_b32 v14, v14, v13, vcc")
        self("  v_cmp_gt_u32 vcc, 32, v0")
        self("  v_cndmask_b32 v13, v15, v14, vcc")
        self("  v_bfe_u32 v14, v0, 2, 2")
        self(f"  v_mul_u32_u24 v14, {SDSTR}, v14")
        self("  v_add_u32 v13, v13, v14")
        self("  v_and_b32 v14, 3, v0")
        self("  v_lshl_add_u32 v13, v14, 4, v13")
        if self.h3early:
            self("  s_mov_b32 exec_hi, 0")
            self("  s_mov_b32 exec_lo, 0xff")
            self(f"  ds_write_b128 v3, v[16:19] offset:{L_MODE}")
            self("  s_mov_b64 exec, -1")
            self("  s_waitcnt lgkmcnt(0)")
            self.srd(44, 30, None, WS_SIZE)
            if self.pclr is not None:
                self("  buffer_store_dwordx4 v[8:11], v24, s[44:47], 0 offen")
                self("  s_mov_b64 exec, 0xffff")
                self("  buffer_store_dwordx4 v[8:11], v12, s[44:47], 0 offen")
                self("  s_mov_b64 exec, -1")
            self("  buffer_store_dwordx4 v[8:11], v24, s[44:47], 0 offen sc1")
            self(f"  s_mov_b32 exec_hi, {'0x1ffff' if self.pf else '0xffff'}")
            self("  buffer_store_dwordx4 v[8:11], v12, s[44:47], 0 offen sc1")
            if self.pf:
                self("  s_mov_b32 exec_hi, 0xffff")
        self("  buffer_store_dwordx4 v[8:11], v13, s[44:47], 0 offen sc1")
        if self.h3early == 2:
            self("  s_barrier            ; B00")
        if self.h3early:
            self.srd(32, 8, None, 1280)
            self.srd(48, 28, None, 256)
            if self.pcdbg:
                self("  s_getpc_b64 s[98:99]")
                self("  v_mov_b32 v20, s98")
                self("  v_mov_b32 v21, 4")
                self("  s_mov_b64 exec, 1")
                self("  buffer_store_dword v20, v21, s[48:51], 0 offen sc1")
                self("  s_mov_b32 exec_lo, -1")
                self("  s_mov_b32 exec_hi, 0xffff")
        if self.dupS > 1:
            self("  v_mov_b32 v14, 0")
            self(f"  v_mov_b32 v12, {8 * SDSTR}")
            self("  v_cmp_gt_u32 vcc, 32, v0")
            self("  v_cndmask_b32 v14, v14, v12, vcc")
            self("  v_mov_b32 v12, 2048")
            self("  v_cmp_gt_u32 vcc, 16, v0")
            self("  v_cndmask_b32 v14, v14, v12, vcc")
            for k in range(1, self.dupS):
                self("  v_add_u32 v13, v13, v14")
                self("  buffer_store_dwordx4 v[8:11], v13, s[44:47], 0 offen sc1")
        if self.xw:
            self("  s_getreg_b32 s69, hwreg(HW_REG_XCC_ID, 0, 4)")
            self("  s_lshl_b32 s69, s69, 8")
            self(f"  s_add_u32 s69, s69, {XC_BASE}")
            self("  v_mov_b32 v12, s69")
            self("  s_mov_b64 exec, 1")
            self("  buffer_store_dword v16, v12, s[44:47], 0 offen")
        if not self.h3early:
            self("  s_mov_b32 exec_hi, 0")
            self("  s_mov_b32 exec_lo, 0xff")
            self(f"  ds_write_b128 v3, v[16:19] offset:{L_MODE}")
        self("  s_mov_b64 exec, -1")
        for i in range(5):
            o = f" offset:{256 * i}" if i else ""
            self(f"  buffer_load_dword v{X[i]}, v1, s[32:35], 0 offen{o}")
        self("  s_waitcnt lgkmcnt(0)")
        self("  s_barrier            ; B0")
        self("  s_getreg_b32 s6, hwreg(HW_REG_XCC_ID, 0, 4)")
        self("  s_mul_i32 s56, s6, s6")
        self("  s_lshl_b32 s56, s56, 16")
        self("  s_lshl_b32 s6, s6, 8")
        self("  s_add_u32 s6, s6, s56")
        self("  s_add_u32 s63, s6, 1")
        lm = self.lmode
        cs = 2 if lm else 3
        self(f"  s_lshl_b32 s6, s4, {cs}")
        self("  v_mov_b32 v12, s6")
        self("  v_mov_b32 v13, s63")
        self("  v_mov_b32 v14, 0")
        self("  v_mov_b32 v15, 1")
        if lm:
            K_, S_, kind = lm[:3]
            self("  s_add_u32 s69, s6, 128")
            self("  s_and_b32 s6, s28, 127")
            self("  s_cmp_eq_u32 s6, 0")
            self(f"  s_cselect_b32 s62, {0 if self.force_slow else K_}, 0")
            self("  s_mov_b32 s59, 0")
        if self.pclr is None:
            self("  s_waitcnt vmcnt(5)")
            self("  s_mov_b64 exec, 1")
            if lm:
                Lnl = self.lab("noloc")
                self("  s_cmp_eq_u32 s62, 0")
                self(f"  s_cbranch_scc1 {Lnl}")
                self("  buffer_atomic_add v15, v12, s[48:51], 0 offen offset:128")
                self(f"{Lnl}:")
            late_glob = lm and kind == 1 and not (len(lm) > 3 and lm[3])
            if not late_glob:
                self("  buffer_atomic_add v13, v12, s[48:51], 0 offen sc1")
            self(f"  ds_write_b32 v14, v15 offset:{L_CLR}")
            self("  s_mov_b64 exec, -1")
            self.stamp(6)

            def local_poll():
                Ll = self.lab("lpoll")
                Lld = self.lab("lpolld")
                Lok = self.lab("lpollok")
                self("  s_mov_b32 s57, 0")
                self("  v_mov_b32 v62, s69")
                self("  s_mov_b64 exec, 1")
                self(f"{Ll}:")
                self("  s_cmp_ge_u32 s57, s62")
                self(f"  s_cbranch_scc1 {Lld}")
                if kind == 0:
                    self("  s_load_dword s58, s[28:29], s69 glc")
                    self("  s_add_u32 s57, s57, 1")
                    self("  s_waitcnt lgkmcnt(0)")
                else:
                    self("  buffer_load_dword v60, v62, s[48:51], 0 offen sc1")
                    self("  s_add_u32 s57, s57, 1")
                    self("  s_waitcnt vmcnt(0)")
                    self("  v_readfirstlane_b32 s58, v60")
                self("  s_cmp_eq_u32 s58, 8")
                self(f"  s_cbranch_scc1 {Lok}")
                if S_:
                    self(f"  s_sleep {S_}")
                self(f"  s_branch {Ll}")
                self(f"{Lok}:")
                self("  s_mov_b32 s59, 2")
                self("  v_mov_b32 v61, 2")
                self(f"  ds_write_b32 v14, v61 offset:{L_MODE}")
                self(f"{Lld}:")
                if late_glob:
                    self("  buffer_atomic_add v13, v12, s[48:51], 0 offen sc1")
                self("  s_mov_b64 exec, -1")
            if lm and not (len(lm) > 3 and lm[3]):
                local_poll()
                self.stamp(8)
            self("  s_waitcnt vmcnt(1)")
            self.ln(X, xs, t)
            self.xn_rows(XL, XH, t[0], n=8, base="s64", mul=64)
            self.stamp(1)
            if lm and len(lm) > 3 and lm[3]:
                self("  v_mov_b32 v14, 0")
                local_poll()
                self.stamp(8)
            self(f"  v_lshlrev_b32 v12, {cs}, v0")
            self("  v_mov_b32 v14, 0")
            Lp = self.lab("cntpoll")
            Lpd = self.lab("cntpolld")
            Lmj = self.lab("modej") if lm else None
            if lm:
                self("  s_mov_b64 s[54:55], -1")
                self("  s_cmp_eq_u32 s59, 2")
                self(f"  s_cbranch_scc1 {Lmj}")
            self("  s_mov_b32 s57, 0")
            if self.poll_delay:
                self(f"  s_sleep {self.poll_delay}")
            if self.own1 is not None:
                self(f"  s_lshl_b32 s6, s4, {cs}")
                self("  v_mov_b32 v62, s6")
                self("  s_mov_b64 exec, 1")
                self(f"{Lp}:")
                self("  buffer_load_dword v60, v62, s[48:51], 0 offen sc1")
                self("  s_add_u32 s57, s57, 1")
                self(f"  s_cmp_gt_u32 s57, {SPIN_MAX}")
                self("  s_waitcnt vmcnt(0)")
                self("  v_readfirstlane_b32 s58, v60")
                self(f"  s_cbranch_scc1 {Lpd}")
                self("  s_and_b32 s6, s58, 0xff")
                self("  s_cmp_eq_u32 s6, 8")
                if self.own1:
                    self(f"  s_cbranch_scc1 {Lpd}")
                    self(f"  s_sleep {self.own1}")
                    self(f"  s_branch {Lp}")
                else:
                    self(f"  s_cbranch_scc0 {Lp}")
            else:
                self("  s_mov_b32 exec_hi, 0")
                self(f"{Lp}:")
                self("  buffer_load_dword v60, v12, s[48:51], 0 offen sc1")
                self("  s_add_u32 s57, s57, 1")
                self(f"  s_cmp_gt_u32 s57, {SPIN_MAX}")
                self("  s_waitcnt vmcnt(0)")
                self("  v_readlane_b32 s58, v60, s4")
                self(f"  s_cbranch_scc1 {Lpd}")
                self("  s_and_b32 s6, s58, 0xff")
                self("  s_cmp_eq_u32 s6, 8")
                self(f"  s_cbranch_scc0 {Lp}")
            self(f"{Lpd}:")
            self("  s_lshl_b32 s6, s63, 3")
            self("  s_cmp_eq_u32 s58, s6")
            if self.force_slow:
                self("  s_mov_b32 s59, 1")
            else:
                self("  s_cselect_b32 s59, 2, 1")
            self("  v_mov_b32 v13, s59")
            if self.own1 is None:
                self("  v_and_b32 v61, 0xff, v60")
                self("  v_cmp_ne_u32 vcc, 8, v61")
            else:
                self("  s_mov_b64 vcc, -1")
            self("  s_mov_b64 exec, 1")
            self(f"  ds_write_b32 v14, v13 offset:{L_MODE}")
            self("  s_mov_b64 exec, -1")
            self("  s_mov_b64 s[54:55], vcc")
            if lm:
                self(f"{Lmj}:")
        else:
            assert self.h3early and not lm
            P_ = self.pclr[0]
            lnfirst = len(self.pclr) > 1 and self.pclr[1]
            self("  s_waitcnt vmcnt(8)")
            self("  s_mov_b64 exec, 1")
            self("  buffer_atomic_add v13, v12, s[48:51], 0 offen sc1")
            self("  s_mov_b64 exec, -1")
            self.stamp(8)
            self("  s_waitcnt vmcnt(6)")
            self("  s_mov_b64 exec, 1")
            self(f"  ds_write_b32 v14, v15 offset:{L_CLR}")
            self("  s_mov_b64 exec, -1")
            self.stamp(6)
            if lnfirst:
                self("  s_waitcnt vmcnt(1)")
                self.ln(X, xs, t)
                self.xn_rows(XL, XH, t[0], n=8, base="s64", mul=64)
                self.stamp(1)
                self(f"  s_lshl_b32 s6, s4, {cs}")
                self("  v_mov_b32 v12, s6")
                self("  v_mov_b32 v14, 0")
            Lp = self.lab("cntpoll")
            Lpd = self.lab("cntpolld")
            Lq = self.lab("cntpollb")
            Lqd = self.lab("cntpollbd")
            self("  s_mov_b32 s57, 0")
            if P_:
                self(f"  s_sleep {P_}")
            self("  s_mov_b64 exec, 1")
            self(f"{Lp}:")
            self("  buffer_load_dword v60, v12, s[48:51], 0 offen sc1")
            self("  s_add_u32 s57, s57, 1")
            self(f"  s_cmp_gt_u32 s57, {SPIN_MAX}")
            self("  s_waitcnt vmcnt(0)")
            self("  v_readfirstlane_b32 s58, v60")
            self(f"  s_cbranch_scc1 {Lpd}")
            self("  s_and_b32 s6, s58, 0xff")
            self("  s_cmp_eq_u32 s6, 8")
            self(f"  s_cbranch_scc0 {Lp}")
            self(f"{Lpd}:")
            self("  v_mov_b32 v61, 0x10000000")
            self("  buffer_atomic_add v61, v12, s[48:51], 0 offen sc1")
            self("  s_mov_b32 s59, 2")
            if not self.force_slow:
                self("  s_and_b32 s58, s58, 0x0fffffff")
                self("  s_lshl_b32 s6, s63, 3")
                self("  s_cmp_eq_u32 s58, s6")
                self(f"  s_cbranch_scc1 {Lqd}")
            self("  s_mov_b32 s59, 1")
            self("  s_mov_b32 s57, 0")
            self(f"{Lq}:")
            self("  buffer_load_dword v60, v12, s[48:51], 0 offen sc1")
            self("  s_add_u32 s57, s57, 1")
            self(f"  s_cmp_gt_u32 s57, {SPIN_MAX}")
            self("  s_waitcnt vmcnt(0)")
            self("  v_readfirstlane_b32 s58, v60")
            self(f"  s_cbranch_scc1 {Lqd}")
            self("  s_lshr_b32 s6, s58, 28")
            self("  s_cmp_eq_u32 s6, 8")
            self(f"  s_cbranch_scc0 {Lq}")
            self(f"{Lqd}:")
            self("  v_mov_b32 v13, s59")
            self(f"  ds_write_b32 v14, v13 offset:{L_MODE}")
            self("  s_mov_b64 exec, -1")
            self("  s_mov_b64 s[54:55], -1")
            self.stamp(3)
            if not lnfirst:
                self.ln(X, xs, t)
                self.xn_rows(XL, XH, t[0], n=8, base="s64", mul=64)
                self.stamp(1)
            self(f"  v_lshlrev_b32 v12, {cs}, v0")
        if self.pclr is None:
            self.stamp(3)

        def all_cleared():
            La = self.lab("allcnt")
            Lad = self.lab("allcntd")
            self("  s_cmp_eq_u64 s[54:55], 0")
            self(f"  s_cbranch_scc1 {Lad}")
            self("  s_mov_b32 s57, 0")
            self("  s_mov_b32 exec_hi, 0")
            self(f"{La}:")
            self("  buffer_load_dword v60, v12, s[48:51], 0 offen sc1")
            self("  s_add_u32 s57, s57, 1")
            self(f"  s_cmp_gt_u32 s57, {SPIN_MAX}")
            self("  s_waitcnt vmcnt(0)")
            self(f"  s_cbranch_scc1 {Lad}")
            if self.pclr is None:
                self("  v_and_b32 v61, 0xff, v60")
            else:
                self("  v_lshrrev_b32 v61, 28, v60")
            self("  v_cmp_ne_u32 vcc, 8, v61")
            if self.asl:
                self(f"  s_cbranch_vccz {Lad}")
                self(f"  s_sleep {self.asl}")
                self(f"  s_branch {La}")
            else:
                self(f"  s_cbranch_vccnz {La}")
            self(f"{Lad}:")
            self("  v_mov_b32 v13, 1")
            self("  v_mov_b32 v14, 0")
            self("  s_mov_b64 exec, 1")
            self(f"  ds_write_b32 v14, v13 offset:{L_ALL}")
            self("  s_mov_b64 exec, -1")

        Lact = self.lab("ffn")
        self("  s_cmp_lg_u32 s66, 0")
        self(f"  s_cbranch_scc1 {Lact}")
        all_cleared()
        self("  s_waitcnt lgkmcnt(0)")
        self.later_tickets()
        self("  s_branch L_exit_stamped")
        self(f"{Lact}:")
        if self.bulkprio is not None:
            self(f"  s_setprio {self.bulkprio}")
        self("  s_mul_i32 s6, s64, 196608      ; 64*3072*m")
        self("  s_lshl_b32 s56, s65, 7")
        self("  s_add_u32 s6, s6, s56")
        self.srd(36, 20, "s6", 63 * 3072 + 128)
        self.srd(40, 22, "s6", 63 * 3072 + 128)
        self("  v_lshrrev_b32 v2, 3, v0")
        self("  v_and_b32 v3, 7, v0")
        self("  v_mul_u32_u24 v9, 1280, v2")
        self("  v_lshl_add_u32 v9, v3, 4, v9")
        self("  v_mul_u32_u24 v2, 3072, v2")
        self("  v_lshl_add_u32 v2, v3, 4, v2")
        WG, WU = 64, 96
        ntg = ' nt' if self.wnt & 2 else ''
        for i in range(8):
            self(f"  s_mov_b32 s6, {24576 * i}")
            self(f"  buffer_load_dwordx4 v[{WG + 4 * i}:{WG + 4 * i + 3}], v2, s[36:39], s6 offen{ntg}")
        for i in range(8):
            self(f"  s_mov_b32 s6, {24576 * i}")
            self(f"  buffer_load_dwordx4 v[{WU + 4 * i}:{WU + 4 * i + 3}], v2, s[40:43], s6 offen{ntg}")
        self("  s_mul_i32 s6, s65, 81920       ; 64*1280*j")
        self("  s_lshl_b32 s56, s64, 7")
        self("  s_add_u32 s6, s6, s56")
        self.srd(36, 24, "s6", 63 * 1280 + 128)
        GA = list(range(44, 52))
        UA = list(range(52, 60))
        self("  s_waitcnt vmcnt(8)")
        self.gemv64(WG, XL, XH, GA, 8)
        self("  s_waitcnt vmcnt(0)")
        self.stamp(2)
        self.gemv64(WU, XL, XH, UA, 8)
        WD = 64
        ntd = ' nt' if self.wnt & 4 else ''
        for n in range(8):
            self(f"  s_mov_b32 s6, {10240 * n}")
            self(f"  buffer_load_dwordx4 v[{WD + 4 * n}:{WD + 4 * n + 3}], v9, s[36:39], s6 offen{ntd}")
        self.treduce8(GA, t[1])
        self.treduce8(UA, t[2])
        self(f"  v_min_u32 v{t[1]}, -2, v{t[1]}")
        self(f"  v_min_u32 v{t[2]}, -2, v{t[2]}")
        self("  v_add_u32 v15, s67, v1")
        self(f"  buffer_store_dword v{t[1]}, v15, s[44:47], 0 offen sc1")
        self(f"  buffer_store_dword v{t[2]}, v15, s[44:47], 0 offen offset:256 sc1")
        all_cleared()
        self(f"  s_mul_i32 s6, s65, {10 * FSTR}")
        self(f"  s_add_u32 s6, s6, {FB_BASE}")
        self("  v_lshrrev_b32 v14, 5, v0")
        self(f"  v_mul_u32_u24 v14, {FSTR}, v14")
        self("  v_and_b32 v15, 31, v0")
        self("  v_lshl_add_u32 v14, v15, 4, v14")
        self("  v_add_u32 v14, s6, v14")
        self(f"  v_add_u32 v15, {6 * FSTR}, v14")
        G = 128

        def issueF():
            for u in range(5):
                a, o = (14, 2 * FSTR * u) if u < 3 else (15, 2 * FSTR * (u - 3))
                oo = f" offset:{o}" if o else ""
                self(f"  buffer_load_dwordx4 v[{G + 4 * u}:{G + 4 * u + 3}], v{a}, s[44:47], 0 offen{oo} sc1")
        if self.fsm:
            self(f"  v_mul_u32_u24 v16, {FSTR}, v0")
            self(f"  v_add_u32 v16, s6, v16")
            self("  s_mov_b64 exec, 0x3ff")
            self.poll_loop("preF", lambda: self(f"  buffer_load_dword v{G}, v16, s[44:47], 0 offen offset:508 sc1"), [G], G + 20, sleep=self.fsm)
            self("  s_mov_b64 exec, -1")
        self.poll_loop("pollF", issueF, range(G, G + 20), G + 20, sleep=4)
        self.stamp(4)
        for e in range(4):
            self(f"  v_add_f32 v{G + e}, v{G + e}, v{G + 4 + e}")
            self(f"  v_add_f32 v{G + 8 + e}, v{G + 8 + e}, v{G + 12 + e}")
        for e in range(4):
            self(f"  v_add_f32 v{G + e}, v{G + e}, v{G + 16 + e}")
        for e in range(4):
            self(f"  v_add_f32 v{G + e}, v{G + e}, v{G + 8 + e}")
        for e in range(4):
            self(f"  v_mov_b32 v{G + 4 + e}, v{G + e}")
        for e in range(4):
            self(f"  v_permlane32_swap_b32 v{G + e}, v{G + 4 + e}")
        for e in range(4):
            self(f"  v_add_f32 v{G + e}, v{G + e}, v{G + 4 + e}")
        for e in range(4):
            self(f"  v_mov_b32 v{G + 4 + e}, v{G + e}")
        for e in range(4):
            self(f"  v_permlane16_swap_b32 v{G + e}, v{G + 4 + e}")
        for e in range(4):
            self(f"  v_cvt_pk_bf16_f32 v{G + e}, v{G + e}, v{G + 4 + e}")
        for e in range(4):
            self(f"  v_lshlrev_b32 v{G + 4 + e}, 16, v{G + e}      ; gate")
            self(f"  v_and_b32 v{G + e}, 0xffff0000, v{G + e}    ; up")
        for e in range(4):
            self(f"  v_max_f32 v{G + 4 + e}, 0, v{G + 4 + e}")
        for e in range(4):
            self(f"  v_mul_f32 v{G + e}, v{G + 4 + e}, v{G + e}")
        for e in range(4):
            self(f"  v_cvt_pk_bf16_f32 v{G + e}, v{G + e}, v{G + e}    ; h")
        self("  v_and_b32 v18, 1, v0")
        self("  v_lshlrev_b32 v18, 5, v18")
        self("  v_bfe_u32 v19, v0, 1, 3")
        self("  v_add_u32 v18, v18, v19")
        self("  v_lshlrev_b32 v18, 1, v18")
        self("  s_mov_b32 exec_lo, 0xffff")
        self("  s_mov_b32 exec_hi, 0")
        for e in range(4):
            self(f"  ds_write_b16 v18, v{G + e} offset:{L_HB + 16 * e}")
        self("  s_mov_b64 exec, -1")
        self("  v_lshrrev_b32 v18, 3, v0")
        self("  v_lshlrev_b32 v18, 1, v18")
        self("  s_waitcnt lgkmcnt(0)")
        for i in range(8):
            self(f"  ds_read_u16 v{XL[i]}, v18 offset:{L_HB + 16 * i}")
        self("  v_bfe_u32 v19, v0, 1, 2")
        self(f"  v_mul_u32_u24 v19, {SDSTR}, v19")
        self("  v_and_b32 v20, 1, v0")
        self("  v_lshl_add_u32 v19, v20, 5, v19")
        self("  v_lshrrev_b32 v20, 3, v0")
        self("  v_lshl_add_u32 v19, v20, 2, v19")
        self("  v_add_u32 v19, s68, v19")
        self("  s_waitcnt lgkmcnt(0)")
        for i in range(8):
            self(f"  v_lshlrev_b32 v{XH[i]}, 16, v{XL[i]}")
        self("  s_waitcnt vmcnt(0)")
        self.gemv64(WD, XL, XH, GA, 8)
        self.treduce8(GA, t[1])
        self(f"  v_min_u32 v{t[1]}, -2, v{t[1]}")
        self(f"  buffer_store_dword v{t[1]}, v19, s[44:47], 0 offen sc1")
        self.stamp(5)
        self.later_tickets()
        self("  s_branch L_exit_stamped")

    def final_consumer(self):
        self("  v_mov_b32 v12, 0")
        self("  s_mov_b32 s55, s56")
        self.lds_spin("allc", 12, L_ALL, 13, target=None, sdst="s58", sleep=4)
        self("  s_mul_i32 s7, s5, 5")
        self("  s_add_u32 s55, s55, s7           ; cg")
        self(f"  s_mul_i32 s6, s55, {SDSTR}")
        self(f"  s_add_u32 s6, s6, {SD_BASE}")
        self("  v_lshlrev_b32 v14, 4, v0")
        self("  v_add_u32 v14, s6, v14")
        self(f"  v_add_u32 v13, {O_D3}, v14")
        self("  v_and_b32 v15, 3, v0")
        self("  v_lshlrev_b32 v15, 2, v15")
        self("  v_lshrrev_b32 v16, 5, v0")
        self("  v_lshl_add_u32 v15, v16, 1, v15")
        self("  v_bfe_u32 v16, v0, 4, 1")
        self("  v_add_u32 v15, v15, v16")
        self("  s_lshl_b32 s6, s55, 4")
        self("  v_add_u32 v15, s6, v15")
        self("  v_lshlrev_b32 v15, 1, v15")
        self("  buffer_load_ushort v17, v15, s[32:35], 0 offen")
        self.srd(40, 26, None, 1280)

        def red(base, first=True):
            for k in range(4 if first else 0):
                self(f"  v_add_f32 v{base + k}, v{base + k}, v{base + 4 + k}")
            self(f"  v_permlane32_swap_b32 v{base}, v{base + 2}")
            self(f"  v_permlane32_swap_b32 v{base + 1}, v{base + 3}")
            self(f"  v_add_f32 v{base}, v{base}, v{base + 2}")
            self(f"  v_add_f32 v{base + 1}, v{base + 1}, v{base + 3}")
            self(f"  v_permlane16_swap_b32 v{base}, v{base + 1}")
            self(f"  v_add_f32 v{base}, v{base}, v{base + 1}")
            self(f"  v_add_f32_dpp v{base}, v{base}, v{base} row_ror:4 row_mask:0xf bank_mask:0xf")
            self(f"  v_add_f32_dpp v{base}, v{base}, v{base} row_ror:8 row_mask:0xf bank_mask:0xf")

        for k in range(4):
            self(f"  v_mov_b32 v{28 + k}, 0")

        def issueD():
            self("  buffer_load_dwordx4 v[24:27], v13, s[44:47], 0 offen sc1")
            self("  s_mov_b32 exec_hi, 0")
            self("  buffer_load_dwordx4 v[28:31], v13, s[44:47], 0 offen offset:1024 sc1")
            self("  s_mov_b32 exec_hi, -1")
        if self.lated:
            self("  s_barrier            ; B2")
            self.poll_loop2("pollD", issueD, range(24, 32), 32, lambda: self("  s_barrier            ; B3"), sleep=4)
        else:
            if self.dlate:
                self.lds_spin("dl", 12, L_PROG2, 16, target=None, sdst="s58", sleep=8)
            self.poll_loop("pollD", issueD, range(24, 32), 32, sleep=self.dsl)
        red(24)
        self("  v_cvt_pk_bf16_f32 v24, v24, v24")
        self("  v_lshlrev_b32 v24, 16, v24")
        self(f"  v_mul_f32 v25, {f2h(-1.4426950408889634)}, v24")
        self("  v_exp_f32 v25, v25")
        self("  s_nop 0")
        self("  v_add_f32 v25, 1.0, v25")
        self("  v_rcp_f32 v25, v25")
        self("  s_nop 0")
        self("  v_mul_f32 v24, v24, v25")
        self("  v_cvt_pk_bf16_f32 v24, v24, v24")
        self("  v_lshlrev_b32 v18, 16, v24          ; g")
        self("  v_lshlrev_b32 v17, 16, v17          ; x")
        self.stamp(6)
        if not self.lated:
            if not self.nob2:
                self("  s_barrier            ; B2")
            self("  s_barrier            ; B3")

        def finish(first=True):
            red(24, first)
            self("  v_cvt_pk_bf16_f32 v24, v24, v24")
            self("  v_lshlrev_b32 v24, 16, v24          ; s")
            self("  v_mul_f32 v24, v24, v18")
            self("  v_cvt_pk_bf16_f32 v24, v24, v24")
            self("  v_lshlrev_b32 v24, 16, v24")
            self("  v_add_f32 v24, v17, v24")
            self("  v_cvt_pk_bf16_f32 v24, v24, v24")
            self("  s_mov_b32 exec_lo, 0x000f000f")
            self("  s_mov_b32 exec_hi, 0x000f000f")
            self("  buffer_store_short v24, v15, s[40:43], 0 offen")
            self("  s_mov_b64 exec, -1")
            self.stamp(7)
            self("  s_branch L_exit_stamped")

        Lbig = self.lab("big")
        self("  s_cmp_ge_u32 s55, 32")
        self(f"  s_cbranch_scc1 {Lbig}")

        def issueS():
            self("  buffer_load_dwordx4 v[24:27], v14, s[44:47], 0 offen sc1")
            self("  buffer_load_dwordx4 v[28:31], v14, s[44:47], 0 offen offset:1024 sc1")
        if self.pipeS:
            PS = 48

            for k in range(self.dupS):
                self(f"  s_mov_b32 s{60 + k}, {2048 * k}")

            def issueSk(k):
                b = PS + 8 * k
                so = f"s{60 + k % self.dupS}" if self.dupS > 1 else "0"
                self(f"  buffer_load_dwordx4 v[{b}:{b + 3}], v14, s[44:47], {so} offen sc1")
                self(f"  buffer_load_dwordx4 v[{b + 4}:{b + 7}], v14, s[44:47], {so} offen offset:1024 sc1")

            def doneS(k):
                self.stamp(8)
                b = PS + 8 * k
                for j in range(4):
                    self(f"  v_add_f32 v{24 + j}, v{b + j}, v{b + 4 + j}")
            self.poll_pipe("pollS", self.pipeS, 2, issueSk, lambda k: range(PS + 8 * k, PS + 8 * k + 8), 32, doneS)
            finish(False)
        else:
            self.poll_loop("pollS", issueS, range(24, 32), 32)
            self.stamp(8)
            finish()
        self(f"{Lbig}:")
        self("  v_add_u32 v13, 4096, v14")

        def issueS6():
            for k in range(4):
                o = f" offset:{1024 * k}" if k else ""
                self(f"  buffer_load_dwordx4 v[{24 + 4 * k}:{27 + 4 * k}], v14, s[44:47], 0 offen{o} sc1")
            self("  buffer_load_dwordx4 v[40:43], v13, s[44:47], 0 offen sc1")
            self("  buffer_load_dwordx4 v[44:47], v13, s[44:47], 0 offen offset:1024 sc1")
        if self.pipeS:
            PS = 48
            cfg = (self.pipeS[0], self.pipeS[1], max(self.pipeS[2] - 1, 0))

            for k in range(self.dupS):
                self(f"  s_mov_b32 s{60 + k}, {8 * SDSTR * k}")

            def issueS6k(k):
                b = PS + 24 * k
                so = f"s{60 + k % self.dupS}" if self.dupS > 1 else "0"
                for j in range(4):
                    o = f" offset:{1024 * j}" if j else ""
                    self(f"  buffer_load_dwordx4 v[{b + 4 * j}:{b + 3 + 4 * j}], v14, s[44:47], {so} offen{o} sc1")
                self(f"  buffer_load_dwordx4 v[{b + 16}:{b + 19}], v13, s[44:47], {so} offen sc1")
                self(f"  buffer_load_dwordx4 v[{b + 20}:{b + 23}], v13, s[44:47], {so} offen offset:1024 sc1")

            def doneS6(k):
                self.stamp(8)
                b = PS + 24 * k
                for j in range(8):
                    self(f"  v_add_f32 v{24 + j}, v{b + j}, v{b + 8 + j}")
                for j in range(8):
                    self(f"  v_add_f32 v{24 + j}, v{24 + j}, v{b + 16 + j}")
            self.poll_pipe("pollS6", cfg, 6, issueS6k, lambda k: range(PS + 24 * k, PS + 24 * k + 24), 32, doneS6)
        else:
            self.poll_loop("pollS6", issueS6, range(24, 48), 48)
            self.stamp(8)
            for k in range(8):
                self(f"  v_add_f32 v{24 + k}, v{24 + k}, v{32 + k}")
            for k in range(8):
                self(f"  v_add_f32 v{24 + k}, v{24 + k}, v{40 + k}")
        finish()

    def epilogue(self):
        self("L_exit_stamped:")
        if self.stamps:
            if not self.prog:
                self("  s_waitcnt vmcnt(0) lgkmcnt(0)")
                self("  s_memrealtime s[92:93]")
            self.srd(44, 30, None, WS_SIZE)
            self.stamps_out()
        self("L_end:")
        self("  s_endpgm")
        self(f""".section .rodata,"a"
.p2align 6
.amdhsa_kernel {KNAME}
  .amdhsa_next_free_vgpr 168
  .amdhsa_next_free_sgpr 102
  .amdhsa_accum_offset 168
  .amdhsa_group_segment_fixed_size 0
  .amdhsa_kernarg_size 96
  .amdhsa_user_sgpr_count 2
  .amdhsa_user_sgpr_kernarg_segment_ptr 1
  .amdhsa_system_sgpr_workgroup_id_x 1
.end_amdhsa_kernel""")

    def build(self):
        self.prologue()
        self.stream()
        self.helper()
        self.epilogue()
        return fix("\n".join(self.lines) + "\n", verbose=True)


if __name__ == "__main__":
    import argparse
    ap = argparse.ArgumentParser()
    ap.add_argument("-o", default="k.s")
    ap.add_argument("--D", type=int, default=5)
    ap.add_argument("--E", type=int, default=5)
    ap.add_argument("--SB", type=int, default=19)
    ap.add_argument("--stamps", action="store_true")
    ap.add_argument("--slow", action="store_true")
    ap.add_argument("--b0post", action="store_true")
    ap.add_argument("--prio", type=int, default=3)
    ap.add_argument("--dbgst", action="store_true")
    ap.add_argument("--fine", action="store_true")
    ap.add_argument("--ds", default="", help="D schedule: slot:D,slot:D")
    ap.add_argument("--qkn", type=int, default=2)
    ap.add_argument("--wot", type=int, default=0)
    ap.add_argument("--npoll", type=int, default=2)
    ap.add_argument("--bp", type=int, default=None)
    ap.add_argument("--ilv", action="store_true")
    ap.add_argument("--prog", default="")
    ap.add_argument("--latepub", action="store_true")
    ap.add_argument("--pdelay", type=int, default=0)
    ap.add_argument("--adapt", default="", help="lo:hi slots with optional tighter throttle")
    ap.add_argument("--nocnt", type=int, default=0, help="diagnosis only: 1 = no atomic, no polls; 2 = atomic but no polls")
    ap.add_argument("--pgap", type=int, default=8)
    ap.add_argument("--hwid", action="store_true")
    ap.add_argument("--map2", action="store_true")
    ap.add_argument("--kvm", default="", help="c_stride:wave_stride:block_stride (bytes) of the key assignment (needs --ilv)")
    ap.add_argument("--b0late", type=int, default=0)
    ap.add_argument("--hrot", type=int, default=0)
    ap.add_argument("--lated", action="store_true", help="down partials read after B2")
    ap.add_argument("--gwait", default="", help="Y:X:Mh[:sleep] slot X waits until Mh heads have issued slot Y")
    ap.add_argument("--fsm", type=int, default=0, help="small pre-poll of the FFN boxes (sleep value)")
    ap.add_argument("--dlate", type=int, default=0, help="down partials polled once the first stream wave issued this slot")
    ap.add_argument("--dsl", type=int, default=8)
    ap.add_argument("--lsl", type=int, default=1)
    ap.add_argument("--asl", type=int, default=0)
    ap.add_argument("--fwait", type=int, default=0, help="stream waves wait for the head's LSE exchange before this slot")
    ap.add_argument("--wop", type=int, default=0, help="progressive wo landing flags (1: with sleep, 2: no sleep)")
    ap.add_argument("--wol", default="", help="X:N:T wo cells requested once N stream waves issued slot X (throttle T)")
    ap.add_argument("--rshard", type=int, default=0, help="0: tickets among h&3 (64), 1: among id&7 (32)")
    ap.add_argument("--ck", default="", help="slot=ub:n1:d,...;slot=... later checkpoints")
    ap.add_argument("--rank", default="", help="lo:hi rank-adaptive depth (slots)")
    ap.add_argument("--rankp", default="", help="ub:n1:d,... policy per arrival rank")
    ap.add_argument("--pipeS", default="", help="N:gap:gap2 pipelined S3 poll")
    ap.add_argument("--pipeA", default="", help="N:gap:gap2 pipelined O gather poll")
    ap.add_argument("--adaptbit", type=int, default=0)
    ap.add_argument("--xw", default="", help="Y:X:M:N[:sleep[:tmo]] slot X waits until M workgroups of the die have N waves past slot Y")
    ap.add_argument("--lmode", default="", help="K:S:kind[:pos] die-local group counter: K rounds, sleep S, kind 0 scalar / 1 vector, pos 1 = after LN")
    ap.add_argument("--own1", type=int, default=None, help="first counter poll reads the own group only (sleep between rounds)")
    ap.add_argument("--h3early", type=int, default=0, help="clearing stores issued right after the kernel arguments arrive")
    ap.add_argument("--pclr", default="", help="P[:lnfirst] two-stage clear announcement, sleep P before the first poll")
    ap.add_argument("--dupS", type=int, default=1, help="copies of the wo partial slots (one per pipelined poll set)")
    ap.add_argument("--pf", default="", help="Sa:Na:pol tail prefetch for slower workgroups")
    ap.add_argument("--pfoff", default="1,2,3,10")
    ap.add_argument("--pfstr", type=int, default=128)
    ap.add_argument("--pcdbg", action="store_true")
    ap.add_argument("--cpf", type=int, default=0)
    ap.add_argument("--kvnt", type=int, default=3, help="nt hint bits: 1 K, 2 V")
    ap.add_argument("--wnt", type=int, default=7, help="nt hint bits: 1 wo, 2 gate/up, 4 down")
    ap.add_argument("--touch", type=int, default=0, help="1: V, 2: wo, 4: FFN weights early page touch")
    ap.add_argument("--rot", default="", help="a:b:w block rotation = h*a + c*b + wave*w")
    a = ap.parse_args()
    g = G(D=a.D, E=a.E, SB=a.SB, stamps=a.stamps, force_slow=a.slow, b0pre=not a.b0post, prio=a.prio, dbgst=a.dbgst, fine=a.fine,
          dsched=[tuple(int(v) for v in p.split(':')) for p in a.ds.split(',') if p], qk_per_slot=a.qkn, wo_throttle=a.wot, npoll=a.npoll, poll_gap=a.pgap, bulkprio=a.bp, ilv=a.ilv, prog=[int(v) for v in a.prog.split(',') if v], early_pub=not a.latepub, poll_delay=a.pdelay, nocnt=a.nocnt, adapt=tuple(int(v) for v in a.adapt.split(':')) if a.adapt else None, hwid=a.hwid, map2=a.map2, kvm=tuple(int(v) for v in a.kvm.split(':')) if a.kvm else None, b0late=a.b0late, hrot=a.hrot, lated=a.lated, wop=a.wop, fwait=a.fwait, fsm=a.fsm, dlate=a.dlate, dsl=a.dsl, lsl=a.lsl, asl=a.asl, lmode=tuple(int(v) for v in a.lmode.split(':')) if a.lmode else None, own1=a.own1, h3early=a.h3early, pf=tuple(int(v) for v in a.pf.split(':')) if a.pf else None, pfoff=tuple(int(v) for v in a.pfoff.split(',')), pfstr=a.pfstr, pcdbg=a.pcdbg, cpf=a.cpf, pclr=tuple(int(v) for v in a.pclr.split(':')) if a.pclr else None, dupS=a.dupS, xw=tuple(int(v) for v in a.xw.split(':')) if a.xw else None, gwait=tuple(int(v) for v in a.gwait.split(':')) if a.gwait else None, wol=tuple(int(v) for v in a.wol.split(':')) if a.wol else None, rshard=a.rshard, ckp=[(int(c.split('=')[0]), [tuple(int(v) for v in p.split(':')) for p in c.split('=')[1].split(',')]) for c in a.ck.split(';') if c], rankp=[tuple(int(v) for v in p.split(':')) for p in a.rankp.split(',') if p], rank=tuple(int(v) for v in a.rank.split(':')) if a.rank else None, pipeS=tuple(int(v) for v in a.pipeS.split(':')) if a.pipeS else None, pipeA=tuple(int(v) for v in a.pipeA.split(':')) if a.pipeA else None, adaptbit=a.adaptbit, kvnt=a.kvnt, wnt=a.wnt, touch=a.touch, rot=tuple(int(v) for v in a.rot.split(':')) if a.rot else None)
    open(a.o, "w").write(g.build())
```
